```python
import torch

def _softmax(x, axis=-1):
    return torch.softmax(x, dim=axis)
def _gelu(x):
    return torch.nn.functional.gelu(x, approximate="tanh")
def _silu(x):
    return torch.nn.functional.silu(x)
def _sigmoid(x):
    return torch.sigmoid(x)
def _layernorm(x, axis=-1, eps=1e-5):
    m = x.mean(dim=axis, keepdim=True)
    v = x.var(dim=axis, keepdim=True, unbiased=False)
    return (x - m) / torch.sqrt(v + eps)
def _scatter_add(tgt, idx, src, axis=0):
    return tgt.clone().index_add_(axis, idx, src)
def _segment_sum(src, seg, n):
    out = torch.zeros((n,) + src.shape[1:], dtype=src.dtype)
    return out.index_add_(0, seg, src)
def _pad(x, pw):
    flat = tuple(v for pair in reversed(pw) for v in pair)
    return torch.nn.functional.pad(x, flat)

kernel_name = 'parallel_sum__grouped_kv_mqa__mixer_channel_mlp__prompt'

def setup_inputs():

    _w = (lambda a: (lambda t: t.to(torch.bfloat16) if t.is_floating_point() else t)(torch.as_tensor(a)))
    def _A_setup():
        B, S, D, H = 1, 2048, 1024, 32
        Dh = D // H
        return {
            "x": _w((lambda *s: torch.randn(*s, dtype=torch.bfloat16) * 0.05)(B, S, D)),
            "wq": _w((lambda *s: torch.randn(*s, dtype=torch.bfloat16) * 0.05)(D, H * Dh)),
            "wk": _w((lambda *s: torch.randn(*s, dtype=torch.bfloat16) * 0.05)(D, Dh)),
            "wv": _w((lambda *s: torch.randn(*s, dtype=torch.bfloat16) * 0.05)(D, Dh)),
            "wo": _w((lambda *s: torch.randn(*s, dtype=torch.bfloat16) * 0.05)(H * Dh, D)),
        }
    _A_in = _A_setup()

    def _B_setup():
        B, S, D, F = 1, 2048, 1024, 3584
        return {
            "x": _w((lambda *s: torch.randn(*s, dtype=torch.bfloat16) * 0.05)(B, S, D)),
            "w1": _w((lambda *s: torch.randn(*s, dtype=torch.bfloat16) * 3.2)(D, F) * (D ** -0.5)),
            "b1": _w((lambda *s: torch.randn(*s, dtype=torch.bfloat16) * 1.6)(F)),
            "w2": _w((lambda *s: torch.randn(*s, dtype=torch.bfloat16) * 0.4)(F, D) * (F ** -0.5)),
            "b2": _w((lambda *s: torch.randn(*s, dtype=torch.bfloat16) * 0.8)(D)),
        }
    _B_in = _B_setup()

    return {
        "A_x": _A_in["x"],
        "A_wq": _A_in["wq"],
        "A_wk": _A_in["wk"],
        "A_wv": _A_in["wv"],
        "A_wo": _A_in["wo"],
        "B_x": _B_in["x"],
        "B_w1": _B_in["w1"],
        "B_b1": _B_in["b1"],
        "B_w2": _B_in["w2"],
        "B_b2": _B_in["b2"],
    }

def reference(A_x, A_wq, A_wk, A_wv, A_wo, B_x, B_w1, B_b1, B_w2, B_b2):
    def _A_ref(x, wq, wk, wv, wo):
        B, S, D = x.shape
        H = 32
        Dh = D // H
        q = (lambda x, *d: x.permute(*d))((x @ wq).reshape(B, S, H, Dh), 0, 2, 1, 3)
        k = x @ wk
        v = x @ wv
        scores = torch.einsum("bhqd,bkd->bhqk", q, k) * (Dh ** -0.5)
        p = _softmax(scores, axis=-1)
        o = torch.einsum("bhqk,bkd->bhqd", p, v)
        return (lambda x, *d: x.permute(*d))(o, 0, 2, 1, 3).reshape(B, S, H * Dh) @ wo

    def _B_ref(x, w1, b1, w2, b2):
        y = _layernorm(x, axis=-1)
        h = _gelu(torch.einsum("bsd,df->bsf", y, w1) + b1)
        return torch.einsum("bsf,fd->bsd", h, w2) + b2

    x = A_x
    xn = _layernorm(x, axis=-1)
    return x + _A_ref(xn, A_wq, A_wk, A_wv, A_wo) + _B_ref(xn, B_w1, B_b1, B_w2, B_b2)
```

```python
import json
from mbgen import build
ks = []
def init_regs(n=128):
    s = ""
    s += "    v_lshlrev_b32 v1, 4, v0\n"
    for i in range(4, n, 4):
        s += f"    buffer_load_dwordx4 v[{i}:{i+3}], v1, s[12:15], 0 offen offset:{(i*16)%4096}\n"
    s += "    s_waitcnt vmcnt(0)\n"
    return s
def add(name, body, nwaves, iters=200, nvgpr=256, note="", rep=4):
    ks.append(dict(name=f"{name}_w{nwaves}", body=body*rep, init=init_regs(128), iters=iters*rep, nwaves=nwaves, nvgpr=nvgpr, accum=nvgpr, note=note))
    ks[-1]["iters_loop"] = iters

def M32(d, a, b, c=None):
    c = d if c is None else c
    cs = f"v[{c}:{c+15}]" if c != "0" else "0"
    return f"    v_mfma_f32_32x32x16_bf16 v[{d}:{d+15}], v[{a}:{a+3}], v[{b}:{b+3}], {cs}\n"
def M16(d, a, b, c=None):
    c = d if c is None else c
    cs = f"v[{c}:{c+3}]" if c != "0" else "0"
    return f"    v_mfma_f32_16x16x32_bf16 v[{d}:{d+3}], v[{a}:{a+3}], v[{b}:{b+3}], {cs}\n"
def EXP(d, s): return f"    v_exp_f32 v{d}, v{s}\n"
def CVT(d, a, b): return f"    v_cvt_pk_bf16_f32 v{d}, v{a}, v{b}\n"
def ADD(d, a, b): return f"    v_add_f32 v{d}, v{a}, v{b}\n"

def tile(sw, sr, pw, pr, order):
    m = [M32(sw, 4, 20, 212), M32(sw, 8, 24), M32(192, 12, pr), M32(192, 16, pr+4), M16(208, 28, pr), M16(208, 28, pr+4)]
    e = [EXP(160+i, sr+i) for i in range(16)]
    c = [CVT(pw+i, 160+2*i, 161+2*i) for i in range(8)]
    return order(m, e, c)
def order_a(m, e, c):
    v = []
    for i in range(8):
        v += [e[2*i], e[2*i+1]]
        if i >= 1: v.append(c[i-1])
    v.append(c[7])
    out = []; cum = 0; pos = [0, 32, 64, 96, 128, 144]; mi = 0
    for x in v:
        while mi < 6 and cum >= pos[mi]:
            out.append(m[mi]); mi += 1
        out.append(x); cum += 8 if "exp" in x else 4
    while mi < 6: out.append(m[mi]); mi += 1
    return "".join(out)
def body(order):
    return tile(128, 144, 176, 184, order) + tile(144, 128, 184, 176, order)
def only_m(m, e, c): return "".join(m)
def only_m4(m, e, c): return "".join(m[:4])
def only_v(m, e, c): return order_a([""]*6, e, c)
def order_nosum(m, e, c):
    return order_a(m[:4] + ["", ""], e, c)
def order_addsum(m, e, c):
    v = []
    for i in range(8):
        v += [e[2*i], e[2*i+1]]
        if i >= 1:
            v.append(c[i-1]); v.append(ADD(208, 208, 160+2*i-2)); v.append(ADD(209, 209, 160+2*i-1))
    v.append(c[7]); v.append(ADD(208,208,174)); v.append(ADD(209,209,175))
    out = []; cum = 0; pos = [0, 56, 112, 168]; mi = 0
    for x in v:
        while mi < 4 and cum >= pos[mi]:
            out.append(m[mi]); mi += 1
        out.append(x); cum += 8 if "exp" in x else 4
    return "".join(out)
def order_pkaddsum(m, e, c):
    v = []
    for i in range(8):
        v += [e[2*i], e[2*i+1]]
        if i >= 1:
            v.append(c[i-1]); v.append(f"    v_pk_add_f32 v[208:209], v[208:209], v[{160+2*i-2}:{160+2*i-1}]\n")
    v.append(c[7]); v.append(f"    v_pk_add_f32 v[208:209], v[208:209], v[174:175]\n")
    out = []; cum = 0; pos = [0, 48, 96, 144]; mi = 0
    for x in v:
        while mi < 4 and cum >= pos[mi]:
            out.append(m[mi]); mi += 1
        out.append(x); cum += 8 if "exp" in x else 4
    return "".join(out)
for nw in (4, 8):
    add("att_full", body(order_a), nw, note="2 tiles per iter")
    add("att_mfma_only6", body(only_m), nw, note="2 tiles per iter")
    add("att_mfma_only4", body(only_m4), nw, note="2 tiles per iter")
    add("att_valu_only", body(only_v), nw, note="2 tiles per iter")
    add("att_nosum", body(order_nosum), nw, note="2 tiles per iter")
    add("att_addsum", body(order_addsum), nw, note="2 tiles per iter")
    add("att_pkaddsum", body(order_pkaddsum), nw, note="2 tiles per iter")
for k in ks:
    k["iters_total"] = k["iters"]; k["iters"] = k["iters_loop"]
build("mb2.s", ks)
json.dump(dict(src="bench/mb2.s", kernels=[dict(name=k["name"], nwaves=k["nwaves"], iters=k["iters_total"], note=k["note"]) for k in ks]), open("mb2.json", "w"))
```

```python
import sys, os, subprocess

HEAD = """.amdgcn_target "amdgcn-amd-amdhsa--gfx950"
.text
.globl {name}
.p2align 8
.type {name},@function
{name}:
    s_load_dwordx2 s[4:5], s[0:1], 0
    s_load_dwordx2 s[6:7], s[0:1], 8
    s_waitcnt lgkmcnt(0)
    s_mov_b32 s8, s4
    s_and_b32 s9, s5, 0xffff
    s_mov_b32 s10, 0x100000
    s_mov_b32 s11, 0x20000
    s_mov_b32 s12, s6
    s_and_b32 s13, s7, 0xffff
    s_mov_b32 s14, 0x4000000
    s_mov_b32 s15, 0x20000
{init}
    s_mov_b32 s20, {iters}
    s_barrier
    s_memtime s[16:17]
    s_memrealtime s[22:23]
    s_waitcnt lgkmcnt(0)
    .p2align 6
L_loop_{name}:
{body}
    s_sub_u32 s20, s20, 1
    s_cmp_lg_u32 s20, 0
    s_cbranch_scc1 L_loop_{name}
    s_waitcnt vmcnt(0) lgkmcnt(0)
    s_nop 15
    s_memtime s[18:19]
    s_memrealtime s[24:25]
    s_waitcnt lgkmcnt(0)
    s_sub_u32 s18, s18, s16
    s_sub_u32 s24, s24, s22
    v_mov_b32 v1, s18
    v_mov_b32 v3, s24
    v_lshrrev_b32 v2, 6, v0
    s_mul_i32 s3, s2, {nwaves}
    v_add_u32 v2, s3, v2
    v_lshlrev_b32 v2, 2, v2
    buffer_store_dword v1, v2, s[8:11], 0 offen
    v_add_u32 v2, 0x80000, v2
    buffer_store_dword v3, v2, s[8:11], 0 offen
    s_waitcnt vmcnt(0)
    s_endpgm
.section .rodata,"a"
.p2align 6
.amdhsa_kernel {name}
  .amdhsa_next_free_vgpr {nvgpr}
  .amdhsa_next_free_sgpr 96
  .amdhsa_accum_offset {accum}
  .amdhsa_group_segment_fixed_size 0
  .amdhsa_kernarg_size 16
  .amdhsa_user_sgpr_count 2
  .amdhsa_user_sgpr_kernarg_segment_ptr 1
  .amdhsa_system_sgpr_workgroup_id_x 1
  .amdhsa_float_denorm_mode_32 3
.end_amdhsa_kernel
.text
"""
META_HEAD = """
.amdgpu_metadata
---
amdhsa.version: [1, 2]
amdhsa.kernels:
"""
META_K = """  - .name: {name}
    .symbol: {name}.kd
    .kernarg_segment_size: 16
    .kernarg_segment_align: 8
    .group_segment_fixed_size: 0
    .private_segment_fixed_size: 0
    .wavefront_size: 64
    .sgpr_count: 96
    .vgpr_count: {nvgpr}
    .max_flat_workgroup_size: 1024
    .args:
      - {{.name: kernargs, .size: 16, .offset: 0, .value_kind: by_value}}
"""
META_TAIL = """...
.end_amdgpu_metadata
"""

def build(path, kernels):
    s = ""
    for k in kernels:
        s += HEAD.format(**k)
    s += META_HEAD
    for k in kernels:
        s += META_K.format(**k)
    s += META_TAIL
    open(path, "w").write(s)
```

```python
import json
from mbgen import build
import mb2
from mb2 import *
ks.clear()
def M16x(d, a, b, acc="v"):
    return f"    v_mfma_f32_16x16x32_bf16 {acc}[{d}:{d+3}], v[{a}:{a+3}], v[{b}:{b+3}], {acc}[{d}:{d+3}]\n"
def M32x(d, a, b, acc="v"):
    return f"    v_mfma_f32_32x32x16_bf16 {acc}[{d}:{d+15}], v[{a}:{a+3}], v[{b}:{b+3}], {acc}[{d}:{d+15}]\n"
def g16(fa, fb, acc="v", base=128):
    return "".join(M16x(base+4*i, 4+4*fa(i), 68+4*fb(i), acc) for i in range(32))
def g32(fa, fb, acc="v", base=128):
    return "".join(M32x(base+16*(i%8), 4+4*fa(i), 68+4*fb(i), acc) for i in range(16))
zero_acc = "".join(f"    v_mov_b32 v{i}, 0\n" for i in range(128, 256))
def addk(name, b, agpr=False):
    ks.append(dict(name=name, body=b*2, init=init_regs(128) + (zero_acc if not agpr else "".join(f"    v_accvgpr_write_b32 a{i}, 0\n" for i in range(128))), iters=20, nwaves=4, nvgpr=256, accum=128 if agpr else 256, note="", iters_total=40, lds=0))
for rep in range(2):
    addk(f"g16_bothvary_{rep}", g16(lambda i: i%8, lambda i: (i*3+i//8)%8))
    addk(f"g16_Avary8_Bslow_{rep}", g16(lambda i: i%8, lambda i: i//8))
    addk(f"g16_Aslow_Bvary8_{rep}", g16(lambda i: i//8, lambda i: i%8))
    addk(f"g16_Avary4_Bslow_{rep}", g16(lambda i: i%4, lambda i: i//4))
    addk(f"g16_Aslow_Bvary4_{rep}", g16(lambda i: i//4, lambda i: i%4))
    addk(f"g16_const_{rep}", g16(lambda i: 0, lambda i: 0))
    addk(f"g16_bothvary_agpr_{rep}", g16(lambda i: i%8, lambda i: (i*3+i//8)%8, "a", 0), agpr=True)
    addk(f"g16_Avary8_Bslow_agpr_{rep}", g16(lambda i: i%8, lambda i: i//8, "a", 0), agpr=True)
    addk(f"g32_bothvary_{rep}", g32(lambda i: i%8, lambda i: (i*3+i//8)%8))
    addk(f"g32_Avary_Bslow_{rep}", g32(lambda i: i%4, lambda i: i//4))
    addk(f"g32_Aslow_Bvary_{rep}", g32(lambda i: i//4, lambda i: i%4))
    addk(f"g32_const_{rep}", g32(lambda i: 0, lambda i: 0))
    addk(f"g32_bothvary_agpr_{rep}", g32(lambda i: i%8, lambda i: (i*3+i//8)%8, "a", 0), agpr=True)
build("mb7.s", ks)
json.dump(dict(src="bench/mb7.s", kernels=[dict(name=k["name"], nwaves=k["nwaves"], iters=k["iters_total"], note=k["note"], sleep=0.01, lds=k["lds"]) for k in ks]), open("mb7.json", "w"))
```

```python
from mbgen import META_HEAD, META_K, META_TAIL
name = "smf"
s = f""".amdgcn_target "amdgcn-amd-amdhsa--gfx950"
.text
.globl {name}
.p2align 8
.type {name},@function
{name}:
    s_load_dwordx2 s[4:5], s[0:1], 0
    s_load_dwordx2 s[6:7], s[0:1], 8
    s_waitcnt lgkmcnt(0)
    s_mov_b32 s8, s4
    s_and_b32 s9, s5, 0xffff
    s_mov_b32 s10, 0x100000
    s_mov_b32 s11, 0x20000
    s_mov_b32 s12, s6
    s_and_b32 s13, s7, 0xffff
    s_mov_b32 s14, 0x400000
    s_mov_b32 s15, 0x20000
    v_lshlrev_b32 v1, 4, v0
    v_lshlrev_b32 v2, 5, v0
    v_lshlrev_b32 v3, 2, v0
    s_lshl_b32 s17, s2, 12
    buffer_load_dwordx4 v[4:7], v1, s[12:15], s17 offen
    buffer_load_dwordx4 v[8:11], v2, s[12:15], s17 offen offset:1024
    buffer_load_dwordx4 v[12:15], v2, s[12:15], s17 offen offset:1040
    buffer_load_dword v16, v3, s[12:15], s17 offen offset:3072
    v_mov_b32 v20, 0
    v_mov_b32 v21, 0
    v_mov_b32 v22, 0
    v_mov_b32 v23, 0
    s_waitcnt vmcnt(0)
    s_nop 4
    v_smfmac_f32_16x16x64_bf16 v[20:23], v[4:7], v[8:15], v16
    s_nop 15
    s_nop 15
    s_lshl_b32 s17, s2, 10
    buffer_store_dwordx4 v[20:23], v1, s[8:11], s17 offen
    s_endpgm
.section .rodata,"a"
.p2align 6
.amdhsa_kernel {name}
  .amdhsa_next_free_vgpr 32
  .amdhsa_next_free_sgpr 32
  .amdhsa_accum_offset 32
  .amdhsa_kernarg_size 16
  .amdhsa_user_sgpr_count 2
  .amdhsa_user_sgpr_kernarg_segment_ptr 1
  .amdhsa_system_sgpr_workgroup_id_x 1
.end_amdhsa_kernel
""" + META_HEAD + META_K.format(name=name, nvgpr=32) + META_TAIL
open("mb12.s", "w").write(s)
```

```python
import re

TRANS = ("v_exp_f32", "v_log_f32", "v_rcp_f32", "v_rsq_f32", "v_sqrt_f32", "v_sin_f32", "v_cos_f32", "v_exp_f16", "v_rcp_f16")

def _regs(tok):
    tok = tok.strip()
    tok = tok.lstrip("-")
    m = re.fullmatch(r"abs\((.*)\)", tok)
    if m: tok = m.group(1)
    tok = tok.strip("|")
    m = re.fullmatch(r"([vas])(\d+)", tok)
    if m: return {(m.group(1), int(m.group(2)))}
    m = re.fullmatch(r"([vas])\[(\d+):(\d+)\]", tok)
    if m: return {(m.group(1), i) for i in range(int(m.group(2)), int(m.group(3)) + 1)}
    if tok == "vcc": return {("s", 106), ("s", 107)}
    if tok == "vcc_lo": return {("s", 106)}
    if tok == "vcc_hi": return {("s", 107)}
    if tok == "exec": return {("s", 126), ("s", 127)}
    if tok == "m0": return {("s", 124)}
    return set()

class Ins:
    __slots__ = ("text", "op", "ops", "kind", "wr", "rd", "passes", "srcc", "srcab", "states", "wide_store", "is_trans", "lds_dma", "dstr")
    def __init__(self, text):
        self.text = text
        t = text.split(";")[0].strip()
        self.kind = "other"; self.wr = set(); self.rd = set(); self.passes = 0
        self.srcc = set(); self.srcab = set(); self.states = 1; self.wide_store = set()
        self.is_trans = False; self.lds_dma = False; self.dstr = None
        if not t or t.endswith(":") or t.startswith("."):
            self.kind = "label" if t.endswith(":") else "dir"
            self.states = 0; self.op = t; self.ops = []
            return
        parts = t.split(None, 1)
        op = parts[0]; self.op = op
        rest = parts[1] if len(parts) > 1 else ""
        ops = []; depth = 0; cur = ""
        for ch in rest:
            if ch in "[(": depth += 1
            if ch in "])": depth -= 1
            if ch == "," and depth == 0:
                ops.append(cur.strip()); cur = ""
            else: cur += ch
        if cur.strip(): ops.append(cur.strip())
        mods = ""
        if ops:
            sp = ops[-1].split(None, 1)
            ops[-1] = sp[0]
            if len(sp) > 1: mods = sp[1]
        self.ops = ops
        R = [_regs(o) for o in ops]
        base = re.sub(r"_(e32|e64|dpp|sdwa)$", "", op)
        if op == "s_nop":
            self.kind = "nop"; self.states = int(ops[0], 0) + 1
        elif op.startswith("v_mfma") or op.startswith("v_smfmac"):
            self.kind = "mfma"
            self.passes = 8 if "32x32" in op else 4
            self.wr = R[0]; self.dstr = ops[0]
            self.srcab = R[1] | R[2]
            if op.startswith("v_smfmac"):
                self.srcc = R[0]; self.srcab |= R[3]
                self.ops = ops[:3] + [ops[0]]
            else:
                self.srcc = R[3]
            self.rd = self.srcab | self.srcc
        elif op.startswith("v_"):
            self.kind = "valu"
            self.is_trans = base in TRANS
            if "permlane" in op and "swap" in op:
                self.wr = R[0] | R[1]; self.rd = R[0] | R[1]
            elif base.startswith("v_cmp"):
                self.wr = R[0]; self.rd = set().union(*R[1:])
            elif base in ("v_add_co_u32", "v_sub_co_u32", "v_addc_co_u32", "v_subb_co_u32"):
                self.wr = R[0] | R[1]; self.rd = set().union(*R[2:])
            else:
                self.wr = R[0]; self.rd = set().union(*R[1:]) if len(R) > 1 else set()
                if base in ("v_fmac_f32", "v_dot2c_f32_bf16", "v_pk_fmac_f16"): self.rd |= R[0]
                if "dpp" in op or "row_" in mods or "quad_perm" in mods: self.rd |= R[0]
        elif op.startswith("ds_"):
            self.kind = "ds"
            if op.startswith("ds_read") or op.startswith("ds_bpermute") or op.startswith("ds_swizzle") or "_rtn" in op:
                self.wr = R[0]; self.rd = set().union(*R[1:])
            else:
                self.rd = set().union(*R)
        elif op.startswith("buffer_") or op.startswith("global_"):
            self.kind = "vmem"
            if " lds" in (" " + mods) or "_lds_" in op:
                self.lds_dma = True
                self.rd = set().union(*R) | {("s", 124)}
            elif "load" in op:
                self.wr = R[0]; self.rd = set().union(*R[1:])
            elif op in ("buffer_inv", "buffer_wbl2"):
                pass
            else:
                self.rd = set().union(*R)
                if "x3" in op or "x4" in op:
                    self.wide_store = R[0] if op.startswith("buffer_") else R[1]
                if "atomic" in op and "sc0" in mods: self.wr = R[0]
        elif op.startswith("s_"):
            self.kind = "salu"
            if op.startswith("s_cmp") or op.startswith("s_cbranch") or op in ("s_branch", "s_waitcnt", "s_barrier", "s_endpgm", "s_setprio", "s_sleep", "s_bitcmp1_b32", "s_bitcmp0_b32"):
                self.rd = set().union(*R) if R else set()
            else:
                self.wr = R[0] if R else set(); self.rd = set().union(*R[1:]) if len(R) > 1 else set()
                if "saveexec" in op: self.wr |= {("s", 126), ("s", 127)}
        self.mods = mods if False else None

    def __setattr__(self, k, v):
        if k == "mods": return
        object.__setattr__(self, k, v)

def vec(s): return {r for r in s if r[0] in "va"}
def sca(s): return {r for r in s if r[0] == "s"}

def need(p, c):
    n = 0
    if p.kind == "valu":
        pw = vec(p.wr); ps = sca(p.wr)
        if c.kind == "mfma" and pw & c.rd: n = max(n, 2)
        if c.kind == "valu":
            if p.is_trans and not c.is_trans and pw & c.rd: n = max(n, 1)
            if p.is_trans and c.is_trans and pw & c.rd: n = max(n, 1)
            if ("permlane" in c.op or "dpp" in c.op or "row_" in c.text or "quad_perm" in c.text) and pw & c.rd: n = max(n, 2)
            if (c.op.startswith("v_readfirstlane") or c.op.startswith("v_readlane")) and pw & c.rd: n = max(n, 1)
            if ps & c.rd:
                n = max(n, 4 if c.op.startswith("v_readlane") or c.op.startswith("v_writelane") else 2)
            if p.op.startswith("v_dot2") and (pw & (c.rd | c.wr)):
                same = (p.op == c.op)
                if not (same and not (pw & set().union(*[_regs(o) for o in c.ops[1:3]]))): n = max(n, 3)
        if c.kind == "vmem" and ps & c.rd: n = max(n, 5)
        if c.kind == "salu" and ps & c.rd: n = max(n, 1)
        if p.is_trans and c.kind in ("vmem", "ds") and pw & c.rd: n = max(n, 1)
        if p.op.startswith("v_dot2") and c.kind in ("vmem", "ds", "mfma") and pw & c.rd: n = max(n, 3)
    if p.kind == "mfma":
        P = p.passes
        if c.kind == "mfma":
            if p.wr & c.srcab: n = max(n, P + 4)
            if p.wr & c.srcc:
                if not (p.wr == c.srcc and p.passes == c.passes): n = max(n, P + 2)
            elif p.wr & c.wr and p.passes != c.passes: n = max(n, P + 4)
        elif c.kind == "valu":
            if p.wr & (c.rd | c.wr): n = max(n, P + 4)
            if p.srcc & c.wr: n = max(n, P - 1)
        elif c.kind in ("vmem", "ds"):
            if p.wr & (c.rd | c.wr): n = max(n, P + 4)
    if p.kind == "salu":
        if ("s", 124) in p.wr and c.lds_dma: n = max(n, 1)
    if p.kind == "vmem" and p.wide_store:
        if p.wide_store & c.wr: n = max(n, 2)
    return n

WINDOW = 14

class Prog:
    def __init__(self):
        self.ins = []
    def __call__(self, text):
        for line in text.split("\n"):
            line = line.strip()
            if line: self.ins.append(Ins(line))
        return self
    def extend(self, other):
        self.ins += other.ins if isinstance(other, Prog) else [Ins(x) if isinstance(x, str) else x for x in other]
    def label(self, name): self.ins.append(Ins(name + ":"))

def fix(ins, pre=(), report=None):
    out = list(pre); npre = len(out)
    for c in ins:
        if c.states == 0 and c.kind in ("label", "dir"):
            out.append(c); continue
        req = 0; dist = 0
        for p in reversed(out):
            if dist >= WINDOW: break
            if p.states:
                n = need(p, c)
                if n - dist > req:
                    req = n - dist; why = p
            dist += p.states
        if req > 0:
            if report is not None: report.append((req, why.text, c.text))
            out.append(Ins(f"s_nop {req-1}"))
        out.append(c)
    return out[npre:]

def check_loop(body):
    rep = []
    fix(body, pre=body, report=rep)
    return rep

def text(ins):
    lines = []
    for i in ins:
        if i.kind == "label": lines.append(i.text)
        else: lines.append("    " + i.text)
    return "\n".join(lines) + "\n"

def interleave(main, fill, positions=None):
    out = []
    byp = {}
    for pos, s in fill: byp.setdefault(pos, []).append(s)
    out += byp.get(-1, [])
    for i, m in enumerate(main):
        out.append(m)
        out += byp.get(i, [])
    for pos in sorted(byp):
        if pos >= len(main): out += byp[pos]
    return out
```

```python
from asmlib import *
import struct

NAME = "parallel_sum__grouped_kv_mqa__mixer_channel_mlp__prompt"
KA = dict(x=0, wq=8, wk=16, wv=24, wo=32, bx=40, w1=48, b1=56, w2=64, b2=72, out=80, dbg=88, ws=96)
XN_F = 0x0
CS   = 0x400000
KV   = 0x410000
Q_F  = 0x500000
OH_F = 0x1000000
OH_TILE = 144 * 1024
WS_SIZE = 0x10000000

def f32(x):
    return "0x%08x" % struct.unpack("<I", struct.pack("<f", x))[0]

def srd(p, d, ptr, size, off=0):
    if off:
        p(f"s_add_u32 s{d}, s{ptr}, {hex(off)}")
        p(f"s_addc_u32 s{d+1}, s{ptr+1}, 0")
        p(f"s_and_b32 s{d+1}, s{d+1}, 0xffff")
    else:
        p(f"s_mov_b32 s{d}, s{ptr}")
        p(f"s_and_b32 s{d+1}, s{ptr+1}, 0xffff")
    p(f"s_mov_b32 s{d+2}, {hex(size)}")
    p(f"s_mov_b32 s{d+3}, 0x20000")

def kernel_text(name, ins, nvgpr, accum, nsgpr=96):
    s = f".text\n.globl {name}\n.p2align 8\n.type {name},@function\n{name}:\n"
    s += text(ins)
    s += f""".section .rodata,"a"
.p2align 6
.amdhsa_kernel {name}
  .amdhsa_next_free_vgpr {nvgpr}
  .amdhsa_next_free_sgpr {nsgpr}
  .amdhsa_accum_offset {accum}
  .amdhsa_group_segment_fixed_size 0
  .amdhsa_kernarg_size 104
  .amdhsa_user_sgpr_count 2
  .amdhsa_user_sgpr_kernarg_segment_ptr 1
  .amdhsa_system_sgpr_workgroup_id_x 1
  .amdhsa_float_denorm_mode_32 3
  .amdhsa_float_denorm_mode_16_64 3
.end_amdhsa_kernel
"""
    return s

def M16(d, a, b, c=None):
    c = d if c is None else c
    return f"v_mfma_f32_16x16x32_bf16 {d}, {a}, {b}, {c}"
def M32(d, a, b, c=None):
    c = d if c is None else c
    return f"v_mfma_f32_32x32x16_bf16 {d}, {a}, {b}, {c}"
def V(i, n=1): return f"v{i}" if n == 1 else f"v[{i}:{i+n-1}]"
def A(i, n=1): return f"a{i}" if n == 1 else f"a[{i}:{i+n-1}]"
def S(i, n=1): return f"s{i}" if n == 1 else f"s[{i}:{i+n-1}]"

import os
STAMPS = os.environ.get("STAMPS", "0") == "1"
STAMP_BASE = 0x3000000
STAMP_OP = "s_memtime" if os.environ.get("CYC") == "1" else "s_memrealtime"
def stamp(p, i):
    if STAMPS:
        p(f"{STAMP_OP} s[{72+2*i}:{73+2*i}]")
def stamp_flush(p, kidx, n, wsptr=6):
    if not STAMPS: return
    p("s_waitcnt vmcnt(0)")
    stamp(p, n-1)
    p("s_waitcnt lgkmcnt(0)")
    srd(p, 92, wsptr, WS_SIZE)
    p("v_lshrrev_b32 v1, 6, v0")
    p("v_lshlrev_b32 v1, 6, v1")
    p("s_lshl_b32 s70, s2, 10")
    p(f"s_add_u32 s70, s70, {hex(STAMP_BASE + kidx*0x40000)}")
    for i in range(n):
        p(f"v_mov_b32 v2, s{72+2*i}")
        p(f"buffer_store_dword v2, v1, s[92:95], s70 offen offset:{4*i}")

STF = os.environ.get("STF", "")
PART = 0x2400000

LOOPST = os.environ.get("LOOPST", "0") == "1"
def loopstamp(q, vreg, vtmp, lane="v1"):
    if not LOOPST: return
    q(f"{STAMP_OP} s[90:91]")
    q("s_waitcnt lgkmcnt(0)")
    q(f"v_cmp_eq_u32 vcc, s71, {lane}")
    q(f"v_mov_b32 {vtmp}, s90")
    q(f"v_cndmask_b32 {vreg}, {vreg}, {vtmp}, vcc")
    q("s_add_u32 s71, s71, 1")
def loopstamp_flush(q, vreg, kidx):
    if not LOOPST: return
    q("v_lshlrev_b32 v1, 2, v0")
    q("s_lshl_b32 s70, s2, 11")
    q(f"s_add_u32 s70, s70, {hex(STAMP_BASE + 0x200000 + kidx*0x100000)}")
    q(f"buffer_store_dword {vreg}, v1, s[92:95], s70 offen")

ST_XN = os.environ.get("ST_XN", "")
ST_Q = os.environ.get("ST_Q", "")
ST_H = os.environ.get("ST_H", "")
ST_O = os.environ.get("ST_O", "")
ST_OUT = os.environ.get("ST_OUT", "")

def loopstamp_list(vreg, vtmp):
    L = []
    loopstamp(L.append, vreg, vtmp)
    return L
```

```python
from common import *

NPF = int(os.environ.get('NPF', '2'))

def ln_body(p, F=32, XR=16, LB=0):
    for i in range(16):
        p(f"v_lshlrev_b32 v{F+2*i}, 16, v{XR+i}")
        p(f"v_and_b32 v{F+2*i+1}, 0xffff0000, v{XR+i}")
    def reduce(off):
        p("v_add_f32_dpp v10, v10, v10 row_ror:8 row_mask:0xf bank_mask:0xf")
        p("v_mov_b32 v11, v10")
        p("v_permlane16_swap_b32 v10, v11")
        p("v_add_f32 v10, v10, v11")
        p("v_mov_b32 v11, v10")
        p("v_permlane32_swap_b32 v10, v11")
        p("v_add_f32 v10, v10, v11")
        p(f"ds_write_b32 v9, v10 offset:{off}")
        p("s_waitcnt lgkmcnt(0)")
        p("s_barrier")
        p(f"ds_read_b128 v[12:15], v8 offset:{off}")
        p("s_waitcnt lgkmcnt(0)")
        p("v_add_f32 v12, v12, v13")
        p("v_add_f32 v14, v14, v15")
        p("v_add_f32 v10, v12, v14")
        p(f"v_mul_f32 v10, {f32(1.0/1024)}, v10")
    for h in range(2): p(f"v_pk_add_f32 {V(10+2*h,2)}, {V(F+2*h,2)}, {V(F+4+2*h,2)}")
    for i in range(4, 16): p(f"v_pk_add_f32 {V(10+2*(i&1),2)}, {V(10+2*(i&1),2)}, {V(F+2*i,2)}")
    p("v_pk_add_f32 v[10:11], v[10:11], v[12:13]")
    p("v_add_f32 v10, v10, v11")
    reduce(0)
    for i in range(16): p(f"v_pk_add_f32 {V(F+2*i,2)}, {V(F+2*i,2)}, v[10:11] op_sel_hi:[1,0] neg_lo:[0,1] neg_hi:[0,1]")
    for h in range(2): p(f"v_pk_mul_f32 {V(10+2*h,2)}, {V(F+2*h,2)}, {V(F+2*h,2)}")
    for i in range(2, 16): p(f"v_pk_fma_f32 {V(10+2*(i&1),2)}, {V(F+2*i,2)}, {V(F+2*i,2)}, {V(10+2*(i&1),2)}")
    p("v_pk_add_f32 v[10:11], v[10:11], v[12:13]")
    p("v_add_f32 v10, v10, v11")
    reduce(128)
    p(f"v_add_f32 v14, {f32(1e-5)}, v10")
    p("v_rsq_f32 v14, v14")
    p("v_mul_f32 v12, v14, v14")
    for i in range(16): p(f"v_pk_mul_f32 {V(F+2*i,2)}, {V(F+2*i,2)}, v[14:15] op_sel_hi:[1,0]")
    p("v_mul_f32 v12, v12, v10")
    p(f"v_add_f32 v12, {f32(1e-5)}, v12")
    p("v_rsq_f32 v12, v12")
    for i in range(16): p(f"v_cvt_pk_bf16_f32 v{XR+i}, v{F+2*i}, v{F+2*i+1}")

def gen():
    name = "lnkv_kernel"
    p = Prog()
    lds = 256
    XR = 16
    p("s_cmp_ge_u32 s2, 256")
    p("s_cbranch_scc1 L0_end")
    stamp(p, 0)
    p(f"s_load_dwordx4 s[4:7], s[0:1], {KA['x']}")
    p(f"s_load_dwordx2 s[8:9], s[0:1], {KA['w1']}")
    p(f"s_load_dwordx2 s[10:11], s[0:1], {KA['ws']}")
    p(f"s_load_dwordx4 s[24:27], s[0:1], {KA['wk']}")
    p("v_and_b32 v1, 63, v0")
    p("v_lshrrev_b32 v2, 6, v0")
    p("v_readfirstlane_b32 s30, v2")
    p("v_and_b32 v3, 7, v1")
    p("v_lshrrev_b32 v4, 3, v1")
    p("v_lshlrev_b32 v5, 11, v3")
    p("v_lshl_add_u32 v5, v4, 4, v5")
    p("s_lshl_b32 s33, s2, 14")
    p("s_lshl_b32 s34, s30, 9")
    p("s_add_u32 s33, s33, s34")
    p("s_waitcnt lgkmcnt(0)")
    srd(p, 12, 4, 2048*1024*2)
    for q in range(4):
        p(f"buffer_load_dwordx4 {V(XR+4*q,4)}, v5, s[12:15], s33 offen offset:{q*128}")
    if NPF:
        p("s_lshr_b32 s35, s2, 3")
        p("s_bfe_u32 s36, s2, 0x20001")
        p("s_cmp_lt_u32 s30, 2")
        p("s_cbranch_scc1 L0_pw1")
        p("s_cmp_eq_u32 s30, 2")
        p("s_cbranch_scc0 L0_pkv")
        srd(p, 16, 6, 1024*1024*2)
        p("v_bfe_u32 v6, v1, 2, 3")
        p("v_and_b32 v7, 3, v1")
        p("v_lshlrev_b32 v7, 7, v7")
        p("v_lshl_add_u32 v6, v6, 11, v7")
        p("s_lshl_b32 s37, s35, 14")
        p("s_lshl_b32 s38, s36, 9")
        p("s_add_u32 s37, s37, s38")
        for g in range(NPF):
            p(f"buffer_load_dword v{64+g}, v6, s[16:19], s37 offen")
            p(f"s_add_u32 s37, s37, {256*2048}")
        p("s_branch L0_pdone")
        p.label("L0_pkv")
        p("s_bitcmp1_b32 s35, 3")
        p("s_cselect_b32 s24, s26, s24")
        p("s_cselect_b32 s25, s27, s25")
        srd(p, 16, 24, 65536)
        p("v_lshlrev_b32 v6, 7, v1")
        p("s_and_b32 s37, s35, 23")
        p("s_lshl_b32 s37, s37, 13")
        for g in range(NPF):
            p(f"buffer_load_dword v{64+g}, v6, s[16:19], s37 offen")
        p("s_branch L0_pdone")
        p.label("L0_pw1")
        srd(p, 16, 8, 1024*3584*2)
        p("v_lshrrev_b32 v6, 4, v1")
        p("v_mul_u32_u24 v6, 7168, v6")
        p("v_and_b32 v7, 15, v1")
        p("v_min_u32 v7, 13, v7")
        p("v_lshl_add_u32 v6, v7, 7, v6")
        p("s_lshl_b32 s37, s35, 1")
        p("s_add_u32 s37, s37, s30")
        p(f"s_mul_i32 s37, s37, {4*7168}")
        p("s_mul_i32 s38, s36, 1792")
        p("s_add_u32 s37, s37, s38")
        for g in range(NPF):
            p(f"buffer_load_dword v{64+g}, v6, s[16:19], s37 offen")
            p(f"s_add_u32 s37, s37, {256*7168}")
        p.label("L0_pdone")
    srd(p, 20, 10, WS_SIZE)
    p("v_lshlrev_b32 v8, 4, v3")
    p("s_lshl_b32 s37, s30, 2")
    p("v_add_u32 v9, s37, v8")
    p("v_lshl_add_u32 v6, v4, 8, v8")
    p("s_lshr_b32 s38, s2, 1")
    p("s_lshl_b32 s38, s38, 15")
    p("s_lshl_b32 s39, s30, 13")
    p("s_add_u32 s38, s38, s39")
    p("s_and_b32 s39, s2, 1")
    p("s_lshl_b32 s39, s39, 7")
    p("s_add_u32 s38, s38, s39")
    p("s_add_u32 s39, s38, 4096")
    p("v_lshlrev_b32 v7, 2, v3")
    p("s_lshl_b32 s41, s2, 5")
    p(f"s_add_u32 s41, s41, {hex(CS)}")
    p(f"s_waitcnt vmcnt({NPF})")
    stamp(p, 1)
    ln_body(p)
    stamp(p, 2)
    for q in range(4):
        p(f"buffer_store_dwordx4 {V(XR+4*q,4)}, v6, s[20:23], s{38+(q>>1)} offen offset:{(q&1)*2048} {ST_XN}")
    p(f"buffer_store_dword v12, v7, s[20:23], s41 offen {ST_XN}")
    stamp(p, 3)
    stamp_flush(p, 0, 5, wsptr=10)
    p.label("L0_end")
    p("s_endpgm")
    ins = fix(p.ins)
    return name, kernel_text(name, ins, 72, 72), (256, 256, lds)
```

```python
from common import *

def gen():
    name = "lnkv_kernel"
    p = Prog()
    L_ST1, L_ST2, L_RED = 65536, 66560, 67584
    lds = L_RED + 8192
    p("s_cmp_ge_u32 s2, 256")
    p("s_cbranch_scc1 L0_end")
    stamp(p, 0)
    p(f"s_load_dwordx2 s[4:5], s[0:1], {KA['x']}")
    p(f"s_load_dwordx4 s[8:11], s[0:1], {KA['wk']}")
    p(f"s_load_dwordx2 s[6:7], s[0:1], {KA['ws']}")
    p("v_and_b32 v1, 63, v0")
    p("v_lshrrev_b32 v2, 6, v0")
    p("v_readfirstlane_b32 s30, v2")
    p("s_lshr_b32 s31, s2, 1")
    p("s_and_b32 s32, s2, 1")
    p("v_and_b32 v3, 15, v1")
    p("v_lshrrev_b32 v4, 4, v1")
    p("v_lshlrev_b32 v5, 11, v3")
    p("v_lshl_add_u32 v5, v4, 4, v5")
    p("s_lshl_b32 s33, s31, 15")
    p("s_lshl_b32 s34, s30, 9")
    p("s_add_u32 s33, s33, s34")
    p("v_lshrrev_b32 v6, 5, v1")
    p("v_lshlrev_b32 v6, 1, v6")
    p("v_and_b32 v7, 3, v1")
    p("v_xor_b32 v6, v6, v7")
    p("v_lshlrev_b32 v6, 4, v6")
    p("v_lshrrev_b32 v7, 2, v1")
    p("v_lshl_add_u32 v6, v7, 6, v6")
    p("s_waitcnt lgkmcnt(0)")
    srd(p, 12, 4, 2048*1024*2)
    p("s_cmp_eq_u32 s32, 0")
    p("s_cselect_b32 s8, s8, s10")
    p("s_cselect_b32 s9, s9, s11")
    srd(p, 16, 8, 65536)
    srd(p, 20, 6, WS_SIZE)
    XR = 16
    for s in range(8):
        p(f"buffer_load_dwordx4 {V(XR+4*s,4)}, v5, s[12:15], s33 offen offset:{s*64}")
    p("s_lshl_b32 s35, s30, 14")
    for pp in range(4):
        p(f"s_add_u32 s36, s35, {pp*4096}")
        p("s_mov_b32 m0, s36")
        for q in range(4):
            p(f"buffer_load_dwordx4 v6, s[16:19], s36 offen offset:{q*1024} lds")
    p("v_lshlrev_b32 v8, 6, v3")
    p("s_lshl_b32 s37, s30, 4")
    p("v_lshl_add_u32 v9, v4, 2, v8")
    p("v_add_u32 v9, s37, v9")
    F = 64
    for s in range(8):
        p(f"s_waitcnt vmcnt({16+7-s})")
        for r in range(4):
            p(f"v_lshlrev_b32 v{F+8*s+2*r}, 16, v{XR+4*s+r}")
            p(f"v_and_b32 v{F+8*s+2*r+1}, 0xffff0000, v{XR+4*s+r}")
    stamp(p, 1)
    for c in range(4): p(f"v_add_f32 v{10+c}, v{F+c}, v{F+4+c}")
    for i in range(8, 64): p(f"v_add_f32 v{10+i%4}, v{10+i%4}, v{F+i}")
    p("v_add_f32 v10, v10, v11\nv_add_f32 v12, v12, v13\nv_add_f32 v10, v10, v12")
    def reduce(base):
        p(f"ds_write_b32 v9, v10 offset:{base}")
        p("s_waitcnt lgkmcnt(0)")
        p("s_barrier")
        for q in range(4): p(f"ds_read_b128 {V(48+4*q,4)}, v8 offset:{base+16*q}")
        p("s_waitcnt lgkmcnt(0)")
        for q in range(8): p(f"v_add_f32 v{48+q}, v{48+q}, v{56+q}")
        for q in range(4): p(f"v_add_f32 v{48+q}, v{48+q}, v{52+q}")
        p("v_add_f32 v48, v48, v50\nv_add_f32 v49, v49, v51\nv_add_f32 v10, v48, v49")
        p(f"v_mul_f32 v10, {f32(1.0/1024)}, v10")
    p(f"v_add_u32 v8, {L_ST1}, v8")
    p(f"v_add_u32 v9, {L_ST1}, v9")
    reduce(0)
    for i in range(64): p(f"v_sub_f32 v{F+i}, v{F+i}, v10")
    for c in range(4): p(f"v_mul_f32 v{10+c}, v{F+c}, v{F+c}")
    for i in range(4, 64): p(f"v_fmac_f32 v{10+i%4}, v{F+i}, v{F+i}")
    p("v_add_f32 v10, v10, v11\nv_add_f32 v12, v12, v13\nv_add_f32 v10, v10, v12")
    reduce(L_ST2 - L_ST1)
    p(f"v_add_f32 v11, {f32(1e-5)}, v10")
    p("v_rsq_f32 v11, v11")
    p("v_mul_f32 v12, v11, v11")
    p("v_mul_f32 v12, v12, v10")
    p(f"v_add_f32 v12, {f32(1e-5)}, v12")
    p("v_rsq_f32 v12, v12")
    for i in range(64): p(f"v_mul_f32 v{F+i}, v{F+i}, v11")
    for i in range(32): p(f"v_cvt_pk_bf16_f32 v{XR+i}, v{F+2*i}, v{F+2*i+1}")
    p("v_lshlrev_b32 v13, 9, v4")
    p("v_bfe_u32 v14, v1, 2, 2")
    p("v_lshl_add_u32 v13, v14, 6, v13")
    p("v_and_b32 v14, 3, v1")
    p("v_lshl_add_u32 v13, v14, 3, v13")
    p("v_and_b32 v14, 1, v4")
    p("v_lshl_add_u32 v13, v14, 5, v13")
    p("v_add_u32 v13, s35, v13")
    p("v_xor_b32 v14, 32, v13")
    p("v_lshlrev_b32 v15, 4, v1")
    p("s_lshl_b32 s38, s31, 15")
    p("s_lshl_b32 s39, s30, 13")
    p("s_add_u32 s38, s38, s39")
    p("s_lshl_b32 s39, s32, 12")
    p("s_add_u32 s38, s38, s39")
    stamp(p, 2)
    p("s_waitcnt vmcnt(0)")
    stamp(p, 3)
    WF = 64
    for s in range(8):
        for t in range(2):
            for rho in range(2):
                p(f"ds_read_b64_tr_b16 {V(WF+(s*2+t)*4+rho*2,2)}, v{13+t} offset:{s*2048+rho*256}")
        if s % 3 == 2: p("s_waitcnt lgkmcnt(0)")
    for i in range(8): p(f"v_mov_b32 v{48+i}, 0")
    p("s_lshl_b32 s40, s30, 11")
    p(f"s_add_u32 s40, s40, {L_RED}")
    p("v_add_u32 v56, s40, v15")
    p("s_lshl_b32 s40, s30, 10")
    p(f"s_add_u32 s40, s40, {L_RED}")
    p("v_add_u32 v57, s40, v15")
    p("s_waitcnt lgkmcnt(0)")
    p("s_cmp_eq_u32 s32, 0")
    p("s_cbranch_scc0 L0_v")
    for s in range(4):
        p(f"buffer_store_dwordx4 {V(XR+4*s,4)}, v15, s[20:23], s38 offen offset:{s*1024} {ST_XN}")
    p("v_lshlrev_b32 v58, 2, v3")
    p("s_lshl_b32 s41, s31, 6")
    p(f"s_add_u32 s41, s41, {hex(CS)}")
    p(f"buffer_store_dword v12, v58, s[20:23], s41 offen {ST_XN}")
    for s in range(8):
        for t in range(2):
            p(M16(V(48+4*t,4), V(WF+(s*2+t)*4,4), V(XR+4*s,4)))
    p("v_lshrrev_b32 v59, 1, v4")
    p("v_lshlrev_b32 v59, 10, v59")
    p("v_and_b32 v60, 1, v4")
    p("v_lshl_add_u32 v59, v60, 9, v59")
    p("v_lshl_add_u32 v59, v3, 4, v59")
    p("s_lshr_b32 s42, s31, 1")
    p("s_lshl_b32 s42, s42, 12")
    p("s_and_b32 s43, s31, 1")
    p("s_lshl_b32 s43, s43, 8")
    p("s_add_u32 s42, s42, s43")
    p("s_lshl_b32 s43, s30, 3")
    p("s_add_u32 s42, s42, s43")
    p("s_branch L0_red")
    p.label("L0_v")
    for s in range(4):
        p(f"buffer_store_dwordx4 {V(XR+16+4*s,4)}, v15, s[20:23], s38 offen offset:{s*1024} {ST_XN}")
    for s in range(8):
        for t in range(2):
            p(M16(V(48+4*t,4), V(XR+4*s,4), V(WF+(s*2+t)*4,4)))
    p("v_lshrrev_b32 v59, 1, v4")
    p("v_lshlrev_b32 v59, 3, v59")
    p("v_and_b32 v60, 1, v4")
    p("v_lshl_add_u32 v59, v60, 9, v59")
    p("v_lshl_add_u32 v59, v3, 4, v59")
    p("s_lshr_b32 s42, s31, 1")
    p("s_lshl_b32 s42, s42, 12")
    p("s_and_b32 s43, s31, 1")
    p("s_lshl_b32 s43, s43, 10")
    p("s_add_u32 s42, s42, s43")
    p("s_lshl_b32 s43, s30, 8")
    p("s_add_u32 s42, s42, s43")
    p("s_add_u32 s42, s42, 2048")
    p.label("L0_red")
    p("s_nop 7")
    p(f"s_add_u32 s42, s42, {hex(KV)}")
    p("ds_write_b128 v56, v[48:51]")
    p("ds_write_b128 v56, v[52:55] offset:1024")
    p("s_waitcnt lgkmcnt(0)")
    p("s_barrier")
    p("s_cmp_ge_u32 s30, 2")
    p("s_cbranch_scc1 L0_end")
    for w in range(4): p(f"ds_read_b128 {V(64+4*w,4)}, v57 offset:{w*2048}")
    p("s_waitcnt lgkmcnt(0)")
    for r in range(4):
        p(f"v_add_f32 v{64+r}, v{64+r}, v{68+r}")
        p(f"v_add_f32 v{72+r}, v{72+r}, v{76+r}")
    for r in range(4): p(f"v_add_f32 v{64+r}, v{64+r}, v{72+r}")
    p("v_cvt_pk_bf16_f32 v80, v64, v65")
    p("v_cvt_pk_bf16_f32 v81, v66, v67")
    p(f"buffer_store_dwordx2 v[80:81], v59, s[20:23], s42 offen {ST_XN}")
    stamp_flush(p, 0, 5)
    p.label("L0_end")
    p("s_endpgm")
    ins = fix(p.ins)
    return name, kernel_text(name, ins, 128, 128), (256, 256, lds)
```

```python
from common import *
import math

LA1 = int(os.environ.get('LA1', '4'))
KVT = int(os.environ.get('KVT', '1'))
STG = 53248
WOFF = 16384

def gen():
    name = "gemma_kernel"
    p = Prog()
    lds = 3 * STG
    ACC = 16
    def acc(u, t): return ACC + (u*9+t)*4
    BIAS = 160; CSC = 188; T = 192
    def XF(f, u): return f*52 + u*4
    def WF(f, t): return f*52 + 16 + t*4
    p("s_cmp_ge_u32 s2, 256")
    p("s_cbranch_scc1 L1_end")
    stamp(p, 0)
    p(f"s_load_dwordx2 s[4:5], s[0:1], {KA['wq']}")
    p(f"s_load_dwordx4 s[8:11], s[0:1], {KA['w1']}")
    p(f"s_load_dwordx2 s[6:7], s[0:1], {KA['ws']}")
    if KVT: p(f"s_load_dwordx4 s[32:35], s[0:1], {KA['wk']}")
    p("v_and_b32 v1, 63, v0")
    p("v_lshrrev_b32 v2, 6, v0")
    p("v_readfirstlane_b32 s40, v2")
    p("s_and_b32 s41, s2, 1")
    p("s_lshl_b32 s41, s41, 3")
    p("s_bfe_u32 s42, s2, 0x30003")
    p("s_add_u32 s41, s41, s42")
    p("s_bfe_u32 s42, s2, 0x20001")
    p("s_lshl_b32 s42, s42, 2")
    p("s_lshr_b32 s43, s2, 6")
    p("s_add_u32 s42, s42, s43")
    p("s_lshr_b32 s44, s40, 1")
    p("s_and_b32 s45, s40, 1")
    p("v_and_b32 v3, 15, v1")
    p("v_lshrrev_b32 v4, 4, v1")
    p("v_lshlrev_b32 v5, 4, v1")
    p("s_lshl_b32 s46, s41, 3")
    p("s_lshl_b32 s47, s40, 1")
    p("s_add_u32 s46, s46, s47")
    p("s_lshl_b32 s46, s46, 15")
    p("v_add_u32 v6, s46, v5")
    p("v_add_u32 v7, 0x8000, v6")
    p("v_lshrrev_b32 v8, 5, v1")
    p("v_lshlrev_b32 v8, 1, v8")
    p("v_and_b32 v9, 3, v1")
    p("v_xor_b32 v8, v8, v9")
    p("v_lshlrev_b32 v8, 4, v8")
    p("v_lshrrev_b32 v9, 2, v1")
    p("s_lshl_b32 s47, s40, 4")
    p("v_add_u32 v9, s47, v9")
    p("s_movk_i32 s47, 7168")
    p("v_mul_lo_u32 v10, v9, s47")
    p("v_add_u32 v10, v10, v8")
    p("s_mul_i32 s47, s42, 448")
    p("v_add_u32 v10, s47, v10")
    p("v_lshl_add_u32 v9, v9, 11, v8")
    p("s_lshl_b32 s47, s42, 7")
    p("v_add_u32 v9, s47, v9")
    p("s_lshl_b32 s47, s44, 13")
    p("v_add_u32 v11, s47, v5")
    p("v_lshlrev_b32 v12, 9, v4")
    p("v_bfe_u32 v13, v1, 2, 2")
    p("v_lshl_add_u32 v12, v13, 6, v12")
    p("v_and_b32 v13, 3, v1")
    p("v_lshl_add_u32 v12, v13, 3, v12")
    p("v_and_b32 v13, 1, v4")
    p("v_lshl_add_u32 v12, v13, 5, v12")
    p("s_lshl_b32 s47, s45, 5")
    p("v_xor_b32 v14, s47, v12")
    p(f"v_add_u32 v14, {WOFF+32768}, v14")
    p("s_lshl_b32 s47, s45, 14")
    p(f"s_add_u32 s47, s47, {WOFF}")
    p("v_add_u32 v12, s47, v12")
    p("v_xor_b32 v13, 32, v12")
    stamp(p, 5)
    p("s_waitcnt lgkmcnt(0)")
    stamp(p, 6)
    srd(p, 12, 6, 0x400000, XN_F)
    srd(p, 16, 4, 1024*1024*2)
    srd(p, 20, 8, 1024*3584*2)
    srd(p, 24, 6, WS_SIZE)
    srd(p, 28, 10, 3584*2)
    small = Prog()
    def psm(x): small(x)
    psm("v_lshlrev_b32 v15, 3, v4")
    psm("s_mul_i32 s47, s42, 448")
    psm("s_lshl_b32 s48, s45, 8")
    psm("s_add_u32 s48, s48, s47")
    for t in range(6):
        psm(f"buffer_load_dwordx2 {V(T+2*t,2)}, v15, s[28:31], s48 offen offset:{t*32}")
    psm("s_lshl_b32 s48, s45, 5")
    psm("s_add_u32 s48, s48, s47")
    psm(f"buffer_load_dwordx2 {V(T+12,2)}, v15, s[28:31], s48 offen offset:192")
    psm("v_lshlrev_b32 v15, 2, v3")
    psm("s_lshl_b32 s47, s41, 9")
    psm("s_lshl_b32 s48, s44, 8")
    psm("s_add_u32 s47, s47, s48")
    psm(f"s_add_u32 s47, s47, {hex(CS)}")
    for u in range(4):
        psm(f"buffer_load_dword v{CSC+u}, v15, s[24:27], s47 offen offset:{u*64}")
    p("s_lshl_b32 s51, s40, 12")
    p("s_lshl_b32 s52, s40, 10")
    p(f"s_add_u32 s52, s52, {WOFF}")
    slot_of = {"q0": 0, "q1": 4, 0: 1, 1: 2, 2: 3, 3: 8, 4: 5, 5: 6, 6: 7}
    def dma_list():
        L = []
        L.append(["s_mov_b32 m0, s56", "buffer_load_dwordx4 v6, s[12:15], s53 offen lds"])
        L.append(["buffer_load_dwordx4 v6, s[12:15], s53 offen offset:1024 lds"])
        L.append(["s_add_u32 m0, s56, 2048", "buffer_load_dwordx4 v7, s[12:15], s53 offen lds"])
        L.append(["buffer_load_dwordx4 v7, s[12:15], s53 offen offset:1024 lds"])
        for a in range(2):
            L.append([f"s_add_u32 m0, s57, {slot_of['q%d'%a]*4096 - a*64}", f"buffer_load_dwordx4 v9, s[16:19], s54 offen offset:{a*64} lds"])
        for a in range(7):
            L.append([f"s_add_u32 m0, s57, {slot_of[a]*4096 - a*64}", f"buffer_load_dwordx4 v10, s[20:23], s55 offen offset:{a*64} lds"])
        return L
    D = dma_list()
    NB = 7
    p("s_bfe_u32 s66, s2, 0x30003")
    p("s_lshr_b32 s67, s2, 6")
    p("s_add_u32 s66, s66, s67")
    def koffs(nreg):
        return [f"s_add_u32 s67, {nreg}, s66", "s_and_b32 s67, s67, 3", f"s_cselect_b32 s67, 0, {LA1}", f"s_add_u32 s67, s67, {nreg}",
                "s_and_b32 s67, s67, 15", f"s_and_b32 s68, {nreg}, 16", "s_or_b32 s67, s67, s68",
                "s_lshl_b32 s53, s67, 11", "s_lshl_b32 s54, s67, 17", f"s_mul_i32 s55, s67, {64*7168}"]
    def set_stage(n):
        for x in koffs(str(n)): p(x)
        p(f"s_add_u32 s56, s51, {n*STG}")
        p(f"s_add_u32 s57, s52, {n*STG}")
    for n in range(2):
        set_stage(n)
        for d in D:
            for x in d: p(x)
        if n == 0:
            stamp(p, 7)
            for i in range(144): p(f"v_mov_b32 v{ACC+i}, 0")
            pass
    set_stage(2)
    stamp(p, 4)
    def reads(f, kk):
        R = []
        for u in range(4):
            R.append(f"ds_read_b128 {A(XF(f,u),4)}, v11 offset:{u*2048+kk*1024}")
        for t in range(9):
            for rho in range(2):
                if t < 8:
                    R.append(f"ds_read_b64_tr_b16 {A(WF(f,t)+rho*2,2)}, v{12+(t&1)} offset:{(t>>1)*4096+kk*2048+rho*256}")
                else:
                    R.append(f"ds_read_b64_tr_b16 {A(WF(f,t)+rho*2,2)}, v14 offset:{kk*2048+rho*256}")
        return R
    def mfmas(f):
        return [M16(V(acc(u,t),4), A(WF(f,t),4), A(XF(f,u),4)) for t in range(9) for u in range(4)]
    p("s_waitcnt vmcnt(13)")
    p("s_barrier")
    stamp(p, 1)
    for x in reads(0, 0): p(x)
    if LOOPST: p("s_mov_b32 s71, 0")
    loopstamp(p, "v2", "v15")
    p("s_mov_b32 s58, 0")
    p("s_mov_b32 s59, 3")
    p("s_waitcnt lgkmcnt(0)")
    def phaseA(dl, pos, extra=()):
        fill = [(i, x) for i, x in enumerate(reads(1, 1))]
        for d, ps in zip(dl, pos):
            if len(d) == 2: fill.append((ps-1, d[0]))
            fill.append((ps, d[-1]))
        fill += list(extra)
        fill += [(28, f"s_add_u32 s60, s58, {STG}"), (28, f"s_cmp_eq_u32 s60, {3*STG}"), (29, "s_cselect_b32 s60, 0, s60"), (29, "s_sub_u32 s61, s60, s58")]
        fill += [(30, "v_add_u32 v11, s61, v11"), (31, "v_add_u32 v12, s61, v12"), (32, "v_add_u32 v13, s61, v13"), (33, "v_add_u32 v14, s61, v14")]
        ko = koffs("s59")
        fill += [(30, "s_add_u32 s56, s51, s58"), (30, "s_add_u32 s57, s52, s58"), (31, "s_mov_b32 s58, s60"),
                 (23, ko[0]), (24, ko[1]), (24, ko[2]), (27, ko[3]), (31, ko[4]), (32, ko[5]), (32, ko[6]), (33, ko[7]), (34, ko[8]), (34, ko[9]),
                 (35, "s_cmp_ge_u32 s59, 16"), (35, "s_cselect_b32 s14, 0, s14"), (35, "s_cselect_b32 s56, 0x30000, s56"), (35, "s_cselect_b32 s57, 0x30000, s57"), (35, "s_add_u32 s59, s59, 1")]
        return interleave(mfmas(0), fill)
    for x in phaseA(D, [1, 3, 5, 7, 9, 11, 13, 15, 17, 19, 21, 23, 25]): p(x)
    p.extend(small)
    p("s_waitcnt vmcnt(24) lgkmcnt(0)")
    p("s_branch L1_mid")
    pre = fix(p.ins)
    b = Prog()
    b.label("L1_loop")
    for x in phaseA(D[NB:], [2, 7, 12, 17, 22, 27]): b(x)
    loopstamp(b, "v2", "v15")
    b("s_waitcnt vmcnt(13) lgkmcnt(0)")
    b.label("L1_mid")
    loopstamp(b, "v2", "v15")
    b("s_barrier")
    loopstamp(b, "v2", "v15")
    fill = [(i, x) for i, x in enumerate(reads(0, 0))]
    pos = [2, 7, 12, 17, 22, 27, 32]
    for d, ps in zip(D[:NB], pos):
        if len(d) == 2: fill.append((ps-1, d[0]))
        fill.append((ps, d[-1]))
    fill += [(33, f"s_cmp_lt_u32 s59, {18 if KVT else 19}")]
    for x in interleave(mfmas(1), fill): b(x)
    b("s_waitcnt lgkmcnt(0)")
    b("s_cbranch_scc1 L1_loop")
    body = fix(b.ins, pre=pre)
    rep = check_loop(body)
    assert not rep, rep
    e = Prog()
    if not KVT: stamp(e, 2)
    KVB = STG; KVR = STG + 65536; KX = 104
    if KVT:
        ops = []
        for q in range(8):
            ops.append([f"buffer_load_dwordx4 {A(KX+4*q,4)}, v5, s[24:27], s{38+(q>>2)} offen offset:{(q&3)*1024}"])
        for pp in range(4):
            for q in range(4):
                o = [f"buffer_load_dwordx4 v10, s[16:19], s50 offen offset:{q*1024} lds"]
                if q == 0: o = [f"s_add_u32 m0, s49, {KVB+pp*4096}", f"s_add_u32 s50, s49, {pp*4096}"] + o
                ops.append(o)
        setup = Prog()
        setup("s_and_b32 s36, s42, 1")
        setup("s_cselect_b32 s32, s34, s32")
        setup("s_cselect_b32 s33, s35, s33")
        srd(setup, 16, 32, 65536)
        setup("s_lshl_b32 s37, s41, 3")
        setup("s_lshr_b32 s38, s42, 1")
        setup("s_add_u32 s37, s37, s38")
        setup("s_lshl_b32 s38, s37, 15")
        setup("s_lshl_b32 s39, s40, 13")
        setup("s_add_u32 s38, s38, s39")
        setup("s_add_u32 s39, s38, 4096")
        setup("v_lshrrev_b32 v10, 2, v1")
        setup("v_lshl_add_u32 v10, v10, 6, v8")
        setup("s_lshl_b32 s49, s40, 14")
        st = [i.text for i in setup.ins]
        fill = [(i, x) for i, x in enumerate(reads(1, 1))]
        fill += [(i // 3, x) for i, x in enumerate(st)]
        order = ops[8:] + ops[:8]
        for k, o in enumerate(order[:10]):
            ps = 7 + 3*k
            for x in o[:-1]: fill.append((ps-1, x))
            fill.append((ps, o[-1]))
        for x in interleave(mfmas(0), fill): e(x)
        e("s_waitcnt lgkmcnt(0)")
        fill = []
        for k, o in enumerate(order[10:]):
            ps = 1 + (5*k)//2
            for x in o[:-1]: fill.append((ps-1, x))
            fill.append((ps, o[-1]))
        for x in interleave(mfmas(1), fill): e(x)
        stamp(e, 2)
        e("s_mov_b32 s38, s49")
        e("v_lshlrev_b32 v12, 9, v4")
        e("v_bfe_u32 v13, v1, 2, 2")
        e("v_lshl_add_u32 v12, v13, 6, v12")
        e("v_and_b32 v13, 3, v1")
        e("v_lshl_add_u32 v12, v13, 3, v12")
        e("v_and_b32 v13, 1, v4")
        e("v_lshl_add_u32 v12, v13, 5, v12")
        e(f"s_add_u32 s39, s38, {KVB}")
        e("v_add_u32 v12, s39, v12")
        e("v_xor_b32 v13, 32, v12")
        e("s_lshl_b32 s39, s40, 11")
        e(f"s_add_u32 s39, s39, {KVR}")
        e("v_add_u32 v14, s39, v5")
        e("s_lshl_b32 s39, s40, 10")
        e(f"s_add_u32 s39, s39, {KVR}")
        e("v_add_u32 v15, s39, v5")
    for t in range(7):
        for r in range(2):
            e(f"v_lshlrev_b32 v{BIAS+4*t+2*r}, 16, v{T+2*t+r}")
            e(f"v_and_b32 v{BIAS+4*t+2*r+1}, 0xffff0000, v{T+2*t+r}")
    e("s_lshl_b32 s46, s41, 3")
    e("s_lshl_b32 s47, s44, 2")
    e("s_add_u32 s46, s46, s47")
    e("s_lshl_b32 s47, s46, 15")
    e("s_lshl_b32 s48, s42, 1")
    e("s_add_u32 s48, s48, s45")
    e("s_lshl_b32 s48, s48, 10")
    e("s_add_u32 s47, s47, s48")
    e(f"s_add_u32 s47, s47, {hex(Q_F)}")
    e(f"s_mul_i32 s48, s46, {OH_TILE}")
    e("s_mul_i32 s49, s42, 7168")
    e("s_add_u32 s48, s48, s49")
    e(f"s_add_u32 s48, s48, {hex(OH_F+32*1024)}")
    e("s_lshl_b32 s49, s45, 12")
    e("v_add_u32 v6, s49, v5")
    e("s_lshl_b32 s49, s45, 3")
    e("v_add_u32 v7, s49, v5")
    qs = math.log2(math.e) / math.sqrt(32.0)
    k1 = -2.0 * math.sqrt(2.0/math.pi) * math.log2(math.e)
    k2 = k1 * 0.044715
    e(f"s_mov_b32 s62, {f32(qs)}")
    e(f"s_mov_b32 s63, {f32(qs)}")
    e(f"s_mov_b32 s64, {f32(k2)}")
    e(f"s_mov_b32 s65, {f32(k2)}")
    e(f"v_mov_b32 v8, {f32(k1)}")
    e(f"v_mov_b32 v9, {f32(k1)}")
    tcnt = [0]
    def gelu_tiles(u, ts, out):
        prs = [(acc(u,t)+2*h, BIAS+4*(t-2)+2*h) for t in ts for h in range(2)]
        n = len(prs)
        tb = T + 16 + (tcnt[0] % 2) * 16; tcnt[0] += 1
        cpair = CSC + (u & ~1)
        sel = u & 1
        for (a, bb) in prs:
            e(f"v_pk_fma_f32 {V(a,2)}, {V(a,2)}, {V(cpair,2)}, {V(bb,2)} op_sel:[0,{sel},0] op_sel_hi:[1,{sel},1]")
        for i, (a, bb) in enumerate(prs): e(f"v_pk_mul_f32 {V(tb+2*i,2)}, {V(a,2)}, {V(a,2)}")
        for i, (a, bb) in enumerate(prs): e(f"v_pk_fma_f32 {V(tb+2*i,2)}, {V(tb+2*i,2)}, s[64:65], v[8:9]")
        for i, (a, bb) in enumerate(prs): e(f"v_pk_mul_f32 {V(tb+2*i,2)}, {V(tb+2*i,2)}, {V(a,2)}")
        for i in range(2*n): e(f"v_exp_f32 v{tb+i}, v{tb+i}")
        for i in range(n): e(f"v_pk_add_f32 {V(tb+2*i,2)}, {V(tb+2*i,2)}, 1.0 op_sel_hi:[1,0]")
        for i in range(2*n): e(f"v_rcp_f32 v{tb+i}, v{tb+i}")
        for i, (a, bb) in enumerate(prs): e(f"v_pk_mul_f32 {V(a,2)}, {V(a,2)}, {V(tb+2*i,2)}")
        for i, (a, bb) in enumerate(prs): e(f"v_cvt_pk_bf16_f32 v{out+i}, v{a}, v{a+1}")
    ocnt = [0]
    def outreg():
        r = T + (ocnt[0] % 4) * 4; ocnt[0] += 1
        return r
    for u in range(4):
        o = outreg()
        for t in range(2):
            for h in range(2):
                a = acc(u,t)+2*h
                e(f"v_pk_mul_f32 {V(a,2)}, {V(a,2)}, s[62:63]")
        for t in range(2):
            for h in range(2):
                a = acc(u,t)+2*h
                e(f"v_cvt_pk_bf16_f32 v{o+2*t+h}, v{a}, v{a+1}")
        e(f"buffer_store_dwordx4 {V(o,4)}, v5, s[24:27], s47 offen {ST_Q}")
        for a3 in range(3):
            o = outreg()
            gelu_tiles(u, [2+2*a3, 3+2*a3], o)
            e(f"buffer_store_dwordx4 {V(o,4)}, v6, s[24:27], s48 offen offset:{a3*1024} {ST_H}")
        o = outreg()
        gelu_tiles(u, [8], o)
        e(f"buffer_store_dwordx2 {V(o,2)}, v7, s[24:27], s48 offen offset:3072 {ST_H}")
        if u < 3:
            e("s_add_u32 s47, s47, 0x8000")
            e(f"s_add_u32 s48, s48, {OH_TILE}")
        KA_ = 240
        if KVT and u == 0:
            e("s_waitcnt vmcnt(5)")
            for s_ in range(8):
                for t in range(2):
                    for rho in range(2):
                        e(f"ds_read_b64_tr_b16 {A(32+(s_*2+t)*4+rho*2,2)}, v{12+t} offset:{s_*2048+rho*256}")
        if KVT and u == 1:
            e("s_waitcnt lgkmcnt(0)")
            e("v_lshrrev_b32 v11, 1, v4")
            e("v_and_b32 v10, 1, v4")
            e("s_lshr_b32 s38, s37, 1")
            e("s_lshl_b32 s38, s38, 12")
            e(f"s_add_u32 s38, s38, {hex(KV)}")
            e("s_and_b32 s39, s37, 1")
            e("s_cmp_eq_u32 s36, 0")
            e("s_cbranch_scc0 L1_kvv")
            for s_ in range(8):
                for t in range(2):
                    e(M16(V(KA_+4*t,4), A(32+(s_*2+t)*4,4), A(KX+4*s_,4), "0" if s_ == 0 else None))
            e("v_lshlrev_b32 v11, 10, v11")
            e("s_lshl_b32 s39, s39, 8")
            e("s_add_u32 s38, s38, s39")
            e("s_lshl_b32 s39, s40, 3")
            e("s_branch L1_kvj")
            e.label("L1_kvv")
            for s_ in range(8):
                for t in range(2):
                    e(M16(V(KA_+4*t,4), A(KX+4*s_,4), A(32+(s_*2+t)*4,4), "0" if s_ == 0 else None))
            e("v_lshlrev_b32 v11, 3, v11")
            e("s_lshl_b32 s39, s39, 10")
            e("s_add_u32 s38, s38, s39")
            e("s_add_u32 s38, s38, 2048")
            e("s_lshl_b32 s39, s40, 8")
            e.label("L1_kvj")
            e("s_add_u32 s38, s38, s39")
            e("v_lshl_add_u32 v11, v10, 9, v11")
            e("v_lshl_add_u32 v11, v3, 4, v11")
            e("s_nop 7")
            e(f"ds_write_b128 v14, {V(KA_,4)} offset:0")
            e(f"ds_write_b128 v14, {V(KA_+4,4)} offset:1024")
        if KVT and u == 2:
            e("s_waitcnt lgkmcnt(0)")
            e("s_barrier")
            e("s_cmp_ge_u32 s40, 2")
            e("s_cbranch_scc1 L1_kvd")
            for w in range(4): e(f"ds_read_b128 {V(KA_+4*w,4)}, v15 offset:{w*2048}")
            e("s_waitcnt lgkmcnt(0)")
            for r in range(2):
                e(f"v_pk_add_f32 {V(KA_+2*r,2)}, {V(KA_+2*r,2)}, {V(KA_+4+2*r,2)}")
                e(f"v_pk_add_f32 {V(KA_+8+2*r,2)}, {V(KA_+8+2*r,2)}, {V(KA_+12+2*r,2)}")
            for r in range(2): e(f"v_pk_add_f32 {V(KA_+2*r,2)}, {V(KA_+2*r,2)}, {V(KA_+8+2*r,2)}")
            e(f"v_cvt_pk_bf16_f32 v{KA_+4}, v{KA_}, v{KA_+1}")
            e(f"v_cvt_pk_bf16_f32 v{KA_+5}, v{KA_+2}, v{KA_+3}")
            e(f"buffer_store_dwordx2 {V(KA_+4,2)}, v11, s[24:27], s38 offen {ST_Q}")
            e.label("L1_kvd")
    stamp(e, 3)
    if LOOPST: e("v_mov_b32 v3, v2")
    stamp_flush(e, 1, 9)
    loopstamp_flush(e, "v3", 1)
    e.label("L1_end")
    e("s_endpgm")
    epi = fix(e.ins, pre=body)
    ins = pre + [Ins(".p2align 6")] + body + epi
    return name, kernel_text(name, ins, 256+136, 256), (256, 256, lds)
```

```python
from common import *

def gen():
    name = "attn_kernel"
    p = Prog()
    lds = 131072
    Q = {0: 16, 1: 24}
    C = {0: 32, 1: 48}
    Sx = {0: 64, 1: 80}
    P = {0: 96, 1: 104}
    O = {0: 112, 1: 128}
    L = {0: 144, 1: 148}
    SEL = 152
    KF = {0: 156, 1: 164}
    VF = {0: 172, 1: 180}
    T = 188
    NV = 208
    p("s_cmp_ge_u32 s2, 256")
    p("s_cbranch_scc1 L2_end")
    stamp(p, 0)
    p(f"s_load_dwordx2 s[6:7], s[0:1], {KA['ws']}")
    p("v_and_b32 v1, 63, v0")
    p("v_lshrrev_b32 v2, 6, v0")
    p("v_readfirstlane_b32 s40, v2")
    p("s_lshr_b32 s41, s2, 2")
    p("s_and_b32 s42, s2, 3")
    p("s_lshl_b32 s42, s42, 3")
    p("s_lshl_b32 s43, s40, 1")
    p("s_add_u32 s42, s42, s43")
    p("v_lshlrev_b32 v5, 4, v1")
    p("v_and_b32 v3, 15, v1")
    p("v_lshlrev_b32 v3, 4, v3")
    p("v_lshrrev_b32 v4, 5, v1")
    p("v_lshl_add_u32 v3, v4, 8, v3")
    p("v_bfe_u32 v4, v1, 4, 1")
    p("v_lshl_add_u32 v6, v4, 15, v3")
    p(f"s_mov_b32 s44, {OH_TILE}")
    p("v_mul_lo_u32 v7, v4, s44")
    p("v_add_u32 v7, v7, v3")
    p("s_lshl_b32 s45, s41, 16")
    p("s_lshl_b32 s46, s42, 10")
    p("s_add_u32 s45, s45, s46")
    p(f"s_add_u32 s45, s45, {hex(Q_F)}")
    p(f"s_mul_i32 s47, s41, {2*OH_TILE}")
    p("s_add_u32 s47, s47, s46")
    p(f"s_add_u32 s47, s47, {hex(OH_F)}")
    p("s_waitcnt lgkmcnt(0)")
    srd(p, 12, 6, 262144, KV)
    srd(p, 24, 6, WS_SIZE)
    for x in range(2):
        for mf in range(2):
            p(f"buffer_load_dwordx4 {V(Q[x]+4*mf,4)}, v6, s[24:27], s45 offen offset:{x*1024+mf*512}")
    p("s_lshl_b32 s50, s40, 13")
    p("s_mov_b32 s51, s50")
    def dma():
        D = []
        for hh in range(2):
            D.append([f"s_add_u32 m0, s51, {hh*4096}", f"s_add_u32 s52, s50, {hh*4096}", "buffer_load_dwordx4 v5, s[12:15], s52 offen lds"])
            for q in range(1, 4):
                D.append([f"buffer_load_dwordx4 v5, s[12:15], s52 offen offset:{q*1024} lds"])
        D.append(["s_add_u32 s50, s50, 0x8000", "s_add_u32 s51, s51, 0x8000", "s_and_b32 s51, s51, 0x1ffff"])
        return D
    for c in range(3):
        for d in dma():
            for x in d: p(x)
    p("v_lshrrev_b32 v8, 2, v1")
    p("v_lshrrev_b32 v9, 4, v1")
    p("v_xor_b32 v8, v8, v9")
    p("v_and_b32 v8, 1, v8")
    p("v_cmp_eq_u32 vcc, 0, v8")
    p("v_mov_b32 v9, 0x3f803f80")
    for r in range(4): p(f"v_cndmask_b32 v{SEL+r}, 0, v9, vcc")
    for x in range(2):
        for r in range(16): p(f"v_mov_b32 v{O[x]+r}, 0")
        for r in range(4): p(f"v_mov_b32 v{L[x]+r}, 0")
    for r in range(8):
        p(f"v_mov_b32 v{P[1]+r}, 0")
        p(f"v_mov_b32 v{VF[1]+r}, 0")
    p("v_mov_b32 v10, v5")
    p("v_add_u32 v11, 0x8000, v5")
    p("s_waitcnt vmcnt(16)")
    p("s_barrier")
    stamp(p, 1)
    def rdK(buf, addr, tile): return [f"ds_read_b128 {V(KF[buf]+4*m,4)}, v{addr} offset:{tile*4096+m*1024}" for m in range(2)]
    def rdV(buf, addr, tile): return [f"ds_read_b128 {V(VF[buf]+4*m,4)}, v{addr} offset:{tile*4096+2048+m*1024}" for m in range(2)]
    def QK(x, buf, c=None):
        cc = V(C[x],16) if c is None else c
        return [M32(V(Sx[x],16), V(KF[buf],4), V(Q[x],4), cc), M32(V(Sx[x],16), V(KF[buf]+4,4), V(Q[x]+4,4))]
    def PV(x, buf):
        return [M32(V(O[x],16), V(VF[buf],4), V(P[x],4)), M32(V(O[x],16), V(VF[buf]+4,4), V(P[x]+4,4))]
    def SUM(x):
        return [M16(V(L[x],4), V(SEL,4), V(P[x],4)), M16(V(L[x],4), V(SEL,4), V(P[x]+4,4))]
    def rowmax(q, x, dst, init=None):
        s = Sx[x]
        if init is None:
            q(f"v_max3_f32 v{dst}, v{s}, v{s+1}, v{s+2}")
            q(f"v_max_f32 v{dst}, v{dst}, v{s+3}")
            st = 4
        else: st = 0
        for i in range(st, 16, 2): q(f"v_max3_f32 v{dst}, v{dst}, v{s+i}, v{s+i+1}")
    def setC(q, x, src):
        q(f"v_mov_b32 v{T+8}, v{src}")
        q(f"v_permlane32_swap_b32 v{src}, v{T+8}")
        q(f"v_max_f32 v{src}, v{src}, v{T+8}")
        for r in range(16): q(f"v_sub_f32 v{C[x]+r}, 0, v{src}")
    for x in rdK(0, 10, 0): p(x)
    p("s_waitcnt lgkmcnt(0)")
    for x in range(2):
        for m in QK(x, 0, "0"): p(m)
    for x in range(2):
        rowmax(p, x, T+x)
        setC(p, x, T+x)
    for m in QK(0, 0): p(m)
    p("s_mov_b32 s59, 0")
    p("s_nop 15")
    pre = fix(p.ins)
    b = Prog()
    b.label("L2_loop")
    def valu(x):
        v = []
        for i in range(8):
            v += [f"v_exp_f32 v{Sx[x]+2*i}, v{Sx[x]+2*i}", f"v_exp_f32 v{Sx[x]+2*i+1}, v{Sx[x]+2*i+1}"]
            if i >= 1: v.append(f"v_cvt_pk_bf16_f32 v{P[x]+i-1}, v{Sx[x]+2*i-2}, v{Sx[x]+2*i-1}")
        v.append(f"v_cvt_pk_bf16_f32 v{P[x]+7}, v{Sx[x]+14}, v{Sx[x]+15}")
        return v
    def phase(x, mf, extra):
        v = valu(x)
        pos = [0, 28, 56, 84, 112, 136]
        out = []; cum = 0; mi = 0
        for ins in v:
            while mi < 6 and cum >= pos[mi]:
                out += extra.get(("pre", mi), [])
                out.append(mf[mi]); out += extra.get(mi, []); mi += 1
            out.append(ins); cum += 8 if "exp" in ins else 4
        assert mi == 6
        return out
    D = dma()
    for t in range(8):
        kb = t & 1
        nk = rdK(kb^1, 10, t+1) if t < 7 else rdK(kb^1, 11, 0)
        nv = rdV(kb, 10, t)
        ex = {0: [nk[0]], 1: [nk[1]], 2: [nv[0]], 3: [nv[1]]}
        if t == 4:
            ex[4] = ["s_waitcnt vmcnt(8)", "s_barrier"]
        if t == 5: ex[4] = D[0]; ex[5] = D[1]
        if t == 6: ex[4] = D[4]; ex[5] = D[5]
        for x in phase(0, QK(1, kb) + PV(1, kb^1) + SUM(1), ex): b(x)
        ex = {("pre", 0): ["s_waitcnt lgkmcnt(0)"]}
        if t == 5: ex[1] = D[2]; ex[3] = D[3]
        if t == 6: ex[1] = D[6]; ex[3] = D[7]; ex[5] = D[8]
        if t == 7:
            ex[1] = ["v_mov_b32 v10, v11"]
            ex[2] = ["v_add_u32 v11, 0x8000, v11"]
            ex[3] = ["v_and_b32 v11, 0x1ffff, v11"]
            ex[4] = ["s_add_u32 s59, s59, 1", "s_cmp_lt_u32 s59, 8"]
        for x in phase(1, QK(0, kb^1) + PV(0, kb) + SUM(0), ex): b(x)
    b("s_cbranch_scc1 L2_loop")
    rep = []
    body = fix(b.ins, pre=pre, report=rep)
    if rep: print("attn loop nops:", len(rep), rep[:5])
    rep = check_loop(body)
    assert not rep, rep
    e = Prog()
    stamp(e, 2)
    for m in PV(1, 1) + SUM(1): e(m)
    e("s_mov_b32 s60, 0")
    e.label("L2_fin")
    e("s_nop 15")
    e(f"s_mov_b32 s61, {f32(2.0**40)}")
    e(f"v_cmp_gt_f32 vcc, s61, v{L[0]}")
    e(f"v_cmp_gt_f32 s[62:63], s61, v{L[1]}")
    e("s_and_b64 vcc, vcc, s[62:63]")
    e("s_cmp_eq_u64 vcc, -1")
    e("s_cbranch_scc1 L2_store")
    e("s_cmp_eq_u32 s60, 0")
    e("s_cbranch_scc1 L2_slow")
    e.label("L2_store")
    for x in range(2):
        e(f"v_rcp_f32 v{T+x}, v{L[x]}")
    for x in range(2):
        for r in range(16): e(f"v_mul_f32 v{O[x]+r}, v{O[x]+r}, v{T+x}")
        for hh in range(2):
            o = P[x] + 4*hh
            src = [4*hh, 4*hh+2, 8+4*hh, 8+4*hh+2]
            for i, sr in enumerate(src): e(f"v_cvt_pk_bf16_f32 v{o+i}, v{O[x]+sr}, v{O[x]+sr+1}")
            e(f"buffer_store_dwordx4 {V(o,4)}, v7, s[24:27], s47 offen offset:{x*1024+hh*512} {STF}")
    stamp(e, 3)
    stamp_flush(e, 2, 5)
    e.label("L2_end")
    e("s_endpgm")
    e.label("L2_slow")
    e("s_waitcnt vmcnt(0)")
    e("s_mov_b32 s60, 1")
    e(f"v_mov_b32 v{T}, 0xff800000")
    e(f"v_mov_b32 v{T+1}, 0xff800000")
    e("s_mov_b32 s52, 0")
    e.label("L2_s1")
    for m in range(2): e(f"buffer_load_dwordx4 {V(KF[0]+4*m,4)}, v5, s[12:15], s52 offen offset:{m*1024}")
    e("s_waitcnt vmcnt(0)")
    for x in range(2):
        for m in QK(x, 0, "0"): e(m)
    e("s_nop 15")
    for x in range(2): rowmax(e, x, T+x, init=True)
    e("s_add_u32 s52, s52, 4096")
    e("s_cmp_lt_u32 s52, 0x40000")
    e("s_cbranch_scc1 L2_s1")
    for x in range(2):
        setC(e, x, T+x)
        for r in range(16): e(f"v_mov_b32 v{O[x]+r}, 0")
        for r in range(4): e(f"v_mov_b32 v{L[x]+r}, 0")
    e("s_mov_b32 s52, 0")
    e.label("L2_s2")
    for m in range(2): e(f"buffer_load_dwordx4 {V(KF[0]+4*m,4)}, v5, s[12:15], s52 offen offset:{m*1024}")
    for m in range(2): e(f"buffer_load_dwordx4 {V(VF[0]+4*m,4)}, v5, s[12:15], s52 offen offset:{2048+m*1024}")
    e("s_waitcnt vmcnt(0)")
    for x in range(2):
        for m in QK(x, 0): e(m)
    e("s_nop 15")
    for x in range(2):
        for v in valu(x): e(v)
    e("s_nop 3")
    for x in range(2):
        for m in PV(x, 0) + SUM(x): e(m)
    e("s_nop 15")
    e("s_add_u32 s52, s52, 4096")
    e("s_cmp_lt_u32 s52, 0x40000")
    e("s_cbranch_scc1 L2_s2")
    e("s_branch L2_fin")
    epi = fix(e.ins, pre=body)
    ins = pre + [Ins(".p2align 6")] + body + epi
    return name, kernel_text(name, ins, NV, NV), (256, 256, lds)
```

```python
from common import *

LA2 = int(os.environ.get('LA2', '0'))
PRIO_A = int(os.environ.get('PRIO_A', '1'))
PRIO_G = int(os.environ.get('PRIO_G', '0'))
STP = os.environ.get('STP', '')
TOUCH = int(os.environ.get('TOUCH', '1'))
PRE0 = int(os.environ.get('PRE0', '2'))
GMAP = int(os.environ.get('GMAP', '1'))
XT = int(os.environ.get('XT', '1'))
LSA = int(os.environ.get('LSA', '1'))
APOS = eval(os.environ.get('APOS', '[0, 32, 64, 96, 128]'))
WSEG = 32768
WBASE = 65536

def gen():
    name = "attn_kernel"
    lds = WBASE + 3 * WSEG
    NV = 240
    p = Prog()
    p("s_cmp_ge_u32 s2, 256")
    p("s_cbranch_scc1 L2_end")
    stamp(p, 0)
    p(f"s_load_dwordx2 s[6:7], s[0:1], {KA['ws']}")
    p(f"s_load_dwordx2 s[4:5], s[0:1], {KA['wo']}")
    p(f"s_load_dwordx4 s[8:11], s[0:1], {KA['w2']}")
    p(f"s_load_dwordx2 s[32:33], s[0:1], {KA['x']}")
    p("v_and_b32 v1, 63, v0")
    p("v_lshrrev_b32 v2, 6, v0")
    p("v_readfirstlane_b32 s40, v2")
    p("v_lshlrev_b32 v5, 4, v1")
    p("s_cmp_ge_u32 s40, 4")
    p("s_cbranch_scc1 L2_gemm")
    head = fix(p.ins)

    Q = {0: 16, 1: 24}; C = {0: 32, 1: 48}; Sx = {0: 64, 1: 80}; P = {0: 96, 1: 104}
    O = {0: 112, 1: 128}; L = {0: 144, 1: 148}; SEL = 152
    KF = {0: 156, 1: 164}; VF = {0: 172, 1: 180}; T = 188; IDX = 200
    p = Prog()
    if PRIO_A: p(f"s_setprio {PRIO_A}")
    p("s_and_b32 s41, s2, 7")
    p("s_lshl_b32 s41, s41, 3")
    p("s_lshr_b32 s42, s2, 5")
    p("s_add_u32 s41, s41, s42")
    p("s_bfe_u32 s42, s2, 0x20003")
    p("s_lshl_b32 s42, s42, 3")
    p("s_lshl_b32 s43, s40, 1")
    p("s_add_u32 s42, s42, s43")
    p("v_and_b32 v3, 15, v1")
    p("v_lshlrev_b32 v3, 4, v3")
    p("v_lshrrev_b32 v4, 5, v1")
    p("v_lshl_add_u32 v3, v4, 8, v3")
    p("v_bfe_u32 v4, v1, 4, 1")
    p("v_lshl_add_u32 v6, v4, 15, v3")
    p("s_lshl_b32 s45, s41, 16")
    p("s_lshl_b32 s46, s42, 10")
    p("s_add_u32 s45, s45, s46")
    p(f"s_add_u32 s45, s45, {hex(Q_F)}")
    p("s_waitcnt lgkmcnt(0)")
    srd(p, 24, 6, WS_SIZE)
    for x in range(2):
        for mf in range(2):
            p(f"buffer_load_dwordx4 {V(Q[x]+4*mf,4)}, v6, s[24:27], s45 offen offset:{x*1024+mf*512}")
    srd(p, 12, 6, 262144, KV)
    if TOUCH:
        p("v_lshlrev_b32 v12, 7, v1")
        p("s_lshr_b32 s48, s2, 3")
        p("s_lshl_b32 s48, s48, 13")
        p("s_cmp_eq_u32 s40, 0")
        p("s_cbranch_scc0 L2_notouch")
        p("buffer_load_dword v13, v12, s[12:15], s48 offen")
        p.label("L2_notouch")
    if XT:
        p("s_cmp_lt_u32 s40, 2")
        p("s_cselect_b32 s32, s32, s10")
        p("s_cselect_b32 s33, s33, s11")
        srd(p, 28, 32, 2048*1024*2)
        p("s_and_b32 s49, s2, 7")
        p("s_lshl_b32 s49, s49, 5")
        p("s_lshr_b32 s50, s2, 3")
        p("s_add_u32 s49, s49, s50")
        p("s_lshl_b32 s49, s49, 1")
        p("s_add_u32 s49, s49, s40")
        p("s_lshl_b32 s49, s49, 13")
        p("s_cmp_lt_u32 s40, 2")
        p("s_cselect_b32 s49, s49, 0")
        p("s_cselect_b32 s30, s30, 2048")
    p(f"s_mov_b32 s44, {OH_TILE}")
    p("v_mul_lo_u32 v7, v4, s44")
    p("v_add_u32 v7, v7, v3")
    p(f"s_mul_i32 s47, s41, {2*OH_TILE}")
    p("s_add_u32 s47, s47, s46")
    p(f"s_add_u32 s47, s47, {hex(OH_F)}")
    p("v_and_b32 v8, 4, v1")
    p("v_cmp_eq_u32 vcc, 0, v8")
    p("v_mov_b32 v9, 0x3f803f80")
    p("v_mov_b32 v8, 0")
    for r in range(2): p(f"v_cndmask_b32 v{SEL+r}, v8, v9, vcc")
    for r in range(2): p(f"v_cndmask_b32 v{SEL+2+r}, v9, v8, vcc")
    p("v_and_b32 v8, 1, v1")
    p("v_mul_u32_u24 v8, 0xaaaa, v8")
    p(f"v_add_u32 v{IDX}, 0x4444, v8")
    for x in range(2):
        for r in range(16): p(f"v_mov_b32 v{O[x]+r}, 0")
        for r in range(4): p(f"v_mov_b32 v{L[x]+r}, 0")
    for r in range(8):
        p(f"v_mov_b32 v{P[1]+r}, 0")
        p(f"v_mov_b32 v{VF[1]+r}, 0")
    p("v_mov_b32 v10, v5")
    p("v_add_u32 v11, 0x8000, v5")
    p("s_barrier")
    stamp(p, 1)
    def rdK(buf, addr, tile): return [f"ds_read_b128 {V(KF[buf]+4*m,4)}, v{addr} offset:{tile*4096+m*1024}" for m in range(2)]
    def rdV(buf, addr, tile): return [f"ds_read_b128 {V(VF[buf]+4*m,4)}, v{addr} offset:{tile*4096+2048+m*1024}" for m in range(2)]
    def QK(x, buf, c=None):
        cc = V(C[x],16) if c is None else c
        return [M32(V(Sx[x],16), V(KF[buf],4), V(Q[x],4), cc), M32(V(Sx[x],16), V(KF[buf]+4,4), V(Q[x]+4,4))]
    def PV(x, buf):
        return [M32(V(O[x],16), V(VF[buf],4), V(P[x],4)), M32(V(O[x],16), V(VF[buf]+4,4), V(P[x]+4,4))]
    def SUM(x):
        return [f"v_smfmac_f32_16x16x64_bf16 {V(L[x],4)}, {V(SEL,4)}, {V(P[x],8)}, v{IDX}"]
    def rowmax(q, x, dst, init=None):
        s = Sx[x]
        if init is None:
            q(f"v_max3_f32 v{dst}, v{s}, v{s+1}, v{s+2}")
            q(f"v_max_f32 v{dst}, v{dst}, v{s+3}")
            st = 4
        else: st = 0
        for i in range(st, 16, 2): q(f"v_max3_f32 v{dst}, v{dst}, v{s+i}, v{s+i+1}")
    def setC(q, x, src):
        q(f"v_mov_b32 v{T+8}, v{src}")
        q(f"v_permlane32_swap_b32 v{src}, v{T+8}")
        q(f"v_max_f32 v{src}, v{src}, v{T+8}")
        for r in range(16): q(f"v_sub_f32 v{C[x]+r}, 0, v{src}")
    for x in rdK(0, 10, 0): p(x)
    p("s_waitcnt vmcnt(0) lgkmcnt(0)")
    for x in range(2):
        for m in QK(x, 0, "0"): p(m)
    for x in range(2):
        rowmax(p, x, T+x)
        setC(p, x, T+x)
    for m in QK(0, 0): p(m)
    p("s_mov_b32 s59, 0")
    if LOOPST: p("s_mov_b32 s71, 0")
    loopstamp(p, "v14", "v15")
    p("s_nop 15")
    if os.environ.get("GONLY") == "1":
        for i in range(15): p("s_barrier")
        p("s_endpgm")
    pre = fix(p.ins, pre=head)
    b = Prog()
    b.label("L2_loop")
    def valu(x):
        v = []
        for i in range(8):
            v += [f"v_exp_f32 v{Sx[x]+2*i}, v{Sx[x]+2*i}", f"v_exp_f32 v{Sx[x]+2*i+1}, v{Sx[x]+2*i+1}"]
            if i >= 1: v.append(f"v_cvt_pk_bf16_f32 v{P[x]+i-1}, v{Sx[x]+2*i-2}, v{Sx[x]+2*i-1}")
        v.append(f"v_cvt_pk_bf16_f32 v{P[x]+7}, v{Sx[x]+14}, v{Sx[x]+15}")
        return v
    def phase(x, mf, extra):
        v = valu(x)
        pos = APOS
        out = []; cum = 0; mi = 0
        for ins in v:
            while mi < 5 and cum >= pos[mi]:
                out += extra.get(("pre", mi), [])
                out.append(mf[mi]); out += extra.get(mi, []); mi += 1
            out.append(ins); cum += 8 if "exp" in ins else 4
        assert mi == 5
        return out
    for t in range(8):
        kb = t & 1
        nk = rdK(kb^1, 10, t+1) if t < 7 else rdK(kb^1, 11, 0)
        nv = rdV(kb, 10, t)
        ex = {0: [nk[0]], 1: [nk[1]], 2: [nv[0]], 3: [nv[1]]}
        for x in phase(0, QK(1, kb) + PV(1, kb^1) + SUM(1), ex): b(x)
        ex = {("pre", 0): ["s_waitcnt lgkmcnt(0)"]}
        LS = loopstamp_list("v14", "v15") if LSA else []
        if t == 2: ex[4] = LS + ["s_barrier"] + LS
        if t == 3 and XT: ex[4] = ["s_cmp_eq_u32 s59, 7", "s_cbranch_scc0 L2_noxt", "buffer_load_dword v13, v12, s[28:31], s49 offen", "L2_noxt:"]
        if t == 6: ex[4] = ["s_cmp_eq_u32 s59, 7", "s_cbranch_scc1 L2_nobar"] + LS + ["s_barrier"] + LS + ["L2_nobar:"]
        if t == 7:
            ex[1] = ["v_xor_b32 v10, 0x8000, v10"]
            ex[2] = ["v_xor_b32 v11, 0x8000, v11"]
            ex[4] = ["s_add_u32 s59, s59, 1", "s_cmp_lt_u32 s59, 8"]
        for x in phase(1, QK(0, kb^1) + PV(0, kb) + SUM(0), ex): b(x)
    b("s_cbranch_scc1 L2_loop")
    rep = []
    body = fix(b.ins, pre=pre, report=rep)
    if rep: print("attn loop nops:", len(rep), rep[:5])
    assert not check_loop(body)
    e = Prog()
    stamp(e, 2)
    for m in PV(1, 1) + SUM(1): e(m)
    e("s_mov_b32 s60, 0")
    e.label("L2_fin")
    e("s_nop 15")
    for x in range(2): e(f"v_add_f32 v{L[x]}, v{L[x]}, v{L[x]+1}")
    e(f"s_mov_b32 s61, {f32(2.0**40)}")
    e(f"v_cmp_gt_f32 vcc, s61, v{L[0]}")
    e(f"v_cmp_gt_f32 s[62:63], s61, v{L[1]}")
    e("s_and_b64 vcc, vcc, s[62:63]")
    e("s_cmp_eq_u64 vcc, -1")
    e("s_cbranch_scc1 L2_store")
    e("s_cmp_eq_u32 s60, 0")
    e("s_cbranch_scc1 L2_slow")
    e.label("L2_store")
    for x in range(2):
        e(f"v_rcp_f32 v{T+x}, v{L[x]}")
    for x in range(2):
        for r in range(16): e(f"v_mul_f32 v{O[x]+r}, v{O[x]+r}, v{T+x}")
        for hh in range(2):
            o = P[x] + 4*hh
            src = [4*hh, 4*hh+2, 8+4*hh, 8+4*hh+2]
            for i, sr in enumerate(src): e(f"v_cvt_pk_bf16_f32 v{o+i}, v{O[x]+sr}, v{O[x]+sr+1}")
            e(f"buffer_store_dwordx4 {V(o,4)}, v7, s[24:27], s47 offen offset:{x*1024+hh*512} {ST_O}")
    stamp(e, 3)
    stamp_flush(e, 2, 5)
    loopstamp_flush(e, "v14", 2)
    e.label("L2_end")
    e("s_endpgm")
    e.label("L2_slow")
    e("s_mov_b32 s60, 1")
    e(f"v_mov_b32 v{T}, 0xff800000")
    e(f"v_mov_b32 v{T+1}, 0xff800000")
    e("s_mov_b32 s52, 0")
    e.label("L2_s1")
    for m in range(2): e(f"buffer_load_dwordx4 {V(KF[0]+4*m,4)}, v5, s[12:15], s52 offen offset:{m*1024}")
    e("s_waitcnt vmcnt(0)")
    for x in range(2):
        for m in QK(x, 0, "0"): e(m)
    e("s_nop 15")
    for x in range(2): rowmax(e, x, T+x, init=True)
    e("s_add_u32 s52, s52, 4096")
    e("s_cmp_lt_u32 s52, 0x40000")
    e("s_cbranch_scc1 L2_s1")
    for x in range(2):
        setC(e, x, T+x)
        for r in range(16): e(f"v_mov_b32 v{O[x]+r}, 0")
        for r in range(4): e(f"v_mov_b32 v{L[x]+r}, 0")
    e("s_mov_b32 s52, 0")
    e.label("L2_s2")
    for m in range(2): e(f"buffer_load_dwordx4 {V(KF[0]+4*m,4)}, v5, s[12:15], s52 offen offset:{m*1024}")
    for m in range(2): e(f"buffer_load_dwordx4 {V(VF[0]+4*m,4)}, v5, s[12:15], s52 offen offset:{2048+m*1024}")
    e("s_waitcnt vmcnt(0)")
    for x in range(2):
        for m in QK(x, 0): e(m)
    e("s_nop 15")
    for x in range(2):
        for v in valu(x): e(v)
    e("s_nop 3")
    for x in range(2):
        for m in PV(x, 0) + SUM(x): e(m)
    e("s_nop 15")
    e("s_add_u32 s52, s52, 4096")
    e("s_cmp_lt_u32 s52, 0x40000")
    e("s_cbranch_scc1 L2_s2")
    e("s_branch L2_fin")
    epi = fix(e.ins, pre=body)
    att = pre + [Ins(".p2align 6")] + body + epi

    ACC = 16
    def acc(u, t): return ACC + (u*8+t)*4
    XR = 80
    def XF(sg, kb, u): return XR + ((sg*4+kb)*2+u)*4
    WB = 144
    def WF(f, t): return WB + f*32 + t*4
    TG = 208
    p = Prog()
    p.label("L2_gemm")
    if PRIO_G: p(f"s_setprio {PRIO_G}")
    p("s_sub_u32 s40, s40, 4")
    p("s_lshl_b32 s50, s40, 12")
    p("s_mov_b32 s51, s50")
    if GMAP == 0:
        p("s_and_b32 s41, s2, 3")
        p("s_lshl_b32 s41, s41, 2")
        p("s_bfe_u32 s43, s2, 0x20003")
        p("s_add_u32 s41, s41, s43")
        p("s_bfe_u32 s44, s2, 0x10002")
        p("s_lshr_b32 s42, s2, 5")
        p("s_add_u32 s66, s42, s43")
    else:
        p("s_and_b32 s41, s2, 7")
        p("s_lshl_b32 s41, s41, 1")
        p("s_bfe_u32 s43, s2, 0x10003")
        p("s_add_u32 s41, s41, s43")
        p("s_bfe_u32 s44, s2, 0x10004")
        p("s_lshr_b32 s42, s2, 5")
        p("s_add_u32 s66, s42, s43")
        p("s_bfe_u32 s43, s2, 0x20003")
    p("v_and_b32 v13, 3, v1")
    p("v_lshlrev_b32 v13, 4, v13")
    p("v_lshrrev_b32 v14, 4, v1")
    p("v_lshl_add_u32 v13, v14, 6, v13")
    p("v_bfe_u32 v14, v1, 2, 2")
    p("v_lshl_add_u32 v8, v14, 11, v13")
    p("s_lshl_b32 s47, s40, 16")
    p("v_add_u32 v8, s47, v8")
    p("v_xor_b32 v9, 32, v8")
    p("s_lshl_b32 s52, s40, 13")
    p(f"s_add_u32 s52, s52, {WBASE}")
    p(f"s_mul_i32 s65, s44, {1792*2048}")
    p("s_lshl_b32 s48, s42, 8")
    p("s_add_u32 s65, s65, s48")
    p(f"s_mul_i32 s63, s44, {56*1024}")
    p("s_add_u32 s63, s63, 0x8000")
    def kseg(q, nreg):
        q(f"s_add_u32 s68, {nreg}, {LA2}")
        if GMAP == 0: q(f"s_and_b32 s69, {nreg}, 3")
        else: q("s_sub_u32 s69, s68, 14")
        q("s_cmp_ge_u32 s68, 14")
        q("s_cselect_b32 s68, s69, s68")
        q(f"s_add_u32 s67, {nreg}, s66")
        q(f"s_and_b32 s67, s67, {3 if GMAP == 0 else 1}")
        q(f"s_cselect_b32 s67, {nreg}, s68")
        q("s_lshl_b32 s54, s67, 18")
        q("s_add_u32 s54, s54, s65")
        q("s_lshl_b32 s53, s67, 12")
        q("s_add_u32 s53, s53, s63")
    kseg(p, "0")
    p("s_mov_b32 s56, s52")
    p("s_waitcnt lgkmcnt(0)")
    srd(p, 12, 6, 262144, KV)
    def wdma(q): return [f"s_add_u32 m0, s56, {q*1024}", f"s_add_u32 s55, s54, {q*8192}", f"buffer_load_dwordx4 v{8+(q&1)}, s[16:19], s55 offen lds"]
    def kvdma(q): return ["s_mov_b32 m0, s51", "s_nop 0", f"buffer_load_dwordx4 v5, s[12:15], s50 offen offset:{q*1024} lds"]
    def kvadv(q):
        q("s_add_u32 s50, s50, 0x4000")
        q("s_add_u32 s51, s51, 0x4000")
        q("s_and_b32 s51, s51, 0xffff")
    def xld(sg, kb): return [f"buffer_load_dwordx4 {V(XF(sg,kb,u),4)}, v{6+u}, s[20:23], s53 offen offset:{kb*1024}" for u in range(2)]
    for q in range(4):
        for x in (kvdma(q) if q == 0 else kvdma(q)[2:]): p(x)
    srd(p, 16, 8, 3584*1024*2)
    for q in range(8):
        for x in wdma(q): p(x)
    kvadv(p)
    for q in range(4):
        for x in (kvdma(q) if q == 0 else kvdma(q)[2:]): p(x)
    kvadv(p)
    srd(p, 20, 6, 128*OH_TILE, OH_F)
    p("s_lshl_b32 s46, s41, 3")
    p("s_lshl_b32 s47, s40, 1")
    p("s_add_u32 s46, s46, s47")
    p(f"s_mul_i32 s47, s46, {OH_TILE}")
    p("v_add_u32 v6, s47, v5")
    p(f"v_add_u32 v7, {OH_TILE}, v6")
    p("s_waitcnt vmcnt(12)")
    p("s_barrier")
    stamp(p, 1)
    for kb in range(4):
        for x in xld(0, kb): p(x)
    srd(p, 36, 6, WS_SIZE)
    p("s_and_b32 s5, s5, 0xffff")
    p("v_and_b32 v3, 15, v1")
    p("v_lshrrev_b32 v4, 4, v1")
    p("v_lshlrev_b32 v12, 10, v4")
    p("v_bfe_u32 v13, v1, 2, 2")
    p("v_lshl_add_u32 v12, v13, 6, v12")
    p("v_and_b32 v13, 3, v1")
    p("v_lshl_add_u32 v12, v13, 3, v12")
    p("v_and_b32 v13, 1, v4")
    p("v_lshl_add_u32 v12, v13, 5, v12")
    p(f"v_add_u32 v12, {WBASE}, v12")
    p("v_xor_b32 v13, 32, v12")
    for i in range(32): p(f"v_mov_b64 {V(ACC+2*i,2)}, 0")
    p("s_lshl_b32 s62, s43, 19")
    p("s_add_u32 s62, s62, s48")
    kseg(p, "1")
    p(f"s_add_u32 s56, s52, {WSEG}")
    for kb in range(PRE0):
        for x in wdma(2*kb) + wdma(2*kb+1) + kvdma(kb) + xld(1, kb): p(x)
    p(f"s_waitcnt vmcnt({8+5*PRE0})")
    p("s_barrier")
    def wreads(f, kb):
        return [f"ds_read_b64_tr_b16 {V(WF(f,t)+rho*2,2)}, v{12+(t&1)} offset:{kb*8192+rho*4096+(t>>1)*256}" for t in range(8) for rho in range(2)]
    def mfmas(f, sg, kb):
        return [M16(V(acc(u,t),4), V(WF(f,t),4), V(XF(sg,kb,u),4)) for t in range(8) for u in range(2)]
    for x in wreads(0, 0): p(x)
    for kb in range(PRE0, 4):
        for x in wdma(2*kb) + wdma(2*kb+1) + kvdma(kb) + xld(1, kb): p(x)
    p("s_mov_b32 s58, 0")
    p("s_mov_b32 s59, 2")
    p(f"s_mov_b32 s64, {2*WSEG}")
    def seg_setup(q):
        kseg(q, "s59")
        q("s_add_u32 s56, s52, s64")
        q(f"s_add_u32 s64, s64, {WSEG}")
        q(f"s_cmp_eq_u32 s64, {3*WSEG}")
        q("s_cselect_b32 s64, 0, s64")
        kvadv(q)
        q("s_cmp_ge_u32 s59, 14")
        q("s_cselect_b32 s16, s4, s16")
        q("s_cselect_b32 s17, s5, s17")
        q("s_cselect_b32 s18, 0x200000, s18")
        q("s_cselect_b32 s54, s62, s54")
        q("s_cselect_b32 s22, 0, s22")
        q("s_cselect_b32 s68, 0x40000, 0")
        q("s_add_u32 s62, s62, s68")
        q("s_add_u32 s59, s59, 1")
    seg_setup(p)
    p("s_waitcnt vmcnt(20)")
    if LOOPST: p("s_mov_b32 s71, 0")
    loopstamp(p, "v10", "v11")
    gpre = fix(p.ins, pre=head)
    b = Prog()
    b.label("L2_gloop")
    for sg in range(2):
        for kb in range(4):
            f = kb & 1
            if kb < 3:
                b("s_waitcnt vmcnt(35) lgkmcnt(0)")
                rd = wreads(f^1, kb+1)
            else:
                rd = wreads(f^1, 0)
                if not LSA: loopstamp(b, "v10", "v11")
                b("s_waitcnt vmcnt(17) lgkmcnt(0)")
                if not LSA: loopstamp(b, "v10", "v11")
                b("s_barrier")
                if not LSA: loopstamp(b, "v10", "v11")
                b(f"s_add_u32 s60, s58, {WSEG}")
                b(f"s_cmp_eq_u32 s60, {3*WSEG}")
                b("s_cselect_b32 s60, 0, s60")
                b("s_sub_u32 s61, s60, s58")
                b("s_mov_b32 s58, s60")
                b("v_add_u32 v12, s61, v12")
                b("v_add_u32 v13, s61, v13")
            fill = [(i // 2, x) for i, x in enumerate(rd)]
            for q, ps in ((2*kb, 8), (2*kb+1, 10)):
                wd = wdma(q)
                fill += [(ps, wd[0]), (ps, wd[1]), (ps+1, wd[2])]
            kd = kvdma(kb)
            fill += [(12, kd[0]), (13, kd[2])]
            fill += [(15, x) for x in xld(sg, kb)]
            for x in interleave(mfmas(f, sg, kb), fill):
                if os.environ.get("NOGMFMA") == "1" and "mfma" in x: continue
                b(x)
        seg_setup(b)
    b("s_cmp_lt_u32 s59, 17")
    b("s_cbranch_scc1 L2_gloop")
    rep = []
    gbody = fix(b.ins, pre=gpre, report=rep)
    if rep: print("gemm loop nops:", len(rep), rep[:5])
    assert not check_loop(gbody)
    e = Prog()
    stamp(e, 2)
    e("s_lshl_b32 s47, s44, 4")
    e("s_add_u32 s47, s47, s41")
    e("s_lshl_b32 s47, s47, 3")
    e("s_add_u32 s47, s47, s42")
    e("s_lshl_b32 s47, s47, 2")
    e("s_add_u32 s47, s47, s40")
    e("s_lshl_b32 s47, s47, 13")
    e(f"s_add_u32 s47, s47, {hex(PART)}")
    e("s_add_u32 s48, s47, 4096")
    for u in range(2):
        for tp in range(4):
            o = TG + (u*4+tp)*4
            for h in range(2):
                t = 2*tp + h
                e(f"v_cvt_pk_bf16_f32 v{o+2*h}, v{acc(u,t)}, v{acc(u,t)+1}")
                e(f"v_cvt_pk_bf16_f32 v{o+2*h+1}, v{acc(u,t)+2}, v{acc(u,t)+3}")
            e(f"buffer_store_dwordx4 {V(o,4)}, v5, s[36:39], s{47+u} offen offset:{tp*1024} {STP}")
    stamp(e, 3)
    stamp_flush(e, 2, 5)
    loopstamp_flush(e, "v10", 2)
    e("s_endpgm")
    gepi = fix(e.ins, pre=gbody)
    ins = head + att + gpre + [Ins(".p2align 6")] + gbody + gepi
    return name, kernel_text(name, ins, NV, NV), (256, 512, lds)
```

```python
from common import *

LA3 = int(os.environ.get('LA3', '4'))
SEG = 16384
R = 4

def gen():
    name = "gemmb_kernel"
    p = Prog()
    lds = R * SEG
    NSEG = 36
    ACC = 16
    def acc(u, t): return ACC + (u*4+t)*4
    XR = 48
    def XF(sg, kb, u): return XR + ((sg*4+kb)*2+u)*4
    WB = 144
    def WF(f, t): return WB + f*16 + t*4
    T = 176
    NV = 208
    p("s_cmp_ge_u32 s2, 256")
    p("s_cbranch_scc1 L3_end")
    stamp(p, 0)
    p(f"s_load_dwordx2 s[4:5], s[0:1], {KA['wo']}")
    p(f"s_load_dwordx4 s[8:11], s[0:1], {KA['w2']}")
    p(f"s_load_dwordx2 s[6:7], s[0:1], {KA['ws']}")
    p(f"s_load_dwordx2 s[32:33], s[0:1], {KA['x']}")
    p(f"s_load_dwordx2 s[34:35], s[0:1], {KA['out']}")
    p("v_and_b32 v1, 63, v0")
    p("v_lshrrev_b32 v2, 6, v0")
    p("v_readfirstlane_b32 s40, v2")
    p("s_and_b32 s41, s2, 3")
    p("s_lshl_b32 s41, s41, 2")
    p("s_bfe_u32 s42, s2, 0x20003")
    p("s_add_u32 s41, s41, s42")
    p("s_bfe_u32 s42, s2, 0x10002")
    p("s_lshl_b32 s42, s42, 3")
    p("s_lshr_b32 s43, s2, 5")
    p("s_add_u32 s42, s42, s43")
    p("v_and_b32 v3, 15, v1")
    p("v_lshrrev_b32 v4, 4, v1")
    p("v_lshlrev_b32 v5, 4, v1")
    p("s_lshl_b32 s46, s41, 3")
    p("s_lshl_b32 s47, s40, 1")
    p("s_add_u32 s46, s46, s47")
    p(f"s_mul_i32 s47, s46, {OH_TILE}")
    p("v_add_u32 v6, s47, v5")
    p(f"v_add_u32 v7, {OH_TILE}, v6")
    p("v_lshrrev_b32 v12, 5, v1")
    p("v_lshlrev_b32 v13, 1, v12")
    p("v_and_b32 v14, 3, v1")
    p("v_xor_b32 v13, v13, v14")
    p("v_lshlrev_b32 v13, 4, v13")
    p("v_bfe_u32 v14, v1, 4, 1")
    p("v_lshl_add_u32 v13, v14, 6, v13")
    p("v_bfe_u32 v14, v1, 2, 2")
    p("v_lshl_add_u32 v12, v12, 2, v14")
    p("v_lshl_add_u32 v8, v12, 11, v13")
    p("s_lshl_b32 s47, s40, 16")
    p("s_lshl_b32 s48, s42, 7")
    p("s_add_u32 s47, s47, s48")
    p("v_add_u32 v8, s47, v8")
    for q in range(1, 4): p(f"v_add_u32 v{8+q}, {q*16384}, v8")
    p("v_lshlrev_b32 v12, 9, v4")
    p("v_bfe_u32 v13, v1, 2, 2")
    p("v_lshl_add_u32 v12, v13, 6, v12")
    p("v_and_b32 v13, 3, v1")
    p("v_lshl_add_u32 v12, v13, 3, v12")
    p("v_and_b32 v13, 1, v4")
    p("v_lshl_add_u32 v12, v13, 5, v12")
    p("v_xor_b32 v13, 32, v12")
    p("v_lshlrev_b32 v15, 3, v4")
    p("v_lshl_add_u32 v14, v3, 11, v15")
    p("s_waitcnt lgkmcnt(0)")
    srd(p, 12, 6, 128*OH_TILE, OH_F)
    srd(p, 16, 4, 1024*1024*2)
    srd(p, 20, 8, 3584*1024*2)
    srd(p, 24, 32, 2048*1024*2)
    srd(p, 28, 10, 2048)
    srd(p, 36, 34, 2048*1024*2)
    p("s_lshl_b32 s49, s46, 15")
    p("s_lshl_b32 s48, s42, 7")
    p("s_add_u32 s49, s49, s48")
    p("s_add_u32 s50, s49, 0x8000")
    for u in range(2):
        for t in range(4):
            p(f"buffer_load_dwordx2 {V(T+(u*4+t)*2,2)}, v14, s[24:27], s{49+u} offen offset:{t*32}")
    for t in range(4):
        p(f"buffer_load_dwordx2 {V(T+16+t*2,2)}, v15, s[28:31], s48 offen offset:{t*32}")
    p("s_lshl_b32 s51, s40, 12")
    def wdma():
        return [[f"s_add_u32 m0, s56, {q*1024}", f"buffer_load_dwordx4 v{8+q}, s[16:19], s54 offen lds"] for q in range(4)]
    def xld(sg, kb):
        return [f"buffer_load_dwordx4 {V(XF(sg,kb,u),4)}, v{6+u}, s[12:15], s53 offen offset:{kb*1024}" for u in range(2)]
    p("s_lshr_b32 s66, s2, 5")
    p("s_bfe_u32 s63, s2, 0x20003")
    p("s_add_u32 s66, s66, s63")
    p("s_mov_b32 s62, 0")
    def advance(q):
        q("s_add_u32 s62, s62, 1")
    def offsets(q, first):
        q("s_add_u32 s67, s62, s66")
        q("s_and_b32 s67, s67, 3")
        q(f"s_cselect_b32 s67, 0, {LA3}")
        q("s_add_u32 s67, s67, s62")
        q("s_cmp_ge_u32 s67, 36")
        q("s_cselect_b32 s68, 36, 0")
        q("s_sub_u32 s67, s67, s68")
        q("s_lshl_b32 s53, s67, 12")
        q("s_cmp_ge_u32 s67, 8")
        q("s_cselect_b32 s68, 8, 0")
        q("s_cselect_b32 s16, s20, s4")
        q("s_cselect_b32 s17, s21, s5")
        q("s_sub_u32 s67, s67, s68")
        q("s_lshl_b32 s54, s67, 18")
    p("s_mov_b32 s5, s17")
    p("s_mov_b32 s18, s22")
    for n in range(3):
        offsets(p, True)
        p(f"s_add_u32 s56, s51, {n*SEG}")
        for kb in range(4):
            for x in wdma()[kb]: p(x)
            for x in xld(n, kb): p(x)
        advance(p)
    offsets(p, True)
    p(f"s_add_u32 s56, s51, {3*SEG}")
    p("s_waitcnt vmcnt(36)")
    for t in range(4):
        for r in range(2):
            p(f"v_lshlrev_b32 v{WB+4*t+2*r}, 16, v{T+16+2*t+r}")
            p(f"v_and_b32 v{WB+4*t+2*r+1}, 0xffff0000, v{T+16+2*t+r}")
    for u in range(2):
        for t in range(4):
            for r in range(2):
                p(f"v_lshlrev_b32 v{acc(u,t)+2*r}, 16, v{T+(u*4+t)*2+r}")
                p(f"v_and_b32 v{acc(u,t)+2*r+1}, 0xffff0000, v{T+(u*4+t)*2+r}")
            for r in range(4): p(f"v_add_f32 v{acc(u,t)+r}, v{acc(u,t)+r}, v{WB+4*t+r}")
    def wreads(f, kb):
        return [f"ds_read_b64_tr_b16 {V(WF(f,t)+rho*2,2)}, v{12+(t&1)} offset:{kb*4096+rho*2048+(t>>1)*256}" for t in range(4) for rho in range(2)]
    def mfmas(f, sg, kb):
        return [M16(V(acc(u,t),4), V(WF(f,t),4), V(XF(sg,kb,u),4)) for t in range(4) for u in range(2)]
    p("s_waitcnt vmcnt(26)")
    p("s_barrier")
    stamp(p, 1)
    for x in wreads(0, 0): p(x)
    p("s_mov_b32 s58, 0")
    p("s_mov_b32 s59, 0")
    pre = fix(p.ins)
    b = Prog()
    b.label("L3_loop")
    for sg in range(3):
        for kb in range(4):
            f = kb & 1
            b("s_waitcnt vmcnt(33) lgkmcnt(0)")
            fill = []
            if kb < 3:
                rd = wreads(f^1, kb+1)
            else:
                rd = wreads(f^1, 0)
                b("s_waitcnt vmcnt(23)")
                b("s_barrier")
                b(f"s_add_u32 s60, s58, {SEG}")
                b(f"s_and_b32 s60, s60, {R*SEG-1}")
                b("s_sub_u32 s61, s60, s58")
                b("s_mov_b32 s58, s60")
                b("v_add_u32 v12, s61, v12")
                b("v_add_u32 v13, s61, v13")
            fill += [(i, x) for i, x in enumerate(rd)]
            wd = wdma()[kb]
            fill += [(0, wd[0]), (1, wd[1])]
            fill += [(7, x) for x in xld(sg, kb)]
            for x in interleave(mfmas(f, sg, kb), fill): b(x)
        b("s_add_u32 s59, s59, 1")
        b(f"s_add_u32 s56, s56, {SEG}")
        b(f"s_and_b32 s56, s56, {R*SEG-1}")
        advance(b)
        offsets(b, False)
        b(f"s_cmp_ge_u32 s59, {NSEG-3}")
        b("s_cselect_b32 s14, 0, s14")
        b("s_cselect_b32 s18, 0, s18")
    b(f"s_cmp_lt_u32 s59, {NSEG}")
    b("s_cbranch_scc1 L3_loop")
    rep = []
    body = fix(b.ins, pre=pre, report=rep)
    if rep: print("gemmb loop nops:", len(rep), rep[:5])
    rep = check_loop(body)
    assert not rep, rep
    e = Prog()
    stamp(e, 2)
    e("v_and_b32 v15, 1, v4")
    e("v_lshlrev_b32 v15, 5, v15")
    e("v_lshrrev_b32 v14, 1, v4")
    e("v_lshl_add_u32 v15, v14, 4, v15")
    e("v_lshl_add_u32 v15, v3, 11, v15")
    for u in range(2):
        for a in range(2):
            o = T + (u*2+a)*4
            t0, t1 = acc(u, 2*a), acc(u, 2*a+1)
            e(f"v_cvt_pk_bf16_f32 v{o}, v{t0}, v{t0+1}")
            e(f"v_cvt_pk_bf16_f32 v{o+1}, v{t0+2}, v{t0+3}")
            e(f"v_cvt_pk_bf16_f32 v{o+2}, v{t1}, v{t1+1}")
            e(f"v_cvt_pk_bf16_f32 v{o+3}, v{t1+2}, v{t1+3}")
            e(f"v_permlane16_swap_b32 v{o}, v{o+2}")
            e(f"v_permlane16_swap_b32 v{o+1}, v{o+3}")
            e(f"buffer_store_dwordx4 {V(o,4)}, v15, s[36:39], s{49+u} offen offset:{a*64} {STF}")
    stamp(e, 3)
    stamp_flush(e, 3, 5)
    e.label("L3_end")
    e("s_endpgm")
    epi = fix(e.ins, pre=body)
    ins = pre + [Ins(".p2align 6")] + body + epi
    return name, kernel_text(name, ins, NV, NV), (256, 256, lds)
```

```python
from common import *

LA3 = int(os.environ.get('LA3', '0'))
XPOS = os.environ.get('XPOS', 'start')
XSEL = os.environ.get('XSEL', 'pxb')
SEG = 16384
R = 4
D = 2

def gen():
    name = "gemmb_kernel"
    p = Prog()
    lds = R * SEG
    NSEG = 8
    ACC = 16
    def acc(u, t): return ACC + (u*4+t)*4
    XR = 48
    def XF(sg, kb, u): return XR + ((sg*4+kb)*2+u)*4
    WB = XR + D*32
    def WF(f, t): return WB + f*16 + t*4
    T = WB + 32
    PR = T + 16
    RR = PR + 32
    NV = RR + 24
    p("s_cmp_ge_u32 s2, 256")
    p("s_cbranch_scc1 L3_end")
    stamp(p, 0)
    p(f"s_load_dwordx2 s[4:5], s[0:1], {KA['wo']}")
    p(f"s_load_dwordx2 s[6:7], s[0:1], {KA['ws']}")
    p(f"s_load_dwordx4 s[32:35], s[0:1], {KA['b2']}")
    p(f"s_load_dwordx2 s[8:9], s[0:1], {KA['x']}")
    p("v_and_b32 v1, 63, v0")
    p("v_lshrrev_b32 v2, 6, v0")
    p("v_readfirstlane_b32 s40, v2")
    p("s_and_b32 s41, s2, 7")
    p("s_lshl_b32 s41, s41, 1")
    p("s_bfe_u32 s43, s2, 0x10003")
    p("s_add_u32 s41, s41, s43")
    p("s_lshr_b32 s42, s2, 4")
    p("s_add_u32 s66, s42, s43")
    p("v_lshlrev_b32 v5, 4, v1")
    p("s_lshl_b32 s46, s41, 3")
    p("s_lshl_b32 s47, s40, 1")
    p("s_add_u32 s46, s46, s47")
    p(f"s_mul_i32 s47, s46, {OH_TILE}")
    p("v_add_u32 v6, s47, v5")
    p(f"v_add_u32 v7, {OH_TILE}, v6")
    p("v_lshrrev_b32 v12, 5, v1")
    p("v_lshlrev_b32 v13, 1, v12")
    p("v_and_b32 v14, 3, v1")
    p("v_xor_b32 v13, v13, v14")
    p("v_lshlrev_b32 v13, 4, v13")
    p("v_bfe_u32 v14, v1, 4, 1")
    p("v_lshl_add_u32 v13, v14, 6, v13")
    p("v_bfe_u32 v14, v1, 2, 2")
    p("v_lshl_add_u32 v12, v12, 2, v14")
    p("v_lshl_add_u32 v8, v12, 11, v13")
    p("s_lshl_b32 s47, s40, 16")
    p("s_lshl_b32 s48, s42, 7")
    p("s_add_u32 s47, s47, s48")
    p("v_add_u32 v8, s47, v8")
    for q in range(1, 4): p(f"v_add_u32 v{8+q}, {q*16384}, v8")
    p("s_lshl_b32 s47, s41, 3")
    p("s_lshr_b32 s45, s42, 1")
    p("s_add_u32 s47, s47, s45")
    p("s_lshl_b32 s47, s47, 2")
    p("s_add_u32 s47, s47, s40")
    p("s_lshl_b32 s47, s47, 13")
    p("s_and_b32 s45, s42, 1")
    p("s_lshl_b32 s45, s45, 11")
    p("s_add_u32 s47, s47, s45")
    p(f"s_add_u32 s47, s47, {hex(PART)}")
    p("v_and_b32 v3, 15, v1")
    p("v_lshrrev_b32 v4, 4, v1")
    p("v_lshlrev_b32 v15, 3, v4")
    p("v_lshl_add_u32 v14, v3, 11, v15")
    p("s_lshl_b32 s49, s46, 15")
    p("s_add_u32 s49, s49, s48")
    p("s_add_u32 s50, s49, 0x8000")
    def extra_loads(q):
        if "p" in XSEL:
            for kh in range(2):
                for u in range(2):
                    q(f"s_add_u32 s45, s47, {kh*0x400000+u*4096}")
                    for a in range(2):
                        q(f"buffer_load_dwordx4 {V(PR+((kh*2+u)*2+a)*4,4)}, v5, s[24:27], s45 offen offset:{a*1024}")
        if "x" in XSEL:
            for u in range(2):
                for t in range(4):
                    q(f"buffer_load_dwordx2 {V(RR+(u*4+t)*2,2)}, v14, s[20:23], s{49+u} offen offset:{t*32}")
        if "b" in XSEL:
            for t in range(4):
                q(f"buffer_load_dwordx2 {V(RR+16+t*2,2)}, v15, s[28:31], s48 offen offset:{t*32}")
    p("s_lshl_b32 s51, s40, 12")
    p("s_mov_b32 s62, 0")
    def offsets(q):
        q("s_add_u32 s67, s62, s66")
        q("s_and_b32 s67, s67, 3")
        q(f"s_cselect_b32 s67, 0, {LA3}")
        q("s_add_u32 s67, s67, s62")
        q("s_and_b32 s67, s67, 7")
        q("s_lshl_b32 s53, s67, 12")
        q("s_lshl_b32 s54, s67, 18")
        q("s_add_u32 s62, s62, 1")
    offsets(p)
    p("s_waitcnt lgkmcnt(0)")
    srd(p, 12, 6, 128*OH_TILE, OH_F)
    srd(p, 16, 4, 1024*1024*2)
    srd(p, 24, 6, WS_SIZE)
    srd(p, 20, 8, 2048*1024*2)
    srd(p, 28, 32, 2048)
    if XPOS == "start": extra_loads(p)
    def wdma():
        return [[f"s_add_u32 m0, s56, {q*1024}", f"buffer_load_dwordx4 v{8+q}, s[16:19], s54 offen lds"] for q in range(4)]
    def xld(sg, kb):
        return [f"buffer_load_dwordx4 {V(XF(sg,kb,u),4)}, v{6+u}, s[12:15], s53 offen offset:{kb*1024}" for u in range(2)]
    for n in range(D):
        p(f"s_add_u32 s56, s51, {n*SEG}")
        for kb in range(4):
            for x in wdma()[kb]: p(x)
            for x in xld(n, kb): p(x)
        offsets(p)
        if n == 0:
            if XPOS == "mid": extra_loads(p)
            srd(p, 36, 34, 2048*1024*2)
            p("v_lshlrev_b32 v12, 9, v4")
            p("v_bfe_u32 v13, v1, 2, 2")
            p("v_lshl_add_u32 v12, v13, 6, v12")
            p("v_and_b32 v13, 3, v1")
            p("v_lshl_add_u32 v12, v13, 3, v12")
            p("v_and_b32 v13, 1, v4")
            p("v_lshl_add_u32 v12, v13, 5, v12")
            p("v_xor_b32 v13, 32, v12")
            for i in range(32): p(f"v_mov_b32 v{ACC+i}, 0")
    p(f"s_add_u32 s56, s51, {D*SEG}")
    def wreads(f, kb):
        return [f"ds_read_b64_tr_b16 {V(WF(f,t)+rho*2,2)}, v{12+(t&1)} offset:{kb*4096+rho*2048+(t>>1)*256}" for t in range(4) for rho in range(2)]
    def mfmas(f, sg, kb):
        return [M16(V(acc(u,t),4), V(WF(f,t),4), V(XF(sg,kb,u),4)) for t in range(4) for u in range(2)]
    p(f"s_waitcnt vmcnt({2+12*(D-1)})")
    p("s_barrier")
    stamp(p, 1)
    for x in wreads(0, 0): p(x)
    p("s_mov_b32 s58, 0")
    p("s_mov_b32 s59, 0")
    if LOOPST: p("s_mov_b32 s71, 0")
    loopstamp(p, "v2", f"v{T}")
    pre = fix(p.ins)
    b = Prog()
    b.label("L3_loop")
    for sg in range(D):
        for kb in range(4):
            f = kb & 1
            b(f"s_waitcnt vmcnt({12*D-3}) lgkmcnt(0)")
            if kb < 3:
                rd = wreads(f^1, kb+1)
            else:
                rd = wreads(f^1, 0)
                loopstamp(b, "v2", f"v{T}")
                b(f"s_waitcnt vmcnt({2+12*(D-2)+9})")
                loopstamp(b, "v2", f"v{T}")
                b("s_barrier")
                loopstamp(b, "v2", f"v{T}")
                b(f"s_add_u32 s60, s58, {SEG}")
                b(f"s_and_b32 s60, s60, {R*SEG-1}")
                b("s_sub_u32 s61, s60, s58")
                b("s_mov_b32 s58, s60")
                b("v_add_u32 v12, s61, v12")
                b("v_add_u32 v13, s61, v13")
            fill = [(i, x) for i, x in enumerate(rd)]
            wd = wdma()[kb]
            fill += [(0, wd[0]), (1, wd[1])]
            fill += [(7, x) for x in xld(sg, kb)]
            for x in interleave(mfmas(f, sg, kb), fill): b(x)
        b("s_add_u32 s59, s59, 1")
        b(f"s_add_u32 s56, s56, {SEG}")
        b(f"s_and_b32 s56, s56, {R*SEG-1}")
        offsets(b)
        b(f"s_cmp_ge_u32 s59, {NSEG-D}")
        b("s_cselect_b32 s14, 0, s14")
        b("s_cselect_b32 s18, 0, s18")
    if XPOS == "late":
        b(f"s_cmp_eq_u32 s59, {NSEG-D}")
        b("s_cbranch_scc0 L3_nopart")
        extra_loads(b)
    b.label("L3_nopart")
    b(f"s_cmp_lt_u32 s59, {NSEG}")
    b("s_cbranch_scc1 L3_loop")
    rep = []
    body = fix(b.ins, pre=pre, report=rep)
    if rep: print("gemmb loop nops:", len(rep), rep[:5])
    assert not check_loop(body)
    e = Prog()
    stamp(e, 2)
    e("v_and_b32 v15, 1, v4")
    e("v_lshlrev_b32 v15, 5, v15")
    e("v_lshrrev_b32 v14, 1, v4")
    e("v_lshl_add_u32 v15, v14, 4, v15")
    e("v_lshl_add_u32 v15, v3, 11, v15")
    e(f"s_waitcnt vmcnt({12*D})")
    for src in ([PR+i for i in range(16)], [PR+16+i for i in range(16)], [RR+i for i in range(16)], [RR+16+(i&7) for i in range(16)]):
        for i in range(16):
            tt = T + 2*(i&3)
            e(f"v_lshlrev_b32 v{tt}, 16, v{src[i]}")
            e(f"v_and_b32 v{tt+1}, 0xffff0000, v{src[i]}")
            e(f"v_pk_add_f32 {V(ACC+2*i,2)}, {V(ACC+2*i,2)}, {V(tt,2)}")
    for u in range(2):
        for a in range(2):
            o = T + (u*2+a)*4
            t0, t1 = acc(u, 2*a), acc(u, 2*a+1)
            e(f"v_cvt_pk_bf16_f32 v{o}, v{t0}, v{t0+1}")
            e(f"v_cvt_pk_bf16_f32 v{o+1}, v{t0+2}, v{t0+3}")
            e(f"v_cvt_pk_bf16_f32 v{o+2}, v{t1}, v{t1+1}")
            e(f"v_cvt_pk_bf16_f32 v{o+3}, v{t1+2}, v{t1+3}")
            e(f"v_permlane16_swap_b32 v{o}, v{o+2}")
            e(f"v_permlane16_swap_b32 v{o+1}, v{o+3}")
            e(f"buffer_store_dwordx4 {V(o,4)}, v15, s[36:39], s{49+u} offen offset:{a*64} {ST_OUT}")
    stamp(e, 3)
    if LOOPST: e("v_mov_b32 v3, v2")
    stamp_flush(e, 3, 5)
    loopstamp_flush(e, "v3", 3)
    e.label("L3_end")
    e("s_endpgm")
    epi = fix(e.ins, pre=body)
    ins = pre + [Ins(".p2align 6")] + body + epi
    return name, kernel_text(name, ins, NV, NV), (256, 256, lds)
```

```python
import sys, importlib
from common import *
import k0_lnkv, k1_gemma, k2_attn, k3_gemmb, k2_fused, k3_out, k0_ln
HDR = open("cdna_kernels/%s.s.ref" % NAME).read().split("; Override launch")[0]
if os.environ.get("FUSED", "1") == "1":
    ks = [k0_ln.gen(), k1_gemma.gen(), k2_fused.gen(), k3_out.gen()]
else:
    ks = [k0_lnkv.gen(), k1_gemma.gen(), k2_attn.gen(), k3_gemmb.gen()]
order = [int(x) for x in os.environ.get("ORDER", "").split(",") if x] or list(range(len(ks)))
if max(order) >= len(ks):
    ks.append(("empty_kernel", kernel_text("empty_kernel", [Ins("s_endpgm")], 8, 8), (256, 256, 0)))
s = HDR
for oi in order:
    name, txt, (g, b, lds) = ks[oi]
    s += f"; @launch kernel={name} grid=({g},1,1) block=({b},1,1) lds={lds}\n"
s += '.amdgcn_target "amdgcn-amd-amdhsa--gfx950"\n'
for name, txt, _ in ks: s += txt
out = sys.argv[1] if len(sys.argv) > 1 else "cdna_kernels/%s.s" % NAME
open(out, "w").write(s)
print("wrote", out, len(s))
```

```python
from common import *
import math

LA1 = int(os.environ.get('LA1', '4'))
KVT = int(os.environ.get('KVT', '1'))
PFW2 = int(os.environ.get('PFW2', '1'))
STG = 53248
WOFF = 16384

def gen():
    name = "gemma_kernel"
    p = Prog()
    lds = 3 * STG
    ACC = 16
    def acc(u, t): return ACC + (u*9+t)*4
    BIAS = 160; CSC = 188; T = 192
    def XF(f, u): return f*52 + u*4
    def WF(f, t): return f*52 + 16 + t*4
    p("s_cmp_ge_u32 s2, 256")
    p("s_cbranch_scc1 L1_end")
    stamp(p, 0)
    p(f"s_load_dwordx2 s[4:5], s[0:1], {KA['wq']}")
    p(f"s_load_dwordx4 s[8:11], s[0:1], {KA['w1']}")
    p(f"s_load_dwordx2 s[6:7], s[0:1], {KA['ws']}")
    if PFW2: p(f"s_load_dwordx2 s[64:65], s[0:1], {KA['w2']}")
    if KVT: p(f"s_load_dwordx4 s[32:35], s[0:1], {KA['wk']}")
    p("v_and_b32 v1, 63, v0")
    p("v_lshrrev_b32 v2, 6, v0")
    p("v_readfirstlane_b32 s40, v2")
    p("s_and_b32 s41, s2, 1")
    p("s_lshl_b32 s41, s41, 3")
    p("s_bfe_u32 s42, s2, 0x30003")
    p("s_add_u32 s41, s41, s42")
    p("s_bfe_u32 s42, s2, 0x20001")
    p("s_lshl_b32 s42, s42, 2")
    p("s_lshr_b32 s43, s2, 6")
    p("s_add_u32 s42, s42, s43")
    p("s_lshr_b32 s44, s40, 1")
    p("s_and_b32 s45, s40, 1")
    p("v_and_b32 v3, 15, v1")
    p("v_lshrrev_b32 v4, 4, v1")
    p("v_lshlrev_b32 v5, 4, v1")
    p("s_lshl_b32 s46, s41, 3")
    p("s_lshl_b32 s47, s40, 1")
    p("s_add_u32 s46, s46, s47")
    p("s_lshl_b32 s46, s46, 15")
    p("v_add_u32 v6, s46, v5")
    p("v_add_u32 v7, 0x8000, v6")
    p("v_lshrrev_b32 v8, 5, v1")
    p("v_lshlrev_b32 v8, 1, v8")
    p("v_and_b32 v9, 3, v1")
    p("v_xor_b32 v8, v8, v9")
    p("v_lshlrev_b32 v8, 4, v8")
    p("v_lshrrev_b32 v9, 2, v1")
    p("s_lshl_b32 s47, s40, 4")
    p("v_add_u32 v9, s47, v9")
    p("s_movk_i32 s47, 7168")
    p("v_mul_lo_u32 v10, v9, s47")
    p("v_add_u32 v10, v10, v8")
    p("s_mul_i32 s47, s42, 448")
    p("v_add_u32 v10, s47, v10")
    p("v_lshl_add_u32 v9, v9, 11, v8")
    p("s_lshl_b32 s47, s42, 7")
    p("v_add_u32 v9, s47, v9")
    p("s_lshl_b32 s47, s44, 13")
    p("v_add_u32 v11, s47, v5")
    p("v_lshlrev_b32 v12, 9, v4")
    p("v_bfe_u32 v13, v1, 2, 2")
    p("v_lshl_add_u32 v12, v13, 6, v12")
    p("v_and_b32 v13, 3, v1")
    p("v_lshl_add_u32 v12, v13, 3, v12")
    p("v_and_b32 v13, 1, v4")
    p("v_lshl_add_u32 v12, v13, 5, v12")
    p("s_lshl_b32 s47, s45, 5")
    p("v_xor_b32 v14, s47, v12")
    p(f"v_add_u32 v14, {WOFF+32768}, v14")
    p("s_lshl_b32 s47, s45, 14")
    p(f"s_add_u32 s47, s47, {WOFF}")
    p("v_add_u32 v12, s47, v12")
    p("v_xor_b32 v13, 32, v12")
    stamp(p, 5)
    p("s_waitcnt lgkmcnt(0)")
    stamp(p, 6)
    srd(p, 12, 6, 0x400000, XN_F)
    srd(p, 16, 4, 1024*1024*2)
    srd(p, 20, 8, 1024*3584*2)
    srd(p, 24, 6, WS_SIZE)
    srd(p, 28, 10, 3584*2)
    small = Prog()
    def psm(x): small(x)
    psm("v_lshlrev_b32 v15, 3, v4")
    psm("s_mul_i32 s47, s42, 448")
    psm("s_lshl_b32 s48, s45, 8")
    psm("s_add_u32 s48, s48, s47")
    for t in range(6):
        psm(f"buffer_load_dwordx2 {V(T+2*t,2)}, v15, s[28:31], s48 offen offset:{t*32}")
    psm("s_lshl_b32 s48, s45, 5")
    psm("s_add_u32 s48, s48, s47")
    psm(f"buffer_load_dwordx2 {V(T+12,2)}, v15, s[28:31], s48 offen offset:192")
    psm("v_lshlrev_b32 v15, 2, v3")
    psm("s_lshl_b32 s47, s41, 9")
    psm("s_lshl_b32 s48, s44, 8")
    psm("s_add_u32 s47, s47, s48")
    psm(f"s_add_u32 s47, s47, {hex(CS)}")
    for u in range(4):
        psm(f"buffer_load_dword v{CSC+u}, v15, s[24:27], s47 offen offset:{u*64}")
    p("s_lshl_b32 s51, s40, 12")
    p("s_lshl_b32 s52, s40, 10")
    p(f"s_add_u32 s52, s52, {WOFF}")
    slot_of = {"q0": 0, "q1": 4, 0: 1, 1: 2, 2: 3, 3: 8, 4: 5, 5: 6, 6: 7}
    def dma_list():
        L = []
        L.append(["s_mov_b32 m0, s56", "buffer_load_dwordx4 v6, s[12:15], s53 offen lds"])
        L.append(["buffer_load_dwordx4 v6, s[12:15], s53 offen offset:1024 lds"])
        L.append(["s_add_u32 m0, s56, 2048", "buffer_load_dwordx4 v7, s[12:15], s53 offen lds"])
        L.append(["buffer_load_dwordx4 v7, s[12:15], s53 offen offset:1024 lds"])
        for a in range(2):
            L.append([f"s_add_u32 m0, s57, {slot_of['q%d'%a]*4096 - a*64}", f"buffer_load_dwordx4 v9, s[16:19], s54 offen offset:{a*64} lds"])
        for a in range(7):
            L.append([f"s_add_u32 m0, s57, {slot_of[a]*4096 - a*64}", f"buffer_load_dwordx4 v10, s[20:23], s55 offen offset:{a*64} lds"])
        return L
    D = dma_list()
    NB = 7
    p("s_bfe_u32 s66, s2, 0x30003")
    p("s_lshr_b32 s67, s2, 6")
    p("s_add_u32 s66, s66, s67")
    def koffs(nreg):
        return [f"s_add_u32 s67, {nreg}, s66", "s_and_b32 s67, s67, 3", f"s_cselect_b32 s67, 0, {LA1}", f"s_add_u32 s67, s67, {nreg}",
                "s_and_b32 s67, s67, 15", f"s_and_b32 s68, {nreg}, 16", "s_or_b32 s67, s67, s68",
                "s_lshl_b32 s53, s67, 11", "s_lshl_b32 s54, s67, 17", f"s_mul_i32 s55, s67, {64*7168}"]
    def set_stage(n):
        for x in koffs(str(n)): p(x)
        p(f"s_add_u32 s56, s51, {n*STG}")
        p(f"s_add_u32 s57, s52, {n*STG}")
    for n in range(2):
        set_stage(n)
        for d in D:
            for x in d: p(x)
        if n == 0:
            stamp(p, 7)
            for i in range(144): p(f"v_mov_b32 v{ACC+i}, 0")
            pass
    set_stage(2)
    stamp(p, 4)
    def reads(f, kk):
        R = []
        for u in range(4):
            R.append(f"ds_read_b128 {A(XF(f,u),4)}, v11 offset:{u*2048+kk*1024}")
        for t in range(9):
            for rho in range(2):
                if t < 8:
                    R.append(f"ds_read_b64_tr_b16 {A(WF(f,t)+rho*2,2)}, v{12+(t&1)} offset:{(t>>1)*4096+kk*2048+rho*256}")
                else:
                    R.append(f"ds_read_b64_tr_b16 {A(WF(f,t)+rho*2,2)}, v14 offset:{kk*2048+rho*256}")
        return R
    def mfmas(f):
        return [M16(V(acc(u,t),4), A(WF(f,t),4), A(XF(f,u),4)) for t in range(9) for u in range(4)]
    p("s_waitcnt vmcnt(13)")
    p("s_barrier")
    stamp(p, 1)
    for x in reads(0, 0): p(x)
    if LOOPST: p("s_mov_b32 s71, 0")
    loopstamp(p, "v2", "v15")
    p("s_mov_b32 s58, 0")
    p("s_mov_b32 s59, 3")
    p("s_waitcnt lgkmcnt(0)")
    def phaseA(dl, pos, extra=()):
        fill = [(i, x) for i, x in enumerate(reads(1, 1))]
        for d, ps in zip(dl, pos):
            if len(d) == 2: fill.append((ps-1, d[0]))
            fill.append((ps, d[-1]))
        fill += list(extra)
        fill += [(28, f"s_add_u32 s60, s58, {STG}"), (28, f"s_cmp_eq_u32 s60, {3*STG}"), (29, "s_cselect_b32 s60, 0, s60"), (29, "s_sub_u32 s61, s60, s58")]
        fill += [(30, "v_add_u32 v11, s61, v11"), (31, "v_add_u32 v12, s61, v12"), (32, "v_add_u32 v13, s61, v13"), (33, "v_add_u32 v14, s61, v14")]
        ko = koffs("s59")
        fill += [(30, "s_add_u32 s56, s51, s58"), (30, "s_add_u32 s57, s52, s58"), (31, "s_mov_b32 s58, s60"),
                 (23, ko[0]), (24, ko[1]), (24, ko[2]), (27, ko[3]), (31, ko[4]), (32, ko[5]), (32, ko[6]), (33, ko[7]), (34, ko[8]), (34, ko[9]),
                 (35, "s_cmp_ge_u32 s59, 16"), (35, "s_cselect_b32 s14, 0, s14"), (35, "s_cselect_b32 s56, 0x30000, s56"), (35, "s_cselect_b32 s57, 0x30000, s57"), (35, "s_add_u32 s59, s59, 1")]
        return interleave(mfmas(0), fill)
    for x in phaseA(D, [1, 3, 5, 7, 9, 11, 13, 15, 17, 19, 21, 23, 25]): p(x)
    p.extend(small)
    p("s_waitcnt vmcnt(24) lgkmcnt(0)")
    p("s_branch L1_mid")
    pre = fix(p.ins)
    b = Prog()
    b.label("L1_loop")
    for x in phaseA(D[NB:], [2, 7, 12, 17, 22, 27]): b(x)
    loopstamp(b, "v2", "v15")
    b("s_waitcnt vmcnt(13) lgkmcnt(0)")
    b.label("L1_mid")
    loopstamp(b, "v2", "v15")
    b("s_barrier")
    loopstamp(b, "v2", "v15")
    fill = [(i, x) for i, x in enumerate(reads(0, 0))]
    pos = [2, 7, 12, 17, 22, 27, 32]
    for d, ps in zip(D[:NB], pos):
        if len(d) == 2: fill.append((ps-1, d[0]))
        fill.append((ps, d[-1]))
    fill += [(33, f"s_cmp_lt_u32 s59, {18 if KVT else 19}")]
    for x in interleave(mfmas(1), fill): b(x)
    b("s_waitcnt lgkmcnt(0)")
    b("s_cbranch_scc1 L1_loop")
    body = fix(b.ins, pre=pre)
    rep = check_loop(body)
    assert not rep, rep
    e = Prog()
    if not KVT: stamp(e, 2)
    KVB = STG; KVR = STG + 65536; KX = 104
    if KVT:
        ops = []
        for q in range(8):
            ops.append([f"buffer_load_dwordx4 {A(KX+4*q,4)}, v5, s[24:27], s{38+(q>>2)} offen offset:{(q&3)*1024}"])
        for pp in range(4):
            for q in range(4):
                o = [f"buffer_load_dwordx4 v10, s[16:19], s50 offen offset:{q*1024} lds"]
                if q == 0: o = [f"s_add_u32 m0, s49, {KVB+pp*4096}", f"s_add_u32 s50, s49, {pp*4096}"] + o
                ops.append(o)
        setup = Prog()
        setup("s_and_b32 s36, s42, 1")
        setup("s_cselect_b32 s32, s34, s32")
        setup("s_cselect_b32 s33, s35, s33")
        srd(setup, 16, 32, 65536)
        setup("s_lshl_b32 s37, s41, 3")
        setup("s_lshr_b32 s38, s42, 1")
        setup("s_add_u32 s37, s37, s38")
        setup("s_lshl_b32 s38, s37, 15")
        setup("s_lshl_b32 s39, s40, 13")
        setup("s_add_u32 s38, s38, s39")
        setup("s_add_u32 s39, s38, 4096")
        setup("v_lshrrev_b32 v10, 2, v1")
        setup("v_lshl_add_u32 v10, v10, 6, v8")
        setup("s_lshl_b32 s49, s40, 14")
        st = [i.text for i in setup.ins]
        fill = [(i, x) for i, x in enumerate(reads(1, 1))]
        fill += [(i // 3, x) for i, x in enumerate(st)]
        order = ops[8:] + ops[:8]
        for k, o in enumerate(order[:10]):
            ps = 7 + 3*k
            for x in o[:-1]: fill.append((ps-1, x))
            fill.append((ps, o[-1]))
        for x in interleave(mfmas(0), fill): e(x)
        e("s_waitcnt lgkmcnt(0)")
        fill = []
        for k, o in enumerate(order[10:]):
            ps = 1 + (5*k)//2
            for x in o[:-1]: fill.append((ps-1, x))
            fill.append((ps, o[-1]))
        for x in interleave(mfmas(1), fill): e(x)
        stamp(e, 2)
        if PFW2:
            srd(e, 20, 64, 3584*1024*2)
            e("v_lshlrev_b32 v9, 7, v1")
            e("s_lshl_b32 s50, s2, 2")
            e("s_add_u32 s50, s50, s40")
            e("s_lshl_b32 s50, s50, 13")
            e("buffer_load_dword v2, v9, s[20:23], s50 offen")
        e("s_mov_b32 s38, s49")
        e("v_lshlrev_b32 v12, 9, v4")
        e("v_bfe_u32 v13, v1, 2, 2")
        e("v_lshl_add_u32 v12, v13, 6, v12")
        e("v_and_b32 v13, 3, v1")
        e("v_lshl_add_u32 v12, v13, 3, v12")
        e("v_and_b32 v13, 1, v4")
        e("v_lshl_add_u32 v12, v13, 5, v12")
        e(f"s_add_u32 s39, s38, {KVB}")
        e("v_add_u32 v12, s39, v12")
        e("v_xor_b32 v13, 32, v12")
        e("s_lshl_b32 s39, s40, 11")
        e(f"s_add_u32 s39, s39, {KVR}")
        e("v_add_u32 v14, s39, v5")
        e("s_lshl_b32 s39, s40, 10")
        e(f"s_add_u32 s39, s39, {KVR}")
        e("v_add_u32 v15, s39, v5")
    for t in range(7):
        for r in range(2):
            e(f"v_lshlrev_b32 v{BIAS+4*t+2*r}, 16, v{T+2*t+r}")
            e(f"v_and_b32 v{BIAS+4*t+2*r+1}, 0xffff0000, v{T+2*t+r}")
    e("s_lshl_b32 s46, s41, 3")
    e("s_lshl_b32 s47, s44, 2")
    e("s_add_u32 s46, s46, s47")
    e("s_lshl_b32 s47, s46, 15")
    e("s_lshl_b32 s48, s42, 1")
    e("s_add_u32 s48, s48, s45")
    e("s_lshl_b32 s48, s48, 10")
    e("s_add_u32 s47, s47, s48")
    e(f"s_add_u32 s47, s47, {hex(Q_F)}")
    e(f"s_mul_i32 s48, s46, {OH_TILE}")
    e("s_mul_i32 s49, s42, 7168")
    e("s_add_u32 s48, s48, s49")
    e(f"s_add_u32 s48, s48, {hex(OH_F+32*1024)}")
    e("s_lshl_b32 s49, s45, 12")
    e("v_add_u32 v6, s49, v5")
    e("s_lshl_b32 s49, s45, 3")
    e("v_add_u32 v7, s49, v5")
    qs = math.log2(math.e) / math.sqrt(32.0)
    k1 = -2.0 * math.sqrt(2.0/math.pi) * math.log2(math.e)
    k2 = k1 * 0.044715
    e(f"s_mov_b32 s62, {f32(qs)}")
    e(f"s_mov_b32 s63, {f32(qs)}")
    e(f"s_mov_b32 s64, {f32(k2)}")
    e(f"s_mov_b32 s65, {f32(k2)}")
    e(f"v_mov_b32 v8, {f32(k1)}")
    e(f"v_mov_b32 v9, {f32(k1)}")
    tcnt = [0]
    def gelu_tiles(u, ts, out):
        prs = [(acc(u,t)+2*h, BIAS+4*(t-2)+2*h) for t in ts for h in range(2)]
        n = len(prs)
        tb = T + 16 + (tcnt[0] % 2) * 16; tcnt[0] += 1
        cpair = CSC + (u & ~1)
        sel = u & 1
        for (a, bb) in prs:
            e(f"v_pk_fma_f32 {V(a,2)}, {V(a,2)}, {V(cpair,2)}, {V(bb,2)} op_sel:[0,{sel},0] op_sel_hi:[1,{sel},1]")
        for i, (a, bb) in enumerate(prs): e(f"v_pk_mul_f32 {V(tb+2*i,2)}, {V(a,2)}, {V(a,2)}")
        for i, (a, bb) in enumerate(prs): e(f"v_pk_fma_f32 {V(tb+2*i,2)}, {V(tb+2*i,2)}, s[64:65], v[8:9]")
        for i, (a, bb) in enumerate(prs): e(f"v_pk_mul_f32 {V(tb+2*i,2)}, {V(tb+2*i,2)}, {V(a,2)}")
        for i in range(2*n): e(f"v_exp_f32 v{tb+i}, v{tb+i}")
        for i in range(n): e(f"v_pk_add_f32 {V(tb+2*i,2)}, {V(tb+2*i,2)}, 1.0 op_sel_hi:[1,0]")
        for i in range(2*n): e(f"v_rcp_f32 v{tb+i}, v{tb+i}")
        for i, (a, bb) in enumerate(prs): e(f"v_pk_mul_f32 {V(a,2)}, {V(a,2)}, {V(tb+2*i,2)}")
        for i, (a, bb) in enumerate(prs): e(f"v_cvt_pk_bf16_f32 v{out+i}, v{a}, v{a+1}")
    ocnt = [0]
    def outreg():
        r = T + (ocnt[0] % 4) * 4; ocnt[0] += 1
        return r
    for u in range(4):
        o = outreg()
        for t in range(2):
            for h in range(2):
                a = acc(u,t)+2*h
                e(f"v_pk_mul_f32 {V(a,2)}, {V(a,2)}, s[62:63]")
        for t in range(2):
            for h in range(2):
                a = acc(u,t)+2*h
                e(f"v_cvt_pk_bf16_f32 v{o+2*t+h}, v{a}, v{a+1}")
        e(f"buffer_store_dwordx4 {V(o,4)}, v5, s[24:27], s47 offen {ST_Q}")
        for a3 in range(3):
            o = outreg()
            gelu_tiles(u, [2+2*a3, 3+2*a3], o)
            e(f"buffer_store_dwordx4 {V(o,4)}, v6, s[24:27], s48 offen offset:{a3*1024} {ST_H}")
        o = outreg()
        gelu_tiles(u, [8], o)
        e(f"buffer_store_dwordx2 {V(o,2)}, v7, s[24:27], s48 offen offset:3072 {ST_H}")
        if u < 3:
            e("s_add_u32 s47, s47, 0x8000")
            e(f"s_add_u32 s48, s48, {OH_TILE}")
        KA_ = 240
        if KVT and u == 0:
            e(f"s_waitcnt vmcnt({5+PFW2})")
            for s_ in range(8):
                for t in range(2):
                    for rho in range(2):
                        e(f"ds_read_b64_tr_b16 {A(32+(s_*2+t)*4+rho*2,2)}, v{12+t} offset:{s_*2048+rho*256}")
        if KVT and u == 1:
            e("s_waitcnt lgkmcnt(0)")
            e("v_lshrrev_b32 v11, 1, v4")
            e("v_and_b32 v10, 1, v4")
            e("s_lshr_b32 s38, s37, 1")
            e("s_lshl_b32 s38, s38, 12")
            e(f"s_add_u32 s38, s38, {hex(KV)}")
            e("s_and_b32 s39, s37, 1")
            e("s_cmp_eq_u32 s36, 0")
            e("s_cbranch_scc0 L1_kvv")
            for s_ in range(8):
                for t in range(2):
                    e(M16(V(KA_+4*t,4), A(32+(s_*2+t)*4,4), A(KX+4*s_,4), "0" if s_ == 0 else None))
            e("v_lshlrev_b32 v11, 10, v11")
            e("s_lshl_b32 s39, s39, 8")
            e("s_add_u32 s38, s38, s39")
            e("s_lshl_b32 s39, s40, 3")
            e("s_branch L1_kvj")
            e.label("L1_kvv")
            for s_ in range(8):
                for t in range(2):
                    e(M16(V(KA_+4*t,4), A(KX+4*s_,4), A(32+(s_*2+t)*4,4), "0" if s_ == 0 else None))
            e("v_lshlrev_b32 v11, 3, v11")
            e("s_lshl_b32 s39, s39, 10")
            e("s_add_u32 s38, s38, s39")
            e("s_add_u32 s38, s38, 2048")
            e("s_lshl_b32 s39, s40, 8")
            e.label("L1_kvj")
            e("s_add_u32 s38, s38, s39")
            e("v_lshl_add_u32 v11, v10, 9, v11")
            e("v_lshl_add_u32 v11, v3, 4, v11")
            e("s_nop 7")
            e(f"ds_write_b128 v14, {V(KA_,4)} offset:0")
            e(f"ds_write_b128 v14, {V(KA_+4,4)} offset:1024")
        if KVT and u == 2:
            e("s_waitcnt lgkmcnt(0)")
            e("s_barrier")
            e("s_cmp_ge_u32 s40, 2")
            e("s_cbranch_scc1 L1_kvd")
            for w in range(4): e(f"ds_read_b128 {V(KA_+4*w,4)}, v15 offset:{w*2048}")
            e("s_waitcnt lgkmcnt(0)")
            for r in range(2):
                e(f"v_pk_add_f32 {V(KA_+2*r,2)}, {V(KA_+2*r,2)}, {V(KA_+4+2*r,2)}")
                e(f"v_pk_add_f32 {V(KA_+8+2*r,2)}, {V(KA_+8+2*r,2)}, {V(KA_+12+2*r,2)}")
            for r in range(2): e(f"v_pk_add_f32 {V(KA_+2*r,2)}, {V(KA_+2*r,2)}, {V(KA_+8+2*r,2)}")
            e(f"v_cvt_pk_bf16_f32 v{KA_+4}, v{KA_}, v{KA_+1}")
            e(f"v_cvt_pk_bf16_f32 v{KA_+5}, v{KA_+2}, v{KA_+3}")
            e(f"buffer_store_dwordx2 {V(KA_+4,2)}, v11, s[24:27], s38 offen {ST_Q}")
            e.label("L1_kvd")
    stamp(e, 3)
    if LOOPST: e("v_mov_b32 v3, v2")
    stamp_flush(e, 1, 9)
    loopstamp_flush(e, "v3", 1)
    e.label("L1_end")
    e("s_endpgm")
    epi = fix(e.ins, pre=body)
    ins = pre + [Ins(".p2align 6")] + body + epi
    return name, kernel_text(name, ins, 256+136, 256), (256, 256, lds)
```

```python
import json, itertools
from mbgen import build
import mb2
from mb2 import *
ks.clear()
def SM(d, a, b): return f"    v_smfmac_f32_16x16x64_bf16 v[{d}:{d+3}], v[{a}:{a+3}], v[{b}:{b+7}], v3\n"
def tile2(sw, sr, pw, pr, pos, smf, rd):
    m = [M32(sw, 4, 20, 212), M32(sw, 8, 24), M32(192, 12, pr), M32(192, 16, pr+4)]
    m += [SM(208, 28, pr)] if smf else [M16(208, 28, pr), M16(208, 28, pr+4)]
    e = [EXP(sr+i, sr+i) for i in range(16)]
    c = [CVT(pw+i, sr+2*i, sr+1+2*i) for i in range(8)]
    v = []
    for i in range(8):
        v += [e[2*i], e[2*i+1]]
        if i >= 1: v.append(c[i-1])
    v.append(c[7])
    out = []; cum = 0; mi = 0
    for x in v:
        while mi < len(m) and cum >= pos[mi]:
            out.append(m[mi])
            if rd and mi < 4: out.append(f"    ds_read_b128 v[{228+4*mi}:{231+4*mi}], v1 offset:{1024*mi}\n")
            mi += 1
        out.append(x); cum += 8 if "exp" in x else 4
    while mi < len(m): out.append(m[mi]); mi += 1
    return "".join(out)
def abody(pos, smf):
    return tile2(128, 144, 176, 184, pos, smf, True) + "    s_waitcnt lgkmcnt(0)\n" + tile2(144, 128, 184, 176, pos, smf, False)
def gblock(kind, f, vm=True, nrd=16):
    s = "    s_waitcnt vmcnt(35) lgkmcnt(0)\n"
    n = 16 if kind == 16 else 8
    per = 2 if kind == 16 else 4
    for i in range(n):
        if kind == 16: s += M16(128+4*i, 4+f*32+4*(i//2), 68+4*(i%2))
        else: s += M32(128+16*(i%4), 4+f*32+4*i, 68+4*(i//4))
        for r in range(per):
            k = i*per + r
            if k < nrd: s += f"    ds_read_b64_tr_b16 v[{4+(f^1)*32+2*k}:{5+(f^1)*32+2*k}], v2 offset:{512*k}\n"
        if vm:
            j = i if kind == 16 else 2*i
            if j in (8, 10, 12): s += f"    s_mov_b32 m0, 0x4000\n    s_add_u32 s40, s41, 0\n"
            if (kind == 16 and j in (9, 11, 13)) or (kind == 32 and j in (8, 10, 12)): s += "    s_nop 0\n    buffer_load_dwordx4 v1, s[12:15], s40 offen lds\n"
    if vm:
        s += "    buffer_load_dwordx4 v[200:203], v1, s[12:15], s40 offen\n    buffer_load_dwordx4 v[204:207], v1, s[12:15], s40 offen offset:1024\n"
    return s
def spec(nm, a, g, pa, pg, iters=8, rep=4):
    b = f"""    v_lshrrev_b32 v2, 8, v0
    s_nop 0
    v_readfirstlane_b32 s30, v2
    v_lshrrev_b32 v2, 1, v1
    v_mov_b32 v3, 0x44
    s_mov_b32 s41, 0
    s_mov_b32 s40, 0
    s_mov_b32 s31, {iters}
    s_cmp_eq_u32 s30, 0
    s_cbranch_scc0 L_g_{nm}
    s_setprio {pa}
L_a_{nm}:
{a*2*rep}
    s_sub_u32 s31, s31, 1
    s_cmp_lg_u32 s31, 0
    s_cbranch_scc1 L_a_{nm}
    s_branch L_e_{nm}
L_g_{nm}:
    s_setprio {pg}
L_g2_{nm}:
{g*rep}
    s_sub_u32 s31, s31, 1
    s_cmp_lg_u32 s31, 0
    s_cbranch_scc1 L_g2_{nm}
L_e_{nm}:
"""
    ks.append(dict(name=nm, body=b, init=init_regs(128) + "    v_and_b32 v1, 63, v0\n    v_lshlrev_b32 v1, 4, v1\n", iters=1, nwaves=8, nvgpr=256, accum=256, note="cyc per unit(2 tiles + 16 m16)", iters_total=iters*rep*2, lds=32768))
P = {"even": [0, 28, 56, 84, 112, 136], "dense": [0, 24, 48, 72, 96, 104], "pairs": [0, 24, 80, 104, 128, 136]}
PS = {"even": [0, 32, 64, 96, 128], "dense": [0, 24, 48, 72, 96], "pairs": [0, 24, 80, 104, 128]}
for kind in (16, 32):
    g = gblock(kind, 0) + gblock(kind, 1)
    for pn in P:
        for smf in (0, 1):
            spec(f"g{kind}_{pn}_smf{smf}_a1", abody((PS if smf else P)[pn], smf), g, 1, 0)
    spec(f"g{kind}_even_smf0_a0", abody(P["even"], 0), g, 0, 0)
    g2 = gblock(kind, 0, vm=False) + gblock(kind, 1, vm=False)
    spec(f"g{kind}_even_smf0_novm", abody(P["even"], 0), g2, 1, 0)
    g3 = gblock(kind, 0, nrd=8) + gblock(kind, 1, nrd=8)
    spec(f"g{kind}_even_smf0_rd8", abody(P["even"], 0), g3, 1, 0)
spec("a_only_smf0", abody(P["even"], 0), "", 1, 0)
spec("a_only_smf1", abody(PS["even"], 1), "", 1, 0)
build("mb11.s", ks)
json.dump(dict(src="bench/mb11.s", kernels=[dict(name=k["name"], nwaves=k["nwaves"], iters=k["iters_total"], note=k["note"], sleep=0.01, lds=k["lds"]) for k in ks]), open("mb11.json", "w"))
```

```python
import json
from mbgen import build
import mb11
from mb11 import *
ks.clear()
def tile3(sw, sr, pw, pr, pos, lag, rdmode, inplace=True, rd=True):
    m = [M32(sw, 4, 20, 212), M32(sw, 8, 24), M32(192, 12, pr), M32(192, 16, pr+4), SM(208, 28, pr)]
    eb = sr if inplace else 160
    e = [EXP(eb+i, sr+i) for i in range(16)]
    c = [CVT(pw+i, eb+2*i, eb+1+2*i) for i in range(8)]
    v = []
    for i in range(8):
        v += [e[2*i], e[2*i+1]]
        if i >= lag: v.append(c[i-lag])
    v += c[8-lag:]
    out = []; cum = 0; mi = 0; pend = []
    for x in v:
        while mi < len(m) and cum >= pos[mi]:
            out.append(m[mi])
            if rd and mi < 4:
                r = f"    ds_read_b128 v[{228+4*mi}:{231+4*mi}], v1 offset:{1024*mi}\n"
                if rdmode == 0: out.append(r)
                else: pend.append(r)
            mi += 1
        out.append(x); cum += 8 if "exp" in x else 4
        if pend and "exp" in x: out.append(pend.pop(0))
    while mi < len(m): out.append(m[mi]); mi += 1
    return "".join(out)
def ab(pos, lag, rdmode, inplace=True, rd=True, wait=True):
    return tile3(128, 144, 176, 184, pos, lag, rdmode, inplace, rd) + ("    s_waitcnt lgkmcnt(0)\n" if wait else "") + tile3(144, 128, 184, 176, pos, lag, rdmode, inplace, False)
g = gblock(16, 0) + gblock(16, 1)
E = [0, 32, 64, 96, 128]
V_ = {
 "base": ab(E, 1, 0), "lag2": ab(E, 2, 0), "rd1": ab(E, 1, 1), "lag2rd1": ab(E, 2, 1), "noinpl": ab(E, 1, 0, inplace=False), "nord": ab(E, 1, 0, rd=False, wait=False),
 "p8": ab([8, 36, 68, 96, 128], 1, 1), "p16": ab([16, 48, 76, 108, 136], 1, 1), "d24": ab([0, 28, 56, 88, 116], 1, 1), "late": ab([0, 36, 68, 104, 140], 1, 1),
}
for n, a in V_.items():
    spec(f"aonly_{n}", a, "", 1, 0)
    spec(f"ag_{n}", a, g, 1, 0)
build("mb13.s", ks)
json.dump(dict(src="bench/mb13.s", kernels=[dict(name=k["name"], nwaves=k["nwaves"], iters=k["iters_total"], note="", sleep=0.01, lds=k["lds"]) for k in ks]), open("mb13.json", "w"))
```

```python
from asmlib import *
import struct

NAME = "parallel_sum__grouped_kv_mqa__mixer_channel_mlp__prompt"
KA = dict(x=0, wq=8, wk=16, wv=24, wo=32, bx=40, w1=48, b1=56, w2=64, b2=72, out=80, dbg=88, ws=96)
XN_F = 0x0
CS   = 0x400000
KV   = 0x410000
Q_F  = 0x500000
OH_F = 0x1000000
OH_TILE = 144 * 1024
WS_SIZE = 0x10000000

def f32(x):
    return "0x%08x" % struct.unpack("<I", struct.pack("<f", x))[0]

def srd(p, d, ptr, size, off=0):
    if off:
        p(f"s_add_u32 s{d}, s{ptr}, {hex(off)}")
        p(f"s_addc_u32 s{d+1}, s{ptr+1}, 0")
        p(f"s_and_b32 s{d+1}, s{d+1}, 0xffff")
    else:
        p(f"s_mov_b32 s{d}, s{ptr}")
        p(f"s_and_b32 s{d+1}, s{ptr+1}, 0xffff")
    p(f"s_mov_b32 s{d+2}, {hex(size)}")
    p(f"s_mov_b32 s{d+3}, 0x20000")

def kernel_text(name, ins, nvgpr, accum, nsgpr=96):
    s = f".text\n.globl {name}\n.p2align 8\n.type {name},@function\n{name}:\n"
    s += text(ins)
    s += f""".section .rodata,"a"
.p2align 6
.amdhsa_kernel {name}
  .amdhsa_next_free_vgpr {nvgpr}
  .amdhsa_next_free_sgpr {nsgpr}
  .amdhsa_accum_offset {accum}
  .amdhsa_group_segment_fixed_size 0
  .amdhsa_kernarg_size 104
  .amdhsa_user_sgpr_count 2
  .amdhsa_user_sgpr_kernarg_segment_ptr 1
  .amdhsa_system_sgpr_workgroup_id_x 1
  .amdhsa_float_denorm_mode_32 3
  .amdhsa_float_denorm_mode_16_64 3
.end_amdhsa_kernel
"""
    return s

def M16(d, a, b, c=None):
    c = d if c is None else c
    return f"v_mfma_f32_16x16x32_bf16 {d}, {a}, {b}, {c}"
def M32(d, a, b, c=None):
    c = d if c is None else c
    return f"v_mfma_f32_32x32x16_bf16 {d}, {a}, {b}, {c}"
def V(i, n=1): return f"v{i}" if n == 1 else f"v[{i}:{i+n-1}]"
def A(i, n=1): return f"a{i}" if n == 1 else f"a[{i}:{i+n-1}]"
def S(i, n=1): return f"s{i}" if n == 1 else f"s[{i}:{i+n-1}]"

import os
STAMPS = os.environ.get("STAMPS", "0") == "1"
STAMP_BASE = 0x3000000
STAMP_OP = "s_memtime" if os.environ.get("CYC") == "1" else "s_memrealtime"
def stamp(p, i):
    if STAMPS:
        p(f"{STAMP_OP} s[{72+2*i}:{73+2*i}]")
def stamp_flush(p, kidx, n, wsptr=6):
    if not STAMPS: return
    p("s_waitcnt vmcnt(0)")
    stamp(p, n-1)
    p("s_waitcnt lgkmcnt(0)")
    srd(p, 92, wsptr, WS_SIZE)
    p("v_lshrrev_b32 v1, 6, v0")
    p("v_lshlrev_b32 v1, 6, v1")
    p("s_lshl_b32 s70, s2, 10")
    p(f"s_add_u32 s70, s70, {hex(STAMP_BASE + kidx*0x40000)}")
    for i in range(n):
        p(f"v_mov_b32 v2, s{72+2*i}")
        p(f"buffer_store_dword v2, v1, s[92:95], s70 offen offset:{4*i}")

STF = os.environ.get("STF", "")
PART = 0x2400000

LOOPST = os.environ.get("LOOPST", "0") == "1"
def loopstamp(q, vreg, vtmp, lane="v1"):
    if not LOOPST: return
    q(f"{STAMP_OP} s[90:91]")
    q("s_waitcnt lgkmcnt(0)")
    q(f"v_cmp_eq_u32 vcc, s71, {lane}")
    q(f"v_mov_b32 {vtmp}, s90")
    q(f"v_cndmask_b32 {vreg}, {vreg}, {vtmp}, vcc")
    q("s_add_u32 s71, s71, 1")
def loopstamp_flush(q, vreg, kidx):
    if not LOOPST: return
    q("v_lshlrev_b32 v1, 2, v0")
    q("s_lshl_b32 s70, s2, 11")
    q(f"s_add_u32 s70, s70, {hex(STAMP_BASE + 0x200000 + kidx*0x100000)}")
    q(f"buffer_store_dword {vreg}, v1, s[92:95], s70 offen")

ST_XN = os.environ.get("ST_XN", "")
ST_Q = os.environ.get("ST_Q", "")
ST_H = os.environ.get("ST_H", "nt")
ST_O = os.environ.get("ST_O", "")
ST_OUT = os.environ.get("ST_OUT", "sc1")

def loopstamp_list(vreg, vtmp):
    L = []
    loopstamp(L.append, vreg, vtmp)
    return L

CODEPF = int(os.environ.get("CODEPF", "1"))
_cp = [0]
def code_srd(d, start, back=False):
    _cp[0] += 1
    l = f"Lpc_{_cp[0]}"
    return [f"s_getpc_b64 s[{d}:{d+1}]", f"{l}:", (f"s_sub_u32 s{d}, s{d}, {l}-{start}" if back else f"s_add_u32 s{d}, s{d}, {start}-{l}"), (f"s_subb_u32 s{d+1}, s{d+1}, 0" if back else f"s_addc_u32 s{d+1}, s{d+1}, 0"),
            f"s_and_b32 s{d+1}, s{d+1}, 0xffff", f"s_mov_b32 s{d+2}, Lcode_end-{start}", f"s_mov_b32 s{d+3}, 0x20000"]
FLG = 0x2E00000
```

```python
from common import *

NPF = int(os.environ.get('NPF', '2'))

SELFPF = int(os.environ.get('SELFPF', '1'))
def ln_body(p0, F=32, XR=16, o=0, mid=None):
    import re as _re
    def p(x):
        if o:
            x = _re.sub(r"\bv(8|9|1[0-5])\b", lambda m: f"v{int(m.group(1))+o}", x)
            x = _re.sub(r"v\[(1[0-5]):(1[0-5])\]", lambda m: f"v[{int(m.group(1))+o}:{int(m.group(2))+o}]", x)
        p0(x)
    for i in range(16):
        p(f"v_lshlrev_b32 v{F+2*i}, 16, v{XR+i}")
        p(f"v_and_b32 v{F+2*i+1}, 0xffff0000, v{XR+i}")
    def reduce(off):
        p("v_add_f32_dpp v10, v10, v10 row_ror:8 row_mask:0xf bank_mask:0xf")
        p("v_mov_b32 v11, v10")
        p("v_permlane16_swap_b32 v10, v11")
        p("v_add_f32 v10, v10, v11")
        p("v_mov_b32 v11, v10")
        p("v_permlane32_swap_b32 v10, v11")
        p("v_add_f32 v10, v10, v11")
        p(f"ds_write_b32 v9, v10 offset:{off}")
        p("s_waitcnt lgkmcnt(0)")
        p("s_barrier")
        p(f"ds_read_b128 v[12:15], v8 offset:{off}")
        p("s_waitcnt lgkmcnt(0)")
        p("v_add_f32 v12, v12, v13")
        p("v_add_f32 v14, v14, v15")
        p("v_add_f32 v10, v12, v14")
        p(f"v_mul_f32 v10, {f32(1.0/1024)}, v10")
    for h in range(2): p(f"v_pk_add_f32 {V(10+2*h,2)}, {V(F+2*h,2)}, {V(F+4+2*h,2)}")
    for i in range(4, 16): p(f"v_pk_add_f32 {V(10+2*(i&1),2)}, {V(10+2*(i&1),2)}, {V(F+2*i,2)}")
    p("v_pk_add_f32 v[10:11], v[10:11], v[12:13]")
    p("v_add_f32 v10, v10, v11")
    reduce(0)
    if mid: mid()
    for i in range(16): p(f"v_pk_add_f32 {V(F+2*i,2)}, {V(F+2*i,2)}, v[10:11] op_sel_hi:[1,0] neg_lo:[0,1] neg_hi:[0,1]")
    for h in range(2): p(f"v_pk_mul_f32 {V(10+2*h,2)}, {V(F+2*h,2)}, {V(F+2*h,2)}")
    for i in range(2, 16): p(f"v_pk_fma_f32 {V(10+2*(i&1),2)}, {V(F+2*i,2)}, {V(F+2*i,2)}, {V(10+2*(i&1),2)}")
    p("v_pk_add_f32 v[10:11], v[10:11], v[12:13]")
    p("v_add_f32 v10, v10, v11")
    reduce(128)
    p(f"v_add_f32 v14, {f32(1e-5)}, v10")
    p("v_rsq_f32 v14, v14")
    p("v_mul_f32 v12, v14, v14")
    for i in range(16): p(f"v_pk_mul_f32 {V(F+2*i,2)}, {V(F+2*i,2)}, v[14:15] op_sel_hi:[1,0]")
    p("v_mul_f32 v12, v12, v10")
    p(f"v_add_f32 v12, {f32(1e-5)}, v12")
    p("v_rsq_f32 v12, v12")
    for i in range(16): p(f"v_cvt_pk_bf16_f32 v{XR+i}, v{F+2*i}, v{F+2*i+1}")

def gen():
    name = "lnkv_kernel"
    p = Prog()
    lds = 256
    XR = 16
    p("s_cmp_ge_u32 s2, 256")
    p("s_cbranch_scc1 L0_end")
    stamp(p, 0)
    p(f"s_load_dwordx4 s[4:7], s[0:1], {KA['x']}")
    p(f"s_load_dwordx2 s[8:9], s[0:1], {KA['w1']}")
    p(f"s_load_dwordx2 s[10:11], s[0:1], {KA['ws']}")
    p(f"s_load_dwordx4 s[24:27], s[0:1], {KA['wk']}")
    p("v_and_b32 v1, 63, v0")
    if CODEPF and SELFPF:
        for x in code_srd(48, "lnkv_kernel", back=True): p(x)
        p("s_movk_i32 s50, 0x800")
        p("v_lshlrev_b32 v7, 7, v1")
        p("buffer_load_dword v71, v7, s[48:51], 0 offen")
    p("v_lshrrev_b32 v2, 6, v0")
    p("v_readfirstlane_b32 s30, v2")
    p("v_and_b32 v3, 7, v1")
    p("v_lshrrev_b32 v4, 3, v1")
    p("v_lshlrev_b32 v5, 11, v3")
    p("v_lshl_add_u32 v5, v4, 4, v5")
    p("s_lshl_b32 s33, s2, 14")
    p("s_lshl_b32 s34, s30, 9")
    p("s_add_u32 s33, s33, s34")
    p("s_waitcnt lgkmcnt(0)")
    srd(p, 12, 4, 2048*1024*2)
    for q in range(4):
        p(f"buffer_load_dwordx4 {V(XR+4*q,4)}, v5, s[12:15], s33 offen offset:{q*128}")
    if NPF:
        p("s_lshr_b32 s35, s2, 3")
        p("s_bfe_u32 s36, s2, 0x20001")
        p("s_cmp_lt_u32 s30, 2")
        p("s_cbranch_scc1 L0_pw1")
        p("s_cmp_eq_u32 s30, 2")
        p("s_cbranch_scc0 L0_pkv")
        srd(p, 16, 6, 1024*1024*2)
        p("v_bfe_u32 v6, v1, 2, 3")
        p("v_and_b32 v7, 3, v1")
        p("v_lshlrev_b32 v7, 7, v7")
        p("v_lshl_add_u32 v6, v6, 11, v7")
        p("s_lshl_b32 s37, s35, 14")
        p("s_lshl_b32 s38, s36, 9")
        p("s_add_u32 s37, s37, s38")
        for g in range(NPF):
            p(f"buffer_load_dword v{64+g}, v6, s[16:19], s37 offen")
            p(f"s_add_u32 s37, s37, {256*2048}")
        p("s_branch L0_pdone")
        p.label("L0_pkv")
        p("s_bitcmp1_b32 s35, 3")
        p("s_cselect_b32 s24, s26, s24")
        p("s_cselect_b32 s25, s27, s25")
        srd(p, 16, 24, 65536)
        p("v_lshlrev_b32 v6, 7, v1")
        p("s_and_b32 s37, s35, 23")
        p("s_lshl_b32 s37, s37, 13")
        for g in range(NPF):
            p(f"buffer_load_dword v{64+g}, v6, s[16:19], s37 offen")
        p("s_branch L0_pdone")
        p.label("L0_pw1")
        srd(p, 16, 8, 1024*3584*2)
        p("v_lshrrev_b32 v6, 4, v1")
        p("v_mul_u32_u24 v6, 7168, v6")
        p("v_and_b32 v7, 15, v1")
        p("v_min_u32 v7, 13, v7")
        p("v_lshl_add_u32 v6, v7, 7, v6")
        p("s_lshl_b32 s37, s35, 1")
        p("s_add_u32 s37, s37, s30")
        p(f"s_mul_i32 s37, s37, {4*7168}")
        p("s_mul_i32 s38, s36, 1792")
        p("s_add_u32 s37, s37, s38")
        for g in range(NPF):
            p(f"buffer_load_dword v{64+g}, v6, s[16:19], s37 offen")
            p(f"s_add_u32 s37, s37, {256*7168}")
        p.label("L0_pdone")
    if CODEPF:
        for x in code_srd(44, "gemma_kernel"): p(x)
        p("v_lshlrev_b32 v7, 7, v1")
        p("s_lshl_b32 s37, s30, 13")
        p("buffer_load_dword v70, v7, s[44:47], s37 offen")
    srd(p, 20, 10, WS_SIZE)
    p("v_and_b32 v8, 31, v1")
    p("v_lshlrev_b32 v8, 2, v8")
    p("s_lshl_b32 s37, s2, 7")
    p("s_add_u32 s38, s37, 0x4000")
    p("s_and_b32 s37, s37, 0x1fff")
    p("v_mov_b32 v9, s38")
    p("v_mov_b32 v10, s37")
    p("v_cmp_gt_u32 vcc, 32, v1")
    p("v_cndmask_b32 v9, v10, v9, vcc")
    p("v_add_u32 v68, v8, v9")
    p("v_mov_b32 v69, 0")
    p("v_lshlrev_b32 v8, 4, v3")
    p("s_lshl_b32 s37, s30, 2")
    p("v_add_u32 v9, s37, v8")
    p("v_lshl_add_u32 v6, v4, 8, v8")
    p("s_lshr_b32 s38, s2, 1")
    p("s_lshl_b32 s38, s38, 15")
    p("s_lshl_b32 s39, s30, 13")
    p("s_add_u32 s38, s38, s39")
    p("s_and_b32 s39, s2, 1")
    p("s_lshl_b32 s39, s39, 7")
    p("s_add_u32 s38, s38, s39")
    p("s_add_u32 s39, s38, 4096")
    p("v_lshlrev_b32 v7, 2, v3")
    p("s_lshl_b32 s41, s2, 5")
    p(f"s_add_u32 s41, s41, {hex(CS)}")
    p(f"s_waitcnt vmcnt({NPF+CODEPF})")
    stamp(p, 1)
    ln_body(p)
    stamp(p, 2)
    for q in range(4):
        p(f"buffer_store_dwordx4 {V(XR+4*q,4)}, v6, s[20:23], s{38+(q>>1)} offen offset:{(q&1)*2048} {ST_XN}")
    p(f"buffer_store_dword v12, v7, s[20:23], s41 offen {ST_XN}")
    p(f"s_mov_b32 s41, {hex(FLG)}")
    p("buffer_store_dword v69, v68, s[20:23], s41 offen")
    stamp(p, 3)
    stamp_flush(p, 0, 5, wsptr=10)
    p.label("L0_end")
    p("s_endpgm")
    ins = fix(p.ins)
    return name, kernel_text(name, ins, 72, 72), (256, 256, lds)
```

```python
from common import *
import math

LA1 = int(os.environ.get('LA1', '4'))
KVT = int(os.environ.get('KVT', '1'))
PFW2 = int(os.environ.get('PFW2', '2'))
STG = 53248
WOFF = 16384

def gen():
    name = "gemma_kernel"
    p = Prog()
    lds = 3 * STG
    ACC = 16
    def acc(u, t): return ACC + (u*9+t)*4
    BIAS = 160; CSC = 188; T = 192
    def XF(f, u): return f*52 + u*4
    def WF(f, t): return f*52 + 16 + t*4
    p("s_cmp_ge_u32 s2, 256")
    p("s_cbranch_scc1 L1_end")
    stamp(p, 0)
    p(f"s_load_dwordx2 s[4:5], s[0:1], {KA['wq']}")
    p(f"s_load_dwordx4 s[8:11], s[0:1], {KA['w1']}")
    p(f"s_load_dwordx2 s[6:7], s[0:1], {KA['ws']}")
    if PFW2: p(f"s_load_dwordx2 s[64:65], s[0:1], {KA['w2']}")
    if KVT: p(f"s_load_dwordx4 s[32:35], s[0:1], {KA['wk']}")
    p("v_and_b32 v1, 63, v0")
    p("v_lshrrev_b32 v2, 6, v0")
    p("v_readfirstlane_b32 s40, v2")
    p("s_and_b32 s41, s2, 1")
    p("s_lshl_b32 s41, s41, 3")
    p("s_bfe_u32 s42, s2, 0x30003")
    p("s_add_u32 s41, s41, s42")
    p("s_bfe_u32 s42, s2, 0x20001")
    p("s_lshl_b32 s42, s42, 2")
    p("s_lshr_b32 s43, s2, 6")
    p("s_add_u32 s42, s42, s43")
    p("s_lshr_b32 s44, s40, 1")
    p("s_and_b32 s45, s40, 1")
    p("v_and_b32 v3, 15, v1")
    p("v_lshrrev_b32 v4, 4, v1")
    p("v_lshlrev_b32 v5, 4, v1")
    p("s_lshl_b32 s46, s41, 3")
    p("s_lshl_b32 s47, s40, 1")
    p("s_add_u32 s46, s46, s47")
    p("s_lshl_b32 s46, s46, 15")
    p("v_add_u32 v6, s46, v5")
    p("v_add_u32 v7, 0x8000, v6")
    p("v_lshrrev_b32 v8, 5, v1")
    p("v_lshlrev_b32 v8, 1, v8")
    p("v_and_b32 v9, 3, v1")
    p("v_xor_b32 v8, v8, v9")
    p("v_lshlrev_b32 v8, 4, v8")
    p("v_lshrrev_b32 v9, 2, v1")
    p("s_lshl_b32 s47, s40, 4")
    p("v_add_u32 v9, s47, v9")
    p("s_movk_i32 s47, 7168")
    p("v_mul_lo_u32 v10, v9, s47")
    p("v_add_u32 v10, v10, v8")
    p("s_mul_i32 s47, s42, 448")
    p("v_add_u32 v10, s47, v10")
    p("v_lshl_add_u32 v9, v9, 11, v8")
    p("s_lshl_b32 s47, s42, 7")
    p("v_add_u32 v9, s47, v9")
    p("s_lshl_b32 s47, s44, 13")
    p("v_add_u32 v11, s47, v5")
    p("v_lshlrev_b32 v12, 9, v4")
    p("v_bfe_u32 v13, v1, 2, 2")
    p("v_lshl_add_u32 v12, v13, 6, v12")
    p("v_and_b32 v13, 3, v1")
    p("v_lshl_add_u32 v12, v13, 3, v12")
    p("v_and_b32 v13, 1, v4")
    p("v_lshl_add_u32 v12, v13, 5, v12")
    p("s_lshl_b32 s47, s45, 5")
    p("v_xor_b32 v14, s47, v12")
    p(f"v_add_u32 v14, {WOFF+32768}, v14")
    p("s_lshl_b32 s47, s45, 14")
    p(f"s_add_u32 s47, s47, {WOFF}")
    p("v_add_u32 v12, s47, v12")
    p("v_xor_b32 v13, 32, v12")
    stamp(p, 5)
    p("s_waitcnt lgkmcnt(0)")
    stamp(p, 6)
    srd(p, 12, 6, 0x400000, XN_F)
    srd(p, 16, 4, 1024*1024*2)
    srd(p, 20, 8, 1024*3584*2)
    srd(p, 24, 6, WS_SIZE)
    srd(p, 28, 10, 3584*2)
    small = Prog()
    def psm(x): small(x)
    psm("v_lshlrev_b32 v15, 3, v4")
    psm("s_mul_i32 s47, s42, 448")
    psm("s_lshl_b32 s48, s45, 8")
    psm("s_add_u32 s48, s48, s47")
    for t in range(6):
        psm(f"buffer_load_dwordx2 {V(T+2*t,2)}, v15, s[28:31], s48 offen offset:{t*32}")
    psm("s_lshl_b32 s48, s45, 5")
    psm("s_add_u32 s48, s48, s47")
    psm(f"buffer_load_dwordx2 {V(T+12,2)}, v15, s[28:31], s48 offen offset:192")
    psm("v_lshlrev_b32 v15, 2, v3")
    psm("s_lshl_b32 s47, s41, 9")
    psm("s_lshl_b32 s48, s44, 8")
    psm("s_add_u32 s47, s47, s48")
    psm(f"s_add_u32 s47, s47, {hex(CS)}")
    for u in range(4):
        psm(f"buffer_load_dword v{CSC+u}, v15, s[24:27], s47 offen offset:{u*64}")
    p("s_lshl_b32 s51, s40, 12")
    p("s_lshl_b32 s52, s40, 10")
    p(f"s_add_u32 s52, s52, {WOFF}")
    slot_of = {"q0": 0, "q1": 4, 0: 1, 1: 2, 2: 3, 3: 8, 4: 5, 5: 6, 6: 7}
    def dma_list():
        L = []
        L.append(["s_mov_b32 m0, s56", "buffer_load_dwordx4 v6, s[12:15], s53 offen lds"])
        L.append(["buffer_load_dwordx4 v6, s[12:15], s53 offen offset:1024 lds"])
        L.append(["s_add_u32 m0, s56, 2048", "buffer_load_dwordx4 v7, s[12:15], s53 offen lds"])
        L.append(["buffer_load_dwordx4 v7, s[12:15], s53 offen offset:1024 lds"])
        for a in range(2):
            L.append([f"s_add_u32 m0, s57, {slot_of['q%d'%a]*4096 - a*64}", f"buffer_load_dwordx4 v9, s[16:19], s54 offen offset:{a*64} lds"])
        for a in range(7):
            L.append([f"s_add_u32 m0, s57, {slot_of[a]*4096 - a*64}", f"buffer_load_dwordx4 v10, s[20:23], s55 offen offset:{a*64} lds"])
        return L
    D = dma_list()
    NB = 7
    p("s_bfe_u32 s66, s2, 0x30003")
    p("s_lshr_b32 s67, s2, 6")
    p("s_add_u32 s66, s66, s67")
    def koffs(nreg):
        return [f"s_add_u32 s67, {nreg}, s66", "s_and_b32 s67, s67, 3", f"s_cselect_b32 s67, 0, {LA1}", f"s_add_u32 s67, s67, {nreg}",
                "s_and_b32 s67, s67, 15", f"s_and_b32 s68, {nreg}, 16", "s_or_b32 s67, s67, s68",
                "s_lshl_b32 s53, s67, 11", "s_lshl_b32 s54, s67, 17", f"s_mul_i32 s55, s67, {64*7168}"]
    def set_stage(n):
        for x in koffs(str(n)): p(x)
        p(f"s_add_u32 s56, s51, {n*STG}")
        p(f"s_add_u32 s57, s52, {n*STG}")
    for n in range(2):
        set_stage(n)
        for d in D:
            for x in d: p(x)
        if n == 0:
            stamp(p, 7)
            for i in range(144): p(f"v_mov_b32 v{ACC+i}, 0")
            pass
    set_stage(2)
    stamp(p, 4)
    def reads(f, kk):
        R = []
        for u in range(4):
            R.append(f"ds_read_b128 {A(XF(f,u),4)}, v11 offset:{u*2048+kk*1024}")
        for t in range(9):
            for rho in range(2):
                if t < 8:
                    R.append(f"ds_read_b64_tr_b16 {A(WF(f,t)+rho*2,2)}, v{12+(t&1)} offset:{(t>>1)*4096+kk*2048+rho*256}")
                else:
                    R.append(f"ds_read_b64_tr_b16 {A(WF(f,t)+rho*2,2)}, v14 offset:{kk*2048+rho*256}")
        return R
    def mfmas(f):
        return [M16(V(acc(u,t),4), A(WF(f,t),4), A(XF(f,u),4)) for t in range(9) for u in range(4)]
    p("s_waitcnt vmcnt(13)")
    p("s_barrier")
    stamp(p, 1)
    for x in reads(0, 0): p(x)
    if LOOPST: p("s_mov_b32 s71, 0")
    loopstamp(p, "v2", "v15")
    p("s_mov_b32 s58, 0")
    p("s_mov_b32 s59, 3")
    p("s_waitcnt lgkmcnt(0)")
    def phaseA(dl, pos, extra=()):
        fill = [(i, x) for i, x in enumerate(reads(1, 1))]
        for d, ps in zip(dl, pos):
            if len(d) == 2: fill.append((ps-1, d[0]))
            fill.append((ps, d[-1]))
        fill += list(extra)
        fill += [(28, f"s_add_u32 s60, s58, {STG}"), (28, f"s_cmp_eq_u32 s60, {3*STG}"), (29, "s_cselect_b32 s60, 0, s60"), (29, "s_sub_u32 s61, s60, s58")]
        fill += [(30, "v_add_u32 v11, s61, v11"), (31, "v_add_u32 v12, s61, v12"), (32, "v_add_u32 v13, s61, v13"), (33, "v_add_u32 v14, s61, v14")]
        ko = koffs("s59")
        fill += [(30, "s_add_u32 s56, s51, s58"), (30, "s_add_u32 s57, s52, s58"), (31, "s_mov_b32 s58, s60"),
                 (23, ko[0]), (24, ko[1]), (24, ko[2]), (27, ko[3]), (31, ko[4]), (32, ko[5]), (32, ko[6]), (33, ko[7]), (34, ko[8]), (34, ko[9]),
                 (35, "s_cmp_ge_u32 s59, 16"), (35, "s_cselect_b32 s14, 0, s14"), (35, "s_cselect_b32 s56, 0x30000, s56"), (35, "s_cselect_b32 s57, 0x30000, s57"), (35, "s_add_u32 s59, s59, 1")]
        return interleave(mfmas(0), fill)
    for x in phaseA(D, [1, 3, 5, 7, 9, 11, 13, 15, 17, 19, 21, 23, 25]): p(x)
    p.extend(small)
    p("s_waitcnt vmcnt(24) lgkmcnt(0)")
    p("s_branch L1_mid")
    pre = fix(p.ins)
    b = Prog()
    b.label("L1_loop")
    for x in phaseA(D[NB:], [2, 7, 12, 17, 22, 27]): b(x)
    loopstamp(b, "v2", "v15")
    b("s_waitcnt vmcnt(13) lgkmcnt(0)")
    b.label("L1_mid")
    loopstamp(b, "v2", "v15")
    b("s_barrier")
    loopstamp(b, "v2", "v15")
    fill = [(i, x) for i, x in enumerate(reads(0, 0))]
    pos = [2, 7, 12, 17, 22, 27, 32]
    for d, ps in zip(D[:NB], pos):
        if len(d) == 2: fill.append((ps-1, d[0]))
        fill.append((ps, d[-1]))
    fill += [(33, f"s_cmp_lt_u32 s59, {18 if KVT else 19}")]
    for x in interleave(mfmas(1), fill): b(x)
    b("s_waitcnt lgkmcnt(0)")
    b("s_cbranch_scc1 L1_loop")
    body = fix(b.ins, pre=pre)
    rep = check_loop(body)
    assert not rep, rep
    e = Prog()
    if not KVT: stamp(e, 2)
    KVB = STG; KVR = STG + 65536; KX = 104
    if KVT:
        ops = []
        for q in range(8):
            ops.append([f"buffer_load_dwordx4 {A(KX+4*q,4)}, v5, s[24:27], s{38+(q>>2)} offen offset:{(q&3)*1024}"])
        for pp in range(4):
            for q in range(4):
                o = [f"buffer_load_dwordx4 v10, s[16:19], s50 offen offset:{q*1024} lds"]
                if q == 0: o = [f"s_add_u32 m0, s49, {KVB+pp*4096}", f"s_add_u32 s50, s49, {pp*4096}"] + o
                ops.append(o)
        setup = Prog()
        setup("s_and_b32 s36, s42, 1")
        setup("s_cselect_b32 s32, s34, s32")
        setup("s_cselect_b32 s33, s35, s33")
        srd(setup, 16, 32, 65536)
        setup("s_lshl_b32 s37, s41, 3")
        setup("s_lshr_b32 s38, s42, 1")
        setup("s_add_u32 s37, s37, s38")
        setup("s_lshl_b32 s38, s37, 15")
        setup("s_lshl_b32 s39, s40, 13")
        setup("s_add_u32 s38, s38, s39")
        setup("s_add_u32 s39, s38, 4096")
        setup("v_lshrrev_b32 v10, 2, v1")
        setup("v_lshl_add_u32 v10, v10, 6, v8")
        setup("s_lshl_b32 s49, s40, 14")
        st = [i.text for i in setup.ins]
        fill = [(i, x) for i, x in enumerate(reads(1, 1))]
        fill += [(i // 3, x) for i, x in enumerate(st)]
        order = ops[8:] + ops[:8]
        for k, o in enumerate(order[:10]):
            ps = 7 + 3*k
            for x in o[:-1]: fill.append((ps-1, x))
            fill.append((ps, o[-1]))
        for x in interleave(mfmas(0), fill): e(x)
        e("s_waitcnt lgkmcnt(0)")
        fill = []
        for k, o in enumerate(order[10:]):
            ps = 1 + (5*k)//2
            for x in o[:-1]: fill.append((ps-1, x))
            fill.append((ps, o[-1]))
        for x in interleave(mfmas(1), fill): e(x)
        stamp(e, 2)
        if PFW2 == 1:
            srd(e, 20, 64, 3584*1024*2)
            e("v_lshlrev_b32 v9, 7, v1")
            e("s_lshl_b32 s50, s2, 2")
            e("s_add_u32 s50, s50, s40")
            e("s_lshl_b32 s50, s50, 13")
            e("buffer_load_dword v2, v9, s[20:23], s50 offen")
        if PFW2 == 2:
            srd(e, 20, 64, 3584*1024*2)
            e("v_lshlrev_b32 v9, 7, v1")
            e("s_lshr_b32 s50, s2, 3")
            e("s_lshl_b32 s50, s50, 1")
            e("s_add_u32 s50, s50, s44")
            e("s_lshl_b32 s50, s50, 13")
            e(f"s_mul_i32 s39, s45, {1792*2048}")
            e("s_add_u32 s50, s50, s39")
            e("buffer_load_dword v2, v9, s[20:23], s50 offen")
        e("s_mov_b32 s38, s49")
        e("v_lshlrev_b32 v12, 9, v4")
        e("v_bfe_u32 v13, v1, 2, 2")
        e("v_lshl_add_u32 v12, v13, 6, v12")
        e("v_and_b32 v13, 3, v1")
        e("v_lshl_add_u32 v12, v13, 3, v12")
        e("v_and_b32 v13, 1, v4")
        e("v_lshl_add_u32 v12, v13, 5, v12")
        e(f"s_add_u32 s39, s38, {KVB}")
        e("v_add_u32 v12, s39, v12")
        e("v_xor_b32 v13, 32, v12")
        e("s_lshl_b32 s39, s40, 11")
        e(f"s_add_u32 s39, s39, {KVR}")
        e("v_add_u32 v14, s39, v5")
        e("s_lshl_b32 s39, s40, 10")
        e(f"s_add_u32 s39, s39, {KVR}")
        e("v_add_u32 v15, s39, v5")
    for t in range(7):
        for r in range(2):
            e(f"v_lshlrev_b32 v{BIAS+4*t+2*r}, 16, v{T+2*t+r}")
            e(f"v_and_b32 v{BIAS+4*t+2*r+1}, 0xffff0000, v{T+2*t+r}")
    e("s_lshl_b32 s46, s41, 3")
    e("s_lshl_b32 s47, s44, 2")
    e("s_add_u32 s46, s46, s47")
    e("s_lshl_b32 s47, s46, 15")
    e("s_lshl_b32 s48, s42, 1")
    e("s_add_u32 s48, s48, s45")
    e("s_lshl_b32 s48, s48, 10")
    e("s_add_u32 s47, s47, s48")
    e(f"s_add_u32 s47, s47, {hex(Q_F)}")
    e(f"s_mul_i32 s48, s46, {OH_TILE}")
    e("s_mul_i32 s49, s42, 7168")
    e("s_add_u32 s48, s48, s49")
    e(f"s_add_u32 s48, s48, {hex(OH_F+32*1024)}")
    e("s_lshl_b32 s49, s45, 12")
    e("v_add_u32 v6, s49, v5")
    e("s_lshl_b32 s49, s45, 3")
    e("v_add_u32 v7, s49, v5")
    qs = math.log2(math.e) / math.sqrt(32.0)
    k1 = -2.0 * math.sqrt(2.0/math.pi) * math.log2(math.e)
    k2 = k1 * 0.044715
    e(f"s_mov_b32 s62, {f32(qs)}")
    e(f"s_mov_b32 s63, {f32(qs)}")
    e(f"s_mov_b32 s64, {f32(k2)}")
    e(f"s_mov_b32 s65, {f32(k2)}")
    e(f"v_mov_b32 v8, {f32(k1)}")
    e(f"v_mov_b32 v9, {f32(k1)}")
    tcnt = [0]
    def gelu_tiles(u, ts, out):
        prs = [(acc(u,t)+2*h, BIAS+4*(t-2)+2*h) for t in ts for h in range(2)]
        n = len(prs)
        tb = T + 16 + (tcnt[0] % 2) * 16; tcnt[0] += 1
        cpair = CSC + (u & ~1)
        sel = u & 1
        for (a, bb) in prs:
            e(f"v_pk_fma_f32 {V(a,2)}, {V(a,2)}, {V(cpair,2)}, {V(bb,2)} op_sel:[0,{sel},0] op_sel_hi:[1,{sel},1]")
        for i, (a, bb) in enumerate(prs): e(f"v_pk_mul_f32 {V(tb+2*i,2)}, {V(a,2)}, {V(a,2)}")
        for i, (a, bb) in enumerate(prs): e(f"v_pk_fma_f32 {V(tb+2*i,2)}, {V(tb+2*i,2)}, s[64:65], v[8:9]")
        for i, (a, bb) in enumerate(prs): e(f"v_pk_mul_f32 {V(tb+2*i,2)}, {V(tb+2*i,2)}, {V(a,2)}")
        for i in range(2*n): e(f"v_exp_f32 v{tb+i}, v{tb+i}")
        for i in range(n): e(f"v_pk_add_f32 {V(tb+2*i,2)}, {V(tb+2*i,2)}, 1.0 op_sel_hi:[1,0]")
        for i in range(2*n): e(f"v_rcp_f32 v{tb+i}, v{tb+i}")
        for i, (a, bb) in enumerate(prs): e(f"v_pk_mul_f32 {V(a,2)}, {V(a,2)}, {V(tb+2*i,2)}")
        for i, (a, bb) in enumerate(prs): e(f"v_cvt_pk_bf16_f32 v{out+i}, v{a}, v{a+1}")
    ocnt = [0]
    def outreg():
        r = T + (ocnt[0] % 4) * 4; ocnt[0] += 1
        return r
    for u in range(4):
        o = outreg()
        for t in range(2):
            for h in range(2):
                a = acc(u,t)+2*h
                e(f"v_pk_mul_f32 {V(a,2)}, {V(a,2)}, s[62:63]")
        for t in range(2):
            for h in range(2):
                a = acc(u,t)+2*h
                e(f"v_cvt_pk_bf16_f32 v{o+2*t+h}, v{a}, v{a+1}")
        e(f"buffer_store_dwordx4 {V(o,4)}, v5, s[24:27], s47 offen {ST_Q}")
        for a3 in range(3):
            o = outreg()
            gelu_tiles(u, [2+2*a3, 3+2*a3], o)
            e(f"buffer_store_dwordx4 {V(o,4)}, v6, s[24:27], s48 offen offset:{a3*1024} {ST_H}")
        o = outreg()
        gelu_tiles(u, [8], o)
        e(f"buffer_store_dwordx2 {V(o,2)}, v7, s[24:27], s48 offen offset:3072 {ST_H}")
        if u < 3:
            e("s_add_u32 s47, s47, 0x8000")
            e(f"s_add_u32 s48, s48, {OH_TILE}")
        KA_ = 240
        if KVT and u == 0:
            e(f"s_waitcnt vmcnt({5+(1 if PFW2 else 0)})")
            for s_ in range(8):
                for t in range(2):
                    for rho in range(2):
                        e(f"ds_read_b64_tr_b16 {A(32+(s_*2+t)*4+rho*2,2)}, v{12+t} offset:{s_*2048+rho*256}")
        if KVT and u == 1:
            e("s_waitcnt lgkmcnt(0)")
            e("v_lshrrev_b32 v11, 1, v4")
            e("v_and_b32 v10, 1, v4")
            e("s_lshr_b32 s38, s37, 1")
            e("s_lshl_b32 s38, s38, 12")
            e(f"s_add_u32 s38, s38, {hex(KV)}")
            e("s_and_b32 s39, s37, 1")
            e("s_cmp_eq_u32 s36, 0")
            e("s_cbranch_scc0 L1_kvv")
            for s_ in range(8):
                for t in range(2):
                    e(M16(V(KA_+4*t,4), A(32+(s_*2+t)*4,4), A(KX+4*s_,4), "0" if s_ == 0 else None))
            e("v_lshlrev_b32 v11, 10, v11")
            e("s_lshl_b32 s39, s39, 8")
            e("s_add_u32 s38, s38, s39")
            e("s_lshl_b32 s39, s40, 3")
            e("s_branch L1_kvj")
            e.label("L1_kvv")
            for s_ in range(8):
                for t in range(2):
                    e(M16(V(KA_+4*t,4), A(KX+4*s_,4), A(32+(s_*2+t)*4,4), "0" if s_ == 0 else None))
            e("v_lshlrev_b32 v11, 3, v11")
            e("s_lshl_b32 s39, s39, 10")
            e("s_add_u32 s38, s38, s39")
            e("s_add_u32 s38, s38, 2048")
            e("s_lshl_b32 s39, s40, 8")
            e.label("L1_kvj")
            e("s_add_u32 s38, s38, s39")
            e("v_lshl_add_u32 v11, v10, 9, v11")
            e("v_lshl_add_u32 v11, v3, 4, v11")
            e("s_nop 7")
            e(f"ds_write_b128 v14, {V(KA_,4)} offset:0")
            e(f"ds_write_b128 v14, {V(KA_+4,4)} offset:1024")
        if KVT and u == 2:
            e("s_waitcnt lgkmcnt(0)")
            e("s_barrier")
            e("s_cmp_ge_u32 s40, 2")
            e("s_cbranch_scc1 L1_kvd")
            for w in range(4): e(f"ds_read_b128 {V(KA_+4*w,4)}, v15 offset:{w*2048}")
            e("s_waitcnt lgkmcnt(0)")
            for r in range(2):
                e(f"v_pk_add_f32 {V(KA_+2*r,2)}, {V(KA_+2*r,2)}, {V(KA_+4+2*r,2)}")
                e(f"v_pk_add_f32 {V(KA_+8+2*r,2)}, {V(KA_+8+2*r,2)}, {V(KA_+12+2*r,2)}")
            for r in range(2): e(f"v_pk_add_f32 {V(KA_+2*r,2)}, {V(KA_+2*r,2)}, {V(KA_+8+2*r,2)}")
            e(f"v_cvt_pk_bf16_f32 v{KA_+4}, v{KA_}, v{KA_+1}")
            e(f"v_cvt_pk_bf16_f32 v{KA_+5}, v{KA_+2}, v{KA_+3}")
            e(f"buffer_store_dwordx2 {V(KA_+4,2)}, v11, s[24:27], s38 offen {ST_Q}")
            e.label("L1_kvd")
    stamp(e, 3)
    if LOOPST: e("v_mov_b32 v3, v2")
    stamp_flush(e, 1, 9)
    loopstamp_flush(e, "v3", 1)
    e.label("L1_end")
    e("s_endpgm")
    epi = fix(e.ins, pre=body)
    ins = pre + [Ins(".p2align 6")] + body + epi
    return name, kernel_text(name, ins, 256+136, 256), (256, 256, lds)
```

```python
from common import *
from k0_ln import ln_body
import math

LA1 = int(os.environ.get('LA1', '4'))
PFW2 = int(os.environ.get('PFW2', '2'))
MERGE = int(os.environ.get('MERGE', '1'))
NPOLL = int(os.environ.get('NPOLL', '32'))
W0PRE = int(os.environ.get('W0PRE', '0'))
MPF = int(os.environ.get('MPF', '0'))
MROW = int(os.environ.get('MROW', '128'))
EPF = int(os.environ.get('EPF', '1'))
PUBPF = int(os.environ.get('PUBPF', '1'))
STG = 53248
WOFF = 16384

def spread(n, lists):
    fill = []
    for (a, b, items) in lists:
        m = max(len(items), 1)
        for k, it in enumerate(items):
            ps = a + (k * (b - a + 1)) // m
            if isinstance(it, list):
                for x in it[:-1]: fill.append((max(ps-1, 0), x))
                fill.append((ps, it[-1]))
            else: fill.append((ps, it))
    return fill

def gen():
    name = "gemma_kernel"
    p = Prog()
    lds = 3 * STG + (4096 if MERGE else 0)
    SC = ' sc1' if MERGE else ''
    ACC = 16
    def acc(u, t): return ACC + (u*9+t)*4
    BIAS = 160; CSC = 188; T = 192; KA_ = 240
    def XF(f, u): return f*52 + u*4
    def WF(f, t): return f*52 + 16 + t*4
    KX = 104; KW = 136; NAG = 200
    p("s_cmp_ge_u32 s2, 256")
    p("s_cbranch_scc1 L1_end")
    stamp(p, 0)
    p(f"s_load_dwordx2 s[4:5], s[0:1], {KA['wq']}")
    p(f"s_load_dwordx4 s[8:11], s[0:1], {KA['w1']}")
    p(f"s_load_dwordx2 s[6:7], s[0:1], {KA['ws']}")
    p(f"s_load_dwordx2 s[64:65], s[0:1], {KA['w2']}")
    p(f"s_load_dwordx4 s[32:35], s[0:1], {KA['wk']}")
    if MERGE:
        p(f"s_load_dwordx2 s[68:69], s[0:1], {KA['x']}")
        p(f"s_load_dwordx2 s[62:63], s[0:1], {KA['dbg']}")
    p("v_and_b32 v1, 63, v0")
    p("v_lshrrev_b32 v2, 6, v0")
    p("v_readfirstlane_b32 s40, v2")
    if MERGE and CODEPF:
        for x in code_srd(28, "gemma_kernel", back=True): p(x)
        p("v_lshlrev_b32 v220, 7, v1")
        p("s_cmp_eq_u32 s40, 0")
        p("s_cbranch_scc0 L1_nt")
        p("buffer_load_dword v221, v220, s[28:31], 0 offen")
        p.label("L1_nt")
    p("s_and_b32 s41, s2, 1")
    p("s_lshl_b32 s41, s41, 3")
    p("s_bfe_u32 s66, s2, 0x30003")
    p("s_add_u32 s41, s41, s66")
    p("s_bfe_u32 s42, s2, 0x20001")
    p("s_lshl_b32 s42, s42, 2")
    p("s_lshr_b32 s43, s2, 6")
    p("s_add_u32 s42, s42, s43")
    p("s_add_u32 s66, s66, s43")
    p("s_lshr_b32 s44, s40, 1")
    p("s_and_b32 s45, s40, 1")
    p("v_lshlrev_b32 v5, 4, v1")
    p("s_lshl_b32 s46, s41, 3")
    p("s_lshl_b32 s47, s40, 1")
    p("s_add_u32 s46, s46, s47")
    p("s_lshl_b32 s46, s46, 15")
    p("v_add_u32 v6, s46, v5")
    p("v_add_u32 v7, 0x8000, v6")
    p("v_lshrrev_b32 v8, 5, v1")
    p("v_lshlrev_b32 v8, 1, v8")
    p("v_and_b32 v9, 3, v1")
    p("v_xor_b32 v8, v8, v9")
    p("v_lshlrev_b32 v8, 4, v8")
    p("v_lshrrev_b32 v9, 2, v1")
    p("s_lshl_b32 s47, s40, 4")
    p("v_add_u32 v9, s47, v9")
    p("v_mul_u32_u24 v10, 7168, v9")
    p("s_mul_i32 s47, s42, 448")
    p("v_add3_u32 v10, v10, v8, s47")
    p("v_lshl_add_u32 v9, v9, 11, v8")
    p("s_lshl_b32 s47, s42, 7")
    p("v_add_u32 v9, s47, v9")
    p("s_lshl_b32 s51, s40, 12")
    p("s_lshl_b32 s52, s40, 10")
    p(f"s_add_u32 s52, s52, {WOFF}")
    def kchain(nreg):
        return [f"s_add_u32 s67, {nreg}, s66", ["s_and_b32 s67, s67, 3", f"s_cselect_b32 s67, 0, {LA1}"], f"s_add_u32 s67, s67, {nreg}", "s_and_b32 s67, s67, 15"]
    def flat(L): return [y for x in L for y in (x if isinstance(x, list) else [x])]
    KO = ["s_lshl_b32 s53, s67, 11", "s_lshl_b32 s54, s67, 17", f"s_mul_i32 s55, s67, {64*7168}"]
    def set_stage(n):
        for x in flat(kchain(str(n))) + KO: p(x)
        p(f"s_add_u32 s56, s51, {n*STG}")
        p(f"s_add_u32 s57, s52, {n*STG}")
    set_stage(0)
    if not MERGE: stamp(p, 5)
    p("s_waitcnt lgkmcnt(0)")
    if not MERGE: stamp(p, 6)
    srd(p, 12, 6, 0x400000, XN_F)
    slot_of = {"q0": 0, "q1": 4, 0: 1, 1: 2, 2: 3, 3: 8, 4: 5, 5: 6, 6: 7}
    D = []
    D.append(["s_mov_b32 m0, s56", "buffer_load_dwordx4 v6, s[12:15], s53 offen" + SC + " lds"])
    D.append(["buffer_load_dwordx4 v6, s[12:15], s53 offen offset:1024" + SC + " lds"])
    D.append(["s_add_u32 m0, s56, 2048", "buffer_load_dwordx4 v7, s[12:15], s53 offen" + SC + " lds"])
    D.append(["buffer_load_dwordx4 v7, s[12:15], s53 offen offset:1024" + SC + " lds"])
    for a in range(2):
        D.append([f"s_add_u32 m0, s57, {slot_of['q%d'%a]*4096 - a*64}", f"buffer_load_dwordx4 v9, s[16:19], s54 offen offset:{a*64} lds"])
    for a in range(7):
        D.append([f"s_add_u32 m0, s57, {slot_of[a]*4096 - a*64}", f"buffer_load_dwordx4 v10, s[20:23], s55 offen offset:{a*64} lds"])
    NB = 7
    XRL = 16
    if MERGE:
        srd(p, 28, 68, 2048*1024*2)
        srd(p, 24, 6, WS_SIZE)
        p("v_and_b32 v203, 7, v1")
        p("v_lshrrev_b32 v204, 3, v1")
        p("v_lshlrev_b32 v205, 11, v203")
        p("v_lshl_add_u32 v205, v204, 4, v205")
        p("s_lshl_b32 s36, s41, 4")
        p("s_add_u32 s36, s36, s42")
        p("s_lshl_b32 s37, s36, 14")
        p("s_lshl_b32 s38, s40, 9")
        p("s_add_u32 s37, s37, s38")
        for q in range(4):
            p(f"buffer_load_dwordx4 {V(XRL+4*q,4)}, v205, s[28:31], s37 offen offset:{q*128}")
        p("v_lshlrev_b32 v216, 2, v1")
        p("v_mov_b32 v217, 0")
        p("s_lshl_b32 s37, s36, 7")
        p("s_and_b32 s38, s37, 0x1fff")
        p("s_add_u32 s39, s37, 0x4000")
        p("s_cmp_eq_u32 s40, 1")
        p("s_cselect_b32 s38, s39, s38")
        p("s_add_u32 s39, s37, 0x10000")
        p("s_cmp_eq_u32 s40, 0")
        p("s_cselect_b32 s38, s39, s38")
        p(f"s_add_u32 s38, s38, {hex(FLG)}")
    srd(p, 16, 4, 1024*1024*2)
    srd(p, 20, 8, 1024*3584*2)
    for k, d in enumerate(D):
        if MERGE and (k < 4 or k >= 4 + W0PRE): continue
        for x in d: p(x)
    if MERGE:
        p("s_mov_b64 exec, 0xffff")
        p("buffer_store_dword v217, v216, s[24:27], s38 offen sc1")
        p("s_mov_b64 exec, -1")
        if EPF:
            p("s_lshr_b32 s47, s2, 3")
            p("s_bfe_u32 s48, s2, 0x20001")
            p("s_cmp_eq_u32 s40, 3")
            p("s_cbranch_scc1 L1_eq")
            p("v_lshrrev_b32 v220, 4, v1")
            p("v_mul_u32_u24 v220, 7168, v220")
            p("v_and_b32 v221, 15, v1")
            p("v_min_u32 v221, 13, v221")
            p("v_lshl_add_u32 v220, v221, 7, v220")
            p(f"s_mul_i32 s49, s47, {4*7168}")
            p("s_mul_i32 s50, s48, 1792")
            p("s_add_u32 s49, s49, s50")
            p(f"s_mul_i32 s50, s40, {128*7168}")
            p("s_add_u32 s49, s49, s50")
            for g in range(EPF):
                p("buffer_load_dword v223, v220, s[20:23], s49 offen")
                p(f"s_add_u32 s49, s49, {3*128*7168}")
            p("s_branch L1_ed")
            p.label("L1_eq")
            p("v_lshrrev_b32 v221, 2, v1")
            p("v_and_b32 v222, 3, v1")
            p("v_lshlrev_b32 v222, 7, v222")
            p("v_lshl_add_u32 v221, v221, 11, v222")
            p("s_lshl_b32 s49, s47, 15")
            p("s_lshl_b32 s50, s48, 9")
            p("s_add_u32 s49, s49, s50")
            for g in range(EPF):
                p("buffer_load_dword v223, v221, s[16:19], s49 offen")
                p(f"s_add_u32 s49, s49, {512*2048}")
            p.label("L1_ed")
    p("v_and_b32 v3, 15, v1")
    p("v_lshrrev_b32 v4, 4, v1")
    p("s_lshl_b32 s47, s44, 13")
    p("v_add_u32 v11, s47, v5")
    p("v_lshlrev_b32 v15, 9, v4")
    p("v_bfe_u32 v13, v1, 2, 2")
    p("v_lshl_add_u32 v15, v13, 6, v15")
    p("v_and_b32 v13, 3, v1")
    p("v_lshl_add_u32 v15, v13, 3, v15")
    p("v_and_b32 v13, 1, v4")
    p("v_lshl_add_u32 v15, v13, 5, v15")
    p("s_lshl_b32 s47, s45, 5")
    p("v_xor_b32 v14, s47, v15")
    p(f"v_add_u32 v14, {WOFF+32768}, v14")
    p("s_lshl_b32 s47, s45, 14")
    p(f"s_add_u32 s47, s47, {WOFF}")
    p("v_add_u32 v12, s47, v15")
    p("v_xor_b32 v13, 32, v12")
    if not MERGE:
        set_stage(1)
        for d in D:
            for x in d: p(x)
        set_stage(2)
    else:
        p("v_lshlrev_b32 v208, 4, v203")
        p(f"v_add_u32 v208, {3*STG}, v208")
        p("s_lshl_b32 s37, s40, 2")
        p("v_add_u32 v209, s37, v208")
        p("v_lshlrev_b32 v206, 4, v203")
        p("v_lshl_add_u32 v206, v204, 8, v206")
        p("s_lshr_b32 s38, s36, 1")
        p("s_lshl_b32 s38, s38, 15")
        p("s_lshl_b32 s39, s40, 13")
        p("s_add_u32 s38, s38, s39")
        p("s_and_b32 s39, s36, 1")
        p("s_lshl_b32 s39, s39, 7")
        p("s_add_u32 s38, s38, s39")
        p("s_add_u32 s39, s38, 4096")
        p("v_lshlrev_b32 v207, 2, v203")
        p("s_lshl_b32 s48, s36, 5")
        p(f"s_add_u32 s48, s48, {hex(CS)}")
        p(f"s_waitcnt vmcnt({W0PRE+1+EPF})")
        stamp(p, 7)
        def mid():
            if EPF: return
            for d in D[4+W0PRE:]:
                for x in d: p(x)
        ln_body(p, F=32, XR=XRL, o=200, mid=mid)
        for q in range(4):
            p(f"buffer_store_dwordx4 {V(XRL+4*q,4)}, v206, s[24:27], s{38+(q>>1)} offen offset:{(q&1)*2048} sc1")
        p("s_cmp_eq_u32 s40, 3")
        p("s_cbranch_scc0 L1_nc")
        p("s_mov_b64 exec, 0xff")
        p("buffer_store_dword v212, v207, s[24:27], s48 offen sc1")
        p("s_mov_b64 exec, -1")
        p.label("L1_nc")
        p("v_and_b32 v216, 15, v1")
        p("v_lshlrev_b32 v218, 7, v216")
        p("v_lshlrev_b32 v216, 2, v216")
        p("v_mov_b32 v217, 1")
        p("v_mov_b32 v219, 0")
        p("s_lshl_b32 s37, s41, 11")
        p("s_lshl_b32 s38, s42, 2")
        p("s_add_u32 s37, s37, s38")
        p(f"s_add_u32 s37, s37, {hex(FLG+0x10000)}")
        p("s_lshl_b32 s38, s36, 7")
        p(f"s_add_u32 s38, s38, {hex(FLG+0x10000)}")
        srd(p, 28, 62, 256)
        p("s_mul_i32 s3, s36, 5958")
        p("s_lshr_b32 s3, s3, 16")
        p("s_mul_i32 s3, s3, 11")
        p("s_sub_u32 s3, s36, s3")
        p("s_add_u32 s3, s3, 4")
        p("s_cmp_eq_u32 s40, 3")
        p("s_cselect_b32 s3, s3, 0")
        if not EPF: set_stage(1)
        stamp(p, 5)
        p("s_waitcnt vmcnt(0)")
        p("s_barrier")
        stamp(p, 6)
        p("s_cmp_eq_u32 s40, 0")
        p("s_cbranch_scc0 L1_nf")
        p("s_mov_b64 exec, 0xffff")
        p("buffer_store_dword v217, v218, s[24:27], s37 offen sc1")
        p("s_mov_b64 exec, -1")
        p.label("L1_nf")
        if EPF:
            for d in D[4+W0PRE:]:
                for x in d: p(x)
            set_stage(1)
        for d in D[4:]:
            for x in d: p(x)
        p("s_cmp_eq_u32 s40, 0")
        p("s_cbranch_scc0 L1_go")
        p("s_mov_b32 s39, 0")
        p.label("L1_p1")
        p("buffer_load_dword v219, v216, s[24:27], s38 offen sc1")
        p("s_add_u32 s39, s39, 1")
        p("s_waitcnt vmcnt(0)")
        p("v_cmp_eq_u32 vcc, 1, v219")
        p("s_cmp_eq_u64 vcc, -1")
        p("s_cbranch_scc1 L1_go")
        if MPF:
            p("s_cmp_eq_u32 s39, 1")
            p("s_cbranch_scc0 L1_npf")
            p("v_lshrrev_b32 v220, 4, v1")
            p("v_mul_u32_u24 v220, 7168, v220")
            p("v_and_b32 v221, 15, v1")
            p("v_min_u32 v221, 13, v221")
            p("v_lshl_add_u32 v220, v221, 7, v220")
            p("v_lshrrev_b32 v221, 2, v1")
            p("v_and_b32 v222, 3, v1")
            p("v_lshlrev_b32 v222, 7, v222")
            p("v_lshl_add_u32 v221, v221, 11, v222")
            p("s_lshr_b32 s47, s2, 3")
            p("s_bfe_u32 s48, s2, 0x20001")
            p(f"s_mul_i32 s49, s47, {4*7168}")
            p("s_mul_i32 s50, s48, 1792")
            p("s_add_u32 s49, s49, s50")
            p(f"s_add_u32 s49, s49, {MROW*7168}")
            for g in range(MPF):
                p("buffer_load_dword v223, v220, s[20:23], s49 offen")
                p(f"s_add_u32 s49, s49, {128*7168}")
            p("s_lshl_b32 s49, s47, 15")
            p("s_lshl_b32 s50, s48, 9")
            p("s_add_u32 s49, s49, s50")
            p(f"s_add_u32 s49, s49, {MROW*2048}")
            p("buffer_load_dword v223, v221, s[16:19], s49 offen")
            p.label("L1_npf")
        p("s_sleep 2")
        p(f"s_cmp_lt_u32 s39, {NPOLL}")
        p("s_cbranch_scc1 L1_p1")
        p("v_mov_b32 v218, 0")
        p("s_mov_b64 exec, 1")
        p("buffer_store_byte v217, v218, s[28:31], s36 offen sc1")
        p("s_mov_b64 exec, -1")
        p("v_and_b32 v216, 12, v216")
        p("s_lshl_b32 s38, s41, 4")
        p("s_mov_b32 s37, 0x01010101")
        p.label("L1_p2")
        p("buffer_load_dword v219, v216, s[28:31], s38 offen sc1")
        p("s_add_u32 s39, s39, 1")
        p("s_waitcnt vmcnt(0)")
        p("v_cmp_eq_u32 vcc, s37, v219")
        p("s_cmp_eq_u64 vcc, -1")
        p("s_cbranch_scc1 L1_go")
        p("s_sleep 8")
        p("s_cmp_lt_u32 s39, 0x100000")
        p("s_cbranch_scc1 L1_p2")
        p.label("L1_go")
        p("v_mov_b32 v218, 0")
        p("s_barrier")
        stamp(p, 4)
        for n in range(2):
            for x in flat(kchain(str(n))) + KO[:1]: p(x)
            p(f"s_add_u32 s56, s51, {n*STG}")
            for d in D[:4]:
                for x in d: p(x)
        set_stage(2)
    if not MERGE: stamp(p, 4)
    def reads(f, kk):
        R = []
        for u in range(4):
            R.append(f"ds_read_b128 {A(XF(f,u),4)}, v11 offset:{u*2048+kk*1024}")
        for t in range(9):
            for rho in range(2):
                if t < 8: R.append(f"ds_read_b64_tr_b16 {A(WF(f,t)+rho*2,2)}, v{12+(t&1)} offset:{(t>>1)*4096+kk*2048+rho*256}")
                else: R.append(f"ds_read_b64_tr_b16 {A(WF(f,t)+rho*2,2)}, v14 offset:{kk*2048+rho*256}")
        return R
    def mfmas(f, zero=False):
        return [M16(V(acc(u,t),4), A(WF(f,t),4), A(XF(f,u),4), "0" if zero else None) for t in range(9) for u in range(4)]
    p(f"s_waitcnt vmcnt({4 if MERGE else 13})")
    p("s_barrier")
    stamp(p, 1)
    for x in reads(0, 0): p(x)
    if LOOPST: p("s_mov_b32 s71, 0")
    loopstamp(p, "v2", f"v{T+40}")
    p("s_mov_b32 s58, 0")
    p(f"s_mov_b32 s60, {STG}")
    p(f"s_mov_b32 s61, {STG}")
    p("s_mov_b32 s59, 3")
    for x in flat(kchain("3")): p(x)
    p("s_waitcnt lgkmcnt(0)")
    rot_v = [f"v_add_u32 v{r}, s61, v{r}" for r in (11, 12, 13, 14)]
    def phaseA(dl, a, b, zero=False, early=True):
        fill = [(i, x) for i, x in enumerate(reads(1, 1))]
        fill += spread(36, [(a, b, dl)])
        fill += [(b+2, KO[0]), (b+3, KO[1]), (b+4, KO[2]), (b+5, "s_add_u32 s56, s51, s58"), (b+6, "s_add_u32 s57, s52, s58"), (b+7, "s_mov_b32 s58, s60")]
        fill += [(30+i, x) for i, x in enumerate(rot_v)]
        return interleave(mfmas(0, zero), fill)
    for x in phaseA(D, 1, 26, zero=True): p(x)
    p("s_waitcnt vmcnt(13) lgkmcnt(0)")
    pre = fix(p.ins)
    b = Prog()
    b.label("L1_loop")
    loopstamp(b, "v2", f"v{T+40}")
    b("s_barrier")
    loopstamp(b, "v2", f"v{T+40}")
    rot_s = [f"s_add_u32 s60, s58, {STG}", [f"s_cmp_eq_u32 s60, {3*STG}", "s_cselect_b32 s60, 0, s60"], "s_sub_u32 s61, s60, s58"]
    fill = [(i, x) for i, x in enumerate(reads(0, 0))]
    fill += spread(36, [(2, 35, D[:NB])])
    kc = kchain("s59")
    sc = ["s_add_u32 s59, s59, 1", kc[0]] + [kc[1]] + [kc[2], kc[3], rot_s[0], rot_s[1], rot_s[2]]
    posn = [22, 23, 24, 27, 28, 29, 32, 33]
    for ps, x in zip(posn, sc):
        for y in (x if isinstance(x, list) else [x]): fill.append((ps, y))
    if MERGE:
        fill += [(34, "s_cmp_eq_u32 s59, s3"), (34, "s_cbranch_scc1 L1_pub"), (34, "L1_nb:")]
    for x in interleave(mfmas(1), fill): b(x)
    b("s_waitcnt lgkmcnt(0)")
    A_ = phaseA(D[NB:], 2, 26)
    for x in A_: b(x)
    b("s_cmp_lt_u32 s59, 16")
    loopstamp(b, "v2", f"v{T+40}") if False else None
    b("s_waitcnt vmcnt(13) lgkmcnt(0)")
    b("s_cbranch_scc1 L1_loop")
    DROP = os.environ.get("DROP", "")
    if DROP:
        b.ins = [i for i in b.ins if not any(i.text.startswith(d) for d in DROP.split(","))]
    body = fix(b.ins, pre=pre)
    assert not check_loop(body)
    e = Prog()
    issued = []
    KVB = STG; KVR = STG + 65536
    sgelu = (2.0 * math.sqrt(2.0/math.pi) * math.log2(math.e) * 0.044715) ** (1.0/3.0)
    kappa = 2.0 * math.sqrt(2.0/math.pi) * math.log2(math.e) / sgelu
    qs = math.log2(math.e) / math.sqrt(32.0)
    su = Prog()
    srd(su, 24, 6, WS_SIZE)
    srd(su, 28, 10, 3584*2)
    su("v_lshlrev_b32 v6, 3, v4")
    su("s_mul_i32 s47, s42, 448")
    su("s_lshl_b32 s48, s45, 8")
    su("s_add_u32 s48, s48, s47")
    su("s_lshl_b32 s49, s45, 5")
    su("s_add_u32 s49, s49, s47")
    su("v_lshlrev_b32 v7, 2, v3")
    su("s_lshl_b32 s50, s41, 9")
    su("s_lshl_b32 s39, s44, 8")
    su("s_add_u32 s50, s50, s39")
    su(f"s_add_u32 s50, s50, {hex(CS)}")
    su("s_lshl_b32 s37, s41, 3")
    su("s_lshr_b32 s38, s42, 1")
    su("s_add_u32 s37, s37, s38")
    su("s_lshl_b32 s38, s37, 15")
    su("s_lshl_b32 s39, s40, 13")
    su("s_add_u32 s38, s38, s39")
    su("s_add_u32 s39, s38, 4096")
    small = [f"buffer_load_dwordx2 {V(T+2*t,2)}, v6, s[28:31], s48 offen offset:{t*32}" for t in range(6)]
    small.append(f"buffer_load_dwordx2 {V(T+12,2)}, v6, s[28:31], s49 offen offset:192")
    small += [f"buffer_load_dword v{CSC+u}, v7, s[24:27], s50 offen offset:{u*64}{SC}" for u in range(4)]
    kx = [f"buffer_load_dwordx4 {A(KX+4*q,4)}, v5, s[24:27], s{38+(q>>2)} offen offset:{(q&3)*1024}{SC}" for q in range(8)]
    e.label("L1_tail")
    e("s_barrier")
    st = [i.text for i in su.ins]
    fill = [(i, x) for i, x in enumerate(reads(0, 0))] + [(i // 2, x) for i, x in enumerate(st)]
    fill += spread(36, [(15, 35, small)])
    fill += [(30, rot_s[0]), (31, rot_s[1][0]), (31, rot_s[1][1]), (32, rot_s[2])]
    for x in interleave(mfmas(1), fill): e(x)
    e("s_waitcnt lgkmcnt(0)")
    su = Prog()
    su("s_and_b32 s36, s42, 1")
    su("s_cselect_b32 s32, s34, s32")
    su("s_cselect_b32 s33, s35, s33")
    srd(su, 16, 32, 65536)
    su("v_lshrrev_b32 v10, 2, v1")
    su("v_lshl_add_u32 v10, v10, 6, v8")
    su("s_lshl_b32 s49, s40, 14")
    srd(su, 20, 64, 3584*1024*2)
    su("v_lshlrev_b32 v9, 7, v1")
    su("s_lshr_b32 s50, s2, 3")
    su("s_lshl_b32 s50, s50, 1")
    su("s_add_u32 s50, s50, s44")
    su("s_lshl_b32 s50, s50, 13")
    su(f"s_mul_i32 s48, s45, {1792*2048}")
    su("s_add_u32 s55, s50, s48")
    st = [i.text for i in su.ins]
    fill = [(i, x) for i, x in enumerate(reads(1, 1))] + [(0, x) for x in st[:3]] + [(1 + i, x) for i, x in enumerate(st[3:])]
    fill += spread(36, [(2, 28, kx)])
    fill += [(30+i, x) for i, x in enumerate(rot_v)]
    for x in interleave(mfmas(0), fill): e(x)
    e(f"s_waitcnt vmcnt({len(small)+len(kx)}) lgkmcnt(0)")
    e("s_barrier")
    kw = []
    for pp in range(4):
        for q in range(4):
            o = [f"buffer_load_dwordx4 v10, s[16:19], s50 offen offset:{q*1024} lds"]
            if q == 0: o = [f"s_add_u32 m0, s49, {KVB+pp*4096}", f"s_add_u32 s50, s49, {pp*4096}"] + o
            kw.append(o)
    fill = [(i, x) for i, x in enumerate(reads(0, 0))] + spread(36, [(1, 35, kw[:10])])
    for x in interleave(mfmas(1), fill): e(x)
    e(f"s_waitcnt vmcnt({len(kx)+10}) lgkmcnt(0)")
    ub = [f"s_mov_b32 s62, {f32(sgelu)}"]
    for t in range(7):
        for r in range(2):
            ub += [f"v_lshlrev_b32 v{BIAS+4*t+2*r}, 16, v{T+2*t+r}", f"v_and_b32 v{BIAS+4*t+2*r+1}, 0xffff0000, v{T+2*t+r}"]
    ub += [f"v_mul_f32 v{BIAS+i}, s62, v{BIAS+i}" for i in range(32)]
    fill = [(i, x) for i, x in enumerate(reads(1, 1))] + spread(36, [(1, 20, kw[10:])])
    if PFW2: fill.append((24, "buffer_load_dword v2, v9, s[20:23], s55 offen"))
    if CODEPF:
        cs_ = code_srd(12, "L1_epi")
        fill += [(22, x) for x in cs_[:4]] + [(23, x) for x in cs_[4:]] + [(23, "s_lshl_b32 s54, s40, 13"), (26, f"buffer_load_dword v{T+41}, v9, s[12:15], s54 offen")]
    fill += [((i * 36) // len(ub), x) for i, x in enumerate(ub)]
    for x in interleave(mfmas(0), fill): e(x)
    e("s_waitcnt lgkmcnt(0)")
    su = Prog()
    su(f"s_add_u32 s39, s49, {KVB}")
    su("v_add_u32 v12, s39, v15")
    su("v_xor_b32 v13, 32, v12")
    su("s_lshl_b32 s39, s40, 11")
    su(f"s_add_u32 s39, s39, {KVR}")
    su("v_add_u32 v14, s39, v5")
    su("s_lshl_b32 s39, s40, 10")
    su(f"s_add_u32 s39, s39, {KVR}")
    su("v_add_u32 v15, s39, v5")
    su("s_lshl_b32 s46, s41, 3")
    su("s_lshl_b32 s47, s44, 2")
    su("s_add_u32 s46, s46, s47")
    su("s_lshl_b32 s47, s46, 15")
    su("s_lshl_b32 s48, s42, 1")
    su("s_add_u32 s48, s48, s45")
    su("s_lshl_b32 s48, s48, 10")
    su("s_add_u32 s47, s47, s48")
    su(f"s_add_u32 s47, s47, {hex(Q_F)}")
    su(f"s_mul_i32 s48, s46, {OH_TILE}")
    su("s_mul_i32 s49, s42, 7168")
    su("s_add_u32 s48, s48, s49")
    su(f"s_add_u32 s48, s48, {hex(OH_F+32*1024)}")
    su("s_lshl_b32 s49, s45, 12")
    su("v_add_u32 v6, s49, v5")
    su("s_lshl_b32 s49, s45, 3")
    su("v_add_u32 v7, s49, v5")
    su(f"s_mov_b32 s63, {f32(sgelu)}")
    su(f"s_mov_b32 s64, {f32(qs)}")
    su(f"s_mov_b32 s65, {f32(qs)}")
    su(f"v_mov_b32 v8, {f32(kappa)}")
    su(f"v_mov_b32 v9, {f32(kappa)}")
    st = [i.text for i in su.ins]
    krd = [f"ds_read_b64_tr_b16 {A(KW+(s_*2+t)*4+rho*2,2)}, v{12+t} offset:{s_*2048+rho*256}" for s_ in range(8) for t in range(2) for rho in range(2)]
    fill = [(i // 2, x) for i, x in enumerate(st)]
    fill += [(17, f"s_waitcnt vmcnt({(1 if PFW2 else 0) + CODEPF})")] + [(18 + i // 2, x) for i, x in enumerate(krd)]
    for x in interleave(mfmas(1), fill): e(x)
    stamp(e, 2)
    e.label("L1_epi")
    e("s_waitcnt lgkmcnt(0)")
    kvm = [M16(V(KA_+4*t,4), A(KW+(s_*2+t)*4,4), A(KX+4*s_,4), "0" if s_ == 0 else None) for s_ in range(8) for t in range(2)]
    qv = []
    for u in range(4):
        o = T + u*4
        for t in range(2):
            for r in range(4): qv.append(f"v_mul_f32 v{acc(u,t)+r}, s64, v{acc(u,t)+r}")
        for t in range(2):
            for h in range(2): qv.append(f"v_cvt_pk_bf16_f32 v{o+2*t+h}, v{acc(u,t)+2*h}, v{acc(u,t)+2*h+1}")
        qv.append(f"s_add_u32 s49, s47, {u*0x8000}")
        qv.append(f"buffer_store_dwordx4 {V(o,4)}, v5, s[24:27], s49 offen {ST_Q}")
    fill = [((i * 16) // len(qv), x) for i, x in enumerate(qv)]
    for x in interleave(kvm, fill): e(x)
    tcnt = [0]
    def gelu(items, out):
        prs = [(acc(u,t)+2*h, BIAS+4*(t-2)+2*h, u) for (u, t) in items for h in range(2)]
        n = len(prs)
        tb = T + 16 + (tcnt[0] % 2) * 8; tcnt[0] += 1
        for (a, bb, u) in prs:
            e(f"v_pk_fma_f32 {V(a,2)}, {V(a,2)}, {V(CSC+(u&~1),2)}, {V(bb,2)} op_sel:[0,{u&1},0] op_sel_hi:[1,{u&1},1]")
        for i, (a, bb, u) in enumerate(prs): e(f"v_pk_fma_f32 {V(tb+2*i,2)}, {V(a,2)}, {V(a,2)}, v[8:9]")
        for i, (a, bb, u) in enumerate(prs): e(f"v_pk_mul_f32 {V(tb+2*i,2)}, {V(tb+2*i,2)}, {V(a,2)} neg_lo:[0,1] neg_hi:[0,1]")
        for i in range(2*n): e(f"v_exp_f32 v{tb+i}, v{tb+i}")
        for i in range(n): e(f"v_pk_fma_f32 {V(tb+2*i,2)}, {V(tb+2*i,2)}, s[62:63], s[62:63]")
        for i in range(2*n): e(f"v_rcp_f32 v{tb+i}, v{tb+i}")
        for i, (a, bb, u) in enumerate(prs): e(f"v_pk_mul_f32 {V(a,2)}, {V(a,2)}, {V(tb+2*i,2)}")
        for i, (a, bb, u) in enumerate(prs): e(f"v_cvt_pk_bf16_f32 v{out+i}, v{a}, v{a+1}")
    ocnt = [0]
    def outreg():
        r = T + (ocnt[0] % 4) * 4; ocnt[0] += 1
        return r
    for u in range(4):
        for a3 in range(3):
            o = outreg()
            gelu([(u, 2+2*a3), (u, 3+2*a3)], o)
            e(f"buffer_store_dwordx4 {V(o,4)}, v6, s[24:27], s48 offen offset:{a3*1024} {ST_H}")
            if u == 0 and a3 == 0:
                e(f"ds_write_b128 v14, {V(KA_,4)}")
                e(f"ds_write_b128 v14, {V(KA_+4,4)} offset:1024")
            if u == 0 and a3 == 1:
                e("s_waitcnt lgkmcnt(0)")
                e("s_barrier")
                for w in range(4): e(f"ds_read_b128 {V(KA_+4*w,4)}, v15 offset:{w*2048}")
        if u & 1:
            o = outreg()
            gelu([(u-1, 8), (u, 8)], o)
            e(f"s_sub_u32 s49, s48, {OH_TILE}")
            e(f"buffer_store_dwordx2 {V(o,2)}, v7, s[24:27], s49 offen offset:3072 {ST_H}")
            e(f"buffer_store_dwordx2 {V(o+2,2)}, v7, s[24:27], s48 offen offset:3072 {ST_H}")
        if u < 3: e(f"s_add_u32 s48, s48, {OH_TILE}")
        if u == 0:
            e("s_cmp_ge_u32 s40, 2")
            e("s_cbranch_scc1 L1_kvd")
            e("s_waitcnt lgkmcnt(0)")
            for r in range(2):
                e(f"v_pk_add_f32 {V(KA_+2*r,2)}, {V(KA_+2*r,2)}, {V(KA_+4+2*r,2)}")
                e(f"v_pk_add_f32 {V(KA_+8+2*r,2)}, {V(KA_+8+2*r,2)}, {V(KA_+12+2*r,2)}")
            for r in range(2): e(f"v_pk_add_f32 {V(KA_+2*r,2)}, {V(KA_+2*r,2)}, {V(KA_+8+2*r,2)}")
            e(f"v_cvt_pk_bf16_f32 v{KA_+4}, v{KA_}, v{KA_+1}")
            e(f"v_cvt_pk_bf16_f32 v{KA_+5}, v{KA_+2}, v{KA_+3}")
            e("s_lshr_b32 s38, s37, 1")
            e("s_lshl_b32 s38, s38, 12")
            e(f"s_add_u32 s38, s38, {hex(KV)}")
            e("s_and_b32 s39, s37, 1")
            e("s_cmp_eq_u32 s36, 0")
            e("s_cbranch_scc0 L1_kvv")
            e("v_lshrrev_b32 v11, 1, v4")
            e("v_and_b32 v10, 1, v4")
            e("v_lshlrev_b32 v11, 10, v11")
            e("v_lshl_add_u32 v11, v10, 9, v11")
            e("v_lshl_add_u32 v11, v3, 4, v11")
            e("s_lshl_b32 s39, s39, 8")
            e("s_add_u32 s38, s38, s39")
            e("s_lshl_b32 s39, s40, 3")
            e("s_add_u32 s38, s38, s39")
            e(f"buffer_store_dwordx2 {V(KA_+4,2)}, v11, s[24:27], s38 offen {ST_Q}")
            e("s_branch L1_kvd")
            e.label("L1_kvv")
            e("v_bfe_u32 v10, v3, 2, 1")
            e("v_lshlrev_b32 v11, 9, v10")
            e("v_lshl_add_u32 v11, v4, 6, v11")
            e("v_lshrrev_b32 v10, 3, v3")
            e("v_lshl_add_u32 v11, v10, 3, v11")
            e("v_and_b32 v10, 3, v3")
            e("v_lshl_add_u32 v11, v10, 1, v11")
            e("s_lshl_b32 s39, s39, 10")
            e("s_add_u32 s38, s38, s39")
            e("s_lshl_b32 s39, s40, 8")
            e("s_add_u32 s38, s38, s39")
            for r in range(4):
                op = "buffer_store_short" if r % 2 == 0 else "buffer_store_short_d16_hi"
                e(f"{op} v{KA_+4+(r>>1)}, v11, s[24:27], s38 offen offset:{2048+r*16} {ST_Q}")
            e.label("L1_kvd")
    stamp(e, 3)
    if LOOPST: e("v_mov_b32 v3, v2")
    stamp_flush(e, 1, 9)
    loopstamp_flush(e, "v3", 1)
    e.label("L1_end")
    e("s_endpgm")
    if MERGE:
        e.label("L1_pub")
        e("s_mov_b64 exec, 1")
        e("buffer_store_byte v217, v218, s[28:31], s36 offen sc1")
        e("s_mov_b64 exec, -1")
        if PUBPF:
            for x in code_srd(28, "L1_tail", back=True): e(x)
            e("v_lshlrev_b32 v220, 7, v1")
            e("buffer_load_dword v221, v220, s[28:31], 0 offen")
            e("s_bitcmp1_b32 s2, 6")
            e("s_cselect_b32 s28, s34, s32")
            e("s_cselect_b32 s29, s35, s33")
            e("s_and_b32 s29, s29, 0xffff")
            e("s_mov_b32 s30, 0x10000")
            e("s_bfe_u32 s47, s2, 0x30003")
            e("s_lshl_b32 s47, s47, 13")
            e("buffer_load_dword v221, v220, s[28:31], s47 offen")
        e("s_nop 3")
        e("s_branch L1_nb")
    DROPE = os.environ.get("DROPE", "")
    if DROPE:
        k0 = [k for k, i in enumerate(e.ins) if i.text == "L1_epi:"][0]
        k1 = [k for k, i in enumerate(e.ins) if "s_memtime s[78:79]" in i.text][0]
        e.ins = e.ins[:k0] + [i for i in e.ins[k0:k1] if not any(i.text.startswith(d) for d in DROPE.split(","))] + e.ins[k1:]
    epi = fix(e.ins, pre=body)
    ins = pre + [Ins(".p2align 6")] + body + epi
    return name, kernel_text(name, ins, 256+NAG, 256), (256, 256, lds)
```

```python
from common import *

LA2 = int(os.environ.get('LA2', '0'))
PRIO_A = int(os.environ.get('PRIO_A', '1'))
PRIO_G = int(os.environ.get('PRIO_G', '0'))
STP = os.environ.get('STP', 'sc1')
TOUCH = int(os.environ.get('TOUCH', '1'))
PRE0 = int(os.environ.get('PRE0', '2'))
GMAP = int(os.environ.get('GMAP', '1'))
XT = int(os.environ.get('XT', '1'))
LSA = int(os.environ.get('LSA', '1'))
APOS = eval(os.environ.get('APOS', '[0, 32, 64, 96, 128]'))
WOIT = int(os.environ.get('WOIT', '3'))
PRIO_T = int(os.environ.get('PRIO_T', '0'))
PRIO_T2 = eval(os.environ.get('PRIO_T2', '0'))
PSLEEP = int(os.environ.get('PSLEEP', '4'))
WOT2 = int(os.environ.get('WOT2', '-1'))
XROT = int(os.environ.get('XROT', '1'))
OINQ = int(os.environ.get('OINQ', '0'))
ABAR = int(os.environ.get('ABAR', '0'))
WSEG = 32768
WBASE = 65536

def gen():
    name = "attn_kernel"
    lds = WBASE + 3 * WSEG
    NV = 240
    p = Prog()
    p("s_cmp_ge_u32 s2, 256")
    p("s_cbranch_scc1 L2_end")
    stamp(p, 0)
    p(f"s_load_dwordx2 s[6:7], s[0:1], {KA['ws']}")
    p(f"s_load_dwordx2 s[4:5], s[0:1], {KA['wo']}")
    p(f"s_load_dwordx4 s[8:11], s[0:1], {KA['w2']}")
    p(f"s_load_dwordx2 s[32:33], s[0:1], {KA['x']}")
    p(f"s_load_dwordx2 s[34:35], s[0:1], {KA['out']}")
    p("v_and_b32 v1, 63, v0")
    p("v_lshrrev_b32 v2, 6, v0")
    p("v_readfirstlane_b32 s40, v2")
    p("v_lshlrev_b32 v5, 4, v1")
    p("s_cmp_ge_u32 s40, 4")
    p("s_cbranch_scc1 L2_gemm")
    head = fix(p.ins)

    Q = {0: 16, 1: 24}; C = {0: 32, 1: 48}; Sx = {0: 64, 1: 80}; P = {0: 96, 1: 104}
    O = {0: 112, 1: 128}; L = {0: 144, 1: 148}; SEL = 152
    KF = {0: 156, 1: 164}; VF = {0: 172, 1: 180}; T = 188; IDX = 200
    p = Prog()
    if PRIO_A: p(f"s_setprio {PRIO_A}")
    p("s_and_b32 s41, s2, 7")
    p("s_lshl_b32 s41, s41, 3")
    p("s_lshr_b32 s42, s2, 5")
    p("s_add_u32 s41, s41, s42")
    p("s_bfe_u32 s42, s2, 0x20003")
    p("s_lshl_b32 s42, s42, 3")
    p("s_lshl_b32 s43, s40, 1")
    p("s_add_u32 s42, s42, s43")
    p("v_and_b32 v3, 15, v1")
    p("v_lshlrev_b32 v3, 4, v3")
    p("v_lshrrev_b32 v4, 5, v1")
    p("v_lshl_add_u32 v3, v4, 8, v3")
    p("v_bfe_u32 v4, v1, 4, 1")
    p("v_lshl_add_u32 v6, v4, 15, v3")
    p("s_lshl_b32 s45, s41, 16")
    p("s_lshl_b32 s46, s42, 10")
    p("s_add_u32 s45, s45, s46")
    p(f"s_add_u32 s45, s45, {hex(Q_F)}")
    p("s_waitcnt lgkmcnt(0)")
    srd(p, 24, 6, WS_SIZE)
    for x in range(2):
        for mf in range(2):
            p(f"buffer_load_dwordx4 {V(Q[x]+4*mf,4)}, v6, s[24:27], s45 offen offset:{x*1024+mf*512}")
    srd(p, 12, 6, 262144, KV)
    if TOUCH:
        p("v_lshlrev_b32 v12, 7, v1")
        p("s_lshr_b32 s48, s2, 3")
        p("s_lshl_b32 s48, s48, 13")
    srd(p, 28, 4, 1024*1024*2)
    p("s_lshl_b32 s49, s2, 13")
    for x in code_srd(16, "L2_gtail"): p(x)
    p("s_sub_u32 s51, s40, 1")
    p("s_lshl_b32 s51, s51, 13")
    p("s_cmp_eq_u32 s40, 0")
    p("s_cselect_b32 s16, s28, s16")
    p("s_cselect_b32 s17, s29, s17")
    p("s_cselect_b32 s18, s30, s18")
    p("s_cselect_b32 s51, s49, s51")
    p("s_lshr_b32 s50, s2, 4")
    p("s_lshl_b32 s50, s50, 7")
    p("s_bfe_u32 s52, s2, 0x10003")
    p("s_lshl_b32 s52, s52, 2")
    p("s_add_u32 s52, s52, s40")
    p("s_lshl_b32 s52, s52, 17")
    p("s_add_u32 s50, s50, s52")
    p("s_add_u32 s50, s50, 0x100000")
    p("v_lshlrev_b32 v15, 11, v1")
    p("s_lshl_b32 s53, s41, 7")
    p("s_lshl_b32 s54, s42, 1")
    p("s_add_u32 s53, s53, s54")
    p(f"s_add_u32 s53, s53, {hex(FLG)}")
    if OINQ:
        p("v_mov_b32 v7, v6")
        p("s_mov_b32 s47, s45")
    else:
        p(f"s_mov_b32 s44, {OH_TILE}")
        p("v_mul_lo_u32 v7, v4, s44")
        p("v_add_u32 v7, v7, v3")
        p(f"s_mul_i32 s47, s41, {2*OH_TILE}")
        p("s_add_u32 s47, s47, s46")
        p(f"s_add_u32 s47, s47, {hex(OH_F)}")
    p("v_and_b32 v8, 4, v1")
    p("v_cmp_eq_u32 vcc, 0, v8")
    p("v_mov_b32 v9, 0x3f803f80")
    p("v_mov_b32 v8, 0")
    for r in range(2): p(f"v_cndmask_b32 v{SEL+r}, v8, v9, vcc")
    for r in range(2): p(f"v_cndmask_b32 v{SEL+2+r}, v9, v8, vcc")
    p("v_and_b32 v8, 1, v1")
    p("v_mul_u32_u24 v8, 0xaaaa, v8")
    p(f"v_add_u32 v{IDX}, 0x4444, v8")
    for x in range(2):
        for r in range(16): p(f"v_mov_b32 v{O[x]+r}, 0")
        for r in range(4): p(f"v_mov_b32 v{L[x]+r}, 0")
    for r in range(8):
        p(f"v_mov_b32 v{P[1]+r}, 0")
        p(f"v_mov_b32 v{VF[1]+r}, 0")
    p("v_mov_b32 v10, v5")
    p("v_add_u32 v11, 0x8000, v5")
    p("s_barrier")
    stamp(p, 1)
    def rdK(buf, addr, tile): return [f"ds_read_b128 {V(KF[buf]+4*m,4)}, v{addr} offset:{tile*4096+m*1024}" for m in range(2)]
    def rdV(buf, addr, tile): return [f"ds_read_b128 {V(VF[buf]+4*m,4)}, v{addr} offset:{tile*4096+2048+m*1024}" for m in range(2)]
    def QK(x, buf, c=None):
        cc = V(C[x],16) if c is None else c
        return [M32(V(Sx[x],16), V(KF[buf],4), V(Q[x],4), cc), M32(V(Sx[x],16), V(KF[buf]+4,4), V(Q[x]+4,4))]
    def PV(x, buf):
        return [M32(V(O[x],16), V(VF[buf],4), V(P[x],4)), M32(V(O[x],16), V(VF[buf]+4,4), V(P[x]+4,4))]
    def SUM(x):
        return [f"v_smfmac_f32_16x16x64_bf16 {V(L[x],4)}, {V(SEL,4)}, {V(P[x],8)}, v{IDX}"]
    def rowmax(q, x, dst, init=None):
        s = Sx[x]
        if init is None:
            q(f"v_max3_f32 v{dst}, v{s}, v{s+1}, v{s+2}")
            q(f"v_max_f32 v{dst}, v{dst}, v{s+3}")
            st = 4
        else: st = 0
        for i in range(st, 16, 2): q(f"v_max3_f32 v{dst}, v{dst}, v{s+i}, v{s+i+1}")
    def setC(q, x, src):
        q(f"v_mov_b32 v{T+8}, v{src}")
        q(f"v_permlane32_swap_b32 v{src}, v{T+8}")
        q(f"v_max_f32 v{src}, v{src}, v{T+8}")
        for r in range(16): q(f"v_sub_f32 v{C[x]+r}, 0, v{src}")
    for x in rdK(0, 10, 0): p(x)
    p("s_waitcnt vmcnt(0) lgkmcnt(0)")
    if TOUCH == 1:
        p("s_cmp_eq_u32 s40, 0")
        p("s_cbranch_scc0 L2_notouch")
        p("buffer_load_dword v13, v12, s[12:15], s48 offen")
        p.label("L2_notouch")
    for x in range(2):
        for m in QK(x, 0, "0"): p(m)
    for x in range(2):
        rowmax(p, x, T+x)
        setC(p, x, T+x)
    for m in QK(0, 0): p(m)
    p("s_mov_b32 s59, 0")
    if LOOPST: p("s_mov_b32 s71, 0")
    loopstamp(p, "v14", "v201")
    p("s_nop 15")
    if os.environ.get("GONLY") == "1":
        for i in range(15): p("s_barrier")
        p("s_endpgm")
    pre = fix(p.ins, pre=head)
    b = Prog()
    b.label("L2_loop")
    def valu(x):
        v = []
        for i in range(8):
            v += [f"v_exp_f32 v{Sx[x]+2*i}, v{Sx[x]+2*i}", f"v_exp_f32 v{Sx[x]+2*i+1}, v{Sx[x]+2*i+1}"]
            if i >= 1: v.append(f"v_cvt_pk_bf16_f32 v{P[x]+i-1}, v{Sx[x]+2*i-2}, v{Sx[x]+2*i-1}")
        v.append(f"v_cvt_pk_bf16_f32 v{P[x]+7}, v{Sx[x]+14}, v{Sx[x]+15}")
        return v
    def phase(x, mf, extra):
        v = valu(x)
        pos = APOS
        out = []; cum = 0; mi = 0
        for ins in v:
            while mi < 5 and cum >= pos[mi]:
                out += extra.get(("pre", mi), [])
                out.append(mf[mi]); out += extra.get(mi, []); mi += 1
            out.append(ins); cum += 8 if "exp" in ins else 4
        assert mi == 5
        return out
    for t in range(8):
        kb = t & 1
        nk = rdK(kb^1, 10, t+1) if t < 7 else rdK(kb^1, 11, 0)
        nv = rdV(kb, 10, t)
        ex = {0: [nk[0]], 1: [nk[1]], 2: [nv[0]], 3: [nv[1]]}
        for x in phase(0, QK(1, kb) + PV(1, kb^1) + SUM(1), ex): b(x)
        ex = {("pre", 0): ["s_waitcnt lgkmcnt(0)"]}
        LS = loopstamp_list("v14", "v201") if LSA else []
        if t == 2: ex[4] = LS + ["s_barrier"] + LS
        if t == 3: ex[4] = [f"s_cmp_eq_u32 s59, {WOIT}", "s_cbranch_scc0 L2_noxt", "buffer_load_dword v13, v12, s[16:19], s51 offen", "L2_noxt:"]
        if t == 5 and WOT2 >= 0: ex[4] = [f"s_cmp_eq_u32 s59, {WOT2}", "s_cbranch_scc0 L2_noxt2", "buffer_load_dword v13, v15, s[28:31], s50 offen", "L2_noxt2:"]
        if t == 6: ex[4] = ["s_cmp_eq_u32 s59, 7", "s_cbranch_scc1 L2_nobar"] + LS + ["s_barrier"] + LS + ["L2_nobar:"]
        if t == 7:
            ex[1] = ["v_xor_b32 v10, 0x8000, v10"]
            ex[2] = ["v_xor_b32 v11, 0x8000, v11"]
            ex[4] = ["s_add_u32 s59, s59, 1", "s_cmp_lt_u32 s59, 8"]
        for x in phase(1, QK(0, kb^1) + PV(0, kb) + SUM(0), ex): b(x)
    b("s_cbranch_scc1 L2_loop")
    rep = []
    body = fix(b.ins, pre=pre, report=rep)
    if rep: print("attn loop nops:", len(rep), rep[:5])
    assert not check_loop(body)
    e = Prog()
    stamp(e, 2)
    for m in PV(1, 1) + SUM(1): e(m)
    e("s_mov_b32 s60, 0")
    e.label("L2_fin")
    e("s_nop 15")
    for x in range(2): e(f"v_add_f32 v{L[x]}, v{L[x]}, v{L[x]+1}")
    e(f"s_mov_b32 s61, {f32(2.0**40)}")
    e(f"v_cmp_gt_f32 vcc, s61, v{L[0]}")
    e(f"v_cmp_gt_f32 s[62:63], s61, v{L[1]}")
    e("s_and_b64 vcc, vcc, s[62:63]")
    e("s_cmp_eq_u64 vcc, -1")
    e("s_cbranch_scc1 L2_store")
    e("s_cmp_eq_u32 s60, 0")
    e("s_cbranch_scc1 L2_slow")
    e.label("L2_store")
    for x in range(2):
        e(f"v_rcp_f32 v{T+x}, v{L[x]}")
    for x in range(2):
        for r in range(16): e(f"v_mul_f32 v{O[x]+r}, v{O[x]+r}, v{T+x}")
        for hh in range(2):
            o = P[x] + 4*hh
            src = [4*hh, 4*hh+2, 8+4*hh, 8+4*hh+2]
            for i, sr in enumerate(src): e(f"v_cvt_pk_bf16_f32 v{o+i}, v{O[x]+sr}, v{O[x]+sr+1}")
            e(f"buffer_store_dwordx4 {V(o,4)}, v7, s[24:27], s47 offen offset:{x*1024+hh*512} sc1")
    e("v_mov_b32 v8, 1")
    e("v_mov_b32 v9, 0")
    stamp(e, 3)
    e("s_waitcnt vmcnt(0)")
    e("s_mov_b64 exec, 1")
    e("buffer_store_dword v8, v9, s[24:27], s53 offen sc1")
    e("s_mov_b64 exec, -1")
    if ABAR: e("s_barrier")
    stamp_flush(e, 2, 5)
    loopstamp_flush(e, "v14", 2)
    e.label("L2_end")
    e("s_endpgm")
    e.label("L2_slow")
    e("s_mov_b32 s60, 1")
    e(f"v_mov_b32 v{T}, 0xff800000")
    e(f"v_mov_b32 v{T+1}, 0xff800000")
    e("s_mov_b32 s52, 0")
    e.label("L2_s1")
    for m in range(2): e(f"buffer_load_dwordx4 {V(KF[0]+4*m,4)}, v5, s[12:15], s52 offen offset:{m*1024}")
    e("s_waitcnt vmcnt(0)")
    for x in range(2):
        for m in QK(x, 0, "0"): e(m)
    e("s_nop 15")
    for x in range(2): rowmax(e, x, T+x, init=True)
    e("s_add_u32 s52, s52, 4096")
    e("s_cmp_lt_u32 s52, 0x40000")
    e("s_cbranch_scc1 L2_s1")
    for x in range(2):
        setC(e, x, T+x)
        for r in range(16): e(f"v_mov_b32 v{O[x]+r}, 0")
        for r in range(4): e(f"v_mov_b32 v{L[x]+r}, 0")
    e("s_mov_b32 s52, 0")
    e.label("L2_s2")
    for m in range(2): e(f"buffer_load_dwordx4 {V(KF[0]+4*m,4)}, v5, s[12:15], s52 offen offset:{m*1024}")
    for m in range(2): e(f"buffer_load_dwordx4 {V(VF[0]+4*m,4)}, v5, s[12:15], s52 offen offset:{2048+m*1024}")
    e("s_waitcnt vmcnt(0)")
    for x in range(2):
        for m in QK(x, 0): e(m)
    e("s_nop 15")
    for x in range(2):
        for v in valu(x): e(v)
    e("s_nop 3")
    for x in range(2):
        for m in PV(x, 0) + SUM(x): e(m)
    e("s_nop 15")
    e("s_add_u32 s52, s52, 4096")
    e("s_cmp_lt_u32 s52, 0x40000")
    e("s_cbranch_scc1 L2_s2")
    e("s_branch L2_fin")
    epi = fix(e.ins, pre=body)
    att = pre + [Ins(".p2align 6")] + body + epi

    ACC = 16
    def acc(u, t): return ACC + (u*8+t)*4
    XR = 80
    def XF(sg, kb, u): return XR + ((sg*4+kb)*2+u)*4
    WB = 144
    def WF(f, t): return WB + f*32 + t*4
    TG = 208
    p = Prog()
    p.label("L2_gemm")
    if PRIO_G: p(f"s_setprio {PRIO_G}")
    p("s_sub_u32 s40, s40, 4")
    p("s_lshl_b32 s50, s40, 12")
    p("s_mov_b32 s51, s50")
    if GMAP == 0:
        p("s_and_b32 s41, s2, 3")
        p("s_lshl_b32 s41, s41, 2")
        p("s_bfe_u32 s43, s2, 0x20003")
        p("s_add_u32 s41, s41, s43")
        p("s_bfe_u32 s44, s2, 0x10002")
        p("s_lshr_b32 s42, s2, 5")
        p("s_add_u32 s66, s42, s43")
    else:
        p("s_and_b32 s41, s2, 7")
        p("s_lshl_b32 s41, s41, 1")
        p("s_bfe_u32 s43, s2, 0x10003")
        p("s_add_u32 s41, s41, s43")
        p("s_bfe_u32 s44, s2, 0x10004")
        p("s_lshr_b32 s42, s2, 5")
        p("s_add_u32 s66, s42, s43")
        p("s_bfe_u32 s43, s2, 0x20003")
    p("v_and_b32 v13, 3, v1")
    p("v_lshlrev_b32 v13, 4, v13")
    p("v_lshrrev_b32 v14, 4, v1")
    p("s_lshl_b32 s47, s44, 1")
    p("v_xor_b32 v14, s47, v14")
    p("v_lshl_add_u32 v13, v14, 6, v13")
    p("v_bfe_u32 v14, v1, 2, 2")
    p("v_lshl_add_u32 v8, v14, 11, v13")
    p("s_lshl_b32 s47, s40, 16")
    p("v_add_u32 v8, s47, v8")
    p("v_xor_b32 v9, 32, v8")
    p("s_lshl_b32 s52, s40, 13")
    p(f"s_add_u32 s52, s52, {WBASE}")
    p(f"s_mul_i32 s65, s44, {1792*2048}")
    p("s_lshl_b32 s48, s42, 8")
    p("s_add_u32 s65, s65, s48")
    p(f"s_mul_i32 s63, s44, {56*1024}")
    p("s_add_u32 s63, s63, 0x8000")
    def kseg(q, nreg):
        q(f"s_add_u32 s68, {nreg}, {LA2}")
        if GMAP == 0: q(f"s_and_b32 s69, {nreg}, 3")
        else: q("s_sub_u32 s69, s68, 14")
        q("s_cmp_ge_u32 s68, 14")
        q("s_cselect_b32 s68, s69, s68")
        q(f"s_add_u32 s67, {nreg}, s66")
        q(f"s_and_b32 s67, s67, {3 if GMAP == 0 else 1}")
        q(f"s_cselect_b32 s67, {nreg}, s68")
        q("s_lshl_b32 s54, s67, 18")
        q("s_add_u32 s54, s54, s65")
        q("s_lshl_b32 s53, s67, 12")
        q("s_add_u32 s53, s53, s63")
    kseg(p, "0")
    p("s_mov_b32 s56, s52")
    p("s_waitcnt lgkmcnt(0)")
    srd(p, 12, 6, 262144, KV)
    p("s_movk_i32 s57, 0x2000")
    def wdma(q): return [f"s_add_u32 m0, s56, {q*1024}", ("s_mov_b32 s55, s54" if q == 0 else "s_add_u32 s55, s55, s57"), f"buffer_load_dwordx4 v{8+(q&1)}, s[16:19], s55 offen lds"]
    def kvdma(q): return ["s_mov_b32 m0, s51", "s_nop 0", f"buffer_load_dwordx4 v5, s[12:15], s50 offen offset:{q*1024} lds"]
    def kvadv(q):
        q("s_add_u32 s50, s50, 0x4000")
        q("s_add_u32 s51, s51, 0x4000")
        q("s_and_b32 s51, s51, 0xffff")
    def xld(sg, kb): return [f"buffer_load_dwordx4 {V(XF(sg,kb,u),4)}, v{6+u}, s[20:23], s53 offen offset:{kb*1024}" for u in range(2)]
    for q in range(4):
        for x in (kvdma(q) if q == 0 else kvdma(q)[2:]): p(x)
    kvadv(p)
    for q in range(4):
        for x in (kvdma(q) if q == 0 else kvdma(q)[2:]): p(x)
    kvadv(p)
    srd(p, 16, 8, 3584*1024*2)
    srd(p, 20, 6, 128*OH_TILE, OH_F)
    p("s_lshl_b32 s46, s41, 3")
    p("s_lshl_b32 s47, s40, 1")
    p("s_add_u32 s46, s46, s47")
    p(f"s_mul_i32 s47, s46, {OH_TILE}")
    p("v_add_u32 v6, s47, v5")
    p(f"v_add_u32 v7, {OH_TILE}, v6")
    srd(p, 36, 6, WS_SIZE)
    p("s_and_b32 s5, s5, 0xffff")
    p("v_and_b32 v3, 15, v1")
    p("v_lshrrev_b32 v4, 4, v1")
    p("v_lshlrev_b32 v12, 10, v4")
    p("v_bfe_u32 v13, v1, 2, 2")
    p("v_lshl_add_u32 v12, v13, 6, v12")
    p("v_and_b32 v13, 3, v1")
    p("v_lshl_add_u32 v12, v13, 3, v12")
    p("v_and_b32 v13, 1, v4")
    p("v_lshl_add_u32 v12, v13, 5, v12")
    p(f"v_add_u32 v12, {WBASE}, v12")
    p("v_xor_b32 v13, 32, v12")
    for i in range(32): p(f"v_mov_b64 {V(ACC+2*i,2)}, 0")
    p("s_lshl_b32 s45, s44, 7")
    p("s_add_u32 s45, s45, s48")
    p("s_lshr_b32 s30, s2, 4" if XROT else "s_mov_b32 s30, 0")
    p("s_add_u32 s62, s30, s40")
    p("s_lshl_b32 s62, s62, 17")
    p("s_and_b32 s62, s62, 0x1fffff")
    p("s_lshl_b32 s30, s30, 11")
    p("v_lshrrev_b32 v10, 5, v1")
    p("v_lshlrev_b32 v11, 1, v10")
    p("v_and_b32 v14, 3, v1")
    p("v_xor_b32 v11, v11, v14")
    p("v_lshlrev_b32 v11, 4, v11")
    p("v_bfe_u32 v14, v1, 4, 1")
    p("v_lshl_add_u32 v11, v14, 6, v11")
    p("v_bfe_u32 v14, v1, 2, 2")
    p("v_lshl_add_u32 v10, v10, 2, v14")
    p("v_lshl_add_u32 v10, v10, 11, v11")
    p("v_add_u32 v10, s45, v10")
    RRX = TG; RRB = TG + 16
    srd(p, 24, 32, 2048*1024*2)
    p("s_mov_b32 s28, s34")
    p("s_mov_b32 s29, s35")
    srd(p, 32, 10, 2048)
    p("v_and_b32 v15, 7, v1")
    p("v_lshlrev_b32 v15, 4, v15")
    p("v_lshrrev_b32 v14, 3, v1")
    p("v_lshl_add_u32 v14, v14, 11, v15")
    p("s_lshl_b32 s31, s46, 15")
    p("s_add_u32 s31, s31, s45")
    p("s_waitcnt vmcnt(4)")
    p("s_barrier")
    for q in range(8):
        for x in wdma(q): p(x)
    stamp(p, 1)
    for kb in range(4):
        for x in xld(0, kb): p(x)
    kseg(p, "1")
    p(f"s_add_u32 s56, s52, {WSEG}")
    for kb in range(PRE0):
        for x in wdma(2*kb) + wdma(2*kb+1) + kvdma(kb) + xld(1, kb): p(x)
    p(f"s_waitcnt vmcnt({8+5*PRE0})")
    p("s_barrier")
    def wreads(f, kb):
        return [f"ds_read_b64_tr_b16 {V(WF(f,t)+rho*2,2)}, v{12+(t&1)} offset:{kb*8192+rho*4096+(t>>1)*256}" for t in range(8) for rho in range(2)]
    def mfmas(f, sg, kb):
        return [M16(V(acc(u,t),4), V(WF(f,t),4), V(XF(sg,kb,u),4)) for t in range(8) for u in range(2)]
    for x in wreads(0, 0): p(x)
    for kb in range(PRE0, 4):
        for x in wdma(2*kb) + wdma(2*kb+1) + kvdma(kb) + xld(1, kb): p(x)
    p("s_mov_b32 s58, 0")
    p("s_mov_b32 s59, 2")
    p(f"s_mov_b32 s64, {2*WSEG}")
    sgc = [0]
    def seg_setup(q):
        kseg(q, "s59")
        q("s_add_u32 s56, s52, s64")
        q(f"s_add_u32 s64, s64, {WSEG}")
        q(f"s_cmp_eq_u32 s64, {3*WSEG}")
        q("s_cselect_b32 s64, 0, s64")
        kvadv(q)
        sgc[0] += 1
        q("s_cmp_ge_u32 s59, 14")
        q(f"s_cbranch_scc0 L2_sg{sgc[0]}")
        q("s_mov_b32 s16, s4")
        q("s_mov_b32 s17, s5")
        q("s_mov_b32 s18, 0x200000")
        q("s_mov_b32 s54, s62")
        q("s_add_u32 s62, s62, 0x80000")
        q("s_and_b32 s62, s62, 0x1fffff")
        q("s_movk_i32 s57, 0x4000")
        q("s_mov_b32 s22, 0")
        q("v_mov_b32 v8, v10")
        q("v_mov_b32 v9, v10")
        q("s_cmp_ge_u32 s59, 15")
        q("s_cselect_b32 s51, 0x30000, s51")
        q(f"s_cbranch_scc1 L2_sg{sgc[0]}")
        for k in range(4):
            q(f"s_add_u32 s55, s70+0, {k*16384}".replace("s70+0", "s31"))
            q(f"buffer_load_dwordx4 {V(RRX+4*k,4)}, v14, s[24:27], s55 offen")
        q(f"buffer_load_dwordx4 {V(RRB,4)}, v15, s[72-44:75-44], s45 offen".replace("72-44:75-44", "32:35"))
        q(f"L2_sg{sgc[0]}:")
        q("s_add_u32 s59, s59, 1")
    seg_setup(p)
    p("s_waitcnt vmcnt(20)")
    if LOOPST: p("s_mov_b32 s71, 0")
    loopstamp(p, "v2", "v11")
    gpre = fix(p.ins, pre=head)
    b = Prog()
    b.label("L2_gloop")
    for sg in range(2):
        for kb in range(4):
            f = kb & 1
            if kb < 3:
                b("s_waitcnt vmcnt(35) lgkmcnt(0)")
                rd = wreads(f^1, kb+1)
            else:
                rd = wreads(f^1, 0)
                if not LSA: loopstamp(b, "v2", "v11")
                b("s_waitcnt vmcnt(17) lgkmcnt(0)")
                if not LSA: loopstamp(b, "v2", "v11")
                b("s_barrier")
                if not LSA: loopstamp(b, "v2", "v11")
                b(f"s_add_u32 s60, s58, {WSEG}")
                b(f"s_cmp_eq_u32 s60, {3*WSEG}")
                b("s_cselect_b32 s60, 0, s60")
                b("s_sub_u32 s61, s60, s58")
                b("s_mov_b32 s58, s60")
                b("v_add_u32 v12, s61, v12")
                b("v_add_u32 v13, s61, v13")
            fill = [(i // 2, x) for i, x in enumerate(rd)]
            for q, ps in ((2*kb, 8), (2*kb+1, 10)):
                wd = wdma(q)
                fill += [(ps, wd[0]), (ps, wd[1]), (ps+1, wd[2])]
            kd = kvdma(kb)
            fill += [(12, kd[0]), (13, kd[2])]
            fill += [(15, x) for x in xld(sg, kb)]
            for x in interleave(mfmas(f, sg, kb), fill):
                if os.environ.get("NOGMFMA") == "1" and "mfma" in x: continue
                b(x)
        seg_setup(b)
    b("s_cmp_lt_u32 s59, 17")
    b("s_cbranch_scc1 L2_gloop")
    rep = []
    gbody = fix(b.ins, pre=gpre, report=rep)
    if rep: print("gemm loop nops:", len(rep), rep[:5])
    assert not check_loop(gbody)
    e = Prog()
    stamp(e, 2)
    e.label("L2_gtail")
    if PRIO_T: e(f"s_setprio {PRIO_T}")
    for q in range(8):
        for x in wdma(q): e(x)
    e("s_mov_b32 s54, s62")
    e("s_lshl_b32 s56, s40, 13")
    for q in range(8):
        for x in wdma(q): e(x)
    e("s_lshl_b32 s47, s41, 3")
    e("s_add_u32 s47, s47, s42")
    e("s_lshl_b32 s47, s47, 1")
    e("s_add_u32 s47, s47, s44")
    e("s_xor_b32 s49, s47, 1")
    e("s_lshl_b32 s50, s47, 2")
    e("s_add_u32 s50, s50, s40")
    e("s_lshl_b32 s50, s50, 12")
    e(f"s_add_u32 s50, s50, {hex(XN_F if OINQ else PART)}")
    e("s_waitcnt lgkmcnt(0)")
    for u in range(2):
        for tp in range(2):
            o = WB + (u*2+tp)*4
            for h in range(2):
                t = 4 + 2*tp + h
                e(f"v_cvt_pk_bf16_f32 v{o+2*h}, v{acc(u,t)}, v{acc(u,t)+1}")
                e(f"v_cvt_pk_bf16_f32 v{o+2*h+1}, v{acc(u,t)+2}, v{acc(u,t)+3}")
    for k in range(4):
        e(f"buffer_store_dwordx4 {V(WB+4*k,4)}, v5, s[36:39], s50 offen offset:{k*1024} sc1")
    e("s_lshl_b32 s47, s47, 7")
    e("s_lshl_b32 s55, s40, 2")
    e("s_add_u32 s47, s47, s55")
    e(f"s_add_u32 s47, s47, {hex(FLG+0x4000)}")
    e("s_lshl_b32 s53, s49, 7")
    e("s_add_u32 s53, s53, s55")
    e(f"s_add_u32 s53, s53, {hex(FLG+0x4000)}")
    e("s_lshl_b32 s50, s49, 2")
    e("s_add_u32 s50, s50, s40")
    e("s_lshl_b32 s50, s50, 12")
    e(f"s_add_u32 s50, s50, {hex(XN_F if OINQ else PART)}")
    e("v_mov_b32 v8, 1")
    e("v_mov_b32 v9, 0")
    e("s_waitcnt vmcnt(0) lgkmcnt(0)")
    e("s_mov_b64 exec, 1")
    e("buffer_store_dword v8, v9, s[36:39], s47 offen sc1")
    e("s_mov_b64 exec, -1")
    stamp(e, 3)
    if PRIO_T2 is not None: e(f"s_setprio {PRIO_T2}")
    e("v_lshlrev_b32 v12, 9, v4")
    e("v_bfe_u32 v13, v1, 2, 2")
    e("v_lshl_add_u32 v12, v13, 6, v12")
    e("v_and_b32 v13, 3, v1")
    e("v_lshl_add_u32 v12, v13, 3, v12")
    e("v_and_b32 v13, 1, v4")
    e("v_lshl_add_u32 v12, v13, 5, v12")
    QB = [WBASE + 2*WSEG, WBASE, WBASE + WSEG, 0]
    e(f"v_add_u32 v12, {QB[0]}, v12")
    e("v_xor_b32 v13, 32, v12")
    def WF3(f, t): return WB + f*16 + t*4
    def wr3(b_): return [f"ds_read_b64_tr_b16 {V(WF3(b_%3,t)+rho*2,2)}, v{12+(t&1)} offset:{(b_&7)*4096+rho*2048+(t>>1)*256}" for t in range(4) for rho in range(2)]
    def poll(lbl, vaddr, soff, need_mask):
        e("s_mov_b32 s58, 0")
        e.label(lbl)
        e(f"buffer_load_dword v10, {vaddr}, s[36:39], {soff} offen sc1")
        e("s_add_u32 s58, s58, 1")
        e("s_waitcnt vmcnt(0)")
        e("v_cmp_eq_u32 vcc, 1, v10")
        e("s_cmp_eq_u64 vcc, -1")
        e(f"s_cbranch_scc1 {lbl}_ok")
        e(f"s_sleep {PSLEEP}")
        e("s_cmp_lt_u32 s58, 0x100000")
        e(f"s_cbranch_scc1 {lbl}")
        e.label(lbl + "_ok")
    PRW = acc(1, 4)
    def SUMR(i): return (acc(0, 4) + i) if i < 16 else (WB + 48 + i - 16)
    TT = TG + 20
    for i in range(4):
        e(f"v_lshlrev_b32 v{TT+2*i}, 16, v{RRB+i}")
        e(f"v_and_b32 v{TT+2*i+1}, 0xffff0000, v{RRB+i}")
    for i in range(16):
        e(f"v_lshlrev_b32 v{SUMR(2*i)}, 16, v{RRX+i}")
        e(f"v_and_b32 v{SUMR(2*i)+1}, 0xffff0000, v{RRX+i}")
        e(f"v_pk_add_f32 {V(SUMR(2*i),2)}, {V(SUMR(2*i),2)}, {V(TT+2*(i&3),2)}")
    if OINQ:
        srd(e, 20, 6, 0x400000, Q_F)
        e("s_lshl_b32 s55, s46, 15")
        e("v_add_u32 v6, s55, v5")
        e("v_add_u32 v7, 0x8000, v6")
    else:
        e(f"s_mov_b32 s22, {128*OH_TILE}")
    e("s_lshl_b32 s55, s41, 2")
    e("s_add_u32 s55, s55, s40")
    e("s_lshl_b32 s55, s55, 7")
    e(f"s_add_u32 s55, s55, {hex(FLG)}")
    e("v_lshlrev_b32 v11, 2, v3")
    e("v_add_u32 v11, s55, v11")
    e("v_mov_b32 v10, s53")
    e("v_cmp_gt_u32 vcc, 32, v1")
    e("v_cndmask_b32 v11, v10, v11, vcc")
    srd(e, 24, 28, 2048*1024*2)
    e("s_barrier")
    stamp(e, 4)
    for x in wr3(0) + wr3(1): e(x)
    poll("L2_po", "v11", "0", None)
    stamp(e, 5)
    LAB = 8
    def XF3(b_, u): return XR + ((b_ % LAB)*2+u)*4
    def xop(b_):
        L_ = []
        if (b_ & 1) == 0: L_ += [f"s_add_u32 s53, s30, {b_*1024}", "s_and_b32 s53, s53, 0x7fff"]
        L_ += [f"buffer_load_dwordx4 {V(XF3(b_,u),4)}, v{6+u}, s[20:23], s53 offen offset:{(b_&1)*1024} sc1" for u in range(2)]
        return L_
    for b_ in range(LAB-1):
        for x in xop(b_): e(x)
    ad = ["v_xor_b32 v8, v3, v4", "v_lshlrev_b32 v8, 4, v8", "v_lshl_add_u32 v8, v3, 8, v8", "s_lshl_b32 s56, s40, 13", "s_add_u32 s56, s56, 0x8000",
          "v_add_u32 v8, s56, v8", "v_xor_b32 v9, 64, v8", "v_xor_b32 v10, 0x80, v8", "v_xor_b32 v11, 0xc0, v8"]
    for x in ad: e(x)
    NBK = 32
    PB = 8
    def padd(u, i):
        tt = TT + 2*(i & 3)
        return [f"v_lshlrev_b32 v{tt}, 16, v{PRW+u*8+i}", f"v_and_b32 v{tt+1}, 0xffff0000, v{PRW+u*8+i}",
                f"v_add_f32 v{acc(u,0)+2*i}, v{acc(u,0)+2*i}, v{tt}", f"v_add_f32 v{acc(u,0)+2*i+1}, v{acc(u,0)+2*i+1}, v{tt+1}"]
    issued = [("x", b_) for b_ in range(LAB-1) for u in range(2)]
    for b_ in range(NBK):
        last = max(k for k, t in enumerate(issued) if t == ("x", b_))
        if b_ in (22, 23): last = max(last, issued.index(("p", 3)))
        e(f"s_waitcnt vmcnt({len(issued)-1-last}) lgkmcnt({8 if b_ < NBK-1 else 0})")
        if (b_ + 2) % 8 == 0 and b_ + 2 < NBK:
            d = QB[(b_+2)//8] - QB[(b_+2)//8 - 1]
            e(f"v_add_u32 v12, {d & 0xffffffff:#x}, v12")
            e(f"v_add_u32 v13, {d & 0xffffffff:#x}, v13")
        rd = wr3(b_+2) if b_ + 2 < NBK else []
        mf = [M16(V(acc(u,t),4), V(WF3(b_%3,t),4), V(XF3(b_,u),4)) for t in range(4) for u in range(2)]
        for i, m in enumerate(mf):
            e(m)
            for x in rd[i:i+1]: e(x)
            nb_ = b_ + LAB - 1
            if nb_ < NBK:
                xo = xop(nb_)
                if i == 0: [e(x) for x in xo[:-2]]
                if i == 1: e(xo[-2]); issued.append(("x", nb_))
                if i == 4: e(xo[-1]); issued.append(("x", nb_))
            if i == 6 and PB <= b_ < PB + 4:
                k = b_ - PB
                e(f"buffer_load_dwordx4 {V(PRW+4*k,4)}, v5, s[36:39], s50 offen offset:{k*1024} sc1")
                issued.append(("p", k))
            if b_ in (22, 23):
                m_ = (i + 5) % 8
                for x in padd(m_ & 1, 2*(m_ >> 1) + (b_ & 1)): e(x)
    stamp(e, 6)
    e("v_lshrrev_b32 v6, 3, v1")
    e("v_and_b32 v7, 7, v1")
    e("v_lshlrev_b32 v7, 1, v7")
    e("v_xor_b32 v7, v7, v6")
    e("v_lshlrev_b32 v7, 4, v7")
    e("v_lshl_add_u32 v6, v6, 8, v7")
    e("v_add_u32 v6, s56, v6")
    e("v_xor_b32 v7, 16, v6")
    e("v_xor_b32 v12, 0x80, v6")
    e("v_xor_b32 v13, 0x90, v6")
    for u in range(2):
        for t in range(4):
            e(f"ds_write_b128 v{8+t}, {V(acc(u,t),4)} offset:{u*4096}")
    RB = XR
    ra = {(0,0): 6, (0,1): 7, (1,0): 12, (1,1): 13}
    for q in range(4):
        for h in range(2):
            e(f"ds_read_b128 {V(RB+q*8+h*4,4)}, v{ra[(q&1,h)]} offset:{q*2048}")
    for q in range(4):
        e(f"s_waitcnt lgkmcnt({6-2*q})")
        for r in range(4): e(f"v_pk_add_f32 {V(RB+q*8+2*r,2)}, {V(RB+q*8+2*r,2)}, {V(SUMR(q*8+2*r),2)}")
        for r in range(4): e(f"v_cvt_pk_bf16_f32 v{WB+q*4+r}, v{RB+q*8+2*r}, v{RB+q*8+2*r+1}")
        e(f"s_add_u32 s55, s31, {q*16384}")
        e(f"buffer_store_dwordx4 {V(WB+q*4,4)}, v14, s[24:27], s55 offen {ST_OUT}")
    if LOOPST: e("v_mov_b32 v3, v2")
    stamp_flush(e, 2, 8)
    loopstamp_flush(e, "v3", 2)
    if os.environ.get("DBGOUT"):
        wg = int(os.environ["DBGOUT"])
        e(f"s_cmp_eq_u32 s2, {wg}")
        e("s_cbranch_scc0 L2_dbgend")
        e("s_cmp_eq_u32 s40, 0")
        e("s_cbranch_scc0 L2_dbgend")
        e(f"s_load_dwordx2 s[4:5], s[0:1], {KA['dbg']}")
        e("s_waitcnt vmcnt(0) lgkmcnt(0)")
        srd(e, 12, 4, 256)
        e("v_and_b32 v1, 63, v0")
        e("v_lshlrev_b32 v1, 2, v1")
        e(f"s_mov_b32 s70, {hex(STAMP_BASE + 1*0x40000 + wg*1024)}")
        e("buffer_load_dword v2, v1, s[92:95], s70 offen")
        e(f"s_mov_b32 s70, {hex(STAMP_BASE + 2*0x40000 + wg*1024 + 256)}")
        e("buffer_load_dword v3, v1, s[92:95], s70 offen sc1")
        e("s_waitcnt vmcnt(0)")
        e("s_mov_b64 exec, 0x1ff")
        e("buffer_store_dword v2, v1, s[12:15], 0 offen")
        e("s_mov_b64 exec, 0xff")
        e("buffer_store_dword v3, v1, s[12:15], 0 offen offset:32")
        e.label("L2_dbgend")
    e("s_endpgm")
    DROPT = os.environ.get("DROPT", "")
    if DROPT:
        k0 = [k for k, i in enumerate(e.ins) if i.text == "L2_po_ok:"][0]
        k1 = [k for k, i in enumerate(e.ins) if "s[84:85]" in i.text][0]
        mid = [i for i in e.ins[k0:k1] if not any(i.text.startswith(d) for d in DROPT.split(","))]
        if "nosc1" in DROPT: mid = [Ins(i.text.replace(" sc1", "")) for i in mid]
        e.ins = e.ins[:k0] + mid + e.ins[k1:]
    gepi = fix(e.ins, pre=gbody)
    ins = head + att + gpre + [Ins(".p2align 6")] + gbody + gepi
    return name, kernel_text(name, ins, NV, NV), (256, 512, lds)
```

```python
from common import *

LA2 = int(os.environ.get('LA2', '0'))
PRIO_A = int(os.environ.get('PRIO_A', '1'))
PRIO_G = int(os.environ.get('PRIO_G', '0'))
STP = os.environ.get('STP', 'sc1')
TOUCH = int(os.environ.get('TOUCH', '1'))
PRE0 = int(os.environ.get('PRE0', '2'))
GMAP = int(os.environ.get('GMAP', '1'))
XT = int(os.environ.get('XT', '1'))
LSA = int(os.environ.get('LSA', '1'))
APOS = eval(os.environ.get('APOS', '[0, 32, 64, 96, 128]'))
WSEG = 32768
WBASE = 65536

def gen():
    name = "attn_kernel"
    lds = WBASE + 3 * WSEG
    NV = 240
    p = Prog()
    p("s_cmp_ge_u32 s2, 256")
    p("s_cbranch_scc1 L2_end")
    stamp(p, 0)
    p(f"s_load_dwordx2 s[6:7], s[0:1], {KA['ws']}")
    p(f"s_load_dwordx2 s[4:5], s[0:1], {KA['wo']}")
    p(f"s_load_dwordx4 s[8:11], s[0:1], {KA['w2']}")
    p(f"s_load_dwordx2 s[32:33], s[0:1], {KA['x']}")
    p("v_and_b32 v1, 63, v0")
    p("v_lshrrev_b32 v2, 6, v0")
    p("v_readfirstlane_b32 s40, v2")
    p("v_lshlrev_b32 v5, 4, v1")
    p("s_cmp_ge_u32 s40, 4")
    p("s_cbranch_scc1 L2_gemm")
    head = fix(p.ins)

    Q = {0: 16, 1: 24}; C = {0: 32, 1: 48}; Sx = {0: 64, 1: 80}; P = {0: 96, 1: 104}
    O = {0: 112, 1: 128}; L = {0: 144, 1: 148}; SEL = 152
    KF = {0: 156, 1: 164}; VF = {0: 172, 1: 180}; T = 188; IDX = 200
    p = Prog()
    if PRIO_A: p(f"s_setprio {PRIO_A}")
    p("s_and_b32 s41, s2, 7")
    p("s_lshl_b32 s41, s41, 3")
    p("s_lshr_b32 s42, s2, 5")
    p("s_add_u32 s41, s41, s42")
    p("s_bfe_u32 s42, s2, 0x20003")
    p("s_lshl_b32 s42, s42, 3")
    p("s_lshl_b32 s43, s40, 1")
    p("s_add_u32 s42, s42, s43")
    p("v_and_b32 v3, 15, v1")
    p("v_lshlrev_b32 v3, 4, v3")
    p("v_lshrrev_b32 v4, 5, v1")
    p("v_lshl_add_u32 v3, v4, 8, v3")
    p("v_bfe_u32 v4, v1, 4, 1")
    p("v_lshl_add_u32 v6, v4, 15, v3")
    p("s_lshl_b32 s45, s41, 16")
    p("s_lshl_b32 s46, s42, 10")
    p("s_add_u32 s45, s45, s46")
    p(f"s_add_u32 s45, s45, {hex(Q_F)}")
    p("s_waitcnt lgkmcnt(0)")
    srd(p, 24, 6, WS_SIZE)
    for x in range(2):
        for mf in range(2):
            p(f"buffer_load_dwordx4 {V(Q[x]+4*mf,4)}, v6, s[24:27], s45 offen offset:{x*1024+mf*512}")
    srd(p, 12, 6, 262144, KV)
    if TOUCH:
        p("v_lshlrev_b32 v12, 7, v1")
        p("s_lshr_b32 s48, s2, 3")
        p("s_lshl_b32 s48, s48, 13")
    if XT:
        p("s_cmp_lt_u32 s40, 2")
        p("s_cselect_b32 s32, s32, s10")
        p("s_cselect_b32 s33, s33, s11")
        srd(p, 28, 32, 2048*1024*2)
        p("s_and_b32 s49, s2, 7")
        p("s_lshl_b32 s49, s49, 5")
        p("s_lshr_b32 s50, s2, 3")
        p("s_add_u32 s49, s49, s50")
        p("s_lshl_b32 s49, s49, 1")
        p("s_add_u32 s49, s49, s40")
        p("s_lshl_b32 s49, s49, 13")
        p("s_cmp_lt_u32 s40, 2")
        p("s_cselect_b32 s49, s49, 0")
        p("s_cselect_b32 s30, s30, 2048")
    if CODEPF:
        for x in code_srd(16, "gemmb_kernel"): p(x)
        p("s_lshl_b32 s51, s40, 13")
    p(f"s_mov_b32 s44, {OH_TILE}")
    p("v_mul_lo_u32 v7, v4, s44")
    p("v_add_u32 v7, v7, v3")
    p(f"s_mul_i32 s47, s41, {2*OH_TILE}")
    p("s_add_u32 s47, s47, s46")
    p(f"s_add_u32 s47, s47, {hex(OH_F)}")
    p("v_and_b32 v8, 4, v1")
    p("v_cmp_eq_u32 vcc, 0, v8")
    p("v_mov_b32 v9, 0x3f803f80")
    p("v_mov_b32 v8, 0")
    for r in range(2): p(f"v_cndmask_b32 v{SEL+r}, v8, v9, vcc")
    for r in range(2): p(f"v_cndmask_b32 v{SEL+2+r}, v9, v8, vcc")
    p("v_and_b32 v8, 1, v1")
    p("v_mul_u32_u24 v8, 0xaaaa, v8")
    p(f"v_add_u32 v{IDX}, 0x4444, v8")
    for x in range(2):
        for r in range(16): p(f"v_mov_b32 v{O[x]+r}, 0")
        for r in range(4): p(f"v_mov_b32 v{L[x]+r}, 0")
    for r in range(8):
        p(f"v_mov_b32 v{P[1]+r}, 0")
        p(f"v_mov_b32 v{VF[1]+r}, 0")
    p("v_mov_b32 v10, v5")
    p("v_add_u32 v11, 0x8000, v5")
    p("s_barrier")
    stamp(p, 1)
    def rdK(buf, addr, tile): return [f"ds_read_b128 {V(KF[buf]+4*m,4)}, v{addr} offset:{tile*4096+m*1024}" for m in range(2)]
    def rdV(buf, addr, tile): return [f"ds_read_b128 {V(VF[buf]+4*m,4)}, v{addr} offset:{tile*4096+2048+m*1024}" for m in range(2)]
    def QK(x, buf, c=None):
        cc = V(C[x],16) if c is None else c
        return [M32(V(Sx[x],16), V(KF[buf],4), V(Q[x],4), cc), M32(V(Sx[x],16), V(KF[buf]+4,4), V(Q[x]+4,4))]
    def PV(x, buf):
        return [M32(V(O[x],16), V(VF[buf],4), V(P[x],4)), M32(V(O[x],16), V(VF[buf]+4,4), V(P[x]+4,4))]
    def SUM(x):
        return [f"v_smfmac_f32_16x16x64_bf16 {V(L[x],4)}, {V(SEL,4)}, {V(P[x],8)}, v{IDX}"]
    def rowmax(q, x, dst, init=None):
        s = Sx[x]
        if init is None:
            q(f"v_max3_f32 v{dst}, v{s}, v{s+1}, v{s+2}")
            q(f"v_max_f32 v{dst}, v{dst}, v{s+3}")
            st = 4
        else: st = 0
        for i in range(st, 16, 2): q(f"v_max3_f32 v{dst}, v{dst}, v{s+i}, v{s+i+1}")
    def setC(q, x, src):
        q(f"v_mov_b32 v{T+8}, v{src}")
        q(f"v_permlane32_swap_b32 v{src}, v{T+8}")
        q(f"v_max_f32 v{src}, v{src}, v{T+8}")
        for r in range(16): q(f"v_sub_f32 v{C[x]+r}, 0, v{src}")
    for x in rdK(0, 10, 0): p(x)
    p("s_waitcnt vmcnt(0) lgkmcnt(0)")
    if TOUCH == 1:
        p("s_cmp_eq_u32 s40, 0")
        p("s_cbranch_scc0 L2_notouch")
        p("buffer_load_dword v13, v12, s[12:15], s48 offen")
        p.label("L2_notouch")
    for x in range(2):
        for m in QK(x, 0, "0"): p(m)
    for x in range(2):
        rowmax(p, x, T+x)
        setC(p, x, T+x)
    for m in QK(0, 0): p(m)
    p("s_mov_b32 s59, 0")
    if LOOPST: p("s_mov_b32 s71, 0")
    loopstamp(p, "v14", "v15")
    p("s_nop 15")
    if os.environ.get("GONLY") == "1":
        for i in range(15): p("s_barrier")
        p("s_endpgm")
    pre = fix(p.ins, pre=head)
    b = Prog()
    b.label("L2_loop")
    def valu(x):
        v = []
        for i in range(8):
            v += [f"v_exp_f32 v{Sx[x]+2*i}, v{Sx[x]+2*i}", f"v_exp_f32 v{Sx[x]+2*i+1}, v{Sx[x]+2*i+1}"]
            if i >= 1: v.append(f"v_cvt_pk_bf16_f32 v{P[x]+i-1}, v{Sx[x]+2*i-2}, v{Sx[x]+2*i-1}")
        v.append(f"v_cvt_pk_bf16_f32 v{P[x]+7}, v{Sx[x]+14}, v{Sx[x]+15}")
        return v
    def phase(x, mf, extra):
        v = valu(x)
        pos = APOS
        out = []; cum = 0; mi = 0
        for ins in v:
            while mi < 5 and cum >= pos[mi]:
                out += extra.get(("pre", mi), [])
                out.append(mf[mi]); out += extra.get(mi, []); mi += 1
            out.append(ins); cum += 8 if "exp" in ins else 4
        assert mi == 5
        return out
    for t in range(8):
        kb = t & 1
        nk = rdK(kb^1, 10, t+1) if t < 7 else rdK(kb^1, 11, 0)
        nv = rdV(kb, 10, t)
        ex = {0: [nk[0]], 1: [nk[1]], 2: [nv[0]], 3: [nv[1]]}
        for x in phase(0, QK(1, kb) + PV(1, kb^1) + SUM(1), ex): b(x)
        ex = {("pre", 0): ["s_waitcnt lgkmcnt(0)"]}
        LS = loopstamp_list("v14", "v15") if LSA else []
        if t == 2: ex[4] = LS + ["s_barrier"] + LS
        if t == 3 and XT: ex[4] = ["s_cmp_eq_u32 s59, 7", "s_cbranch_scc0 L2_noxt", "buffer_load_dword v13, v12, s[28:31], s49 offen"] + (["buffer_load_dword v13, v12, s[16:19], s51 offen"] if CODEPF else []) + ["L2_noxt:"]
        if t == 6: ex[4] = ["s_cmp_eq_u32 s59, 7", "s_cbranch_scc1 L2_nobar"] + LS + ["s_barrier"] + LS + ["L2_nobar:"]
        if t == 7:
            ex[1] = ["v_xor_b32 v10, 0x8000, v10"]
            ex[2] = ["v_xor_b32 v11, 0x8000, v11"]
            ex[4] = ["s_add_u32 s59, s59, 1", "s_cmp_lt_u32 s59, 8"]
        for x in phase(1, QK(0, kb^1) + PV(0, kb) + SUM(0), ex): b(x)
    b("s_cbranch_scc1 L2_loop")
    rep = []
    body = fix(b.ins, pre=pre, report=rep)
    if rep: print("attn loop nops:", len(rep), rep[:5])
    assert not check_loop(body)
    e = Prog()
    stamp(e, 2)
    for m in PV(1, 1) + SUM(1): e(m)
    e("s_mov_b32 s60, 0")
    e.label("L2_fin")
    e("s_nop 15")
    for x in range(2): e(f"v_add_f32 v{L[x]}, v{L[x]}, v{L[x]+1}")
    e(f"s_mov_b32 s61, {f32(2.0**40)}")
    e(f"v_cmp_gt_f32 vcc, s61, v{L[0]}")
    e(f"v_cmp_gt_f32 s[62:63], s61, v{L[1]}")
    e("s_and_b64 vcc, vcc, s[62:63]")
    e("s_cmp_eq_u64 vcc, -1")
    e("s_cbranch_scc1 L2_store")
    e("s_cmp_eq_u32 s60, 0")
    e("s_cbranch_scc1 L2_slow")
    e.label("L2_store")
    for x in range(2):
        e(f"v_rcp_f32 v{T+x}, v{L[x]}")
    for x in range(2):
        for r in range(16): e(f"v_mul_f32 v{O[x]+r}, v{O[x]+r}, v{T+x}")
        for hh in range(2):
            o = P[x] + 4*hh
            src = [4*hh, 4*hh+2, 8+4*hh, 8+4*hh+2]
            for i, sr in enumerate(src): e(f"v_cvt_pk_bf16_f32 v{o+i}, v{O[x]+sr}, v{O[x]+sr+1}")
            e(f"buffer_store_dwordx4 {V(o,4)}, v7, s[24:27], s47 offen offset:{x*1024+hh*512} {ST_O}")
    stamp(e, 3)
    stamp_flush(e, 2, 5)
    loopstamp_flush(e, "v14", 2)
    e.label("L2_end")
    e("s_endpgm")
    e.label("L2_slow")
    e("s_mov_b32 s60, 1")
    e(f"v_mov_b32 v{T}, 0xff800000")
    e(f"v_mov_b32 v{T+1}, 0xff800000")
    e("s_mov_b32 s52, 0")
    e.label("L2_s1")
    for m in range(2): e(f"buffer_load_dwordx4 {V(KF[0]+4*m,4)}, v5, s[12:15], s52 offen offset:{m*1024}")
    e("s_waitcnt vmcnt(0)")
    for x in range(2):
        for m in QK(x, 0, "0"): e(m)
    e("s_nop 15")
    for x in range(2): rowmax(e, x, T+x, init=True)
    e("s_add_u32 s52, s52, 4096")
    e("s_cmp_lt_u32 s52, 0x40000")
    e("s_cbranch_scc1 L2_s1")
    for x in range(2):
        setC(e, x, T+x)
        for r in range(16): e(f"v_mov_b32 v{O[x]+r}, 0")
        for r in range(4): e(f"v_mov_b32 v{L[x]+r}, 0")
    e("s_mov_b32 s52, 0")
    e.label("L2_s2")
    for m in range(2): e(f"buffer_load_dwordx4 {V(KF[0]+4*m,4)}, v5, s[12:15], s52 offen offset:{m*1024}")
    for m in range(2): e(f"buffer_load_dwordx4 {V(VF[0]+4*m,4)}, v5, s[12:15], s52 offen offset:{2048+m*1024}")
    e("s_waitcnt vmcnt(0)")
    for x in range(2):
        for m in QK(x, 0): e(m)
    e("s_nop 15")
    for x in range(2):
        for v in valu(x): e(v)
    e("s_nop 3")
    for x in range(2):
        for m in PV(x, 0) + SUM(x): e(m)
    e("s_nop 15")
    e("s_add_u32 s52, s52, 4096")
    e("s_cmp_lt_u32 s52, 0x40000")
    e("s_cbranch_scc1 L2_s2")
    e("s_branch L2_fin")
    epi = fix(e.ins, pre=body)
    att = pre + [Ins(".p2align 6")] + body + epi

    ACC = 16
    def acc(u, t): return ACC + (u*8+t)*4
    XR = 80
    def XF(sg, kb, u): return XR + ((sg*4+kb)*2+u)*4
    WB = 144
    def WF(f, t): return WB + f*32 + t*4
    TG = 208
    p = Prog()
    p.label("L2_gemm")
    if PRIO_G: p(f"s_setprio {PRIO_G}")
    p("s_sub_u32 s40, s40, 4")
    p("s_lshl_b32 s50, s40, 12")
    p("s_mov_b32 s51, s50")
    if GMAP == 0:
        p("s_and_b32 s41, s2, 3")
        p("s_lshl_b32 s41, s41, 2")
        p("s_bfe_u32 s43, s2, 0x20003")
        p("s_add_u32 s41, s41, s43")
        p("s_bfe_u32 s44, s2, 0x10002")
        p("s_lshr_b32 s42, s2, 5")
        p("s_add_u32 s66, s42, s43")
    else:
        p("s_and_b32 s41, s2, 7")
        p("s_lshl_b32 s41, s41, 1")
        p("s_bfe_u32 s43, s2, 0x10003")
        p("s_add_u32 s41, s41, s43")
        p("s_bfe_u32 s44, s2, 0x10004")
        p("s_lshr_b32 s42, s2, 5")
        p("s_add_u32 s66, s42, s43")
        p("s_bfe_u32 s43, s2, 0x20003")
    p("v_and_b32 v13, 3, v1")
    p("v_lshlrev_b32 v13, 4, v13")
    p("v_lshrrev_b32 v14, 4, v1")
    p("v_lshl_add_u32 v13, v14, 6, v13")
    p("v_bfe_u32 v14, v1, 2, 2")
    p("v_lshl_add_u32 v8, v14, 11, v13")
    p("s_lshl_b32 s47, s40, 16")
    p("v_add_u32 v8, s47, v8")
    p("v_xor_b32 v9, 32, v8")
    p("s_lshl_b32 s52, s40, 13")
    p(f"s_add_u32 s52, s52, {WBASE}")
    p(f"s_mul_i32 s65, s44, {1792*2048}")
    p("s_lshl_b32 s48, s42, 8")
    p("s_add_u32 s65, s65, s48")
    p(f"s_mul_i32 s63, s44, {56*1024}")
    p("s_add_u32 s63, s63, 0x8000")
    def kseg(q, nreg):
        q(f"s_add_u32 s68, {nreg}, {LA2}")
        if GMAP == 0: q(f"s_and_b32 s69, {nreg}, 3")
        else: q("s_sub_u32 s69, s68, 14")
        q("s_cmp_ge_u32 s68, 14")
        q("s_cselect_b32 s68, s69, s68")
        q(f"s_add_u32 s67, {nreg}, s66")
        q(f"s_and_b32 s67, s67, {3 if GMAP == 0 else 1}")
        q(f"s_cselect_b32 s67, {nreg}, s68")
        q("s_lshl_b32 s54, s67, 18")
        q("s_add_u32 s54, s54, s65")
        q("s_lshl_b32 s53, s67, 12")
        q("s_add_u32 s53, s53, s63")
    kseg(p, "0")
    p("s_mov_b32 s56, s52")
    p("s_waitcnt lgkmcnt(0)")
    srd(p, 12, 6, 262144, KV)
    def wdma(q): return [f"s_add_u32 m0, s56, {q*1024}", f"s_add_u32 s55, s54, {q*8192}", f"buffer_load_dwordx4 v{8+(q&1)}, s[16:19], s55 offen lds"]
    def kvdma(q): return ["s_mov_b32 m0, s51", "s_nop 0", f"buffer_load_dwordx4 v5, s[12:15], s50 offen offset:{q*1024} lds"]
    def kvadv(q):
        q("s_add_u32 s50, s50, 0x4000")
        q("s_add_u32 s51, s51, 0x4000")
        q("s_and_b32 s51, s51, 0xffff")
    def xld(sg, kb): return [f"buffer_load_dwordx4 {V(XF(sg,kb,u),4)}, v{6+u}, s[20:23], s53 offen offset:{kb*1024}" for u in range(2)]
    for q in range(4):
        for x in (kvdma(q) if q == 0 else kvdma(q)[2:]): p(x)
    kvadv(p)
    for q in range(4):
        for x in (kvdma(q) if q == 0 else kvdma(q)[2:]): p(x)
    kvadv(p)
    srd(p, 16, 8, 3584*1024*2)
    srd(p, 20, 6, 128*OH_TILE, OH_F)
    p("s_lshl_b32 s46, s41, 3")
    p("s_lshl_b32 s47, s40, 1")
    p("s_add_u32 s46, s46, s47")
    p(f"s_mul_i32 s47, s46, {OH_TILE}")
    p("v_add_u32 v6, s47, v5")
    p(f"v_add_u32 v7, {OH_TILE}, v6")
    srd(p, 36, 6, WS_SIZE)
    p("s_and_b32 s5, s5, 0xffff")
    p("v_and_b32 v3, 15, v1")
    p("v_lshrrev_b32 v4, 4, v1")
    p("v_lshlrev_b32 v12, 10, v4")
    p("v_bfe_u32 v13, v1, 2, 2")
    p("v_lshl_add_u32 v12, v13, 6, v12")
    p("v_and_b32 v13, 3, v1")
    p("v_lshl_add_u32 v12, v13, 3, v12")
    p("v_and_b32 v13, 1, v4")
    p("v_lshl_add_u32 v12, v13, 5, v12")
    p(f"v_add_u32 v12, {WBASE}, v12")
    p("v_xor_b32 v13, 32, v12")
    for i in range(32): p(f"v_mov_b64 {V(ACC+2*i,2)}, 0")
    p("s_lshl_b32 s62, s43, 19")
    p("s_add_u32 s62, s62, s48")
    p("s_waitcnt vmcnt(4)")
    p("s_barrier")
    for q in range(8):
        for x in wdma(q): p(x)
    stamp(p, 1)
    for kb in range(4):
        for x in xld(0, kb): p(x)
    kseg(p, "1")
    p(f"s_add_u32 s56, s52, {WSEG}")
    for kb in range(PRE0):
        for x in wdma(2*kb) + wdma(2*kb+1) + kvdma(kb) + xld(1, kb): p(x)
    p(f"s_waitcnt vmcnt({8+5*PRE0})")
    p("s_barrier")
    def wreads(f, kb):
        return [f"ds_read_b64_tr_b16 {V(WF(f,t)+rho*2,2)}, v{12+(t&1)} offset:{kb*8192+rho*4096+(t>>1)*256}" for t in range(8) for rho in range(2)]
    def mfmas(f, sg, kb):
        return [M16(V(acc(u,t),4), V(WF(f,t),4), V(XF(sg,kb,u),4)) for t in range(8) for u in range(2)]
    for x in wreads(0, 0): p(x)
    for kb in range(PRE0, 4):
        for x in wdma(2*kb) + wdma(2*kb+1) + kvdma(kb) + xld(1, kb): p(x)
    p("s_mov_b32 s58, 0")
    p("s_mov_b32 s59, 2")
    p(f"s_mov_b32 s64, {2*WSEG}")
    def seg_setup(q):
        kseg(q, "s59")
        q("s_add_u32 s56, s52, s64")
        q(f"s_add_u32 s64, s64, {WSEG}")
        q(f"s_cmp_eq_u32 s64, {3*WSEG}")
        q("s_cselect_b32 s64, 0, s64")
        kvadv(q)
        q("s_cmp_ge_u32 s59, 14")
        q("s_cselect_b32 s16, s4, s16")
        q("s_cselect_b32 s17, s5, s17")
        q("s_cselect_b32 s18, 0x200000, s18")
        q("s_cselect_b32 s54, s62, s54")
        q("s_cselect_b32 s22, 0, s22")
        q("s_cselect_b32 s68, 0x40000, 0")
        q("s_add_u32 s62, s62, s68")
        q("s_add_u32 s59, s59, 1")
    seg_setup(p)
    p("s_waitcnt vmcnt(20)")
    if LOOPST: p("s_mov_b32 s71, 0")
    loopstamp(p, "v10", "v11")
    gpre = fix(p.ins, pre=head)
    b = Prog()
    b.label("L2_gloop")
    for sg in range(2):
        for kb in range(4):
            f = kb & 1
            if kb < 3:
                b("s_waitcnt vmcnt(35) lgkmcnt(0)")
                rd = wreads(f^1, kb+1)
            else:
                rd = wreads(f^1, 0)
                if not LSA: loopstamp(b, "v10", "v11")
                b("s_waitcnt vmcnt(17) lgkmcnt(0)")
                if not LSA: loopstamp(b, "v10", "v11")
                b("s_barrier")
                if not LSA: loopstamp(b, "v10", "v11")
                b(f"s_add_u32 s60, s58, {WSEG}")
                b(f"s_cmp_eq_u32 s60, {3*WSEG}")
                b("s_cselect_b32 s60, 0, s60")
                b("s_sub_u32 s61, s60, s58")
                b("s_mov_b32 s58, s60")
                b("v_add_u32 v12, s61, v12")
                b("v_add_u32 v13, s61, v13")
            fill = [(i // 2, x) for i, x in enumerate(rd)]
            for q, ps in ((2*kb, 8), (2*kb+1, 10)):
                wd = wdma(q)
                fill += [(ps, wd[0]), (ps, wd[1]), (ps+1, wd[2])]
            kd = kvdma(kb)
            fill += [(12, kd[0]), (13, kd[2])]
            fill += [(15, x) for x in xld(sg, kb)]
            for x in interleave(mfmas(f, sg, kb), fill):
                if os.environ.get("NOGMFMA") == "1" and "mfma" in x: continue
                b(x)
        seg_setup(b)
    b("s_cmp_lt_u32 s59, 17")
    b("s_cbranch_scc1 L2_gloop")
    rep = []
    gbody = fix(b.ins, pre=gpre, report=rep)
    if rep: print("gemm loop nops:", len(rep), rep[:5])
    assert not check_loop(gbody)
    e = Prog()
    stamp(e, 2)
    e("s_lshl_b32 s47, s44, 4")
    e("s_add_u32 s47, s47, s41")
    e("s_lshl_b32 s47, s47, 3")
    e("s_add_u32 s47, s47, s42")
    e("s_lshl_b32 s47, s47, 2")
    e("s_add_u32 s47, s47, s40")
    e("s_lshl_b32 s47, s47, 13")
    e(f"s_add_u32 s47, s47, {hex(PART)}")
    e("s_add_u32 s48, s47, 4096")
    for u in range(2):
        for tp in range(4):
            o = TG + (u*4+tp)*4
            for h in range(2):
                t = 2*tp + h
                e(f"v_cvt_pk_bf16_f32 v{o+2*h}, v{acc(u,t)}, v{acc(u,t)+1}")
                e(f"v_cvt_pk_bf16_f32 v{o+2*h+1}, v{acc(u,t)+2}, v{acc(u,t)+3}")
            e(f"buffer_store_dwordx4 {V(o,4)}, v5, s[36:39], s{47+u} offen offset:{tp*1024} {STP}")
    stamp(e, 3)
    stamp_flush(e, 2, 5)
    loopstamp_flush(e, "v10", 2)
    e("s_endpgm")
    gepi = fix(e.ins, pre=gbody)
    ins = head + att + gpre + [Ins(".p2align 6")] + gbody + gepi
    return name, kernel_text(name, ins, NV, NV), (256, 512, lds)
```

```python
from common import *

LAB = int(os.environ.get('LAB', '7'))

XSEL = os.environ.get('XSEL', 'pxb')
GST = int(os.environ.get('GST', '14'))
OT = int(os.environ.get('OT', '0'))
def gen():
    name = "gemmb_kernel"
    p = Prog()
    lds = 163840
    NB = 32
    ACC = 16
    def acc(u, t): return ACC + (u*4+t)*4
    SUMR = 48
    WB = 80
    def WF(f, t): return WB + f*16 + t*4
    PR = 128
    RR = 160
    T = 184
    XR = 200
    def XF(b, u): return XR + ((b % LAB)*2+u)*4
    NV = XR + LAB*8
    NA = 0
    p("s_cmp_ge_u32 s2, 256")
    p("s_cbranch_scc1 L3_end")
    stamp(p, 0)
    p(f"s_load_dwordx2 s[4:5], s[0:1], {KA['wo']}")
    p(f"s_load_dwordx2 s[6:7], s[0:1], {KA['ws']}")
    p(f"s_load_dwordx4 s[32:35], s[0:1], {KA['b2']}")
    p(f"s_load_dwordx2 s[8:9], s[0:1], {KA['x']}")
    p("v_and_b32 v1, 63, v0")
    p("v_lshrrev_b32 v2, 6, v0")
    p("v_readfirstlane_b32 s40, v2")
    p("s_and_b32 s41, s2, 7")
    p("s_lshl_b32 s41, s41, 1")
    p("s_bfe_u32 s43, s2, 0x10003")
    p("s_add_u32 s41, s41, s43")
    p("s_lshr_b32 s42, s2, 4")
    p("v_lshlrev_b32 v5, 4, v1")
    p("s_lshl_b32 s46, s41, 3")
    p("s_lshl_b32 s47, s40, 1")
    p("s_add_u32 s46, s46, s47")
    p(f"s_mul_i32 s47, s46, {OH_TILE}")
    p("v_add_u32 v6, s47, v5")
    p(f"v_add_u32 v7, {OH_TILE}, v6")
    p("v_lshrrev_b32 v12, 5, v1")
    p("v_lshlrev_b32 v13, 1, v12")
    p("v_and_b32 v14, 3, v1")
    p("v_xor_b32 v13, v13, v14")
    p("v_lshlrev_b32 v13, 4, v13")
    p("v_bfe_u32 v14, v1, 4, 1")
    p("v_lshl_add_u32 v13, v14, 6, v13")
    p("v_bfe_u32 v14, v1, 2, 2")
    p("v_lshl_add_u32 v12, v12, 2, v14")
    p("v_lshl_add_u32 v8, v12, 11, v13")
    p("s_lshl_b32 s47, s40, 16")
    p("s_lshl_b32 s48, s42, 7")
    p("s_add_u32 s47, s47, s48")
    p("v_add_u32 v8, s47, v8")
    for q in range(1, 4): p(f"v_add_u32 v{8+q}, {q*16384}, v8")
    p("s_lshl_b32 s51, s40, 12")
    if OT:
        p("s_lshr_b32 s52, s2, 3")
        p("s_lshl_b32 s52, s52, 2")
        p("s_add_u32 s52, s52, s40")
        p("s_and_b32 s53, s2, 7")
        p("s_lshl_b32 s53, s53, 4")
        p("s_lshr_b32 s54, s52, 3")
        p("s_add_u32 s53, s53, s54")
        p(f"s_mul_i32 s53, s53, {OH_TILE}")
        p("s_and_b32 s52, s52, 7")
        p("s_lshl_b32 s52, s52, 12")
        p("s_add_u32 s52, s52, s53")
        p("v_and_b32 v3, 31, v1")
        p("v_lshlrev_b32 v3, 7, v3")
    p("s_waitcnt lgkmcnt(0)")
    srd(p, 16, 4, 1024*1024*2)
    srd(p, 12, 6, 128*OH_TILE, OH_F)
    issued = []
    def vm(q, tag, lines):
        for x in lines: q(x)
        issued.append(tag)
    def wait_for(tags):
        last = max(issued.index(t) for t in tags)
        return len(issued) - 1 - last
    def wop(b):
        sg, q = b >> 2, b & 3
        L = []
        if q == 0: L.append(f"s_mov_b32 s54, {sg*128*2048}")
        L += [f"s_add_u32 m0, s51, {sg*16384+q*1024}", "s_nop 0" if False else "", f"buffer_load_dwordx4 v{8+q}, s[16:19], s54 offen lds"]
        return [x for x in L if x]
    def xop(b, u):
        L = []
        if (b & 3) == 0 and u == 0: L.append(f"s_mov_b32 s53, {(b>>2)*4096}")
        L.append(f"buffer_load_dwordx4 {V(XF(b,u),4)}, v{6+u}, s[12:15], s53 offen offset:{(b&3)*1024}")
        return L
    extras = []
    for kh in range(2):
        for u in range(2):
            for a in range(2):
                extras.append((("p", kh, u, a), [f"s_add_u32 s45, s47, {kh*0x400000+u*4096}", f"buffer_load_dwordx4 {V(PR+((kh*2+u)*2+a)*4,4)}, v5, s[24:27], s45 offen offset:{a*1024}"]))
    for q in range(4):
        extras.append((("x", q), [f"s_add_u32 s45, s49, {q*16384}", f"buffer_load_dwordx4 {V(RR+q*4,4)}, v14, s[20:23], s45 offen"]))
    extras.append((("b", 0), [f"buffer_load_dwordx4 {V(RR+16,4)}, v15, s[28:31], s48 offen"]))
    drop = [t for t, _ in extras if t[0] not in XSEL]
    extras = [(t, L) for t, L in extras if t[0] in XSEL]
    if OT == 1: vm(p, ("t",), [f"buffer_load_dword v{RR+21}, v3, s[12:15], s52 offen"])
    for b in range(4): vm(p, ("w", b), wop(b))
    if OT == 2: vm(p, ("t",), [f"buffer_load_dword v{RR+21}, v3, s[12:15], s52 offen"])
    for b in range(2):
        for u in range(2): vm(p, ("x", b, u, 0), xop(b, u))
    srd(p, 24, 6, WS_SIZE)
    srd(p, 20, 8, 2048*1024*2)
    srd(p, 28, 32, 2048)
    srd(p, 36, 34, 2048*1024*2)
    p("s_lshl_b32 s47, s41, 3")
    p("s_lshr_b32 s45, s42, 1")
    p("s_add_u32 s47, s47, s45")
    p("s_lshl_b32 s47, s47, 2")
    p("s_add_u32 s47, s47, s40")
    p("s_lshl_b32 s47, s47, 13")
    p("s_and_b32 s45, s42, 1")
    p("s_lshl_b32 s45, s45, 11")
    p("s_add_u32 s47, s47, s45")
    p(f"s_add_u32 s47, s47, {hex(PART)}")
    p("v_and_b32 v3, 15, v1")
    p("v_lshrrev_b32 v4, 4, v1")
    p("v_and_b32 v15, 7, v1")
    p("v_lshlrev_b32 v15, 4, v15")
    p("v_lshrrev_b32 v14, 3, v1")
    p("v_lshl_add_u32 v14, v14, 11, v15")
    p("s_lshl_b32 s49, s46, 15")
    p("s_add_u32 s49, s49, s48")
    p("v_lshlrev_b32 v12, 9, v4")
    p("v_bfe_u32 v13, v1, 2, 2")
    p("v_lshl_add_u32 v12, v13, 6, v12")
    p("v_and_b32 v13, 3, v1")
    p("v_lshl_add_u32 v12, v13, 3, v12")
    p("v_and_b32 v13, 1, v4")
    p("v_lshl_add_u32 v12, v13, 5, v12")
    p("v_xor_b32 v13, 32, v12")
    WLA = LAB + 2 - ((LAB + 2) % 4 or 4) + 4
    nw = 4
    for b in range(2, LAB):
        vm(p, ("w", nw), wop(nw)); nw += 1
        for u in range(2): vm(p, ("x", b, u, 0), xop(b, u))
        if b == 3:
            p(f"s_waitcnt vmcnt({wait_for([('w', 3)])})")
            p("s_barrier")
            stamp(p, 1)
            if LOOPST: p("s_mov_b32 s71, 0")
            loopstamp(p, "v2", f"v{RR+20}")
            def wreads(f, b_):
                hi = (b_ >> 4) & 1
                return [f"ds_read_b64_tr_b16 {V(WF(f,t)+rho*2,2)}, v{12+(t&1)} offset:{(b_&15)*4096+rho*2048+(t>>1)*256}" for t in range(4) for rho in range(2)]
            for x in wreads(0, 0) + wreads(1, 1): p(x)
    groups = []
    def padd(src, i):
        tt = T + 2*(i & 3)
        return [f"v_lshlrev_b32 v{tt}, 16, v{src}", f"v_and_b32 v{tt+1}, 0xffff0000, v{src}",
                f"v_add_f32 v{ACC+2*i}, v{ACC+2*i}, v{tt}", f"v_add_f32 v{ACC+2*i+1}, v{ACC+2*i+1}, v{tt+1}"]
    for kh in range(2):
        for hlf in range(2):
            sl = [[] for _ in range(8)]
            for tile in range(8):
                u, t = tile >> 2, tile & 3
                sl[(t*2+u+3) % 8] += padd(PR+kh*16+2*tile+hlf, 2*tile+hlf)
            groups.append(([("p", kh, 1, 1)], sl))
    ub = []
    for i in range(4): ub += [f"v_lshlrev_b32 v{T+8+2*i}, 16, v{RR+16+i}", f"v_and_b32 v{T+8+2*i+1}, 0xffff0000, v{RR+16+i}"]
    ux = []
    for i in range(16):
        ux += [f"v_lshlrev_b32 v{SUMR+2*i}, 16, v{RR+i}", f"v_and_b32 v{SUMR+2*i+1}, 0xffff0000, v{RR+i}",
               f"v_add_f32 v{SUMR+2*i}, v{SUMR+2*i}, v{T+8+2*(i&3)}", f"v_add_f32 v{SUMR+2*i+1}, v{SUMR+2*i+1}, v{T+8+2*(i&3)+1}"]
    ad = ["v_xor_b32 v8, v3, v4", "v_lshlrev_b32 v8, 4, v8", "v_lshl_add_u32 v8, v3, 8, v8", "s_lshl_b32 s52, s40, 13", "s_add_u32 s52, s52, 0x20000",
          "v_add_u32 v8, s52, v8", "v_xor_b32 v9, 64, v8", "v_xor_b32 v10, 0x80, v8", "v_xor_b32 v11, 0xc0, v8"]
    allv = ub + ux
    for k in range(3):
        chunk = allv[24*k:24*k+24]
        groups.append(([("x", 3), ("b", 0)], [chunk[3*i:3*i+3] for i in range(8)]))
    gstart = GST
    ex = list(extras)
    for b in range(NB):
        f = b % 3
        need_tags = [("x", b, 1, 0)]
        if (b & 3) == 2 and b < NB-2: need_tags.append(("w", b+5))
        g = groups[b-gstart] if gstart <= b < gstart + len(groups) else None
        if g: need_tags += [t for t in g[0] if t not in drop]
        p(f"s_waitcnt vmcnt({wait_for(need_tags)}) lgkmcnt({8 if b < NB-1 else 0})")
        if (b & 3) == 3: loopstamp(p, "v2", f"v{RR+20}")
        if (b & 3) == 2 and b < NB-2:
            p("s_barrier")
            if b == 14:
                p("v_add_u32 v12, 0x10000, v12")
                p("v_add_u32 v13, 0x10000, v13")
        mf = [M16(V(acc(u,t),4), V(WF(f,t),4), V(XF(b,u),4), "0" if b == 0 else None) for t in range(4) for u in range(2)]
        rd = wreads((b+2) % 3, b+2) if b < NB-2 else []
        q = Prog()
        va = g[1] if g else [[]]*8
        for i, m in enumerate(mf):
            p(m)
            for x in rd[i:i+1]: p(x)
            for x in va[i]: p(x)
            if b == NB-2: [p(x) for x in ad[2*i:2*i+2]]
            if i == 4 and nw < NB:
                vm(p, ("w", nw), wop(nw)); nw += 1
            if i == 5 and ex:
                tag, L = ex.pop(0); vm(p, tag, L)
        if b + LAB < NB:
            for u in range(2): vm(p, ("x", b+LAB, u, 0), xop(b+LAB, u))
    assert not ex and nw == NB
    e = p
    stamp(e, 2)
    e("v_lshrrev_b32 v6, 3, v1")
    e("v_and_b32 v7, 7, v1")
    e("v_lshlrev_b32 v7, 1, v7")
    e("v_xor_b32 v7, v7, v6")
    e("v_lshlrev_b32 v7, 4, v7")
    e("v_lshl_add_u32 v6, v6, 8, v7")
    e("v_add_u32 v6, s52, v6")
    e("v_xor_b32 v7, 16, v6")
    e("v_xor_b32 v12, 0x80, v6")
    e("v_xor_b32 v13, 0x90, v6")
    for u in range(2):
        for t in range(4):
            e(f"ds_write_b128 v{8+t}, {V(acc(u,t),4)} offset:{u*4096}")
    RB = PR
    ra = {(0,0): 6, (0,1): 7, (1,0): 12, (1,1): 13}
    e("s_waitcnt lgkmcnt(4)")
    for q in range(4):
        if q == 2: e("s_waitcnt lgkmcnt(4)")
        for h in range(2):
            e(f"ds_read_b128 {V(RB+q*8+h*4,4)}, v{ra[(q&1,h)]} offset:{q*2048}")
    for q in range(4):
        e(f"s_waitcnt lgkmcnt({6-2*q})")
        for r in range(4): e(f"v_pk_add_f32 {V(RB+q*8+2*r,2)}, {V(RB+q*8+2*r,2)}, {V(SUMR+q*8+2*r,2)}")
        for r in range(4): e(f"v_cvt_pk_bf16_f32 v{T+q*4+r}, v{RB+q*8+2*r}, v{RB+q*8+2*r+1}")
        e(f"s_add_u32 s45, s49, {q*16384}")
        e(f"buffer_store_dwordx4 {V(T+q*4,4)}, v14, s[36:39], s45 offen {ST_OUT}")
    stamp(e, 3)
    if LOOPST: e("v_mov_b32 v3, v2")
    stamp_flush(e, 3, 5)
    loopstamp_flush(e, "v3", 3)
    e.label("L3_end")
    e("s_endpgm")
    ins = fix(p.ins)
    assert NV <= 256, NV
    return name, kernel_text(name, ins, NV, NV), (256, 256, lds)
```

```python
import sys, importlib
from common import *
import k0_lnkv, k1_gemma, k2_attn, k3_gemmb, k2_fused, k3_out, k0_ln, k3_out2, k1_gemma2, k2_final
HDR = open("cdna_kernels/%s.s.ref" % NAME).read().split("; Override launch")[0]
if os.environ.get("FUSED", "2") == "2":
    ks = ([] if k1_gemma2.MERGE else [k0_ln.gen()]) + [k1_gemma2.gen(), k2_final.gen()]
elif os.environ.get("FUSED", "2") == "1":
    ks = [k0_ln.gen(), (k1_gemma2 if os.environ.get("K1", "2") == "2" else k1_gemma).gen(), k2_fused.gen(), (k3_out2 if os.environ.get("K3", "2") == "2" else k3_out).gen()]
else:
    ks = [k0_lnkv.gen(), k1_gemma.gen(), k2_attn.gen(), k3_gemmb.gen()]
order = [int(x) for x in os.environ.get("ORDER", "").split(",") if x] or list(range(len(ks)))
if max(order) >= len(ks):
    ks.append(("empty_kernel", kernel_text("empty_kernel", [Ins("s_endpgm")], 8, 8), (256, 256, 0)))
s = HDR
for oi in order:
    name, txt, (g, b, lds) = ks[oi]
    s += f"; @launch kernel={name} grid=({g},1,1) block=({b},1,1) lds={lds}\n"
s += '.amdgcn_target "amdgcn-amd-amdhsa--gfx950"\n'
for name, txt, _ in ks: s += txt
s += '.text\nLcode_end:\n'
out = sys.argv[1] if len(sys.argv) > 1 else "cdna_kernels/%s.s" % NAME
open(out, "w").write(s)
print("wrote", out, len(s))
```

```python
from common import *

NPF = int(os.environ.get('NPF', '2'))

SELFPF = int(os.environ.get('SELFPF', '1'))
def ln_body(p0, F=32, XR=16, o=0, mid=None):
    import re as _re
    def p(x):
        if o:
            x = _re.sub(r"\bv(8|9|1[0-5])\b", lambda m: f"v{int(m.group(1))+o}", x)
            x = _re.sub(r"v\[(1[0-5]):(1[0-5])\]", lambda m: f"v[{int(m.group(1))+o}:{int(m.group(2))+o}]", x)
        p0(x)
    for i in range(16):
        p(f"v_lshlrev_b32 v{F+2*i}, 16, v{XR+i}")
        p(f"v_and_b32 v{F+2*i+1}, 0xffff0000, v{XR+i}")
    def reduce(off):
        p("v_add_f32_dpp v10, v10, v10 row_ror:8 row_mask:0xf bank_mask:0xf")
        p("v_mov_b32 v11, v10")
        p("v_permlane16_swap_b32 v10, v11")
        p("v_add_f32 v10, v10, v11")
        p("v_mov_b32 v11, v10")
        p("v_permlane32_swap_b32 v10, v11")
        p("v_add_f32 v10, v10, v11")
        p(f"ds_write_b32 v9, v10 offset:{off}")
        p("s_waitcnt lgkmcnt(0)")
        p("s_barrier")
        p(f"ds_read_b128 v[12:15], v8 offset:{off}")
        p("s_waitcnt lgkmcnt(0)")
        p("v_add_f32 v12, v12, v13")
        p("v_add_f32 v14, v14, v15")
        p("v_add_f32 v10, v12, v14")
        p(f"v_mul_f32 v10, {f32(1.0/1024)}, v10")
    for h in range(2): p(f"v_pk_add_f32 {V(10+2*h,2)}, {V(F+2*h,2)}, {V(F+4+2*h,2)}")
    for i in range(4, 16): p(f"v_pk_add_f32 {V(10+2*(i&1),2)}, {V(10+2*(i&1),2)}, {V(F+2*i,2)}")
    p("v_pk_add_f32 v[10:11], v[10:11], v[12:13]")
    p("v_add_f32 v10, v10, v11")
    reduce(0)
    if mid: mid()
    p("v_mov_b32 v11, v10")
    for i in range(16): p(f"v_pk_add_f32 {V(F+2*i,2)}, {V(F+2*i,2)}, v[10:11] neg_lo:[0,1] neg_hi:[0,1]")
    for h in range(2): p(f"v_pk_mul_f32 {V(10+2*h,2)}, {V(F+2*h,2)}, {V(F+2*h,2)}")
    for i in range(2, 16): p(f"v_pk_fma_f32 {V(10+2*(i&1),2)}, {V(F+2*i,2)}, {V(F+2*i,2)}, {V(10+2*(i&1),2)}")
    p("v_pk_add_f32 v[10:11], v[10:11], v[12:13]")
    p("v_add_f32 v10, v10, v11")
    reduce(128)
    p(f"v_add_f32 v14, {f32(1e-5)}, v10")
    p("v_rsq_f32 v14, v14")
    p("v_mul_f32 v12, v14, v14")
    p("v_mov_b32 v15, v14")
    for i in range(16): p(f"v_pk_mul_f32 {V(F+2*i,2)}, {V(F+2*i,2)}, v[14:15]")
    p("v_mul_f32 v12, v12, v10")
    p(f"v_add_f32 v12, {f32(1e-5)}, v12")
    p("v_rsq_f32 v12, v12")
    for i in range(16): p(f"v_cvt_pk_bf16_f32 v{XR+i}, v{F+2*i}, v{F+2*i+1}")

def gen():
    name = "lnkv_kernel"
    p = Prog()
    lds = 256
    XR = 16
    p("s_cmp_ge_u32 s2, 256")
    p("s_cbranch_scc1 L0_end")
    stamp(p, 0)
    p(f"s_load_dwordx4 s[4:7], s[0:1], {KA['x']}")
    p(f"s_load_dwordx2 s[8:9], s[0:1], {KA['w1']}")
    p(f"s_load_dwordx2 s[10:11], s[0:1], {KA['ws']}")
    p(f"s_load_dwordx4 s[24:27], s[0:1], {KA['wk']}")
    p("v_and_b32 v1, 63, v0")
    if CODEPF and SELFPF:
        for x in code_srd(48, "lnkv_kernel", back=True): p(x)
        p("s_movk_i32 s50, 0x800")
        p("v_lshlrev_b32 v7, 7, v1")
        p("buffer_load_dword v71, v7, s[48:51], 0 offen")
    p("v_lshrrev_b32 v2, 6, v0")
    p("v_readfirstlane_b32 s30, v2")
    p("v_and_b32 v3, 7, v1")
    p("v_lshrrev_b32 v4, 3, v1")
    p("v_lshlrev_b32 v5, 11, v3")
    p("v_lshl_add_u32 v5, v4, 4, v5")
    p("s_lshl_b32 s33, s2, 14")
    p("s_lshl_b32 s34, s30, 9")
    p("s_add_u32 s33, s33, s34")
    p("s_waitcnt lgkmcnt(0)")
    srd(p, 12, 4, 2048*1024*2)
    for q in range(4):
        p(f"buffer_load_dwordx4 {V(XR+4*q,4)}, v5, s[12:15], s33 offen offset:{q*128}")
    if NPF:
        p("s_lshr_b32 s35, s2, 3")
        p("s_bfe_u32 s36, s2, 0x20001")
        p("s_cmp_lt_u32 s30, 2")
        p("s_cbranch_scc1 L0_pw1")
        p("s_cmp_eq_u32 s30, 2")
        p("s_cbranch_scc0 L0_pkv")
        srd(p, 16, 6, 1024*1024*2)
        p("v_bfe_u32 v6, v1, 2, 3")
        p("v_and_b32 v7, 3, v1")
        p("v_lshlrev_b32 v7, 7, v7")
        p("v_lshl_add_u32 v6, v6, 11, v7")
        p("s_lshl_b32 s37, s35, 14")
        p("s_lshl_b32 s38, s36, 9")
        p("s_add_u32 s37, s37, s38")
        for g in range(NPF):
            p(f"buffer_load_dword v{64+g}, v6, s[16:19], s37 offen")
            p(f"s_add_u32 s37, s37, {256*2048}")
        p("s_branch L0_pdone")
        p.label("L0_pkv")
        p("s_bitcmp1_b32 s35, 3")
        p("s_cselect_b32 s24, s26, s24")
        p("s_cselect_b32 s25, s27, s25")
        srd(p, 16, 24, 65536)
        p("v_lshlrev_b32 v6, 7, v1")
        p("s_and_b32 s37, s35, 23")
        p("s_lshl_b32 s37, s37, 13")
        for g in range(NPF):
            p(f"buffer_load_dword v{64+g}, v6, s[16:19], s37 offen")
        p("s_branch L0_pdone")
        p.label("L0_pw1")
        srd(p, 16, 8, 1024*3584*2)
        p("v_lshrrev_b32 v6, 4, v1")
        p("v_mul_u32_u24 v6, 7168, v6")
        p("v_and_b32 v7, 15, v1")
        p("v_min_u32 v7, 13, v7")
        p("v_lshl_add_u32 v6, v7, 7, v6")
        p("s_lshl_b32 s37, s35, 1")
        p("s_add_u32 s37, s37, s30")
        p(f"s_mul_i32 s37, s37, {4*7168}")
        p("s_mul_i32 s38, s36, 1792")
        p("s_add_u32 s37, s37, s38")
        for g in range(NPF):
            p(f"buffer_load_dword v{64+g}, v6, s[16:19], s37 offen")
            p(f"s_add_u32 s37, s37, {256*7168}")
        p.label("L0_pdone")
    if CODEPF:
        for x in code_srd(44, "gemma_kernel"): p(x)
        p("v_lshlrev_b32 v7, 7, v1")
        p("s_lshl_b32 s37, s30, 13")
        p("buffer_load_dword v70, v7, s[44:47], s37 offen")
    srd(p, 20, 10, WS_SIZE)
    p("v_and_b32 v8, 31, v1")
    p("v_lshlrev_b32 v8, 2, v8")
    p("s_lshl_b32 s37, s2, 7")
    p("s_add_u32 s38, s37, 0x4000")
    p("s_and_b32 s37, s37, 0x1fff")
    p("v_mov_b32 v9, s38")
    p("v_mov_b32 v10, s37")
    p("v_cmp_gt_u32 vcc, 32, v1")
    p("v_cndmask_b32 v9, v10, v9, vcc")
    p("v_add_u32 v68, v8, v9")
    p("v_mov_b32 v69, 0")
    p("v_lshlrev_b32 v8, 4, v3")
    p("s_lshl_b32 s37, s30, 2")
    p("v_add_u32 v9, s37, v8")
    p("v_lshl_add_u32 v6, v4, 8, v8")
    p("s_lshr_b32 s38, s2, 1")
    p("s_lshl_b32 s38, s38, 15")
    p("s_lshl_b32 s39, s30, 13")
    p("s_add_u32 s38, s38, s39")
    p("s_and_b32 s39, s2, 1")
    p("s_lshl_b32 s39, s39, 7")
    p("s_add_u32 s38, s38, s39")
    p("s_add_u32 s39, s38, 4096")
    p("v_lshlrev_b32 v7, 2, v3")
    p("s_lshl_b32 s41, s2, 5")
    p(f"s_add_u32 s41, s41, {hex(CS)}")
    p(f"s_waitcnt vmcnt({NPF+CODEPF})")
    stamp(p, 1)
    ln_body(p)
    stamp(p, 2)
    for q in range(4):
        p(f"buffer_store_dwordx4 {V(XR+4*q,4)}, v6, s[20:23], s{38+(q>>1)} offen offset:{(q&1)*2048} {ST_XN}")
    p(f"buffer_store_dword v12, v7, s[20:23], s41 offen {ST_XN}")
    p(f"s_mov_b32 s41, {hex(FLG)}")
    p("buffer_store_dword v69, v68, s[20:23], s41 offen")
    stamp(p, 3)
    stamp_flush(p, 0, 5, wsptr=10)
    p.label("L0_end")
    p("s_endpgm")
    ins = fix(p.ins)
    return name, kernel_text(name, ins, 72, 72), (256, 256, lds)
```

```python
from common import *
from k0_ln import ln_body
import math

LA1 = int(os.environ.get('LA1', '4'))
PFW2 = int(os.environ.get('PFW2', '2'))
MERGE = int(os.environ.get('MERGE', '1'))
NPOLL = int(os.environ.get('NPOLL', '32'))
W0PRE = int(os.environ.get('W0PRE', '0'))
MPF = int(os.environ.get('MPF', '0'))
MROW = int(os.environ.get('MROW', '128'))
EPF = int(os.environ.get('EPF', '1'))
PUBPF = int(os.environ.get('PUBPF', '0'))
STG = 53248
WOFF = 16384

def spread(n, lists):
    fill = []
    for (a, b, items) in lists:
        m = max(len(items), 1)
        for k, it in enumerate(items):
            ps = a + (k * (b - a + 1)) // m
            if isinstance(it, list):
                for x in it[:-1]: fill.append((max(ps-1, 0), x))
                fill.append((ps, it[-1]))
            else: fill.append((ps, it))
    return fill

def gen():
    name = "gemma_kernel"
    p = Prog()
    lds = 3 * STG + (4096 if MERGE else 0)
    SC = ' sc1' if MERGE else ''
    ACC = 16
    def acc(u, t): return ACC + (u*9+t)*4
    BIAS = 160; CSC = 188; T = 192; KA_ = 240
    def XF(f, u): return f*52 + u*4
    def WF(f, t): return f*52 + 16 + t*4
    KX = 104; KW = 136; NAG = 200
    p("s_cmp_ge_u32 s2, 256")
    p("s_cbranch_scc1 L1_end")
    stamp(p, 0)
    p(f"s_load_dwordx2 s[4:5], s[0:1], {KA['wq']}")
    p(f"s_load_dwordx4 s[8:11], s[0:1], {KA['w1']}")
    p(f"s_load_dwordx2 s[6:7], s[0:1], {KA['ws']}")
    p(f"s_load_dwordx2 s[64:65], s[0:1], {KA['w2']}")
    p(f"s_load_dwordx4 s[32:35], s[0:1], {KA['wk']}")
    if MERGE:
        p(f"s_load_dwordx2 s[68:69], s[0:1], {KA['x']}")
    p("v_and_b32 v1, 63, v0")
    p("v_lshrrev_b32 v2, 6, v0")
    p("v_readfirstlane_b32 s40, v2")
    if MERGE and CODEPF:
        for x in code_srd(28, "gemma_kernel", back=True): p(x)
        p("v_lshlrev_b32 v220, 7, v1")
        p("s_cmp_eq_u32 s40, 0")
        p("s_cbranch_scc0 L1_nt")
        p("buffer_load_dword v221, v220, s[28:31], 0 offen")
        p.label("L1_nt")
    p("s_and_b32 s41, s2, 1")
    p("s_lshl_b32 s41, s41, 3")
    p("s_bfe_u32 s66, s2, 0x30003")
    p("s_add_u32 s41, s41, s66")
    p("s_bfe_u32 s42, s2, 0x20001")
    p("s_lshl_b32 s42, s42, 2")
    p("s_lshr_b32 s43, s2, 6")
    p("s_add_u32 s42, s42, s43")
    p("s_add_u32 s66, s66, s43")
    p("s_lshr_b32 s44, s40, 1")
    p("s_and_b32 s45, s40, 1")
    p("v_lshlrev_b32 v5, 4, v1")
    p("s_lshl_b32 s46, s41, 3")
    p("s_lshl_b32 s47, s40, 1")
    p("s_add_u32 s46, s46, s47")
    p("s_lshl_b32 s46, s46, 15")
    p("v_add_u32 v6, s46, v5")
    p("v_add_u32 v7, 0x8000, v6")
    p("v_lshrrev_b32 v8, 5, v1")
    p("v_lshlrev_b32 v8, 1, v8")
    p("v_and_b32 v9, 3, v1")
    p("v_xor_b32 v8, v8, v9")
    p("v_lshlrev_b32 v8, 4, v8")
    p("v_lshrrev_b32 v9, 2, v1")
    p("s_lshl_b32 s47, s40, 4")
    p("v_add_u32 v9, s47, v9")
    p("v_mul_u32_u24 v10, 7168, v9")
    p("s_mul_i32 s47, s42, 448")
    p("v_add3_u32 v10, v10, v8, s47")
    p("v_lshl_add_u32 v9, v9, 11, v8")
    p("s_lshl_b32 s47, s42, 7")
    p("v_add_u32 v9, s47, v9")
    p("s_lshl_b32 s51, s40, 12")
    p("s_lshl_b32 s52, s40, 10")
    p(f"s_add_u32 s52, s52, {WOFF}")
    def kchain(nreg):
        return [f"s_add_u32 s67, {nreg}, s66", ["s_and_b32 s67, s67, 3", f"s_cselect_b32 s67, 0, {LA1}"], f"s_add_u32 s67, s67, {nreg}", "s_and_b32 s67, s67, 15"]
    def flat(L): return [y for x in L for y in (x if isinstance(x, list) else [x])]
    KO = ["s_lshl_b32 s53, s67, 11", "s_lshl_b32 s54, s67, 17", f"s_mul_i32 s55, s67, {64*7168}"]
    def set_stage(n):
        for x in flat(kchain(str(n))) + KO: p(x)
        p(f"s_add_u32 s56, s51, {n*STG}")
        p(f"s_add_u32 s57, s52, {n*STG}")
    set_stage(0)
    if not MERGE: stamp(p, 5)
    p("s_waitcnt lgkmcnt(0)")
    if not MERGE: stamp(p, 6)
    srd(p, 12, 6, 0x400000, XN_F)
    slot_of = {"q0": 0, "q1": 4, 0: 1, 1: 2, 2: 3, 3: 8, 4: 5, 5: 6, 6: 7}
    D = []
    D.append(["s_mov_b32 m0, s56", "buffer_load_dwordx4 v6, s[12:15], s53 offen" + SC + " lds"])
    D.append(["buffer_load_dwordx4 v6, s[12:15], s53 offen offset:1024" + SC + " lds"])
    D.append(["s_add_u32 m0, s56, 2048", "buffer_load_dwordx4 v7, s[12:15], s53 offen" + SC + " lds"])
    D.append(["buffer_load_dwordx4 v7, s[12:15], s53 offen offset:1024" + SC + " lds"])
    for a in range(2):
        D.append([f"s_add_u32 m0, s57, {slot_of['q%d'%a]*4096 - a*64}", f"buffer_load_dwordx4 v9, s[16:19], s54 offen offset:{a*64} lds"])
    for a in range(7):
        D.append([f"s_add_u32 m0, s57, {slot_of[a]*4096 - a*64}", f"buffer_load_dwordx4 v10, s[20:23], s55 offen offset:{a*64} lds"])
    NB = 7
    XRL = 16
    if MERGE:
        srd(p, 28, 68, 2048*1024*2)
        srd(p, 24, 6, WS_SIZE)
        p("v_and_b32 v203, 7, v1")
        p("v_lshrrev_b32 v204, 3, v1")
        p("v_lshlrev_b32 v205, 11, v203")
        p("v_lshl_add_u32 v205, v204, 4, v205")
        p("s_lshl_b32 s36, s41, 4")
        p("s_add_u32 s36, s36, s42")
        p("s_lshl_b32 s37, s36, 14")
        p("s_lshl_b32 s38, s40, 9")
        p("s_add_u32 s37, s37, s38")
        for q in range(4):
            p(f"buffer_load_dwordx4 {V(XRL+4*q,4)}, v205, s[28:31], s37 offen offset:{q*128}")
        p("v_lshlrev_b32 v216, 2, v1")
        p("v_mov_b32 v217, 0")
        p("s_lshl_b32 s37, s36, 7")
        p("s_and_b32 s38, s37, 0x1fff")
        p("s_add_u32 s39, s37, 0x4000")
        p("s_cmp_eq_u32 s40, 1")
        p("s_cselect_b32 s38, s39, s38")
        p("s_add_u32 s39, s37, 0x10000")
        p("s_cmp_eq_u32 s40, 0")
        p("s_cselect_b32 s38, s39, s38")
        p(f"s_add_u32 s38, s38, {hex(FLG)}")
    srd(p, 16, 4, 1024*1024*2)
    srd(p, 20, 8, 1024*3584*2)
    for k, d in enumerate(D):
        if MERGE and (k < 4 or k >= 4 + W0PRE): continue
        for x in d: p(x)
    if MERGE:
        if os.environ.get("LATERESET"):
            p("s_and_b32 s47, s2, 3")
            p("s_cmp_eq_u32 s47, 0")
            p("s_cbranch_scc0 L1_nd")
            for i in range(int(os.environ["LATERESET"])): p("s_sleep 127")
            p.label("L1_nd")
        p("s_mov_b64 exec, 0xffff")
        p("buffer_store_dword v217, v216, s[24:27], s38 offen sc1")
        p("s_mov_b64 exec, -1")
        if EPF:
            p("s_lshr_b32 s47, s2, 3")
            p("s_bfe_u32 s48, s2, 0x20001")
            p("s_cmp_eq_u32 s40, 3")
            p("s_cbranch_scc1 L1_eq")
            p("v_lshrrev_b32 v220, 4, v1")
            p("v_mul_u32_u24 v220, 7168, v220")
            p("v_and_b32 v221, 15, v1")
            p("v_min_u32 v221, 13, v221")
            p("v_lshl_add_u32 v220, v221, 7, v220")
            p(f"s_mul_i32 s49, s47, {4*7168}")
            p("s_mul_i32 s50, s48, 1792")
            p("s_add_u32 s49, s49, s50")
            p(f"s_mul_i32 s50, s40, {128*7168}")
            p("s_add_u32 s49, s49, s50")
            for g in range(EPF):
                p("buffer_load_dword v223, v220, s[20:23], s49 offen")
                p(f"s_add_u32 s49, s49, {3*128*7168}")
            p("s_branch L1_ed")
            p.label("L1_eq")
            p("v_lshrrev_b32 v221, 2, v1")
            p("v_and_b32 v222, 3, v1")
            p("v_lshlrev_b32 v222, 7, v222")
            p("v_lshl_add_u32 v221, v221, 11, v222")
            p("s_lshl_b32 s49, s47, 15")
            p("s_lshl_b32 s50, s48, 9")
            p("s_add_u32 s49, s49, s50")
            for g in range(EPF):
                p("buffer_load_dword v223, v221, s[16:19], s49 offen")
                p(f"s_add_u32 s49, s49, {512*2048}")
            p.label("L1_ed")
    p("v_and_b32 v3, 15, v1")
    p("v_lshrrev_b32 v4, 4, v1")
    p("s_lshl_b32 s47, s44, 13")
    p("v_add_u32 v11, s47, v5")
    p("v_lshlrev_b32 v15, 9, v4")
    p("v_bfe_u32 v13, v1, 2, 2")
    p("v_lshl_add_u32 v15, v13, 6, v15")
    p("v_and_b32 v13, 3, v1")
    p("v_lshl_add_u32 v15, v13, 3, v15")
    p("v_and_b32 v13, 1, v4")
    p("v_lshl_add_u32 v15, v13, 5, v15")
    p("s_lshl_b32 s47, s45, 5")
    p("v_xor_b32 v14, s47, v15")
    p(f"v_add_u32 v14, {WOFF+32768}, v14")
    p("s_lshl_b32 s47, s45, 14")
    p(f"s_add_u32 s47, s47, {WOFF}")
    p("v_add_u32 v12, s47, v15")
    p("v_xor_b32 v13, 32, v12")
    if not MERGE:
        set_stage(1)
        for d in D:
            for x in d: p(x)
        set_stage(2)
    else:
        p("v_lshlrev_b32 v208, 4, v203")
        p(f"v_add_u32 v208, {3*STG}, v208")
        p("s_lshl_b32 s37, s40, 2")
        p("v_add_u32 v209, s37, v208")
        p("v_lshlrev_b32 v206, 4, v203")
        p("v_lshl_add_u32 v206, v204, 8, v206")
        p("s_lshr_b32 s38, s36, 1")
        p("s_lshl_b32 s38, s38, 15")
        p("s_lshl_b32 s39, s40, 13")
        p("s_add_u32 s38, s38, s39")
        p("s_and_b32 s39, s36, 1")
        p("s_lshl_b32 s39, s39, 7")
        p("s_add_u32 s38, s38, s39")
        p("s_add_u32 s39, s38, 4096")
        p("v_lshlrev_b32 v207, 2, v203")
        p("s_lshl_b32 s48, s36, 5")
        p(f"s_add_u32 s48, s48, {hex(CS)}")
        p(f"s_waitcnt vmcnt({W0PRE+1+EPF})")
        stamp(p, 7)
        def mid():
            if EPF: return
            for d in D[4+W0PRE:]:
                for x in d: p(x)
        ln_body(p, F=32, XR=XRL, o=200, mid=mid)
        for q in range(4):
            p(f"buffer_store_dwordx4 {V(XRL+4*q,4)}, v206, s[24:27], s{38+(q>>1)} offen offset:{(q&1)*2048} sc1")
        p("s_cmp_eq_u32 s40, 3")
        p("s_cbranch_scc0 L1_nc")
        p("s_mov_b64 exec, 0xff")
        p("buffer_store_dword v212, v207, s[24:27], s48 offen sc1")
        p("s_mov_b64 exec, -1")
        p.label("L1_nc")
        p("v_and_b32 v216, 15, v1")
        p("v_lshlrev_b32 v218, 7, v216")
        p("v_lshlrev_b32 v216, 2, v216")
        p("v_mov_b32 v217, 1")
        p("v_mov_b32 v219, 0")
        p("s_lshl_b32 s37, s41, 11")
        p("s_lshl_b32 s38, s42, 2")
        p("s_add_u32 s37, s37, s38")
        p(f"s_add_u32 s37, s37, {hex(FLG+0x10000)}")
        p("s_lshl_b32 s38, s36, 7")
        p(f"s_add_u32 s38, s38, {hex(FLG+0x10000)}")
        p("s_mul_i32 s3, s36, 5958")
        p("s_lshr_b32 s3, s3, 16")
        p("s_mul_i32 s3, s3, 11")
        p("s_sub_u32 s3, s36, s3")
        p("s_add_u32 s3, s3, 4")
        p("s_cmp_eq_u32 s40, 3")
        p("s_cselect_b32 s3, s3, 0")
        if not EPF: set_stage(1)
        stamp(p, 5)
        p("s_waitcnt vmcnt(0)")
        p("s_barrier")
        stamp(p, 6)
        p("s_cmp_eq_u32 s40, 0")
        p("s_cbranch_scc0 L1_nf")
        p("s_mov_b64 exec, 0xffff")
        p("buffer_store_dword v217, v218, s[24:27], s37 offen sc1")
        p("s_mov_b64 exec, -1")
        p.label("L1_nf")
        if EPF:
            for d in D[4+W0PRE:]:
                for x in d: p(x)
            set_stage(1)
        for d in D[4:]:
            for x in d: p(x)
        p("s_cmp_eq_u32 s40, 0")
        p("s_cbranch_scc0 L1_go")
        p("s_mov_b32 s39, 0")
        p.label("L1_p1")
        p("buffer_load_dword v219, v216, s[24:27], s38 offen sc1")
        p("s_add_u32 s39, s39, 1")
        p("s_waitcnt vmcnt(0)")
        p("v_cmp_eq_u32 vcc, 1, v219")
        p("s_cmp_eq_u64 vcc, -1")
        p("s_cbranch_scc1 L1_go")
        if MPF:
            p("s_cmp_eq_u32 s39, 1")
            p("s_cbranch_scc0 L1_npf")
            p("v_lshrrev_b32 v220, 4, v1")
            p("v_mul_u32_u24 v220, 7168, v220")
            p("v_and_b32 v221, 15, v1")
            p("v_min_u32 v221, 13, v221")
            p("v_lshl_add_u32 v220, v221, 7, v220")
            p("v_lshrrev_b32 v221, 2, v1")
            p("v_and_b32 v222, 3, v1")
            p("v_lshlrev_b32 v222, 7, v222")
            p("v_lshl_add_u32 v221, v221, 11, v222")
            p("s_lshr_b32 s47, s2, 3")
            p("s_bfe_u32 s48, s2, 0x20001")
            p(f"s_mul_i32 s49, s47, {4*7168}")
            p("s_mul_i32 s50, s48, 1792")
            p("s_add_u32 s49, s49, s50")
            p(f"s_add_u32 s49, s49, {MROW*7168}")
            for g in range(MPF):
                p("buffer_load_dword v223, v220, s[20:23], s49 offen")
                p(f"s_add_u32 s49, s49, {128*7168}")
            p("s_lshl_b32 s49, s47, 15")
            p("s_lshl_b32 s50, s48, 9")
            p("s_add_u32 s49, s49, s50")
            p(f"s_add_u32 s49, s49, {MROW*2048}")
            p("buffer_load_dword v223, v221, s[16:19], s49 offen")
            p.label("L1_npf")
        p("s_sleep 2")
        p("s_cmp_lt_u32 s39, 0x100000")
        p("s_cbranch_scc1 L1_p1")
        p.label("L1_go")
        p("s_barrier")
        stamp(p, 4)
        for n in range(2):
            for x in flat(kchain(str(n))) + KO[:1]: p(x)
            p(f"s_add_u32 s56, s51, {n*STG}")
            for d in D[:4]:
                for x in d: p(x)
        p("s_cmp_eq_u32 s40, 0")
        p("s_cbranch_scc0 L1_nr")
        p("s_mov_b64 exec, 0xffff")
        p("buffer_store_dword v217, v218, s[24:27], s37 offen sc1")
        p("s_mov_b64 exec, -1")
        p.label("L1_nr")
        set_stage(2)
    if not MERGE: stamp(p, 4)
    def reads(f, kk):
        R = []
        for u in range(4):
            R.append(f"ds_read_b128 {A(XF(f,u),4)}, v11 offset:{u*2048+kk*1024}")
        for t in range(9):
            for rho in range(2):
                if t < 8: R.append(f"ds_read_b64_tr_b16 {A(WF(f,t)+rho*2,2)}, v{12+(t&1)} offset:{(t>>1)*4096+kk*2048+rho*256}")
                else: R.append(f"ds_read_b64_tr_b16 {A(WF(f,t)+rho*2,2)}, v14 offset:{kk*2048+rho*256}")
        return R
    def mfmas(f, zero=False):
        return [M16(V(acc(u,t),4), A(WF(f,t),4), A(XF(f,u),4), "0" if zero else None) for t in range(9) for u in range(4)]
    p(f"s_waitcnt vmcnt({4 if MERGE else 13})")
    p("s_barrier")
    stamp(p, 1)
    for x in reads(0, 0): p(x)
    if LOOPST: p("s_mov_b32 s71, 0")
    loopstamp(p, "v2", f"v{T+40}")
    p("s_mov_b32 s58, 0")
    p(f"s_mov_b32 s60, {STG}")
    p(f"s_mov_b32 s61, {STG}")
    p("s_mov_b32 s59, 3")
    for x in flat(kchain("3")): p(x)
    p("s_waitcnt lgkmcnt(0)")
    rot_v = [f"v_add_u32 v{r}, s61, v{r}" for r in (11, 12, 13, 14)]
    def phaseA(dl, a, b, zero=False, early=True):
        fill = [(i, x) for i, x in enumerate(reads(1, 1))]
        fill += spread(36, [(a, b, dl)])
        fill += [(b+2, KO[0]), (b+3, KO[1]), (b+4, KO[2]), (b+5, "s_add_u32 s56, s51, s58"), (b+6, "s_add_u32 s57, s52, s58"), (b+7, "s_mov_b32 s58, s60")]
        fill += [(30+i, x) for i, x in enumerate(rot_v)]
        return interleave(mfmas(0, zero), fill)
    for x in phaseA(D, 1, 26, zero=True): p(x)
    p("s_waitcnt vmcnt(13) lgkmcnt(0)")
    pre = fix(p.ins)
    b = Prog()
    b.label("L1_loop")
    loopstamp(b, "v2", f"v{T+40}")
    b("s_barrier")
    loopstamp(b, "v2", f"v{T+40}")
    rot_s = [f"s_add_u32 s60, s58, {STG}", [f"s_cmp_eq_u32 s60, {3*STG}", "s_cselect_b32 s60, 0, s60"], "s_sub_u32 s61, s60, s58"]
    fill = [(i, x) for i, x in enumerate(reads(0, 0))]
    fill += spread(36, [(2, 35, D[:NB])])
    kc = kchain("s59")
    sc = ["s_add_u32 s59, s59, 1", kc[0]] + [kc[1]] + [kc[2], kc[3], rot_s[0], rot_s[1], rot_s[2]]
    posn = [22, 23, 24, 27, 28, 29, 32, 33]
    for ps, x in zip(posn, sc):
        for y in (x if isinstance(x, list) else [x]): fill.append((ps, y))
    if MERGE and PUBPF:
        fill += [(34, "s_cmp_eq_u32 s59, s3"), (34, "s_cbranch_scc1 L1_pub"), (34, "L1_nb:")]
    for x in interleave(mfmas(1), fill): b(x)
    b("s_waitcnt lgkmcnt(0)")
    A_ = phaseA(D[NB:], 2, 26)
    for x in A_: b(x)
    b("s_cmp_lt_u32 s59, 16")
    loopstamp(b, "v2", f"v{T+40}") if False else None
    b("s_waitcnt vmcnt(13) lgkmcnt(0)")
    b("s_cbranch_scc1 L1_loop")
    DROP = os.environ.get("DROP", "")
    if DROP:
        b.ins = [i for i in b.ins if not any(i.text.startswith(d) for d in DROP.split(","))]
    body = fix(b.ins, pre=pre)
    assert not check_loop(body)
    e = Prog()
    issued = []
    KVB = STG; KVR = STG + 65536
    sgelu = (2.0 * math.sqrt(2.0/math.pi) * math.log2(math.e) * 0.044715) ** (1.0/3.0)
    kappa = 2.0 * math.sqrt(2.0/math.pi) * math.log2(math.e) / sgelu
    qs = math.log2(math.e) / math.sqrt(32.0)
    su = Prog()
    srd(su, 24, 6, WS_SIZE)
    srd(su, 28, 10, 3584*2)
    su("v_lshlrev_b32 v6, 3, v4")
    su("s_mul_i32 s47, s42, 448")
    su("s_lshl_b32 s48, s45, 8")
    su("s_add_u32 s48, s48, s47")
    su("s_lshl_b32 s49, s45, 5")
    su("s_add_u32 s49, s49, s47")
    su("v_lshlrev_b32 v7, 2, v3")
    su("s_lshl_b32 s50, s41, 9")
    su("s_lshl_b32 s39, s44, 8")
    su("s_add_u32 s50, s50, s39")
    su(f"s_add_u32 s50, s50, {hex(CS)}")
    su("s_lshl_b32 s37, s41, 3")
    su("s_lshr_b32 s38, s42, 1")
    su("s_add_u32 s37, s37, s38")
    su("s_lshl_b32 s38, s37, 15")
    su("s_lshl_b32 s39, s40, 13")
    su("s_add_u32 s38, s38, s39")
    su("s_add_u32 s39, s38, 4096")
    small = [f"buffer_load_dwordx2 {V(T+2*t,2)}, v6, s[28:31], s48 offen offset:{t*32}" for t in range(6)]
    small.append(f"buffer_load_dwordx2 {V(T+12,2)}, v6, s[28:31], s49 offen offset:192")
    small += [f"buffer_load_dword v{CSC+u}, v7, s[24:27], s50 offen offset:{u*64}{SC}" for u in range(4)]
    kx = [f"buffer_load_dwordx4 {A(KX+4*q,4)}, v5, s[24:27], s{38+(q>>2)} offen offset:{(q&3)*1024}{SC}" for q in range(8)]
    e.label("L1_tail")
    e("s_barrier")
    st = [i.text for i in su.ins]
    fill = [(i, x) for i, x in enumerate(reads(0, 0))] + [(i // 2, x) for i, x in enumerate(st)]
    fill += spread(36, [(15, 35, small)])
    fill += [(30, rot_s[0]), (31, rot_s[1][0]), (31, rot_s[1][1]), (32, rot_s[2])]
    for x in interleave(mfmas(1), fill): e(x)
    e("s_waitcnt lgkmcnt(0)")
    su = Prog()
    su("s_and_b32 s36, s42, 1")
    su("s_cselect_b32 s32, s34, s32")
    su("s_cselect_b32 s33, s35, s33")
    srd(su, 16, 32, 65536)
    su("v_lshrrev_b32 v10, 2, v1")
    su("v_lshl_add_u32 v10, v10, 6, v8")
    su("s_lshl_b32 s49, s40, 14")
    srd(su, 20, 64, 3584*1024*2)
    su("v_lshlrev_b32 v9, 7, v1")
    su("s_lshr_b32 s50, s2, 3")
    su("s_lshl_b32 s50, s50, 1")
    su("s_add_u32 s50, s50, s44")
    su("s_lshl_b32 s50, s50, 13")
    su(f"s_mul_i32 s48, s45, {1792*2048}")
    su("s_add_u32 s55, s50, s48")
    st = [i.text for i in su.ins]
    fill = [(i, x) for i, x in enumerate(reads(1, 1))] + [(0, x) for x in st[:3]] + [(1 + i, x) for i, x in enumerate(st[3:])]
    fill += spread(36, [(2, 28, kx)])
    fill += [(30+i, x) for i, x in enumerate(rot_v)]
    for x in interleave(mfmas(0), fill): e(x)
    e(f"s_waitcnt vmcnt({len(small)+len(kx)}) lgkmcnt(0)")
    e("s_barrier")
    kw = []
    for pp in range(4):
        for q in range(4):
            o = [f"buffer_load_dwordx4 v10, s[16:19], s50 offen offset:{q*1024} lds"]
            if q == 0: o = [f"s_add_u32 m0, s49, {KVB+pp*4096}", f"s_add_u32 s50, s49, {pp*4096}"] + o
            kw.append(o)
    fill = [(i, x) for i, x in enumerate(reads(0, 0))] + spread(36, [(1, 35, kw[:10])])
    for x in interleave(mfmas(1), fill): e(x)
    e(f"s_waitcnt vmcnt({len(kx)+10}) lgkmcnt(0)")
    ub = [f"s_mov_b32 s62, {f32(sgelu)}"]
    for t in range(7):
        for r in range(2):
            ub += [f"v_lshlrev_b32 v{BIAS+4*t+2*r}, 16, v{T+2*t+r}", f"v_and_b32 v{BIAS+4*t+2*r+1}, 0xffff0000, v{T+2*t+r}"]
    ub += [f"v_mul_f32 v{BIAS+i}, s62, v{BIAS+i}" for i in range(32)]
    fill = [(i, x) for i, x in enumerate(reads(1, 1))] + spread(36, [(1, 20, kw[10:])])
    if PFW2: fill.append((24, "buffer_load_dword v2, v9, s[20:23], s55 offen"))
    if CODEPF:
        cs_ = code_srd(12, "L1_epi")
        fill += [(22, x) for x in cs_[:4]] + [(23, x) for x in cs_[4:]] + [(23, "s_lshl_b32 s54, s40, 13"), (26, f"buffer_load_dword v{T+41}, v9, s[12:15], s54 offen")]
    fill += [((i * 36) // len(ub), x) for i, x in enumerate(ub)]
    for x in interleave(mfmas(0), fill): e(x)
    e("s_waitcnt lgkmcnt(0)")
    su = Prog()
    su(f"s_add_u32 s39, s49, {KVB}")
    su("v_add_u32 v12, s39, v15")
    su("v_xor_b32 v13, 32, v12")
    su("s_lshl_b32 s39, s40, 11")
    su(f"s_add_u32 s39, s39, {KVR}")
    su("v_add_u32 v14, s39, v5")
    su("s_lshl_b32 s39, s40, 10")
    su(f"s_add_u32 s39, s39, {KVR}")
    su("v_add_u32 v15, s39, v5")
    su("s_lshl_b32 s46, s41, 3")
    su("s_lshl_b32 s47, s44, 2")
    su("s_add_u32 s46, s46, s47")
    su("s_lshl_b32 s47, s46, 15")
    su("s_lshl_b32 s48, s42, 1")
    su("s_add_u32 s48, s48, s45")
    su("s_lshl_b32 s48, s48, 10")
    su("s_add_u32 s47, s47, s48")
    su(f"s_add_u32 s47, s47, {hex(Q_F)}")
    su(f"s_mul_i32 s48, s46, {OH_TILE}")
    su("s_mul_i32 s49, s42, 7168")
    su("s_add_u32 s48, s48, s49")
    su(f"s_add_u32 s48, s48, {hex(OH_F+32*1024)}")
    su("s_lshl_b32 s49, s45, 12")
    su("v_add_u32 v6, s49, v5")
    su("s_lshl_b32 s49, s45, 3")
    su("v_add_u32 v7, s49, v5")
    su(f"s_mov_b32 s63, {f32(sgelu)}")
    su(f"s_mov_b32 s64, {f32(qs)}")
    su(f"s_mov_b32 s65, {f32(qs)}")
    su(f"v_mov_b32 v8, {f32(kappa)}")
    su(f"v_mov_b32 v9, {f32(kappa)}")
    st = [i.text for i in su.ins]
    krd = [f"ds_read_b64_tr_b16 {A(KW+(s_*2+t)*4+rho*2,2)}, v{12+t} offset:{s_*2048+rho*256}" for s_ in range(8) for t in range(2) for rho in range(2)]
    fill = [(i // 2, x) for i, x in enumerate(st)]
    fill += [(17, f"s_waitcnt vmcnt({(1 if PFW2 else 0) + CODEPF})")] + [(18 + i // 2, x) for i, x in enumerate(krd)]
    for x in interleave(mfmas(1), fill): e(x)
    stamp(e, 2)
    e.label("L1_epi")
    e("s_waitcnt lgkmcnt(0)")
    kvm = [M16(V(KA_+4*t,4), A(KW+(s_*2+t)*4,4), A(KX+4*s_,4), "0" if s_ == 0 else None) for s_ in range(8) for t in range(2)]
    qv = []
    for u in range(4):
        o = T + u*4
        for t in range(2):
            for r in range(4): qv.append(f"v_mul_f32 v{acc(u,t)+r}, s64, v{acc(u,t)+r}")
        for t in range(2):
            for h in range(2): qv.append(f"v_cvt_pk_bf16_f32 v{o+2*t+h}, v{acc(u,t)+2*h}, v{acc(u,t)+2*h+1}")
        qv.append(f"s_add_u32 s49, s47, {u*0x8000}")
        qv.append(f"buffer_store_dwordx4 {V(o,4)}, v5, s[24:27], s49 offen {ST_Q}")
    fill = [((i * 16) // len(qv), x) for i, x in enumerate(qv)]
    for x in interleave(kvm, fill): e(x)
    tcnt = [0]
    def gelu(items, out):
        prs = [(acc(u,t)+2*h, BIAS+4*(t-2)+2*h, u) for (u, t) in items for h in range(2)]
        n = len(prs)
        tb = T + 16 + (tcnt[0] % 2) * 8; tcnt[0] += 1
        for (a, bb, u) in prs:
            e(f"v_pk_fma_f32 {V(a,2)}, {V(a,2)}, {V(CSC+(u&~1),2)}, {V(bb,2)} op_sel:[0,{u&1},0] op_sel_hi:[1,{u&1},1]")
        for i, (a, bb, u) in enumerate(prs): e(f"v_pk_fma_f32 {V(tb+2*i,2)}, {V(a,2)}, {V(a,2)}, v[8:9]")
        for i, (a, bb, u) in enumerate(prs): e(f"v_pk_mul_f32 {V(tb+2*i,2)}, {V(tb+2*i,2)}, {V(a,2)} neg_lo:[0,1] neg_hi:[0,1]")
        for i in range(2*n): e(f"v_exp_f32 v{tb+i}, v{tb+i}")
        for i in range(n): e(f"v_pk_fma_f32 {V(tb+2*i,2)}, {V(tb+2*i,2)}, s[62:63], s[62:63]")
        for i in range(2*n): e(f"v_rcp_f32 v{tb+i}, v{tb+i}")
        for i, (a, bb, u) in enumerate(prs): e(f"v_pk_mul_f32 {V(a,2)}, {V(a,2)}, {V(tb+2*i,2)}")
        for i, (a, bb, u) in enumerate(prs): e(f"v_cvt_pk_bf16_f32 v{out+i}, v{a}, v{a+1}")
    ocnt = [0]
    def outreg():
        r = T + (ocnt[0] % 4) * 4; ocnt[0] += 1
        return r
    for u in range(4):
        for a3 in range(3):
            o = outreg()
            gelu([(u, 2+2*a3), (u, 3+2*a3)], o)
            e(f"buffer_store_dwordx4 {V(o,4)}, v6, s[24:27], s48 offen offset:{a3*1024} {ST_H}")
            if u == 0 and a3 == 0:
                e(f"ds_write_b128 v14, {V(KA_,4)}")
                e(f"ds_write_b128 v14, {V(KA_+4,4)} offset:1024")
            if u == 0 and a3 == 1:
                e("s_waitcnt lgkmcnt(0)")
                e("s_barrier")
                for w in range(4): e(f"ds_read_b128 {V(KA_+4*w,4)}, v15 offset:{w*2048}")
        if u & 1:
            o = outreg()
            gelu([(u-1, 8), (u, 8)], o)
            e(f"s_sub_u32 s49, s48, {OH_TILE}")
            e(f"buffer_store_dwordx2 {V(o,2)}, v7, s[24:27], s49 offen offset:3072 {ST_H}")
            e(f"buffer_store_dwordx2 {V(o+2,2)}, v7, s[24:27], s48 offen offset:3072 {ST_H}")
        if u < 3: e(f"s_add_u32 s48, s48, {OH_TILE}")
        if u == 0:
            e("s_cmp_ge_u32 s40, 2")
            e("s_cbranch_scc1 L1_kvd")
            e("s_waitcnt lgkmcnt(0)")
            for r in range(2):
                e(f"v_pk_add_f32 {V(KA_+2*r,2)}, {V(KA_+2*r,2)}, {V(KA_+4+2*r,2)}")
                e(f"v_pk_add_f32 {V(KA_+8+2*r,2)}, {V(KA_+8+2*r,2)}, {V(KA_+12+2*r,2)}")
            for r in range(2): e(f"v_pk_add_f32 {V(KA_+2*r,2)}, {V(KA_+2*r,2)}, {V(KA_+8+2*r,2)}")
            e(f"v_cvt_pk_bf16_f32 v{KA_+4}, v{KA_}, v{KA_+1}")
            e(f"v_cvt_pk_bf16_f32 v{KA_+5}, v{KA_+2}, v{KA_+3}")
            e("s_lshr_b32 s38, s37, 1")
            e("s_lshl_b32 s38, s38, 12")
            e(f"s_add_u32 s38, s38, {hex(KV)}")
            e("s_and_b32 s39, s37, 1")
            e("s_cmp_eq_u32 s36, 0")
            e("s_cbranch_scc0 L1_kvv")
            e("v_lshrrev_b32 v11, 1, v4")
            e("v_and_b32 v10, 1, v4")
            e("v_lshlrev_b32 v11, 10, v11")
            e("v_lshl_add_u32 v11, v10, 9, v11")
            e("v_lshl_add_u32 v11, v3, 4, v11")
            e("s_lshl_b32 s39, s39, 8")
            e("s_add_u32 s38, s38, s39")
            e("s_lshl_b32 s39, s40, 3")
            e("s_add_u32 s38, s38, s39")
            e(f"buffer_store_dwordx2 {V(KA_+4,2)}, v11, s[24:27], s38 offen {ST_Q}")
            e("s_branch L1_kvd")
            e.label("L1_kvv")
            e("v_bfe_u32 v10, v3, 2, 1")
            e("v_lshlrev_b32 v11, 9, v10")
            e("v_lshl_add_u32 v11, v4, 6, v11")
            e("v_lshrrev_b32 v10, 3, v3")
            e("v_lshl_add_u32 v11, v10, 3, v11")
            e("v_and_b32 v10, 3, v3")
            e("v_lshl_add_u32 v11, v10, 1, v11")
            e("s_lshl_b32 s39, s39, 10")
            e("s_add_u32 s38, s38, s39")
            e("s_lshl_b32 s39, s40, 8")
            e("s_add_u32 s38, s38, s39")
            for r in range(4):
                op = "buffer_store_short" if r % 2 == 0 else "buffer_store_short_d16_hi"
                e(f"{op} v{KA_+4+(r>>1)}, v11, s[24:27], s38 offen offset:{2048+r*16} {ST_Q}")
            e.label("L1_kvd")
    stamp(e, 3)
    if LOOPST: e("v_mov_b32 v3, v2")
    stamp_flush(e, 1, 9)
    loopstamp_flush(e, "v3", 1)
    e.label("L1_end")
    e("s_endpgm")
    if MERGE and PUBPF:
        e.label("L1_pub")
        if PUBPF:
            for x in code_srd(28, "L1_tail", back=True): e(x)
            e("v_lshlrev_b32 v220, 7, v1")
            e("buffer_load_dword v221, v220, s[28:31], 0 offen")
            e("s_bitcmp1_b32 s2, 6")
            e("s_cselect_b32 s28, s34, s32")
            e("s_cselect_b32 s29, s35, s33")
            e("s_and_b32 s29, s29, 0xffff")
            e("s_mov_b32 s30, 0x10000")
            e("s_bfe_u32 s47, s2, 0x30003")
            e("s_lshl_b32 s47, s47, 13")
            e("buffer_load_dword v221, v220, s[28:31], s47 offen")
        e("s_nop 3")
        e("s_branch L1_nb")
    DROPE = os.environ.get("DROPE", "")
    if DROPE:
        k0 = [k for k, i in enumerate(e.ins) if i.text == "L1_epi:"][0]
        k1 = [k for k, i in enumerate(e.ins) if "s_memtime s[78:79]" in i.text][0]
        e.ins = e.ins[:k0] + [i for i in e.ins[k0:k1] if not any(i.text.startswith(d) for d in DROPE.split(","))] + e.ins[k1:]
    epi = fix(e.ins, pre=body)
    ins = pre + [Ins(".p2align 6")] + body + epi
    return name, kernel_text(name, ins, 256+NAG, 256), (256, 256, lds)
```

```python
from common import *

LA2 = int(os.environ.get('LA2', '0'))
PRIO_A = int(os.environ.get('PRIO_A', '1'))
PRIO_G = int(os.environ.get('PRIO_G', '0'))
STP = os.environ.get('STP', 'sc1')
TOUCH = int(os.environ.get('TOUCH', '1'))
PRE0 = int(os.environ.get('PRE0', '2'))
GMAP = int(os.environ.get('GMAP', '1'))
XT = int(os.environ.get('XT', '1'))
LSA = int(os.environ.get('LSA', '1'))
APOS = eval(os.environ.get('APOS', '[0, 32, 64, 96, 128]'))
WOIT = int(os.environ.get('WOIT', '3'))
PRIO_T = int(os.environ.get('PRIO_T', '0'))
PRIO_T2 = eval(os.environ.get('PRIO_T2', '0'))
PSLEEP = int(os.environ.get('PSLEEP', '4'))
WOT2 = int(os.environ.get('WOT2', '-1'))
XROT = int(os.environ.get('XROT', '1'))
OINQ = int(os.environ.get('OINQ', '0'))
ABAR = int(os.environ.get('ABAR', '0'))
GV = int(os.environ.get('GV', '2'))
WSEG = 32768
WBASE = 65536

def gen():
    name = "attn_kernel"
    lds = WBASE + 3 * WSEG
    NV = 240
    p = Prog()
    p("s_cmp_ge_u32 s2, 256")
    p("s_cbranch_scc1 L2_end")
    stamp(p, 0)
    p(f"s_load_dwordx2 s[6:7], s[0:1], {KA['ws']}")
    p(f"s_load_dwordx2 s[4:5], s[0:1], {KA['wo']}")
    p(f"s_load_dwordx4 s[8:11], s[0:1], {KA['w2']}")
    p(f"s_load_dwordx2 s[32:33], s[0:1], {KA['x']}")
    p(f"s_load_dwordx2 s[34:35], s[0:1], {KA['out']}")
    p("v_and_b32 v1, 63, v0")
    p("v_lshrrev_b32 v2, 6, v0")
    p("v_readfirstlane_b32 s40, v2")
    p("v_lshlrev_b32 v5, 4, v1")
    p("s_cmp_ge_u32 s40, 4")
    p("s_cbranch_scc1 L2_gemm")
    head = fix(p.ins)

    Q = {0: 16, 1: 24}; C = {0: 32, 1: 48}; Sx = {0: 64, 1: 80}; P = {0: 96, 1: 104}
    O = {0: 112, 1: 128}; L = {0: 144, 1: 148}; SEL = 152
    KF = {0: 156, 1: 164}; VF = {0: 172, 1: 180}; T = 188; IDX = 200
    p = Prog()
    if PRIO_A: p(f"s_setprio {PRIO_A}")
    p("s_and_b32 s41, s2, 7")
    p("s_lshl_b32 s41, s41, 3")
    p("s_lshr_b32 s42, s2, 5")
    p("s_add_u32 s41, s41, s42")
    p("s_bfe_u32 s42, s2, 0x20003")
    p("s_lshl_b32 s42, s42, 3")
    p("s_lshl_b32 s43, s40, 1")
    p("s_add_u32 s42, s42, s43")
    p("v_and_b32 v3, 15, v1")
    p("v_lshlrev_b32 v3, 4, v3")
    p("v_lshrrev_b32 v4, 5, v1")
    p("v_lshl_add_u32 v3, v4, 8, v3")
    p("v_bfe_u32 v4, v1, 4, 1")
    p("v_lshl_add_u32 v6, v4, 15, v3")
    p("s_lshl_b32 s45, s41, 16")
    p("s_lshl_b32 s46, s42, 10")
    p("s_add_u32 s45, s45, s46")
    p(f"s_add_u32 s45, s45, {hex(Q_F)}")
    p("s_waitcnt lgkmcnt(0)")
    srd(p, 24, 6, WS_SIZE)
    for x in range(2):
        for mf in range(2):
            p(f"buffer_load_dwordx4 {V(Q[x]+4*mf,4)}, v6, s[24:27], s45 offen offset:{x*1024+mf*512}")
    srd(p, 12, 6, 262144, KV)
    if TOUCH:
        p("v_lshlrev_b32 v12, 7, v1")
        p("s_lshr_b32 s48, s2, 3")
        p("s_lshl_b32 s48, s48, 13")
    srd(p, 28, 4, 1024*1024*2)
    p("s_lshl_b32 s49, s2, 13")
    for x in code_srd(16, "L2_gtail"): p(x)
    p("s_sub_u32 s51, s40, 1")
    p("s_lshl_b32 s51, s51, 13")
    p("s_cmp_eq_u32 s40, 0")
    p("s_cselect_b32 s16, s28, s16")
    p("s_cselect_b32 s17, s29, s17")
    p("s_cselect_b32 s18, s30, s18")
    p("s_cselect_b32 s51, s49, s51")
    p("s_lshr_b32 s50, s2, 4")
    p("s_lshl_b32 s50, s50, 7")
    p("s_bfe_u32 s52, s2, 0x10003")
    p("s_lshl_b32 s52, s52, 2")
    p("s_add_u32 s52, s52, s40")
    p("s_lshl_b32 s52, s52, 17")
    p("s_add_u32 s50, s50, s52")
    p("s_add_u32 s50, s50, 0x100000")
    p("v_lshlrev_b32 v15, 11, v1")
    p("s_lshl_b32 s53, s41, 7")
    p("s_lshl_b32 s54, s42, 1")
    p("s_add_u32 s53, s53, s54")
    p(f"s_add_u32 s53, s53, {hex(FLG)}")
    if OINQ:
        p("v_mov_b32 v7, v6")
        p("s_mov_b32 s47, s45")
    else:
        p(f"s_mov_b32 s44, {OH_TILE}")
        p("v_mul_lo_u32 v7, v4, s44")
        p("v_add_u32 v7, v7, v3")
        p(f"s_mul_i32 s47, s41, {2*OH_TILE}")
        p("s_add_u32 s47, s47, s46")
        p(f"s_add_u32 s47, s47, {hex(OH_F)}")
    p("v_and_b32 v8, 4, v1")
    p("v_cmp_eq_u32 vcc, 0, v8")
    p("v_mov_b32 v9, 0x3f803f80")
    p("v_mov_b32 v8, 0")
    for r in range(2): p(f"v_cndmask_b32 v{SEL+r}, v8, v9, vcc")
    for r in range(2): p(f"v_cndmask_b32 v{SEL+2+r}, v9, v8, vcc")
    p("v_and_b32 v8, 1, v1")
    p("v_mul_u32_u24 v8, 0xaaaa, v8")
    p(f"v_add_u32 v{IDX}, 0x4444, v8")
    for x in range(2):
        for r in range(16): p(f"v_mov_b32 v{O[x]+r}, 0")
        for r in range(4): p(f"v_mov_b32 v{L[x]+r}, 0")
    for r in range(8):
        p(f"v_mov_b32 v{P[1]+r}, 0")
        p(f"v_mov_b32 v{VF[1]+r}, 0")
    p("v_mov_b32 v10, v5")
    p("v_add_u32 v11, 0x8000, v5")
    p("s_barrier")
    stamp(p, 1)
    def rdK(buf, addr, tile): return [f"ds_read_b128 {V(KF[buf]+4*m,4)}, v{addr} offset:{tile*4096+m*1024}" for m in range(2)]
    def rdV(buf, addr, tile): return [f"ds_read_b128 {V(VF[buf]+4*m,4)}, v{addr} offset:{tile*4096+2048+m*1024}" for m in range(2)]
    def QK(x, buf, c=None):
        cc = V(C[x],16) if c is None else c
        return [M32(V(Sx[x],16), V(KF[buf],4), V(Q[x],4), cc), M32(V(Sx[x],16), V(KF[buf]+4,4), V(Q[x]+4,4))]
    def PV(x, buf):
        return [M32(V(O[x],16), V(VF[buf],4), V(P[x],4)), M32(V(O[x],16), V(VF[buf]+4,4), V(P[x]+4,4))]
    def SUM(x):
        return [f"v_smfmac_f32_16x16x64_bf16 {V(L[x],4)}, {V(SEL,4)}, {V(P[x],8)}, v{IDX}"]
    def rowmax(q, x, dst, init=None):
        s = Sx[x]
        if init is None:
            q(f"v_max3_f32 v{dst}, v{s}, v{s+1}, v{s+2}")
            q(f"v_max_f32 v{dst}, v{dst}, v{s+3}")
            st = 4
        else: st = 0
        for i in range(st, 16, 2): q(f"v_max3_f32 v{dst}, v{dst}, v{s+i}, v{s+i+1}")
    def setC(q, x, src):
        q(f"v_mov_b32 v{T+8}, v{src}")
        q(f"v_permlane32_swap_b32 v{src}, v{T+8}")
        q(f"v_max_f32 v{src}, v{src}, v{T+8}")
        for r in range(16): q(f"v_sub_f32 v{C[x]+r}, 0, v{src}")
    for x in rdK(0, 10, 0): p(x)
    p("s_waitcnt vmcnt(0) lgkmcnt(0)")
    if TOUCH == 1:
        p("s_cmp_eq_u32 s40, 0")
        p("s_cbranch_scc0 L2_notouch")
        p("buffer_load_dword v13, v12, s[12:15], s48 offen")
        p.label("L2_notouch")
    for x in range(2):
        for m in QK(x, 0, "0"): p(m)
    for x in range(2):
        rowmax(p, x, T+x)
        setC(p, x, T+x)
    for m in QK(0, 0): p(m)
    p("s_mov_b32 s59, 0")
    if LOOPST: p("s_mov_b32 s71, 0")
    loopstamp(p, "v14", "v201")
    p("s_nop 15")
    if os.environ.get("GONLY") == "1":
        for i in range(15): p("s_barrier")
        p("s_endpgm")
    pre = fix(p.ins, pre=head)
    b = Prog()
    b.label("L2_loop")
    def valu(x):
        v = []
        for i in range(8):
            v += [f"v_exp_f32 v{Sx[x]+2*i}, v{Sx[x]+2*i}", f"v_exp_f32 v{Sx[x]+2*i+1}, v{Sx[x]+2*i+1}"]
            if i >= 1: v.append(f"v_cvt_pk_bf16_f32 v{P[x]+i-1}, v{Sx[x]+2*i-2}, v{Sx[x]+2*i-1}")
        v.append(f"v_cvt_pk_bf16_f32 v{P[x]+7}, v{Sx[x]+14}, v{Sx[x]+15}")
        return v
    def phase(x, mf, extra):
        v = valu(x)
        pos = APOS
        out = []; cum = 0; mi = 0
        for ins in v:
            while mi < 5 and cum >= pos[mi]:
                out += extra.get(("pre", mi), [])
                out.append(mf[mi]); out += extra.get(mi, []); mi += 1
            out.append(ins); cum += 8 if "exp" in ins else 4
        assert mi == 5
        return out
    for t in range(8):
        kb = t & 1
        nk = rdK(kb^1, 10, t+1) if t < 7 else rdK(kb^1, 11, 0)
        nv = rdV(kb, 10, t)
        ex = {0: [nk[0]], 1: [nk[1]], 2: [nv[0]], 3: [nv[1]]}
        for x in phase(0, QK(1, kb) + PV(1, kb^1) + SUM(1), ex): b(x)
        ex = {("pre", 0): ["s_waitcnt lgkmcnt(0)"]}
        LS = loopstamp_list("v14", "v201") if LSA else []
        if t == 2: ex[4] = LS + ["s_barrier"] + LS
        if t == 3: ex[4] = [f"s_cmp_eq_u32 s59, {WOIT}", "s_cbranch_scc0 L2_noxt", "buffer_load_dword v13, v12, s[16:19], s51 offen", "L2_noxt:"]
        if t == 5 and WOT2 >= 0: ex[4] = [f"s_cmp_eq_u32 s59, {WOT2}", "s_cbranch_scc0 L2_noxt2", "buffer_load_dword v13, v15, s[28:31], s50 offen", "L2_noxt2:"]
        if t == 6: ex[4] = ["s_cmp_eq_u32 s59, 7", "s_cbranch_scc1 L2_nobar"] + LS + ["s_barrier"] + LS + ["L2_nobar:"]
        if t == 7:
            ex[1] = ["v_xor_b32 v10, 0x8000, v10"]
            ex[2] = ["v_xor_b32 v11, 0x8000, v11"]
            ex[4] = ["s_add_u32 s59, s59, 1", "s_cmp_lt_u32 s59, 8"]
        for x in phase(1, QK(0, kb^1) + PV(0, kb) + SUM(0), ex): b(x)
    b("s_cbranch_scc1 L2_loop")
    rep = []
    body = fix(b.ins, pre=pre, report=rep)
    if rep: print("attn loop nops:", len(rep), rep[:5])
    assert not check_loop(body)
    e = Prog()
    stamp(e, 2)
    for m in PV(1, 1) + SUM(1): e(m)
    e("s_mov_b32 s60, 0")
    e.label("L2_fin")
    e("s_nop 15")
    for x in range(2): e(f"v_add_f32 v{L[x]}, v{L[x]}, v{L[x]+1}")
    e(f"s_mov_b32 s61, {f32(2.0**40)}")
    e(f"v_cmp_gt_f32 vcc, s61, v{L[0]}")
    e(f"v_cmp_gt_f32 s[62:63], s61, v{L[1]}")
    e("s_and_b64 vcc, vcc, s[62:63]")
    e("s_cmp_eq_u64 vcc, -1")
    e("s_cbranch_scc1 L2_store")
    e("s_cmp_eq_u32 s60, 0")
    e("s_cbranch_scc1 L2_slow")
    e.label("L2_store")
    for x in range(2):
        e(f"v_rcp_f32 v{T+x}, v{L[x]}")
    for x in range(2):
        for r in range(16): e(f"v_mul_f32 v{O[x]+r}, v{O[x]+r}, v{T+x}")
        for hh in range(2):
            o = P[x] + 4*hh
            src = [4*hh, 4*hh+2, 8+4*hh, 8+4*hh+2]
            for i, sr in enumerate(src): e(f"v_cvt_pk_bf16_f32 v{o+i}, v{O[x]+sr}, v{O[x]+sr+1}")
            e(f"buffer_store_dwordx4 {V(o,4)}, v7, s[24:27], s47 offen offset:{x*1024+hh*512} sc1")
    e("v_mov_b32 v8, 1")
    e("v_mov_b32 v9, 0")
    stamp(e, 3)
    e("s_waitcnt vmcnt(0)")
    e("s_mov_b64 exec, 1")
    e("buffer_store_dword v8, v9, s[24:27], s53 offen sc1")
    e("s_mov_b64 exec, -1")
    if ABAR: e("s_barrier")
    stamp_flush(e, 2, 5)
    loopstamp_flush(e, "v14", 2)
    e.label("L2_end")
    e("s_endpgm")
    e.label("L2_slow")
    e("s_mov_b32 s60, 1")
    e(f"v_mov_b32 v{T}, 0xff800000")
    e(f"v_mov_b32 v{T+1}, 0xff800000")
    e("s_mov_b32 s52, 0")
    e.label("L2_s1")
    for m in range(2): e(f"buffer_load_dwordx4 {V(KF[0]+4*m,4)}, v5, s[12:15], s52 offen offset:{m*1024}")
    e("s_waitcnt vmcnt(0)")
    for x in range(2):
        for m in QK(x, 0, "0"): e(m)
    e("s_nop 15")
    for x in range(2): rowmax(e, x, T+x, init=True)
    e("s_add_u32 s52, s52, 4096")
    e("s_cmp_lt_u32 s52, 0x40000")
    e("s_cbranch_scc1 L2_s1")
    for x in range(2):
        setC(e, x, T+x)
        for r in range(16): e(f"v_mov_b32 v{O[x]+r}, 0")
        for r in range(4): e(f"v_mov_b32 v{L[x]+r}, 0")
    e("s_mov_b32 s52, 0")
    e.label("L2_s2")
    for m in range(2): e(f"buffer_load_dwordx4 {V(KF[0]+4*m,4)}, v5, s[12:15], s52 offen offset:{m*1024}")
    for m in range(2): e(f"buffer_load_dwordx4 {V(VF[0]+4*m,4)}, v5, s[12:15], s52 offen offset:{2048+m*1024}")
    e("s_waitcnt vmcnt(0)")
    for x in range(2):
        for m in QK(x, 0): e(m)
    e("s_nop 15")
    for x in range(2):
        for v in valu(x): e(v)
    e("s_nop 3")
    for x in range(2):
        for m in PV(x, 0) + SUM(x): e(m)
    e("s_nop 15")
    e("s_add_u32 s52, s52, 4096")
    e("s_cmp_lt_u32 s52, 0x40000")
    e("s_cbranch_scc1 L2_s2")
    e("s_branch L2_fin")
    epi = fix(e.ins, pre=body)
    att = pre + [Ins(".p2align 6")] + body + epi

    ACC = 16
    def acc(u, t): return ACC + (u*8+t)*4
    XR = 80
    def XF(sg, kb, u): return XR + ((sg*4+kb)*2+u)*4
    WB = 144
    def WF(f, t): return WB + f*32 + t*4
    TG = 208
    p = Prog()
    p.label("L2_gemm")
    if PRIO_G: p(f"s_setprio {PRIO_G}")
    p("s_sub_u32 s40, s40, 4")
    p("s_lshl_b32 s50, s40, 12")
    p("s_mov_b32 s51, s50")
    if GMAP == 0:
        p("s_and_b32 s41, s2, 3")
        p("s_lshl_b32 s41, s41, 2")
        p("s_bfe_u32 s43, s2, 0x20003")
        p("s_add_u32 s41, s41, s43")
        p("s_bfe_u32 s44, s2, 0x10002")
        p("s_lshr_b32 s42, s2, 5")
        p("s_add_u32 s66, s42, s43")
    else:
        p("s_and_b32 s41, s2, 7")
        p("s_lshl_b32 s41, s41, 1")
        p("s_bfe_u32 s43, s2, 0x10003")
        p("s_add_u32 s41, s41, s43")
        p("s_bfe_u32 s44, s2, 0x10004")
        p("s_lshr_b32 s42, s2, 5")
        p("s_add_u32 s66, s42, s43")
        p("s_bfe_u32 s43, s2, 0x20003")
    p("v_and_b32 v13, 3, v1")
    p("v_lshlrev_b32 v13, 4, v13")
    p("v_lshrrev_b32 v14, 4, v1")
    p("s_lshl_b32 s47, s44, 1")
    p("v_xor_b32 v14, s47, v14")
    p("v_lshl_add_u32 v13, v14, 6, v13")
    p("v_bfe_u32 v14, v1, 2, 2")
    p("v_lshl_add_u32 v8, v14, 11, v13")
    p("s_lshl_b32 s47, s40, 16")
    p("v_add_u32 v8, s47, v8")
    p("v_xor_b32 v9, 32, v8")
    p("s_lshl_b32 s52, s40, 13")
    p(f"s_add_u32 s52, s52, {WBASE}")
    p(f"s_mul_i32 s65, s44, {1792*2048}")
    p("s_lshl_b32 s48, s42, 8")
    p("s_add_u32 s65, s65, s48")
    p(f"s_mul_i32 s63, s44, {56*1024}")
    p("s_add_u32 s63, s63, 0x8000")
    def kseg(q, nreg):
        q(f"s_add_u32 s68, {nreg}, {LA2}")
        if GMAP == 0: q(f"s_and_b32 s69, {nreg}, 3")
        else: q("s_sub_u32 s69, s68, 14")
        q("s_cmp_ge_u32 s68, 14")
        q("s_cselect_b32 s68, s69, s68")
        q(f"s_add_u32 s67, {nreg}, s66")
        q(f"s_and_b32 s67, s67, {3 if GMAP == 0 else 1}")
        q(f"s_cselect_b32 s67, {nreg}, s68")
        q("s_lshl_b32 s54, s67, 18")
        q("s_add_u32 s54, s54, s65")
        q("s_lshl_b32 s53, s67, 12")
        q("s_add_u32 s53, s53, s63")
    kseg(p, "0")
    p("s_mov_b32 s56, s52")
    p("s_waitcnt lgkmcnt(0)")
    srd(p, 12, 6, 262144, KV)
    p("s_movk_i32 s57, 0x2000")
    def wdma(q): return [f"s_add_u32 m0, s56, {q*1024}", ("s_mov_b32 s55, s54" if q == 0 else "s_add_u32 s55, s55, s57"), f"buffer_load_dwordx4 v{8+(q&1)}, s[16:19], s55 offen lds"]
    def kvdma(q): return ["s_mov_b32 m0, s51", "s_nop 0", f"buffer_load_dwordx4 v5, s[12:15], s50 offen offset:{q*1024} lds"]
    def kvadv(q):
        q("s_add_u32 s50, s50, 0x4000")
        q("s_add_u32 s51, s51, 0x4000")
        q("s_and_b32 s51, s51, 0xffff")
    def xld(sg, kb): return [f"buffer_load_dwordx4 {V(XF(sg,kb,u),4)}, v{6+u}, s[20:23], s53 offen offset:{kb*1024}" for u in range(2)]
    for q in range(4):
        for x in (kvdma(q) if q == 0 else kvdma(q)[2:]): p(x)
    kvadv(p)
    for q in range(4):
        for x in (kvdma(q) if q == 0 else kvdma(q)[2:]): p(x)
    kvadv(p)
    srd(p, 16, 8, 3584*1024*2)
    srd(p, 20, 6, 128*OH_TILE, OH_F)
    p("s_lshl_b32 s46, s41, 3")
    p("s_lshl_b32 s47, s40, 1")
    p("s_add_u32 s46, s46, s47")
    p(f"s_mul_i32 s47, s46, {OH_TILE}")
    p("v_add_u32 v6, s47, v5")
    p(f"v_add_u32 v7, {OH_TILE}, v6")
    srd(p, 36, 6, WS_SIZE)
    p("s_and_b32 s5, s5, 0xffff")
    p("v_and_b32 v3, 15, v1")
    p("v_lshrrev_b32 v4, 4, v1")
    p("v_lshlrev_b32 v12, 10, v4")
    p("v_bfe_u32 v13, v1, 2, 2")
    p("v_lshl_add_u32 v12, v13, 6, v12")
    p("v_and_b32 v13, 3, v1")
    p("v_lshl_add_u32 v12, v13, 3, v12")
    p("v_and_b32 v13, 1, v4")
    p("v_lshl_add_u32 v12, v13, 5, v12")
    p(f"v_add_u32 v12, {WBASE}, v12")
    p("v_xor_b32 v13, 32, v12")
    for i in range(32): p(f"v_mov_b64 {V(ACC+2*i,2)}, 0")
    p("s_lshl_b32 s45, s44, 7")
    p("s_add_u32 s45, s45, s48")
    p("s_lshr_b32 s30, s2, 4" if XROT else "s_mov_b32 s30, 0")
    p("s_add_u32 s62, s30, s40")
    p("s_lshl_b32 s62, s62, 17")
    p("s_and_b32 s62, s62, 0x1fffff")
    p("s_lshl_b32 s30, s30, 11")
    p("v_lshrrev_b32 v10, 5, v1")
    p("v_lshlrev_b32 v11, 1, v10")
    p("v_and_b32 v14, 3, v1")
    p("v_xor_b32 v11, v11, v14")
    p("v_lshlrev_b32 v11, 4, v11")
    p("v_bfe_u32 v14, v1, 4, 1")
    p("v_lshl_add_u32 v11, v14, 6, v11")
    p("v_bfe_u32 v14, v1, 2, 2")
    p("v_lshl_add_u32 v10, v10, 2, v14")
    p("v_lshl_add_u32 v10, v10, 11, v11")
    p("v_add_u32 v10, s45, v10")
    RRX = TG; RRB = TG + 16
    srd(p, 24, 32, 2048*1024*2)
    p("s_mov_b32 s28, s34")
    p("s_mov_b32 s29, s35")
    srd(p, 32, 10, 2048)
    p("v_and_b32 v15, 7, v1")
    p("v_lshlrev_b32 v15, 4, v15")
    p("v_lshrrev_b32 v14, 3, v1")
    p("v_lshl_add_u32 v14, v14, 11, v15")
    p("s_lshl_b32 s31, s46, 15")
    p("s_add_u32 s31, s31, s45")
    p("s_waitcnt vmcnt(4)")
    p("s_barrier")
    for q in range(8):
        for x in wdma(q): p(x)
    stamp(p, 1)
    for kb in range(4):
        for x in xld(0, kb): p(x)
    kseg(p, "1")
    p(f"s_add_u32 s56, s52, {WSEG}")
    for kb in range(PRE0):
        for x in wdma(2*kb) + wdma(2*kb+1) + kvdma(kb) + xld(1, kb): p(x)
    p(f"s_waitcnt vmcnt({8+5*PRE0})")
    p("s_barrier")
    def wreads(f, kb):
        return [f"ds_read_b64_tr_b16 {V(WF(f,t)+rho*2,2)}, v{12+(t&1)} offset:{kb*8192+rho*4096+(t>>1)*256}" for t in range(8) for rho in range(2)]
    def mfmas(f, sg, kb):
        return [M16(V(acc(u,t),4), V(WF(f,t),4), V(XF(sg,kb,u),4)) for t in range(8) for u in range(2)]
    for x in wreads(0, 0): p(x)
    for kb in range(PRE0, 4):
        for x in wdma(2*kb) + wdma(2*kb+1) + kvdma(kb) + xld(1, kb): p(x)
    p("s_mov_b32 s58, 0")
    p("s_mov_b32 s59, 2")
    p(f"s_mov_b32 s64, {2*WSEG}")
    sgc = [0]
    ool = Prog()
    def seg_early():
        return ["s_add_u32 s54, s54, 0x40000", "s_add_u32 s56, s52, s64", f"s_add_u32 s64, s64, {WSEG}", f"s_cmp_eq_u32 s64, {3*WSEG}", "s_cselect_b32 s64, 0, s64",
                "s_add_u32 s50, s50, 0x4000", "s_add_u32 s51, s51, 0x4000", "s_and_b32 s51, s51, 0xffff"]
    def seg_setup(q0, early=True):
        if early:
            for x in seg_early(): q0(x)
        q0("s_add_u32 s53, s53, 0x1000")
        sgc[0] += 1
        q0("s_add_u32 s59, s59, 1")
        q0("s_cmp_ge_u32 s59, 15")
        q0(f"s_cbranch_scc1 L2_so{sgc[0]}")
        q0(f"L2_sg{sgc[0]}:")
        q = ool
        q(f"L2_so{sgc[0]}:")
        q("s_mov_b32 s16, s4")
        q("s_mov_b32 s17, s5")
        q("s_mov_b32 s18, 0x200000")
        q("s_mov_b32 s54, s62")
        q("s_add_u32 s62, s62, 0x80000")
        q("s_and_b32 s62, s62, 0x1fffff")
        q("s_movk_i32 s57, 0x4000")
        q("s_mov_b32 s22, 0")
        q("s_setprio 2")
        q("v_mov_b32 v8, v10")
        q("v_mov_b32 v9, v10")
        q("s_setprio 0")
        q("s_cmp_ge_u32 s59, 16")
        q("s_cselect_b32 s51, 0x30000, s51")
        q(f"s_cbranch_scc1 L2_sg{sgc[0]}")
        for k in range(4):
            q(f"s_add_u32 s55, s31, {k*16384}")
            q(f"buffer_load_dwordx4 {V(RRX+4*k,4)}, v14, s[24:27], s55 offen")
        q(f"buffer_load_dwordx4 {V(RRB,4)}, v15, s[32:35], s45 offen")
        q(f"s_branch L2_sg{sgc[0]}")
    seg_setup(p)
    p("s_waitcnt vmcnt(20)")
    if LOOPST: p("s_mov_b32 s71, 0")
    loopstamp(p, "v2", "v11")
    gpre = fix(p.ins, pre=head)
    b = Prog()
    b.label("L2_gloop")
    for sg in range(2):
        for kb in range(4):
            f = kb & 1
            if kb < 3:
                b("s_waitcnt vmcnt(35) lgkmcnt(0)")
                rd = wreads(f^1, kb+1)
            else:
                rd = wreads(f^1, 0)
                if not LSA: loopstamp(b, "v2", "v11")
                b("s_waitcnt vmcnt(17) lgkmcnt(0)")
                if not LSA: loopstamp(b, "v2", "v11")
                b("s_barrier")
            fill = [(i // 2, x) for i, x in enumerate(rd)]
            for q, ps in ((2*kb, 8), (2*kb+1, 10)):
                wd = wdma(q)
                fill += [(ps, wd[0]), (ps, wd[1]), (ps+1, wd[2])]
            kd = kvdma(kb)
            fill += [(12, kd[0]), (13, kd[2])]
            if kb == 2:
                fill += [(12, f"s_add_u32 s60, s58, {WSEG}"), (12, f"s_cmp_eq_u32 s60, {3*WSEG}"), (12, "s_cselect_b32 s60, 0, s60"),
                         (13, "s_sub_u32 s61, s60, s58"), (13, "s_mov_b32 s58, s60"),
                         (14, "s_setprio 2"), (14, "v_add_u32 v12, s61, v12"), (14, "v_add_u32 v13, s61, v13"), (14, "s_setprio 0")]
            if kb == 3:
                se = seg_early()
                fill += [(12, se[0]), (12, se[1]), (13, se[2]), (13, se[3]), (13, se[4]), (14, se[5]), (14, se[6]), (14, se[7])]
            fill += [(15, x) for x in xld(sg, kb)]
            for x in interleave(mfmas(f, sg, kb), fill):
                if os.environ.get("NOGMFMA") == "1" and "mfma" in x: continue
                b(x)
        seg_setup(b, early=False)
    b("s_cmp_lt_u32 s59, 17")
    b("s_cbranch_scc1 L2_gloop")
    rep = []
    gbody = fix(b.ins, pre=gpre, report=rep)
    if rep: print("gemm loop nops:", len(rep), rep[:5])
    assert not check_loop(gbody)
    e = Prog()
    stamp(e, 2)
    e.label("L2_gtail")
    if PRIO_T: e(f"s_setprio {PRIO_T}")
    for q in range(8):
        for x in wdma(q): e(x)
    e("s_mov_b32 s54, s62")
    e("s_lshl_b32 s56, s40, 13")
    for q in range(8):
        for x in wdma(q): e(x)
    e("s_lshl_b32 s47, s41, 3")
    e("s_add_u32 s47, s47, s42")
    e("s_lshl_b32 s47, s47, 1")
    e("s_add_u32 s47, s47, s44")
    e("s_xor_b32 s49, s47, 1")
    e("s_lshl_b32 s50, s47, 2")
    e("s_add_u32 s50, s50, s40")
    e("s_lshl_b32 s50, s50, 12")
    e(f"s_add_u32 s50, s50, {hex(XN_F if OINQ else PART)}")
    e("s_waitcnt lgkmcnt(0)")
    for u in range(2):
        for tp in range(2):
            o = WB + (u*2+tp)*4
            for h in range(2):
                t = 4 + 2*tp + h
                e(f"v_cvt_pk_bf16_f32 v{o+2*h}, v{acc(u,t)}, v{acc(u,t)+1}")
                e(f"v_cvt_pk_bf16_f32 v{o+2*h+1}, v{acc(u,t)+2}, v{acc(u,t)+3}")
    for k in range(4):
        e(f"buffer_store_dwordx4 {V(WB+4*k,4)}, v5, s[36:39], s50 offen offset:{k*1024} sc1")
    e("s_lshl_b32 s47, s47, 7")
    e("s_lshl_b32 s55, s40, 2")
    e("s_add_u32 s47, s47, s55")
    e(f"s_add_u32 s47, s47, {hex(FLG+0x4000)}")
    e("s_lshl_b32 s53, s49, 7")
    e("s_add_u32 s53, s53, s55")
    e(f"s_add_u32 s53, s53, {hex(FLG+0x4000)}")
    e("s_lshl_b32 s50, s49, 2")
    e("s_add_u32 s50, s50, s40")
    e("s_lshl_b32 s50, s50, 12")
    e(f"s_add_u32 s50, s50, {hex(XN_F if OINQ else PART)}")
    e("v_mov_b32 v8, 1")
    e("v_mov_b32 v9, 0")
    e("s_waitcnt vmcnt(0) lgkmcnt(0)")
    e("s_mov_b64 exec, 1")
    e("buffer_store_dword v8, v9, s[36:39], s47 offen sc1")
    e("s_mov_b64 exec, -1")
    stamp(e, 3)
    if PRIO_T2 is not None: e(f"s_setprio {PRIO_T2}")
    e("v_lshlrev_b32 v12, 9, v4")
    e("v_bfe_u32 v13, v1, 2, 2")
    e("v_lshl_add_u32 v12, v13, 6, v12")
    e("v_and_b32 v13, 3, v1")
    e("v_lshl_add_u32 v12, v13, 3, v12")
    e("v_and_b32 v13, 1, v4")
    e("v_lshl_add_u32 v12, v13, 5, v12")
    QB = [WBASE + 2*WSEG, WBASE, WBASE + WSEG, 0]
    e(f"v_add_u32 v12, {QB[0]}, v12")
    e("v_xor_b32 v13, 32, v12")
    def WF3(f, t): return WB + f*16 + t*4
    def wr3(b_): return [f"ds_read_b64_tr_b16 {V(WF3(b_%3,t)+rho*2,2)}, v{12+(t&1)} offset:{(b_&7)*4096+rho*2048+(t>>1)*256}" for t in range(4) for rho in range(2)]
    def poll(lbl, vaddr, soff, need_mask):
        e("s_mov_b32 s58, 0")
        e.label(lbl)
        e(f"buffer_load_dword v10, {vaddr}, s[36:39], {soff} offen sc1")
        e("s_add_u32 s58, s58, 1")
        e("s_waitcnt vmcnt(0)")
        e("v_cmp_eq_u32 vcc, 1, v10")
        e("s_cmp_eq_u64 vcc, -1")
        e(f"s_cbranch_scc1 {lbl}_ok")
        e(f"s_sleep {PSLEEP}")
        e("s_cmp_lt_u32 s58, 0x100000")
        e(f"s_cbranch_scc1 {lbl}")
        e.label(lbl + "_ok")
    PRW = acc(1, 4)
    def SUMR(i): return (acc(0, 4) + i) if i < 16 else (WB + 48 + i - 16)
    TT = TG + 20
    for i in range(4):
        e(f"v_lshlrev_b32 v{TT+2*i}, 16, v{RRB+i}")
        e(f"v_and_b32 v{TT+2*i+1}, 0xffff0000, v{RRB+i}")
    for i in range(16):
        e(f"v_lshlrev_b32 v{SUMR(2*i)}, 16, v{RRX+i}")
        e(f"v_and_b32 v{SUMR(2*i)+1}, 0xffff0000, v{RRX+i}")
        e(f"v_pk_add_f32 {V(SUMR(2*i),2)}, {V(SUMR(2*i),2)}, {V(TT+2*(i&3),2)}")
    if OINQ:
        srd(e, 20, 6, 0x400000, Q_F)
        e("s_lshl_b32 s55, s46, 15")
        e("v_add_u32 v6, s55, v5")
        e("v_add_u32 v7, 0x8000, v6")
    else:
        e(f"s_mov_b32 s22, {128*OH_TILE}")
    e("s_lshl_b32 s55, s41, 2")
    e("s_add_u32 s55, s55, s40")
    e("s_lshl_b32 s55, s55, 7")
    e(f"s_add_u32 s55, s55, {hex(FLG)}")
    e("v_lshlrev_b32 v11, 2, v3")
    e("v_add_u32 v11, s55, v11")
    e("v_mov_b32 v10, s53")
    e("v_cmp_gt_u32 vcc, 32, v1")
    e("v_cndmask_b32 v11, v10, v11, vcc")
    srd(e, 24, 28, 2048*1024*2)
    e("s_barrier")
    stamp(e, 4)
    for x in wr3(0) + wr3(1): e(x)
    poll("L2_po", "v11", "0", None)
    stamp(e, 5)
    LAB = 8
    def XF3(b_, u): return XR + ((b_ % LAB)*2+u)*4
    def xop(b_):
        L_ = []
        if (b_ & 1) == 0: L_ += [f"s_add_u32 s53, s30, {b_*1024}", "s_and_b32 s53, s53, 0x7fff"]
        L_ += [f"buffer_load_dwordx4 {V(XF3(b_,u),4)}, v{6+u}, s[20:23], s53 offen offset:{(b_&1)*1024} sc1" for u in range(2)]
        return L_
    for b_ in range(LAB-1):
        for x in xop(b_): e(x)
    ad = ["v_xor_b32 v8, v3, v4", "v_lshlrev_b32 v8, 4, v8", "v_lshl_add_u32 v8, v3, 8, v8", "s_lshl_b32 s56, s40, 13", "s_add_u32 s56, s56, 0x8000",
          "v_add_u32 v8, s56, v8", "v_xor_b32 v9, 64, v8", "v_xor_b32 v10, 0x80, v8", "v_xor_b32 v11, 0xc0, v8"]
    for x in ad: e(x)
    NBK = 32
    PB = 8
    def padd(u, i):
        tt = TT + 2*(i & 3)
        return [f"v_lshlrev_b32 v{tt}, 16, v{PRW+u*8+i}", f"v_and_b32 v{tt+1}, 0xffff0000, v{PRW+u*8+i}",
                f"v_add_f32 v{acc(u,0)+2*i}, v{acc(u,0)+2*i}, v{tt}", f"v_add_f32 v{acc(u,0)+2*i+1}, v{acc(u,0)+2*i+1}, v{tt+1}"]
    issued = [("x", b_) for b_ in range(LAB-1) for u in range(2)]
    for b_ in range(NBK):
        last = max(k for k, t in enumerate(issued) if t == ("x", b_))
        if b_ in (22, 23): last = max(last, issued.index(("p", 3)))
        e(f"s_waitcnt vmcnt({len(issued)-1-last}) lgkmcnt({8 if b_ < NBK-1 else 0})")
        if (b_ + 2) % 8 == 0 and b_ + 2 < NBK:
            d = QB[(b_+2)//8] - QB[(b_+2)//8 - 1]
            e(f"v_add_u32 v12, {d & 0xffffffff:#x}, v12")
            e(f"v_add_u32 v13, {d & 0xffffffff:#x}, v13")
        rd = wr3(b_+2) if b_ + 2 < NBK else []
        mf = [M16(V(acc(u,t),4), V(WF3(b_%3,t),4), V(XF3(b_,u),4)) for t in range(4) for u in range(2)]
        for i, m in enumerate(mf):
            e(m)
            for x in rd[i:i+1]: e(x)
            nb_ = b_ + LAB - 1
            if nb_ < NBK:
                xo = xop(nb_)
                if i == 0: [e(x) for x in xo[:-2]]
                if i == 1: e(xo[-2]); issued.append(("x", nb_))
                if i == 4: e(xo[-1]); issued.append(("x", nb_))
            if i == 6 and PB <= b_ < PB + 4:
                k = b_ - PB
                e(f"buffer_load_dwordx4 {V(PRW+4*k,4)}, v5, s[36:39], s50 offen offset:{k*1024} sc1")
                issued.append(("p", k))
            if b_ in (22, 23):
                m_ = (i + 5) % 8
                for x in padd(m_ & 1, 2*(m_ >> 1) + (b_ & 1)): e(x)
    stamp(e, 6)
    e("v_lshrrev_b32 v6, 3, v1")
    e("v_and_b32 v7, 7, v1")
    e("v_lshlrev_b32 v7, 1, v7")
    e("v_xor_b32 v7, v7, v6")
    e("v_lshlrev_b32 v7, 4, v7")
    e("v_lshl_add_u32 v6, v6, 8, v7")
    e("v_add_u32 v6, s56, v6")
    e("v_xor_b32 v7, 16, v6")
    e("v_xor_b32 v12, 0x80, v6")
    e("v_xor_b32 v13, 0x90, v6")
    for u in range(2):
        for t in range(4):
            e(f"ds_write_b128 v{8+t}, {V(acc(u,t),4)} offset:{u*4096}")
    RB = XR
    ra = {(0,0): 6, (0,1): 7, (1,0): 12, (1,1): 13}
    for q in range(4):
        for h in range(2):
            e(f"ds_read_b128 {V(RB+q*8+h*4,4)}, v{ra[(q&1,h)]} offset:{q*2048}")
    for q in range(4):
        e(f"s_waitcnt lgkmcnt({6-2*q})")
        for r in range(4): e(f"v_pk_add_f32 {V(RB+q*8+2*r,2)}, {V(RB+q*8+2*r,2)}, {V(SUMR(q*8+2*r),2)}")
        for r in range(4): e(f"v_cvt_pk_bf16_f32 v{WB+q*4+r}, v{RB+q*8+2*r}, v{RB+q*8+2*r+1}")
        e(f"s_add_u32 s55, s31, {q*16384}")
        e(f"buffer_store_dwordx4 {V(WB+q*4,4)}, v14, s[24:27], s55 offen {ST_OUT}")
    if LOOPST: e("v_mov_b32 v3, v2")
    stamp_flush(e, 2, 8)
    loopstamp_flush(e, "v3", 2)
    if os.environ.get("DBGOUT"):
        wg = int(os.environ["DBGOUT"])
        e(f"s_cmp_eq_u32 s2, {wg}")
        e("s_cbranch_scc0 L2_dbgend")
        e("s_cmp_eq_u32 s40, 0")
        e("s_cbranch_scc0 L2_dbgend")
        e(f"s_load_dwordx2 s[4:5], s[0:1], {KA['dbg']}")
        e("s_waitcnt vmcnt(0) lgkmcnt(0)")
        srd(e, 12, 4, 256)
        e("v_and_b32 v1, 63, v0")
        e("v_lshlrev_b32 v1, 2, v1")
        e(f"s_mov_b32 s70, {hex(STAMP_BASE + 1*0x40000 + wg*1024)}")
        e("buffer_load_dword v2, v1, s[92:95], s70 offen")
        e(f"s_mov_b32 s70, {hex(STAMP_BASE + 2*0x40000 + wg*1024 + 256)}")
        e("buffer_load_dword v3, v1, s[92:95], s70 offen sc1")
        e("s_waitcnt vmcnt(0)")
        e("s_mov_b64 exec, 0x1ff")
        e("buffer_store_dword v2, v1, s[12:15], 0 offen")
        e("s_mov_b64 exec, 0xff")
        e("buffer_store_dword v3, v1, s[12:15], 0 offen offset:32")
        e.label("L2_dbgend")
    e("s_endpgm")
    DROPT = os.environ.get("DROPT", "")
    if DROPT:
        k0 = [k for k, i in enumerate(e.ins) if i.text == "L2_po_ok:"][0]
        k1 = [k for k, i in enumerate(e.ins) if "s[84:85]" in i.text][0]
        mid = [i for i in e.ins[k0:k1] if not any(i.text.startswith(d) for d in DROPT.split(","))]
        if "nosc1" in DROPT: mid = [Ins(i.text.replace(" sc1", "")) for i in mid]
        e.ins = e.ins[:k0] + mid + e.ins[k1:]
    e.extend(ool)
    gepi = fix(e.ins, pre=gbody)
    ins = head + att + gpre + [Ins(".p2align 6")] + gbody + gepi
    return name, kernel_text(name, ins, NV, NV), (256, 512, lds)
```

```python
from common import *
from k0_ln import ln_body
import math

LA1 = int(os.environ.get('LA1', '4'))
PSLEEP = int(os.environ.get('PSLEEP', '4'))
APOS = eval(os.environ.get('APOS', '[0, 32, 64, 96, 128]'))
PRIO_A = int(os.environ.get('PRIO_A', '1'))
PRIO_GELU = int(os.environ.get('PRIO_GELU', '2'))
WOIT = int(os.environ.get('WOIT', '3'))
SPINMAX = int(os.environ.get('SPINMAX', '20000'))
PFX = int(os.environ.get('PFX', '1'))
HTHR = int(os.environ.get('HTHR', '-1'))
PRIO_G1 = int(os.environ.get('PRIO_G1', '0'))
SPLIT = int(os.environ.get('SPLIT', '9'))
SMIT = int(os.environ.get('SMIT', '15'))
TGATE = int(os.environ.get('TGATE', '1'))
PSLEEP2 = int(os.environ.get('PSLEEP2', '8'))
STG = 53248; WOFF = 16384
LNS = 3*STG
SY = LNS + 512
SY_KVP, SY_Q, SY_OK, SY_EA, SY_EG = 0, 16, 32, 48, 64
QST = 143360; KVR = 135168
WBASE = 61440; WSEG = 32768; SPARE = 32768
F_OF = FLG; F_PF = FLG + 0x4000; F_LN = FLG + 0x10000; F_HF = FLG + 0x2000; F_KV = FLG + 0x18000

def flat(L): return [y for x in L for y in (x if isinstance(x, list) else [x])]

def lds_wait(q, lbl, vaddr, off, vtmp, cmp_src):
    q("s_mov_b32 s3, 0")
    q(f"{lbl}:")
    q(f"ds_read_b32 {vtmp}, {vaddr} offset:{off}")
    q("s_add_u32 s3, s3, 1")
    q("s_waitcnt lgkmcnt(0)")
    q(f"v_cmp_gt_u32 vcc, {cmp_src}, {vtmp}")
    q("s_nop 4")
    q(f"s_cbranch_vccz {lbl}_ok")
    q("s_sleep 1")
    q(f"s_cmp_lt_u32 s3, {SPINMAX*8}")
    q(f"s_cbranch_scc1 {lbl}")
    q(f"{lbl}_ok:")

def gpoll(q, lbl, load, vregs, val, cnt="s58", sleep=None):
    q(f"s_mov_b32 {cnt}, 0")
    q(f"{lbl}:")
    q(load)
    q(f"s_add_u32 {cnt}, {cnt}, 1")
    q("s_waitcnt vmcnt(0)")
    for r in vregs[1:]: q(f"v_and_b32 {vregs[0]}, {vregs[0]}, {r}")
    q(f"v_cmp_ne_u32 vcc, {val}, {vregs[0]}")
    q("s_nop 4")
    q(f"s_cbranch_vccz {lbl}_ok")
    q(f"s_sleep {PSLEEP if sleep is None else sleep}")
    q(f"s_cmp_lt_u32 {cnt}, {SPINMAX}")
    q(f"s_cbranch_scc1 {lbl}")
    q(f"{lbl}_ok:")

def gen():
    name = NAME + "_kernel"
    lds = 163840
    p = Prog()
    p("s_cmp_ge_u32 s2, 256")
    p("s_cbranch_scc1 L_end")
    stamp(p, 0)
    p(f"s_load_dwordx4 s[64:67], s[0:1], {KA['x']}")
    p(f"s_load_dwordx4 s[8:11], s[0:1], {KA['w1']}")
    p(f"s_load_dwordx2 s[6:7], s[0:1], {KA['ws']}")
    p(f"s_load_dwordx4 s[32:35], s[0:1], {KA['wk']}")
    p(f"s_load_dwordx2 s[62:63], s[0:1], {KA['dbg']}")
    p("v_and_b32 v1, 63, v0")
    p("v_lshrrev_b32 v2, 6, v0")
    p("v_readfirstlane_b32 s40, v2")
    p("v_lshlrev_b32 v5, 4, v1")
    p("s_and_b32 s41, s2, 1")
    p("s_lshl_b32 s41, s41, 3")
    p("s_bfe_u32 s68, s2, 0x30003")
    p("s_add_u32 s41, s41, s68")
    p("s_bfe_u32 s42, s2, 0x20001")
    p("s_lshl_b32 s42, s42, 2")
    p("s_lshr_b32 s43, s2, 6")
    p("s_add_u32 s42, s42, s43")
    p("s_add_u32 s68, s68, s43")
    p("s_lshl_b32 s36, s41, 4")
    p("s_add_u32 s36, s36, s42")
    p("v_and_b32 v3, 15, v1")
    p("v_lshrrev_b32 v4, 4, v1")
    p("v_and_b32 v255, 3, v1")
    p("v_lshlrev_b32 v255, 2, v255")
    p(f"v_add_u32 v255, {SY}, v255")
    p("s_cmp_ge_u32 s40, 4")
    p("s_cbranch_scc1 L_G")
    head = fix(p.ins)

    p = Prog()
    XRL = 16
    p("v_and_b32 v203, 7, v1")
    p("v_lshrrev_b32 v204, 3, v1")
    p("v_lshlrev_b32 v205, 11, v203")
    p("v_lshl_add_u32 v205, v204, 4, v205")
    p("s_lshl_b32 s37, s36, 14")
    p("s_lshl_b32 s38, s40, 9")
    p("s_add_u32 s37, s37, s38")
    p("v_lshlrev_b32 v216, 2, v1")
    p("v_mov_b32 v217, 0")
    p("s_lshl_b32 s47, s36, 7")
    p("s_and_b32 s48, s42, 3")
    p("s_lshl_b32 s49, s41, 2")
    p("s_add_u32 s48, s48, s49")
    p("s_lshl_b32 s48, s48, 7")
    p(f"s_add_u32 s38, s47, {hex(F_LN)}")
    p(f"s_add_u32 s39, s47, {hex(F_PF)}")
    p("s_cmp_eq_u32 s40, 1")
    p("s_cselect_b32 s38, s39, s38")
    p(f"s_add_u32 s39, s48, {hex(F_OF)}")
    p("s_lshl_b32 s49, s41, 7")
    p(f"s_add_u32 s49, s49, {hex(F_KV)}")
    p("s_cmp_eq_u32 s42, 15")
    p("s_cselect_b32 s39, s49, s39")
    p("s_cmp_eq_u32 s40, 2")
    p("s_cselect_b32 s38, s39, s38")
    p(f"s_add_u32 s39, s48, {hex(F_HF)}")
    p("s_cmp_eq_u32 s40, 3")
    p("s_cselect_b32 s38, s39, s38")
    p("s_waitcnt lgkmcnt(0)")
    srd(p, 28, 64, 2048*1024*2)
    for q in range(4):
        p(f"buffer_load_dwordx4 {V(XRL+4*q,4)}, v205, s[28:31], s37 offen offset:{q*128}")
    srd(p, 24, 6, WS_SIZE)
    p("s_mov_b64 exec, 0xffff")
    p("buffer_store_dword v217, v216, s[24:27], s38 offen sc1")
    p("s_mov_b64 exec, -1")
    srd(p, 12, 6, 0x400000, XN_F)
    srd(p, 16, 66, 1024*1024*2)
    srd(p, 20, 8, 1024*3584*2)
    p("s_lshl_b32 s46, s41, 3")
    p("s_lshl_b32 s47, s40, 1")
    p("s_add_u32 s46, s46, s47")
    p("s_lshl_b32 s46, s46, 15")
    p("v_add_u32 v6, s46, v5")
    p("v_add_u32 v7, 0x8000, v6")
    p("v_lshrrev_b32 v8, 5, v1")
    p("v_lshlrev_b32 v8, 1, v8")
    p("v_and_b32 v9, 3, v1")
    p("v_xor_b32 v8, v8, v9")
    p("v_lshlrev_b32 v8, 4, v8")
    p("v_lshrrev_b32 v9, 2, v1")
    p("s_lshl_b32 s47, s40, 4")
    p("v_add_u32 v9, s47, v9")
    p("v_mul_u32_u24 v10, 7168, v9")
    p("s_mul_i32 s47, s42, 448")
    p("v_add3_u32 v10, v10, v8, s47")
    p("v_lshl_add_u32 v9, v9, 11, v8")
    p("s_lshl_b32 s47, s42, 7")
    p("v_add_u32 v9, s47, v9")
    p("s_lshl_b32 s51, s40, 12")
    p("s_lshl_b32 s52, s40, 10")
    p(f"s_add_u32 s52, s52, {WOFF}")
    def kchain(n): return [f"s_add_u32 s69, {n}, s68", "s_and_b32 s69, s69, 3", f"s_cselect_b32 s69, 0, {LA1}", f"s_add_u32 s69, s69, {n}", "s_and_b32 s69, s69, 15",
                           "s_lshl_b32 s53, s69, 11", "s_lshl_b32 s54, s69, 17", f"s_mul_i32 s55, s69, {64*7168}"]
    def set_stage(q, n, slot):
        for x in kchain(n): q(x)
        q(f"s_add_u32 s56, s51, {slot}")
        q(f"s_add_u32 s57, s52, {slot}")
    slot_of = {"q0": 0, "q1": 4, 0: 1, 1: 2, 2: 3, 3: 8, 4: 5, 5: 6, 6: 7}
    DX = ["s_mov_b32 m0, s56", "buffer_load_dwordx4 v6, s[12:15], s53 offen sc1 lds", "buffer_load_dwordx4 v6, s[12:15], s53 offen offset:1024 sc1 lds",
          "s_add_u32 m0, s56, 2048", "buffer_load_dwordx4 v7, s[12:15], s53 offen sc1 lds", "buffer_load_dwordx4 v7, s[12:15], s53 offen offset:1024 sc1 lds"]
    DW = []
    for a in range(2): DW += [f"s_add_u32 m0, s57, {slot_of['q%d'%a]*4096 - a*64}", f"buffer_load_dwordx4 v9, s[16:19], s54 offen offset:{a*64} lds"]
    for a in range(7): DW += [f"s_add_u32 m0, s57, {slot_of[a]*4096 - a*64}", f"buffer_load_dwordx4 v10, s[20:23], s55 offen offset:{a*64} lds"]
    def groups(L):
        G_ = []; cur = []
        for x in L:
            cur.append(x)
            if x.startswith("buffer_load"): G_.append(cur); cur = []
        return G_
    OPS = groups(DX + DW)
    HEAD = flat(OPS[:SPLIT]); REST = flat(OPS[SPLIT:])
    p("v_lshlrev_b32 v208, 4, v203")
    p(f"v_add_u32 v208, {LNS}, v208")
    p("s_lshl_b32 s37, s40, 2")
    p("v_add_u32 v209, s37, v208")
    p("v_lshlrev_b32 v206, 4, v203")
    p("v_lshl_add_u32 v206, v204, 8, v206")
    p("s_lshr_b32 s38, s36, 1")
    p("s_lshl_b32 s38, s38, 15")
    p("s_lshl_b32 s39, s40, 13")
    p("s_add_u32 s38, s38, s39")
    p("s_and_b32 s39, s36, 1")
    p("s_lshl_b32 s39, s39, 7")
    p("s_add_u32 s38, s38, s39")
    p("s_add_u32 s39, s38, 4096")
    p("v_lshlrev_b32 v207, 2, v203")
    p("s_lshl_b32 s48, s36, 5")
    p(f"s_add_u32 s48, s48, {hex(CS)}")
    p("s_waitcnt vmcnt(1)")
    stamp(p, 7)
    ln_body(p, F=32, XR=XRL, o=200)
    for q in range(4):
        p(f"buffer_store_dwordx4 {V(XRL+4*q,4)}, v206, s[24:27], s{38+(q>>1)} offen offset:{(q&1)*2048} sc1")
    p("s_cmp_eq_u32 s40, 3")
    p("s_cbranch_scc0 LA_nc")
    p("s_mov_b64 exec, 0xff")
    p("buffer_store_dword v212, v207, s[24:27], s48 offen sc1")
    p("s_mov_b64 exec, -1")
    p.label("LA_nc")
    p("v_lshlrev_b32 v218, 7, v3")
    p("v_lshlrev_b32 v216, 2, v3")
    p("v_mov_b32 v217, 1")
    p("s_lshl_b32 s37, s41, 11")
    p("s_lshl_b32 s38, s42, 2")
    p("s_add_u32 s37, s37, s38")
    p(f"s_add_u32 s37, s37, {hex(F_LN)}")
    p("s_lshl_b32 s38, s36, 7")
    p(f"s_add_u32 s38, s38, {hex(F_LN)}")
    set_stage(p, 0, 0)
    p("s_waitcnt vmcnt(0)")
    p("s_barrier")
    p("s_cmp_eq_u32 s40, 0")
    p("s_cbranch_scc0 LA_nf")
    p("s_mov_b64 exec, 0xffff")
    p("buffer_store_dword v217, v218, s[24:27], s37 offen sc1")
    p("s_mov_b64 exec, -1")
    p.label("LA_nf")
    for x in DW: p(x)
    set_stage(p, 1, STG)
    for x in DW: p(x)
    p("s_cmp_eq_u32 s40, 0")
    p("s_cbranch_scc0 LA_p1_ok")
    gpoll(p, "LA_p1", "buffer_load_dword v219, v216, s[24:27], s38 offen sc1", ["v219"], "1", cnt="s39")
    p("s_barrier")
    for n in range(2):
        set_stage(p, n, n*STG)
        for x in DX: p(x)
    p("s_cmp_eq_u32 s40, 0")
    p("s_cbranch_scc0 LA_nr")
    p("s_mov_b64 exec, 0xffff")
    p("buffer_store_dword v217, v218, s[24:27], s37 offen sc1")
    p("s_mov_b64 exec, -1")
    p.label("LA_nr")
    set_stage(p, 2, 2*STG)
    KX = 16; KW = 24; KA_ = 32; KT = 48
    p("s_and_b32 s44, s42, 3")
    p("s_cmp_ge_u32 s44, 2")
    p("s_cselect_b32 s32, s34, s32")
    p("s_cselect_b32 s33, s35, s33")
    p("s_cselect_b32 s47, 4, 5")
    p("s_cselect_b32 s48, 5, 4")
    srd(p, 32, 32, 65536)
    p("v_and_b32 v11, 1, v1")
    p("v_lshlrev_b32 v11, s47, v11")
    p("v_lshrrev_b32 v12, 1, v1")
    p("v_lshl_add_u32 v11, v12, 6, v11")
    p("s_and_b32 s47, s44, 1")
    p("s_lshl_b32 s47, s47, s48")
    p("s_lshl_b32 s60, s40, 14")
    p("s_add_u32 s60, s60, s47")
    p("s_lshl_b32 s45, s41, 2")
    p("s_lshr_b32 s47, s42, 2")
    p("s_add_u32 s45, s45, s47")
    p("s_lshl_b32 s61, s45, 16")
    p("s_lshl_b32 s47, s40, 13")
    p("s_add_u32 s61, s61, s47")
    p("v_add_u32 v13, 0x8000, v5")
    p("s_lshl_b32 s49, s40, 10")
    p(f"s_add_u32 s49, s49, {LNS}")
    p("v_lshlrev_b32 v12, 8, v4")
    p("v_bfe_u32 v14, v1, 2, 2")
    p("v_lshl_add_u32 v12, v14, 5, v12")
    p("v_and_b32 v14, 3, v1")
    p("v_lshl_add_u32 v12, v14, 3, v12")
    p("v_add_u32 v12, s49, v12")
    for r in range(4): p(f"v_mov_b64 {V(KA_+2*r,2)}, 0")
    kv_issue = ["s_mov_b32 m0, s49", "s_nop 0", "buffer_load_dwordx4 v11, s[32:35], s60 offen lds",
                f"buffer_load_dwordx4 {V(KX,4)}, v5, s[12:15], s61 offen sc1", f"buffer_load_dwordx4 {V(KX+4,4)}, v13, s[12:15], s61 offen sc1",
                "s_add_u32 s60, s60, 2048", "s_add_u32 s61, s61, 1024"]
    kv_use = [f"ds_read_b64_tr_b16 {V(KW,2)}, v12", f"ds_read_b64_tr_b16 {V(KW+2,2)}, v12 offset:128", "s_waitcnt lgkmcnt(0)",
              M16(V(KA_,4), V(KW,4), V(KX,4)), M16(V(KA_+4,4), V(KW,4), V(KX+4,4))]
    p("s_waitcnt vmcnt(4)")
    p("s_barrier")
    for x in kv_issue + HEAD: p(x)
    srd(p, 28, 62, 256)
    p("s_or_b32 s47, s42, s40")
    p("s_cmp_eq_u32 s47, 0")
    p("s_cbranch_scc0 LA_nz")
    p("v_mov_b32 v219, 0")
    p("s_lshl_b32 s47, s41, 2")
    p("s_mov_b64 exec, 1")
    p("buffer_store_dword v217, v219, s[28:31], s47 offen sc1")
    p("s_mov_b64 exec, -1")
    p.label("LA_nz")
    p("s_mov_b32 s58, 0")
    p("s_mov_b32 s59, 3")
    p(f"s_waitcnt vmcnt({SPLIT})")
    def step(pre_=(), post=()):
        p("s_barrier")
        for x in REST: p(x)
        for x in pre_: p(x)
        set_stage(p, "s59", "s58")
        for x in HEAD: p(x)
        p("s_add_u32 s59, s59, 1")
        p(f"s_add_u32 s58, s58, {STG}")
        p(f"s_cmp_eq_u32 s58, {3*STG}")
        p("s_cselect_b32 s58, 0, s58")
        for x in post: p(x)
        p(f"s_waitcnt vmcnt({SPLIT}) lgkmcnt(0)")
    p.label("LA_ld1")
    step(pre_=kv_use + kv_issue)
    p("s_cmp_lt_u32 s59, 10")
    p("s_cbranch_scc1 LA_ld1")
    step(post=kv_use + ["s_and_b32 s47, s40, 1", "s_lshl_b32 s47, s47, 11", f"s_add_u32 s47, s47, {LNS}", "v_add_u32 v14, s47, v5"])
    step(post=["s_cmp_lt_u32 s40, 2", "s_cbranch_scc1 LA_r1", f"ds_write_b128 v14, {V(KA_,4)}", f"ds_write_b128 v14, {V(KA_+4,4)} offset:1024", "LA_r1:"])
    red = [f"ds_read_b128 {V(KT,4)}, v14", f"ds_read_b128 {V(KT+4,4)}, v14 offset:1024", "s_waitcnt lgkmcnt(0)"] + \
          [f"v_pk_add_f32 {V(KA_+2*r,2)}, {V(KA_+2*r,2)}, {V(KT+2*r,2)}" for r in range(4)]
    step(post=["s_cmp_ge_u32 s40, 2", "s_cbranch_scc1 LA_r2"] + red + ["s_cmp_eq_u32 s40, 0", "s_cbranch_scc1 LA_r2",
               f"ds_write_b128 v14, {V(KA_,4)}", f"ds_write_b128 v14, {V(KA_+4,4)} offset:1024", "LA_r2:"])
    fin = Prog()
    fin("s_cmp_eq_u32 s40, 0")
    fin("s_cbranch_scc0 LA_kvd")
    fin("v_add_u32 v14, 2048, v14")
    for x in red: fin(x)
    for r in range(4): fin(f"v_cvt_pk_bf16_f32 v{KT+r}, v{KA_+2*r}, v{KA_+2*r+1}")
    fin("s_lshl_b32 s38, s45, 12")
    fin(f"s_add_u32 s38, s38, {hex(KV)}")
    fin("s_and_b32 s39, s44, 1")
    fin("s_cmp_ge_u32 s44, 2")
    fin("s_cbranch_scc1 LA_kvv")
    fin("v_and_b32 v11, 1, v4")
    fin("v_lshlrev_b32 v11, 9, v11")
    fin("v_lshl_add_u32 v11, v3, 4, v11")
    fin("v_lshrrev_b32 v12, 1, v4")
    fin("v_lshl_add_u32 v11, v12, 3, v11")
    fin("s_lshl_b32 s39, s39, 10")
    fin("s_add_u32 s38, s38, s39")
    for u in range(2): fin(f"buffer_store_dwordx2 {V(KT+2*u,2)}, v11, s[24:27], s38 offen offset:{u*256} sc1")
    fin("s_branch LA_kvd")
    fin.label("LA_kvv")
    fin("v_bfe_u32 v12, v3, 2, 1")
    fin("v_lshlrev_b32 v11, 8, v12")
    fin("v_lshl_add_u32 v11, v4, 6, v11")
    fin("v_lshrrev_b32 v12, 3, v3")
    fin("v_lshl_add_u32 v11, v12, 3, v11")
    fin("v_and_b32 v12, 3, v3")
    fin("v_lshl_add_u32 v11, v12, 1, v11")
    fin(f"v_add_u32 v11, {LNS+2048}, v11")
    for u in range(2):
        for r in range(4):
            op = "ds_write_b16" if r % 2 == 0 else "ds_write_b16_d16_hi"
            fin(f"{op} v11, v{KT+2*u+(r>>1)} offset:{u*512+r*16}")
    fin(f"ds_read_b128 {V(KT+4,4)}, v14")
    fin("v_lshlrev_b32 v11, 9, v4")
    fin("v_lshl_add_u32 v11, v3, 4, v11")
    fin("s_lshl_b32 s39, s39, 8")
    fin("s_add_u32 s38, s38, s39")
    fin("s_waitcnt lgkmcnt(0)")
    fin(f"buffer_store_dwordx4 {V(KT+4,4)}, v11, s[24:27], s38 offen offset:2048 sc1")
    fin.label("LA_kvd")
    fin("v_lshlrev_b32 v11, 2, v1")
    fin(f"v_add_u32 v11, {SY}, v11")
    fin("v_mov_b32 v219, 0")
    fin("ds_write_b32 v11, v219")
    step(post=[i.text for i in fin.ins])
    pub = ["s_cmp_eq_u32 s40, 0", "s_cbranch_scc0 LA_np0", "s_lshl_b32 s38, s41, 7", "s_lshl_b32 s39, s42, 2", "s_add_u32 s38, s38, s39", f"s_add_u32 s38, s38, {hex(F_KV)}",
           "s_waitcnt vmcnt(0)", "s_mov_b64 exec, 1", "buffer_store_dword v217, v219, s[24:27], s38 offen sc1", "s_mov_b64 exec, -1", "LA_np0:"]
    step(pre_=pub)
    step()
    p(f"s_load_dwordx2 s[8:9], s[0:1], {KA['w2']}")
    p("s_barrier")
    for x in REST: p(x)
    p("s_lshl_b32 s39, s40, 2")
    p(f"s_add_u32 s39, s39, {SY}")
    p("v_mov_b32 v254, s39")
    p("s_waitcnt vmcnt(0) lgkmcnt(0)")
    p("s_barrier")
    srd(p, 20, 8, 3584*1024*2)
    p("v_lshlrev_b32 v12, 7, v1")
    p("s_lshr_b32 s50, s2, 3")
    p("s_lshl_b32 s50, s50, 1")
    p("s_lshr_b32 s47, s40, 1")
    p("s_add_u32 s50, s50, s47")
    p("s_lshl_b32 s50, s50, 13")
    p("s_and_b32 s47, s40, 1")
    p(f"s_mul_i32 s47, s47, {1792*2048}")
    p("s_add_u32 s50, s50, s47")
    if PFX:
        p("buffer_load_dword v203, v12, s[20:23], s50 offen")
        for x in code_srd(16, "LA_loop"): p(x)
        p("s_lshl_b32 s47, s40, 13")
        p("buffer_load_dword v203, v12, s[16:19], s47 offen")
    stamp(p, 5)
    ool = Prog()

    Q = {0: 16, 1: 24}; C = {0: 32, 1: 48}; Sx = {0: 64, 1: 80}; P = {0: 96, 1: 104}
    O = {0: 112, 1: 128}; L = {0: 144, 1: 148}; SEL = 152
    KF = {0: 156, 1: 164}; VF = {0: 172, 1: 180}; T = 188; IDX = 200; EP = 201; EPR = 202
    p(f"s_load_dwordx2 s[4:5], s[0:1], {KA['wo']}")
    p("v_lshlrev_b32 v6, 4, v3")
    p("v_lshrrev_b32 v7, 5, v1")
    p("v_lshl_add_u32 v6, v7, 8, v6")
    p("v_bfe_u32 v8, v1, 4, 1")
    p(f"s_mov_b32 s44, {OH_TILE}")
    p("v_mul_lo_u32 v7, v8, s44")
    p("v_add_u32 v7, v7, v6")
    p("v_lshl_add_u32 v6, v8, 11, v6")
    p(f"s_add_u32 s47, s51, {QST}")
    p("v_add_u32 v6, s47, v6")
    p("s_lshl_b32 s45, s41, 2")
    p("s_add_u32 s45, s45, s40")
    p(f"s_mul_i32 s47, s45, {2*OH_TILE}")
    p("s_lshl_b32 s46, s42, 11")
    p("s_add_u32 s47, s47, s46")
    p(f"s_add_u32 s47, s47, {hex(OH_F)}")
    p("s_lshl_b32 s53, s45, 7")
    p("s_lshl_b32 s54, s42, 2")
    p("s_add_u32 s53, s53, s54")
    p(f"s_add_u32 s53, s53, {hex(F_OF)}")
    srd(p, 12, 6, 262144, KV)
    p("v_and_b32 v8, 4, v1")
    p("v_cmp_eq_u32 vcc, 0, v8")
    p("v_mov_b32 v9, 0x3f803f80")
    p("v_mov_b32 v8, 0")
    for r in range(2): p(f"v_cndmask_b32 v{SEL+r}, v8, v9, vcc")
    for r in range(2): p(f"v_cndmask_b32 v{SEL+2+r}, v9, v8, vcc")
    p("v_and_b32 v8, 1, v1")
    p("v_mul_u32_u24 v8, 0xaaaa, v8")
    p(f"v_add_u32 v{IDX}, 0x4444, v8")
    for x in range(2):
        for r in range(8): p(f"v_mov_b64 {V(O[x]+2*r,2)}, 0")
        for r in range(2): p(f"v_mov_b64 {V(L[x]+2*r,2)}, 0")
    for r in range(4):
        p(f"v_mov_b64 {V(P[1]+2*r,2)}, 0")
        p(f"v_mov_b64 {V(VF[1]+2*r,2)}, 0")
    p(f"v_mov_b32 v{EP}, 1")
    p("v_lshlrev_b32 v12, 7, v1")
    p("s_waitcnt lgkmcnt(0)")
    srd(p, 20, 4, 1024*1024*2)
    for x in code_srd(16, "LG_tail"): p(x)
    p("s_lshl_b32 s49, s2, 13")
    p("s_sub_u32 s55, s40, 1")
    p("s_lshl_b32 s55, s55, 13")
    p("s_cmp_eq_u32 s40, 0")
    p("s_cselect_b32 s16, s20, s16")
    p("s_cselect_b32 s17, s21, s17")
    p("s_cselect_b32 s18, s22, s18")
    p("s_cselect_b32 s55, s49, s55")
    p("s_cmp_eq_u32 s40, 1")
    p("s_cbranch_scc0 LA_np")
    p("v_lshlrev_b32 v13, 2, v3")
    gpoll(p, "LA_p2", "buffer_load_dword v14, v13, s[28:31], 0 offen sc1", ["v14"], "1")
    p("v_lshrrev_b32 v13, 2, v1")
    p("v_lshlrev_b32 v13, 7, v13")
    p("v_and_b32 v14, 3, v1")
    p("v_lshl_add_u32 v13, v14, 4, v13")
    p(f"s_mov_b32 s48, {hex(F_KV)}")
    gpoll(p, "LA_p3", f"buffer_load_dwordx4 {V(T,4)}, v13, s[24:27], s48 offen sc1", [f"v{T+r}" for r in range(4)], "1")
    p(f"ds_write_b32 v255, v{EP} offset:{SY_OK}")
    p.label("LA_np")
    lds_wait(p, "LA_w3", "v255", SY_OK, "v13", "1")
    stamp(p, 4)
    lds_wait(p, "LA_w2", "v255", SY_Q, "v13", "1")
    for x in range(2):
        for mf in range(2): p(f"ds_read_b128 {V(Q[x]+4*mf,4)}, v6 offset:{x*1024+mf*512}")
    stamp(p, 6)
    if PRIO_A: p(f"s_setprio {PRIO_A}")
    p("s_lshl_b32 s50, s40, 11")
    p("s_mov_b32 s51, s50")
    def kvd(slot): return [f"s_add_u32 m0, s51, {slot*8192}", "buffer_load_dwordx4 v5, s[12:15], s50 offen sc1 lds",
                           "buffer_load_dwordx4 v5, s[12:15], s50 offen offset:1024 sc1 lds", "s_add_u32 s50, s50, 0x2000"]
    for c in range(3):
        for x in kvd(c): p(x)
    p("s_waitcnt vmcnt(4)")
    p(f"ds_write_b32 v254, v{EP} offset:{SY_EA}")
    lds_wait(p, "LA_w4", "v255", SY_EA, "v13", "1")
    stamp(p, 1)
    def rdK(buf, tile): return [f"ds_read_b128 {V(KF[buf]+4*m,4)}, v5 offset:{(tile&7)*4096+m*1024}" for m in range(2)]
    def rdV(buf, tile): return [f"ds_read_b128 {V(VF[buf]+4*m,4)}, v5 offset:{(tile&7)*4096+2048+m*1024}" for m in range(2)]
    def QK(x, buf, c=None):
        cc = V(C[x],16) if c is None else c
        return [M32(V(Sx[x],16), V(KF[buf],4), V(Q[x],4), cc), M32(V(Sx[x],16), V(KF[buf]+4,4), V(Q[x]+4,4))]
    def PV(x, buf): return [M32(V(O[x],16), V(VF[buf],4), V(P[x],4)), M32(V(O[x],16), V(VF[buf]+4,4), V(P[x]+4,4))]
    def SUM(x): return [f"v_smfmac_f32_16x16x64_bf16 {V(L[x],4)}, {V(SEL,4)}, {V(P[x],8)}, v{IDX}"]
    def rowmax(q, x, dst, init=None):
        s = Sx[x]
        if init is None:
            q(f"v_max3_f32 v{dst}, v{s}, v{s+1}, v{s+2}")
            q(f"v_max_f32 v{dst}, v{dst}, v{s+3}")
            st = 4
        else: st = 0
        for i in range(st, 16, 2): q(f"v_max3_f32 v{dst}, v{dst}, v{s+i}, v{s+i+1}")
    def setC(q, x, src):
        q(f"v_mov_b32 v{T+8}, v{src}")
        q(f"v_permlane32_swap_b32 v{src}, v{T+8}")
        q(f"v_max_f32 v{src}, v{src}, v{T+8}")
        for r in range(16): q(f"v_sub_f32 v{C[x]+r}, 0, v{src}")
    for x in rdK(0, 0): p(x)
    p(f"v_add_u32 v{EP}, 1, v{EP}")
    p("s_waitcnt vmcnt(2)")
    p(f"ds_write_b32 v254, v{EP} offset:{SY_EA}")
    p("s_waitcnt lgkmcnt(0)")
    for x in range(2):
        for m in QK(x, 0, "0"): p(m)
    for x in range(2):
        rowmax(p, x, T+x)
        setC(p, x, T+x)
    for m in QK(0, 0): p(m)
    p("s_mov_b32 s59, 0")
    p("s_nop 15")
    pre = fix(p.ins, pre=head)
    b = Prog()
    b.label("LA_loop")
    def valu(x):
        v = []
        for i in range(8):
            v += [f"v_exp_f32 v{Sx[x]+2*i}, v{Sx[x]+2*i}", f"v_exp_f32 v{Sx[x]+2*i+1}, v{Sx[x]+2*i+1}"]
            if i >= 1: v.append(f"v_cvt_pk_bf16_f32 v{P[x]+i-1}, v{Sx[x]+2*i-2}, v{Sx[x]+2*i-1}")
        v.append(f"v_cvt_pk_bf16_f32 v{P[x]+7}, v{Sx[x]+14}, v{Sx[x]+15}")
        return v
    def phase(x, mf, extra):
        v = valu(x); out = []; cum = 0; mi = 0
        for ins in v:
            while mi < 5 and cum >= APOS[mi]:
                out += extra.get(("pre", mi), [])
                out.append(mf[mi]); out += extra.get(mi, []); mi += 1
            out.append(ins); cum += 8 if "exp" in ins else 4
        assert mi == 5
        return out
    for t in range(8):
        kb = t & 1; ch = t >> 1
        nk = rdK(kb^1, t+1); nv = rdV(kb, t)
        ex = {0: [nk[0]], 1: [nk[1]], 2: [nv[0]], 3: [nv[1]]}
        if kb == 0: ex[4] = [f"ds_read_b32 v{EPR}, v255 offset:{SY_EA}"]
        for x in phase(0, QK(1, kb) + PV(1, kb^1) + SUM(1), ex): b(x)
        ex = {("pre", 0): ["s_waitcnt lgkmcnt(0)"]}
        if kb == 0:
            d = kvd((ch + 3) & 3)
            ex[0] = [f"v_cmp_gt_u32 vcc, v{EP}, v{EPR}"]
            ex[1] = [f"s_cbranch_vccnz LA_sp{ch}", f"LA_spr{ch}:"]
            ex[2] = [d[0]]; ex[3] = [d[1]]; ex[4] = [d[2], d[3]]
            ool.label(f"LA_sp{ch}")
            lds_wait(ool, f"LA_spw{ch}", "v255", SY_EA, f"v{EPR}", f"v{EP}")
            ool(f"s_branch LA_spr{ch}")
        else:
            ex[0] = [f"v_add_u32 v{EP}, 1, v{EP}"]
            ex[1] = ["s_waitcnt vmcnt(2)", f"ds_write_b32 v254, v{EP} offset:{SY_EA}"]
            if t == 3: ex[3] = [f"s_cmp_eq_u32 s59, {WOIT}", "s_cbranch_scc1 LA_xt", "LA_xtr:"]
            if t == 7: ex[4] = ["s_add_u32 s59, s59, 1", "s_cmp_lt_u32 s59, 8"]
        for x in phase(1, QK(0, kb^1) + PV(0, kb) + SUM(0), ex): b(x)
    b("s_cbranch_scc1 LA_loop")
    ool.label("LA_xt")
    ool("buffer_load_dword v13, v12, s[16:19], s55 offen")
    ool("s_branch LA_xtr")
    rep = []
    body = fix(b.ins, pre=pre, report=rep)
    if rep: print("attn loop nops:", len(rep), rep[:5])
    assert not check_loop(body)
    e = Prog()
    stamp(e, 2)
    for m in PV(1, 1) + SUM(1): e(m)
    e("s_mov_b32 s60, 0")
    e.label("LA_fin")
    e("s_nop 15")
    for x in range(2): e(f"v_add_f32 v{L[x]}, v{L[x]}, v{L[x]+1}")
    e(f"s_mov_b32 s61, {f32(2.0**40)}")
    e(f"v_cmp_gt_f32 vcc, s61, v{L[0]}")
    e(f"v_cmp_gt_f32 s[62:63], s61, v{L[1]}")
    e("s_and_b64 vcc, vcc, s[62:63]")
    e("s_cmp_eq_u64 vcc, -1")
    e("s_cbranch_scc1 LA_store")
    e("s_cmp_eq_u32 s60, 0")
    e("s_cbranch_scc1 LA_slow")
    e.label("LA_store")
    for x in range(4): e(f"v_rcp_f32 v{T+x}, v{L[x>>1]}")
    for x in range(2):
        for r in range(8): e(f"v_pk_mul_f32 {V(O[x]+2*r,2)}, {V(O[x]+2*r,2)}, {V(T+2*x,2)}")
        for hh in range(2):
            o = P[x] + 4*hh
            src = [4*hh, 4*hh+2, 8+4*hh, 8+4*hh+2]
            for i, sr in enumerate(src): e(f"v_cvt_pk_bf16_f32 v{o+i}, v{O[x]+sr}, v{O[x]+sr+1}")
            e(f"buffer_store_dwordx4 {V(o,4)}, v7, s[24:27], s47 offen offset:{x*1024+hh*512} sc1")
    e("v_mov_b32 v8, 1")
    e("v_mov_b32 v9, 0")
    stamp(e, 3)
    e("s_waitcnt vmcnt(0)")
    e("s_mov_b64 exec, 1")
    e("buffer_store_dword v8, v9, s[24:27], s53 offen sc1")
    e("s_mov_b64 exec, -1")
    stamp_flush(e, 2, 9)
    e.label("L_end")
    e("s_endpgm")
    e.label("LA_slow")
    e("s_mov_b32 s60, 1")
    e(f"v_mov_b32 v{T}, 0xff800000")
    e(f"v_mov_b32 v{T+1}, 0xff800000")
    e("s_mov_b32 s52, 0")
    e.label("LA_s1")
    for m in range(2): e(f"buffer_load_dwordx4 {V(KF[0]+4*m,4)}, v5, s[12:15], s52 offen offset:{m*1024} sc1")
    e("s_waitcnt vmcnt(0)")
    for x in range(2):
        for m in QK(x, 0, "0"): e(m)
    e("s_nop 15")
    for x in range(2): rowmax(e, x, T+x, init=True)
    e("s_add_u32 s52, s52, 4096")
    e("s_cmp_lt_u32 s52, 0x40000")
    e("s_cbranch_scc1 LA_s1")
    for x in range(2):
        setC(e, x, T+x)
        for r in range(16): e(f"v_mov_b32 v{O[x]+r}, 0")
        for r in range(4): e(f"v_mov_b32 v{L[x]+r}, 0")
    e("s_mov_b32 s52, 0")
    e.label("LA_s2")
    for m in range(2): e(f"buffer_load_dwordx4 {V(KF[0]+4*m,4)}, v5, s[12:15], s52 offen offset:{m*1024} sc1")
    for m in range(2): e(f"buffer_load_dwordx4 {V(VF[0]+4*m,4)}, v5, s[12:15], s52 offen offset:{2048+m*1024} sc1")
    e("s_waitcnt vmcnt(0)")
    for x in range(2):
        for m in QK(x, 0): e(m)
    e("s_nop 15")
    for x in range(2):
        for v in valu(x): e(v)
    e("s_nop 3")
    for x in range(2):
        for m in PV(x, 0) + SUM(x): e(m)
    e("s_nop 15")
    e("s_add_u32 s52, s52, 4096")
    e("s_cmp_lt_u32 s52, 0x40000")
    e("s_cbranch_scc1 LA_s2")
    e("s_branch LA_fin")
    e.extend(ool)
    epi = fix(e.ins, pre=body)
    roleA = pre + [Ins(".p2align 6")] + body + epi
    import mega_g
    roleG = mega_g.gen(head)
    ins = head + roleA + roleG
    return name, kernel_text(name, ins, 256, 256), (256, 512, lds)
```

```python
from common import *
from mega import *
import math

def gen(head):
    ACC = 16
    def acc(u, t): return ACC + (u*9+t)*4
    XB = 160; WS_ = 192; RAW = 236; CSC = 250
    def XF(f, u): return XB + f*16 + u*4
    sa = list(range(9)); sb = [9, 10, 0, 1, 2, 3, 4, 5, 6]
    def WF(f, t): return WS_ + (sa if f == 0 else sb)[t]*4
    p = Prog()
    p.label("L_G")
    p("s_sub_u32 s40, s40, 4")
    p("s_lshr_b32 s44, s40, 1")
    p("s_and_b32 s45, s40, 1")
    if CODEPF:
        for x in code_srd(28, NAME + "_kernel", back=True): p(x)
        p("v_lshlrev_b32 v20, 7, v1")
        p("s_cmp_eq_u32 s40, 0")
        p("s_cbranch_scc0 LG_nt")
        p("buffer_load_dword v21, v20, s[28:31], 0 offen")
        p.label("LG_nt")
    p("s_lshl_b32 s39, s40, 2")
    p(f"s_add_u32 s39, s39, {SY}")
    p("v_mov_b32 v254, s39")
    p("v_lshrrev_b32 v22, 4, v1")
    p("v_mul_u32_u24 v22, 7168, v22")
    p("v_min_u32 v23, 13, v3")
    p("v_lshl_add_u32 v22, v23, 7, v22")
    p("v_lshrrev_b32 v23, 2, v1")
    p("v_and_b32 v24, 3, v1")
    p("v_lshlrev_b32 v24, 7, v24")
    p("v_lshl_add_u32 v23, v23, 11, v24")
    p("s_lshr_b32 s47, s2, 3")
    p("s_bfe_u32 s48, s2, 0x20001")
    p("s_waitcnt lgkmcnt(0)")
    p("s_cmp_eq_u32 s40, 3")
    p("s_cbranch_scc1 LG_eq")
    srd(p, 20, 8, 1024*3584*2)
    p(f"s_mul_i32 s49, s47, {4*7168}")
    p("s_mul_i32 s50, s48, 1792")
    p("s_add_u32 s49, s49, s50")
    p(f"s_mul_i32 s50, s40, {128*7168}")
    p("s_add_u32 s49, s49, s50")
    p("buffer_load_dword v21, v22, s[20:23], s49 offen")
    p("s_branch LG_ed")
    p.label("LG_eq")
    srd(p, 20, 66, 1024*1024*2)
    p("s_lshl_b32 s49, s47, 15")
    p("s_lshl_b32 s50, s48, 9")
    p("s_add_u32 s49, s49, s50")
    p("buffer_load_dword v21, v23, s[20:23], s49 offen")
    p.label("LG_ed")
    p("s_lshl_b32 s47, s44, 13")
    p("v_add_u32 v11, s47, v5")
    p("v_lshlrev_b32 v15, 9, v4")
    p("v_bfe_u32 v13, v1, 2, 2")
    p("v_lshl_add_u32 v15, v13, 6, v15")
    p("v_and_b32 v13, 3, v1")
    p("v_lshl_add_u32 v15, v13, 3, v15")
    p("v_and_b32 v13, 1, v4")
    p("v_lshl_add_u32 v15, v13, 5, v15")
    p("s_lshl_b32 s47, s45, 5")
    p("v_xor_b32 v14, s47, v15")
    p(f"v_add_u32 v14, {WOFF+32768}, v14")
    p("s_lshl_b32 s47, s45, 14")
    p(f"s_add_u32 s47, s47, {WOFF}")
    p("v_add_u32 v12, s47, v15")
    p("v_xor_b32 v13, 32, v12")
    srd(p, 24, 6, WS_SIZE)
    srd(p, 28, 10, 3584*2)
    p("v_lshlrev_b32 v6, 3, v4")
    p("s_mul_i32 s47, s42, 448")
    p("s_lshl_b32 s48, s45, 8")
    p("s_add_u32 s48, s48, s47")
    p("s_lshl_b32 s49, s45, 5")
    p("s_add_u32 s49, s49, s47")
    p("v_lshlrev_b32 v7, 2, v3")
    p("s_lshl_b32 s50, s41, 9")
    p("s_lshl_b32 s39, s44, 8")
    p("s_add_u32 s50, s50, s39")
    p(f"s_add_u32 s50, s50, {hex(CS)}")
    p("s_mov_b32 s58, 0")
    p(f"s_mov_b32 s60, {STG}")
    p(f"s_mov_b32 s61, {STG}")
    p("s_mov_b32 s59, 0")
    for i in range(4): p("s_barrier")
    p("s_waitcnt vmcnt(0)")
    p("s_barrier")
    if PRIO_G1: p(f"s_setprio {PRIO_G1}")
    stamp(p, 1)
    if LOOPST: p("s_mov_b32 s71, 0")
    def rx(f, kk): return [f"ds_read_b128 {V(XF(f,u),4)}, v11 offset:{u*2048+kk*1024}" for u in range(4)]
    def rw(f, t, kk):
        if t < 8: return [f"ds_read_b64_tr_b16 {V(WF(f,t)+rho*2,2)}, v{12+(t&1)} offset:{(t>>1)*4096+kk*2048+rho*256}" for rho in range(2)]
        return [f"ds_read_b64_tr_b16 {V(WF(f,t)+rho*2,2)}, v14 offset:{kk*2048+rho*256}" for rho in range(2)]
    def mfmas(f, zero=False): return [M16(V(acc(u,t),4), V(WF(f,t),4), V(XF(f,u),4), "0" if zero else None) for t in range(9) for u in range(4)]
    for x in rx(0, 0): p(x)
    for t in range(9):
        for x in rw(0, t, 0): p(x)
    p("s_waitcnt lgkmcnt(0)")
    rot_v = [f"v_add_u32 v{r}, s61, v{r}" for r in (11, 12, 13, 14)]
    rot_s = ["s_mov_b32 s58, s60", f"s_add_u32 s60, s58, {STG}", f"s_cmp_eq_u32 s60, {3*STG}", "s_cselect_b32 s60, 0, s60", "s_sub_u32 s61, s60, s58"]
    def phaseA(zero=False, extra=()):
        early = rx(1, 1) + rw(1, 0, 1) + rw(1, 1, 1)
        fill = [(i // 2, x) for i, x in enumerate(early)]
        for t in range(2, 9):
            r = rw(1, t, 1)
            fill += [(4*(t-2)+4, r[0]), (4*(t-2)+5, r[1])]
        fill.append((7, "s_waitcnt lgkmcnt(10)"))
        fill += [(30+i, x) for i, x in enumerate(rot_v)]
        return interleave(mfmas(0, zero), fill + list(extra))
    def phaseB(last=False, extra=()):
        fill = []
        if not last:
            early = rx(0, 0) + rw(0, 7, 0) + rw(0, 8, 0)
            fill = [(i, x) for i, x in enumerate(early)]
            for t in range(7):
                r = rw(0, t, 0)
                if t < 6: fill += [(4*(t+2)+4, r[0]), (4*(t+2)+5, r[1])]
                else: fill += [(35, r[0]), (35, r[1])]
            fill += [(8, rot_s[0]), (8, rot_s[1]), (9, rot_s[2]), (9, rot_s[3]), (10, rot_s[4])]
        return interleave(mfmas(1), fill + list(extra))
    small = [f"buffer_load_dwordx2 {V(RAW+2*t,2)}, v6, s[28:31], s48 offen offset:{t*32}" for t in range(6)]
    small.append(f"buffer_load_dwordx2 {V(RAW+12,2)}, v6, s[28:31], s49 offen offset:192")
    small += [f"buffer_load_dword v{CSC+u}, v7, s[24:27], s50 offen offset:{u*64} sc1" for u in range(4)]
    for x in phaseA(zero=True): p(x)
    p("s_waitcnt lgkmcnt(0)")
    pre = fix(p.ins, pre=head)
    ool = Prog()
    b = Prog()
    b.label("LG_l1")
    loopstamp(b, "v2", "v10")
    b("s_barrier")
    loopstamp(b, "v2", "v10")
    for x in phaseB(extra=[(14, "s_add_u32 s59, s59, 1"), (15, f"s_cmp_eq_u32 s59, {SMIT}"), (15, "s_cbranch_scc1 LG_sm"), (15, "LG_smr:")]): b(x)
    b("s_waitcnt lgkmcnt(4)")
    for x in phaseA(extra=[(34, "s_cmp_lt_u32 s59, 15")]): b(x)
    b("s_waitcnt lgkmcnt(0)")
    b("s_cbranch_scc1 LG_l1")
    ool.label("LG_sm")
    for x in small: ool(x)
    ool("s_branch LG_smr")
    rep = []
    body = fix(b.ins, pre=pre, report=rep)
    if rep: print("gemm1 loop nops:", len(rep), rep[:5])
    assert not check_loop(body)
    e = Prog()
    sgelu = (2.0 * math.sqrt(2.0/math.pi) * math.log2(math.e) * 0.044715) ** (1.0/3.0)
    kappa = 2.0 * math.sqrt(2.0/math.pi) * math.log2(math.e) / sgelu
    qs = math.log2(math.e) / math.sqrt(32.0)
    def BIAS(i): return (XB + i) if i < 16 else (WS_ + 28 + i - 16)
    su = Prog()
    su(f"s_mov_b32 s62, {f32(sgelu)}")
    su(f"s_mov_b32 s63, {f32(sgelu)}")
    su(f"s_mov_b32 s64, {f32(qs)}")
    su("s_lshl_b32 s46, s41, 3")
    su("s_lshl_b32 s47, s44, 2")
    su("s_add_u32 s46, s46, s47")
    su(f"s_mul_i32 s48, s46, {OH_TILE}")
    su("s_mul_i32 s49, s42, 7168")
    su("s_add_u32 s48, s48, s49")
    su(f"s_add_u32 s48, s48, {hex(OH_F+32*1024)}")
    su("s_lshl_b32 s49, s45, 12")
    su("v_add_u32 v6, s49, v5")
    su("s_lshl_b32 s49, s45, 3")
    su("v_add_u32 v7, s49, v5")
    su("s_lshl_b32 s47, s44, 13")
    su("s_lshl_b32 s49, s45, 10")
    su("s_add_u32 s47, s47, s49")
    su(f"s_add_u32 s47, s47, {QST}")
    su("v_add_u32 v10, s47, v5")
    su(f"v_mov_b32 v8, {f32(kappa)}")
    su(f"v_mov_b32 v9, {f32(kappa)}")
    su("v_mov_b32 v11, 1")
    st = [i.text for i in su.ins]
    ub = []
    for i in range(14): ub += [f"v_lshlrev_b32 v{BIAS(2*i)}, 16, v{RAW+i}", f"v_and_b32 v{BIAS(2*i+1)}, 0xffff0000, v{RAW+i}", f"v_mul_f32 v{BIAS(2*i)}, s62, v{BIAS(2*i)}", f"v_mul_f32 v{BIAS(2*i+1)}, s62, v{BIAS(2*i+1)}"]
    ub += [f"v_mul_f32 v{RAW+i}, s62, v{CSC+(i>>1)}" for i in range(8)]
    e("s_waitcnt vmcnt(0)")
    ex = [(i // 3, x) for i, x in enumerate(st)] + [(4 + i // 2, x) for i, x in enumerate(ub)]
    for x in phaseB(last=True, extra=ex): e(x)
    stamp(e, 2)
    e.label("LG_epi")
    if PRIO_GELU: e(f"s_setprio {PRIO_GELU}")
    T = XB + 16
    TB = WS_
    for u in range(4):
        o = T + u*4
        for t in range(2):
            for r in range(4): e(f"v_mul_f32 v{acc(u,t)+r}, s64, v{acc(u,t)+r}")
        for t in range(2):
            for h in range(2): e(f"v_cvt_pk_bf16_f32 v{o+2*t+h}, v{acc(u,t)+2*h}, v{acc(u,t)+2*h+1}")
        e(f"ds_write_b128 v10, {V(o,4)} offset:{u*2048}")
    e(f"ds_write_b32 v254, v11 offset:{SY_Q}")
    e(f"s_load_dwordx2 s[4:5], s[0:1], {KA['wo']}")
    e(f"s_load_dwordx4 s[8:11], s[0:1], {KA['w2']}")
    e(f"s_load_dwordx2 s[32:33], s[0:1], {KA['x']}")
    e(f"s_load_dwordx2 s[34:35], s[0:1], {KA['out']}")
    tcnt = [0]
    def gelu(items, out):
        prs = [(acc(u,t)+2*h, BIAS(4*(t-2)+2*h), u) for (u, t) in items for h in range(2)]
        n = len(prs)
        tb = TB + (tcnt[0] % 2) * 8; tcnt[0] += 1
        for (a, bb, u) in prs:
            e(f"v_pk_fma_f32 {V(a,2)}, {V(a,2)}, {V(RAW+2*u,2)}, {V(bb,2)}")
        for i, (a, bb, u) in enumerate(prs): e(f"v_pk_fma_f32 {V(tb+2*i,2)}, {V(a,2)}, {V(a,2)}, v[8:9]")
        for i, (a, bb, u) in enumerate(prs): e(f"v_pk_mul_f32 {V(tb+2*i,2)}, {V(tb+2*i,2)}, {V(a,2)} neg_lo:[0,1] neg_hi:[0,1]")
        for i in range(2*n): e(f"v_exp_f32 v{tb+i}, v{tb+i}")
        for i in range(n): e(f"v_pk_fma_f32 {V(tb+2*i,2)}, {V(tb+2*i,2)}, s[62:63], s[62:63]")
        for i in range(2*n): e(f"v_rcp_f32 v{tb+i}, v{tb+i}")
        for i, (a, bb, u) in enumerate(prs): e(f"v_pk_mul_f32 {V(a,2)}, {V(a,2)}, {V(tb+2*i,2)}")
        for i, (a, bb, u) in enumerate(prs): e(f"v_cvt_pk_bf16_f32 v{out+i}, v{a}, v{a+1}")
    ocnt = [0]
    def outreg():
        r = T + (ocnt[0] % 4) * 4; ocnt[0] += 1
        return r
    first = True
    for u in range(4):
        for a3 in range(3):
            o = outreg()
            if first: e("s_waitcnt lgkmcnt(0)"); first = False
            gelu([(u, 2+2*a3), (u, 3+2*a3)], o)
            if HTHR >= 0: e(f"s_waitcnt vmcnt({HTHR})")
            e(f"buffer_store_dwordx4 {V(o,4)}, v6, s[24:27], s48 offen offset:{a3*1024} sc1")
        if u & 1:
            o = outreg()
            gelu([(u-1, 8), (u, 8)], o)
            e(f"s_sub_u32 s49, s48, {OH_TILE}")
            e(f"buffer_store_dwordx2 {V(o,2)}, v7, s[24:27], s49 offen offset:3072 sc1")
            e(f"buffer_store_dwordx2 {V(o+2,2)}, v7, s[24:27], s48 offen offset:3072 sc1")
        if u < 3: e(f"s_add_u32 s48, s48, {OH_TILE}")
    stamp(e, 3)
    e("s_lshl_b32 s37, s41, 2")
    e("s_lshr_b32 s38, s42, 3")
    e("s_lshl_b32 s38, s38, 1")
    e("s_add_u32 s37, s37, s38")
    e("s_add_u32 s37, s37, s44")
    e("s_lshl_b32 s37, s37, 7")
    e("s_and_b32 s38, s42, 7")
    e("s_lshl_b32 s38, s38, 1")
    e("s_add_u32 s38, s38, s45")
    e("s_lshl_b32 s38, s38, 2")
    e("s_add_u32 s37, s37, s38")
    e(f"s_add_u32 s37, s37, {hex(F_HF)}")

    def acc2(u, t): return ACC + (u*8+t)*4
    XR = 80
    def XF2(sg, kb, u): return XR + ((sg*4+kb)*2+u)*4
    WB = 144
    def WF2(f, t): return WB + f*32 + t*4
    TG = 208; EP = 240; EPR = 241
    p = e
    p("s_and_b32 s41, s2, 7")
    p("s_lshl_b32 s41, s41, 1")
    p("s_bfe_u32 s43, s2, 0x10003")
    p("s_add_u32 s41, s41, s43")
    p("s_bfe_u32 s44, s2, 0x10004")
    p("s_lshr_b32 s42, s2, 5")
    p("v_and_b32 v13, 3, v1")
    p("v_lshlrev_b32 v13, 4, v13")
    p("s_lshl_b32 s47, s44, 1")
    p("v_xor_b32 v14, s47, v4")
    p("v_lshl_add_u32 v13, v14, 6, v13")
    p("v_bfe_u32 v14, v1, 2, 2")
    p("v_lshl_add_u32 v8, v14, 11, v13")
    p("s_lshl_b32 s47, s40, 16")
    p("v_add_u32 v8, s47, v8")
    p("v_xor_b32 v9, 32, v8")
    p("s_lshl_b32 s52, s40, 13")
    p(f"s_add_u32 s52, s52, {WBASE}")
    p(f"s_mul_i32 s54, s44, {1792*2048}")
    p("s_lshl_b32 s48, s42, 8")
    p("s_add_u32 s54, s54, s48")
    p(f"s_mul_i32 s53, s44, {56*1024}")
    p("s_add_u32 s53, s53, 0x8000")
    p("s_mov_b32 s56, s52")
    p("s_movk_i32 s57, 0x2000")
    srd(p, 16, 8, 3584*1024*2)
    srd(p, 20, 6, 128*OH_TILE, OH_F)
    p("s_lshl_b32 s46, s41, 3")
    p("s_lshl_b32 s47, s40, 1")
    p("s_add_u32 s46, s46, s47")
    p(f"s_mul_i32 s47, s46, {OH_TILE}")
    p("v_add_u32 v6, s47, v5")
    p(f"v_add_u32 v7, {OH_TILE}, v6")
    p("s_and_b32 s5, s5, 0xffff")
    p("v_lshlrev_b32 v12, 9, v4")
    p("v_add_u32 v12, v12, v15")
    p(f"v_add_u32 v12, {WBASE}, v12")
    p("v_xor_b32 v13, 32, v12")
    p("v_mov_b32 v242, v15")
    p("s_lshl_b32 s45, s44, 7")
    p("s_add_u32 s45, s45, s48")
    p("s_lshl_b32 s62, s40, 17")
    p("v_lshrrev_b32 v10, 5, v1")
    p("v_lshlrev_b32 v243, 1, v10")
    p("v_and_b32 v14, 3, v1")
    p("v_xor_b32 v243, v243, v14")
    p("v_lshlrev_b32 v243, 4, v243")
    p("v_bfe_u32 v14, v1, 4, 1")
    p("v_lshl_add_u32 v243, v14, 6, v243")
    p("v_bfe_u32 v14, v1, 2, 2")
    p("v_lshl_add_u32 v10, v10, 2, v14")
    p("v_lshl_add_u32 v10, v10, 11, v243")
    p("v_add_u32 v10, s45, v10")
    RRX = TG; RRB = TG + 16
    srd(p, 64, 32, 2048*1024*2)
    p("s_mov_b32 s28, s34")
    p("s_mov_b32 s29, s35")
    srd(p, 32, 10, 2048)
    p("v_and_b32 v15, 7, v1")
    p("v_lshlrev_b32 v15, 4, v15")
    p("v_lshrrev_b32 v14, 3, v1")
    p("v_lshl_add_u32 v14, v14, 11, v15")
    p("s_lshl_b32 s31, s46, 15")
    p("s_add_u32 s31, s31, s45")
    for i in range(32): p(f"v_mov_b64 {V(ACC+2*i,2)}, 0")
    p(f"v_mov_b32 v{EP}, 1")
    p("v_mov_b32 v244, 0")
    p("v_lshlrev_b32 v245, 2, v3")
    p("s_lshl_b32 s38, s41, 2")
    p("s_lshl_b32 s39, s44, 1")
    p("s_add_u32 s38, s38, s39")
    p("s_lshr_b32 s39, s40, 1")
    p("s_add_u32 s38, s38, s39")
    p("s_lshl_b32 s38, s38, 7")
    p(f"s_add_u32 s38, s38, {hex(F_HF)}")
    p("s_waitcnt vmcnt(0)")
    p("s_mov_b64 exec, 1")
    p("buffer_store_dword v11, v244, s[24:27], s37 offen sc1")
    p("s_mov_b64 exec, -1")
    stamp(p, 4)
    def wdma(q): return [f"s_add_u32 m0, s56, {q*1024}", ("s_mov_b32 s55, s54" if q == 0 else "s_add_u32 s55, s55, s57"), f"buffer_load_dwordx4 v{8+(q&1)}, s[16:19], s55 offen lds"]
    def xld(sg, kb): return [f"buffer_load_dwordx4 {V(XF2(sg,kb,u),4)}, v{6+u}, s[20:23], s53 offen offset:{kb*1024} sc1" for u in range(2)]
    lds_wait(p, "LG_w1", "v255", SY_EA, f"v{EPR}", "1")
    for n in range(2):
        for q in range(8):
            for x in wdma(q): p(x)
        p("s_add_u32 s54, s54, 0x40000")
        p(f"s_add_u32 s56, s56, {WSEG}")
    gpoll(p, "LG_p1", "buffer_load_dword v246, v245, s[24:27], s38 offen sc1", ["v246"], "1")
    p(f"ds_write_b32 v254, v{EP} offset:{SY_EG}")
    for n in range(2):
        for kb in range(4):
            for x in xld(n, kb): p(x)
        p("s_add_u32 s53, s53, 0x1000")
    lds_wait(p, "LG_w2", "v255", SY_EG, f"v{EPR}", "1")
    def wreads(f, kb): return [f"ds_read_b64_tr_b16 {V(WF2(f,t)+rho*2,2)}, v{12+(t&1)} offset:{kb*8192+rho*4096+(t>>1)*256}" for t in range(8) for rho in range(2)]
    def mf2(f, sg, kb): return [M16(V(acc2(u,t),4), V(WF2(f,t),4), V(XF2(sg,kb,u),4)) for t in range(8) for u in range(2)]
    for x in wreads(0, 0): p(x)
    p("s_mov_b32 s58, 0")
    p("s_mov_b32 s59, 3")
    p("s_mov_b32 s63, 0")
    p("s_waitcnt vmcnt(0)")
    p("s_setprio 0")
    stamp(p, 5)
    mid = fix(p.ins, pre=body)
    sgc = [0]
    def seg_early(): return ["s_add_u32 s54, s54, 0x40000", "s_add_u32 s56, s52, s63", f"s_add_u32 s63, s63, {WSEG}", f"s_cmp_eq_u32 s63, {3*WSEG}", "s_cselect_b32 s63, 0, s63"]
    def seg_setup(q0):
        q0("s_add_u32 s53, s53, 0x1000")
        sgc[0] += 1
        q0("s_add_u32 s59, s59, 1")
        q0("s_cmp_ge_u32 s59, 15")
        q0(f"s_cbranch_scc1 LG_so{sgc[0]}")
        q0(f"LG_sg{sgc[0]}:")
        q = ool
        q(f"LG_so{sgc[0]}:")
        q("s_mov_b32 s16, s4")
        q("s_mov_b32 s17, s5")
        q("s_mov_b32 s18, 0x200000")
        q("s_mov_b32 s54, s62")
        q("s_add_u32 s62, s62, 0x80000")
        q("s_movk_i32 s57, 0x4000")
        q("s_mov_b32 s22, 0")
        q("s_setprio 2")
        q("v_mov_b32 v8, v10")
        q("v_mov_b32 v9, v10")
        q("s_setprio 0")
        q("s_cmp_ge_u32 s59, 16")
        q(f"s_cbranch_scc1 LG_sg{sgc[0]}")
        for k in range(4):
            q(f"s_add_u32 s55, s31, {k*16384}")
            q(f"buffer_load_dwordx4 {V(RRX+4*k,4)}, v14, s[64:67], s55 offen")
        q(f"buffer_load_dwordx4 {V(RRB,4)}, v15, s[32:35], s45 offen")
        q("s_lshl_b32 s60, s40, 13")
        q(f"s_add_u32 s60, s60, {SPARE}")
        q("s_add_u32 s55, s54, 0x180000")
        for k in range(8):
            if k == 4:
                q("s_cmp_eq_u32 s40, 3")
                q(f"s_cbranch_scc1 LG_sg{sgc[0]}")
            q(f"s_add_u32 m0, s60, {k*1024}")
            q("s_nop 0")
            q("buffer_load_dwordx4 v10, s[16:19], s55 offen lds")
            q("s_add_u32 s55, s55, 0x4000")
        q(f"s_branch LG_sg{sgc[0]}")
    b = Prog()
    b.label("LG_l2")
    for sg in range(2):
        for kb in range(4):
            f = kb & 1
            if kb < 3:
                b("s_waitcnt vmcnt(28) lgkmcnt(0)")
                fill = [(i // 2, x) for i, x in enumerate(wreads(f^1, kb+1))]
                wpos = (8, 10)
            else:
                b("s_waitcnt vmcnt(14) lgkmcnt(0)")
                b(f"ds_write_b32 v254, v{EP} offset:{SY_EG}")
                fill = [(2, f"ds_read_b32 v{EPR}, v255 offset:{SY_EG}"),
                        (6, "s_waitcnt lgkmcnt(0)"), (6, "s_setprio 2"), (6, f"v_cmp_gt_u32 vcc, v{EP}, v{EPR}"), (6, "s_setprio 0"),
                        (7, f"s_cbranch_vccnz LG_sp{sg}"), (7, f"LG_spr{sg}:")]
                fill += [(7 + i // 2, x) for i, x in enumerate(wreads(f^1, 0))]
                wpos = (0, 3)
                ool.label(f"LG_sp{sg}")
                ool("s_setprio 2")
                lds_wait(ool, f"LG_spw{sg}", "v255", SY_EG, f"v{EPR}", f"v{EP}")
                ool("s_setprio 0")
                ool(f"s_branch LG_spr{sg}")
            for q, ps in zip((2*kb, 2*kb+1), wpos):
                wd = wdma(q)
                fill += [(ps, wd[0]), (ps, wd[1]), (ps+1, wd[2])]
            if kb == 2:
                fill += [(12, f"s_add_u32 s60, s58, {WSEG}"), (12, f"s_cmp_eq_u32 s60, {3*WSEG}"), (12, "s_cselect_b32 s60, 0, s60"),
                         (13, "s_sub_u32 s61, s60, s58"), (13, "s_mov_b32 s58, s60"),
                         (14, "s_setprio 2"), (14, "v_add_u32 v12, s61, v12"), (14, "v_add_u32 v13, s61, v13"), (14, f"v_add_u32 v{EP}, 1, v{EP}"), (14, "s_setprio 0")]
            if kb == 3:
                se = seg_early()
                fill += [(5, se[0]), (5, se[1]), (15, se[2]), (15, se[3]), (15, se[4])]
            fill += [(15, x) for x in xld(sg, kb)]
            for x in interleave(mf2(f, sg, kb), fill): b(x)
        seg_setup(b)
    b("s_cmp_lt_u32 s59, 17")
    b("s_cbranch_scc1 LG_l2")
    rep = []
    body2 = fix(b.ins, pre=mid, report=rep)
    if rep: print("gemm2 loop nops:", len(rep), rep[:5])
    assert not check_loop(body2)
    e = Prog()
    stamp(e, 6)
    e.label("LG_tail")
    for q in range(8):
        for x in wdma(q): e(x)
    e("s_lshl_b32 s47, s41, 3")
    e("s_add_u32 s47, s47, s42")
    e("s_lshl_b32 s47, s47, 1")
    e("s_add_u32 s47, s47, s44")
    e("s_xor_b32 s49, s47, 1")
    e("s_lshl_b32 s50, s47, 2")
    e("s_add_u32 s50, s50, s40")
    e("s_lshl_b32 s50, s50, 12")
    e(f"s_add_u32 s50, s50, {hex(PART)}")
    e("s_waitcnt lgkmcnt(0)")
    for u in range(2):
        for tp in range(2):
            o = WB + (u*2+tp)*4
            for h in range(2):
                t = 4 + 2*tp + h
                e(f"v_cvt_pk_bf16_f32 v{o+2*h}, v{acc2(u,t)}, v{acc2(u,t)+1}")
                e(f"v_cvt_pk_bf16_f32 v{o+2*h+1}, v{acc2(u,t)+2}, v{acc2(u,t)+3}")
    for k in range(4): e(f"buffer_store_dwordx4 {V(WB+4*k,4)}, v5, s[24:27], s50 offen offset:{k*1024} sc1")
    e("s_lshl_b32 s47, s47, 7")
    e("s_lshl_b32 s55, s40, 2")
    e("s_add_u32 s47, s47, s55")
    e(f"s_add_u32 s47, s47, {hex(F_PF)}")
    e("s_lshl_b32 s53, s49, 7")
    e("s_add_u32 s53, s53, s55")
    e(f"s_add_u32 s53, s53, {hex(F_PF)}")
    e("s_lshl_b32 s50, s49, 2")
    e("s_add_u32 s50, s50, s40")
    e("s_lshl_b32 s50, s50, 12")
    e(f"s_add_u32 s50, s50, {hex(PART)}")
    QB = [WBASE + 2*WSEG, WBASE, WBASE + WSEG, SPARE]
    e(f"v_add_u32 v12, {QB[0]}, v242")
    e("v_xor_b32 v13, 32, v12")
    def SUMR(i): return (acc2(0, 4) + i) if i < 16 else (WB + 48 + i - 16)
    PRW = acc2(1, 4); TT = TG + 20
    for i in range(4):
        e(f"v_lshlrev_b32 v{TT+2*i}, 16, v{RRB+i}")
        e(f"v_and_b32 v{TT+2*i+1}, 0xffff0000, v{RRB+i}")
    for i in range(16):
        e(f"v_lshlrev_b32 v{SUMR(2*i)}, 16, v{RRX+i}")
        e(f"v_and_b32 v{SUMR(2*i)+1}, 0xffff0000, v{RRX+i}")
        e(f"v_pk_add_f32 {V(SUMR(2*i),2)}, {V(SUMR(2*i),2)}, {V(TT+2*(i&3),2)}")
    e(f"s_mov_b32 s22, {128*OH_TILE}")
    e("s_lshl_b32 s55, s41, 2")
    e("s_add_u32 s55, s55, s40")
    e("s_lshl_b32 s55, s55, 7")
    e(f"s_add_u32 s55, s55, {hex(F_OF)}")
    e("s_mov_b32 s37, s55")
    srd(e, 64, 28, 2048*1024*2)
    e("v_add_u32 v247, 0, v242")
    e("v_xor_b32 v248, 32, v247")
    e(f"v_add_u32 v{EP}, 1, v{EP}")
    e("v_mov_b32 v249, 34")
    e("s_waitcnt vmcnt(0)")
    e("s_mov_b64 exec, 1")
    e("buffer_store_dword v11, v244, s[24:27], s47 offen sc1")
    e("s_mov_b64 exec, -1")
    e(f"ds_write_b32 v254, v{EP} offset:{SY_EG}")
    def WF3(f, t): return WB + f*16 + t*4
    def wr3(b_):
        if b_ == 31: return [f"ds_read_b64_tr_b16 {V(WF3(b_%3,t)+rho*2,2)}, v{247+(t&1)} offset:{rho*2048+(t>>1)*256}" for t in range(4) for rho in range(2)]
        return [f"ds_read_b64_tr_b16 {V(WF3(b_%3,t)+rho*2,2)}, v{12+(t&1)} offset:{(b_&7)*4096+rho*2048+(t>>1)*256}" for t in range(4) for rho in range(2)]
    for x in wr3(0) + wr3(1): e(x)
    if TGATE: lds_wait(e, "LG_w3", "v255", SY_EA, f"v{EPR}", "v249")
    stamp(e, 7)
    gpoll(e, "LG_p2", "buffer_load_dword v246, v245, s[24:27], s37 offen sc1", ["v246"], "1", sleep=PSLEEP2)
    e("s_mov_b32 s36, s53")
    LAB = 8
    def XF3(b_, u): return XR + ((b_ % LAB)*2+u)*4
    def xop(b_):
        L_ = []
        if (b_ & 3) == 0: L_.append(f"s_mov_b32 s53, {(b_>>2)*4096}")
        L_ += [f"buffer_load_dwordx4 {V(XF3(b_,u),4)}, v{6+u}, s[20:23], s53 offen offset:{(b_&3)*1024} sc1" for u in range(2)]
        return L_
    for b_ in range(LAB-1):
        for x in xop(b_): e(x)
    for x in ["v_xor_b32 v8, v3, v4", "v_lshlrev_b32 v8, 4, v8", "v_lshl_add_u32 v8, v3, 8, v8", "s_lshl_b32 s56, s40, 12", f"s_add_u32 s56, s56, {QB[0]}",
              "v_add_u32 v8, s56, v8", "v_xor_b32 v9, 64, v8", "v_mov_b32 v250, v10", "v_xor_b32 v10, 0x80, v8", "v_xor_b32 v11, 0xc0, v8"]: e(x)
    NBK = 32; PB = 14; PA = (26, 27)
    def padd(u, i):
        tt = TT + 2*(i & 3)
        return [f"v_lshlrev_b32 v{tt}, 16, v{PRW+u*8+i}", f"v_and_b32 v{tt+1}, 0xffff0000, v{PRW+u*8+i}",
                f"v_add_f32 v{acc2(u,0)+2*i}, v{acc2(u,0)+2*i}, v{tt}", f"v_add_f32 v{acc2(u,0)+2*i+1}, v{acc2(u,0)+2*i+1}, v{tt+1}"]
    issued = [("x", b_) for b_ in range(LAB-1) for u in range(2)]
    for b_ in range(NBK):
        last = max(k for k, t in enumerate(issued) if t == ("x", b_))
        if b_ in PA: last = max(last, issued.index(("p", 3)))
        if b_ == PB: last = max(last, issued.index(("f",)))
        if b_ == 29: last = max(last, issued.index(("w31",)))
        e(f"s_waitcnt vmcnt({len(issued)-1-last}) lgkmcnt({8 if b_ < NBK-1 else 0})")
        if b_ == 6: lds_wait(e, "LG_w4", "v255", SY_EG, f"v{EPR}", f"v{EP}")
        if b_ == PB:
            e("v_cmp_ne_u32 vcc, 1, v246")
            e("s_nop 4")
            e("s_cbranch_vccnz LG_pp")
            e.label("LG_ppr")
            ool.label("LG_pp")
            gpoll(ool, "LG_p3", "buffer_load_dword v246, v244, s[24:27], s36 offen sc1", ["v246"], "1")
            ool("s_branch LG_ppr")
        if b_ == 16:
            e("s_barrier")
            e("s_lshl_b32 s55, s40, 14")
            e("s_add_u32 s55, s55, 0x1f0000")
            e("s_lshl_b32 m0, s40, 10")
            e("s_nop 0")
            e("buffer_load_dwordx4 v250, s[16:19], s55 offen lds")
            issued.append(("w31",))
        if b_ == 29: e("s_barrier")
        if (b_ + 2) % 8 == 0 and b_ + 2 < NBK:
            d = QB[(b_+2)//8] - QB[(b_+2)//8 - 1]
            e(f"v_add_u32 v12, {d & 0xffffffff:#x}, v12")
            e(f"v_add_u32 v13, {d & 0xffffffff:#x}, v13")
        rd = wr3(b_+2) if b_ + 2 < NBK else []
        mf = [M16(V(acc2(u,t),4), V(WF3(b_%3,t),4), V(XF3(b_,u),4)) for t in range(4) for u in range(2)]
        for i, m in enumerate(mf):
            e(m)
            for x in rd[i:i+1]: e(x)
            nb_ = b_ + LAB - 1
            if nb_ < NBK:
                xo = xop(nb_)
                if i == 0: [e(x) for x in xo[:-2]]
                if i == 1: e(xo[-2]); issued.append(("x", nb_))
                if i == 4: e(xo[-1]); issued.append(("x", nb_))
            if i == 6 and b_ == 8:
                e("buffer_load_dword v246, v244, s[24:27], s36 offen sc1")
                issued.append(("f",))
            if i == 6 and PB <= b_ < PB + 4:
                k = b_ - PB
                e(f"buffer_load_dwordx4 {V(PRW+4*k,4)}, v5, s[24:27], s50 offen offset:{k*1024} sc1")
                issued.append(("p", k))
            if b_ in PA:
                m_ = (i + 5) % 8
                for x in padd(m_ & 1, 2*(m_ >> 1) + (b_ & 1)): e(x)
    e("v_lshrrev_b32 v6, 3, v1")
    e("v_and_b32 v7, 7, v1")
    e("v_lshlrev_b32 v7, 1, v7")
    e("v_xor_b32 v7, v7, v6")
    e("v_lshlrev_b32 v7, 4, v7")
    e("v_lshl_add_u32 v6, v6, 8, v7")
    e("v_add_u32 v6, s56, v6")
    e("v_xor_b32 v7, 16, v6")
    e("v_xor_b32 v12, 0x80, v6")
    e("v_xor_b32 v13, 0x90, v6")
    RB = XR
    ra = {(0,0): 6, (0,1): 7, (1,0): 12, (1,1): 13}
    for u in range(2):
        for t in range(4): e(f"ds_write_b128 v{8+t}, {V(acc2(u,t),4)}")
        for q in range(2):
            for h in range(2): e(f"ds_read_b128 {V(RB+(u*2+q)*8+h*4,4)}, v{ra[(q,h)]} offset:{q*2048}")
    wl = [10, 8, 2, 0]
    for q in range(4):
        e(f"s_waitcnt lgkmcnt({wl[q]})")
        for r in range(4): e(f"v_pk_add_f32 {V(RB+q*8+2*r,2)}, {V(RB+q*8+2*r,2)}, {V(SUMR(q*8+2*r),2)}")
        for r in range(4): e(f"v_cvt_pk_bf16_f32 v{WB+q*4+r}, v{RB+q*8+2*r}, v{RB+q*8+2*r+1}")
        e(f"s_add_u32 s55, s31, {q*16384}")
        e(f"buffer_store_dwordx4 {V(WB+q*4,4)}, v14, s[64:67], s55 offen {ST_OUT}")
    if LOOPST: e("v_mov_b32 v3, v2")
    stamp_flush(e, 2, 9)
    loopstamp_flush(e, "v3", 2)
    e("s_endpgm")
    e.extend(ool)
    tail = fix(e.ins, pre=body2)
    return pre + [Ins(".p2align 6")] + body + mid + [Ins(".p2align 6")] + body2 + tail
```

```python
import sys, importlib
from common import *
import k0_lnkv, k1_gemma, k2_attn, k3_gemmb, k2_fused, k3_out, k0_ln, k3_out2, k1_gemma2, k2_final
HDR = open("cdna_kernels/%s.s.ref" % NAME).read().split("; Override launch")[0]
if os.environ.get("FUSED", "2") == "3":
    import mega
    ks = [mega.gen()]
elif os.environ.get("FUSED", "2") == "2":
    ks = ([] if k1_gemma2.MERGE else [k0_ln.gen()]) + [k1_gemma2.gen(), k2_final.gen()]
elif os.environ.get("FUSED", "2") == "1":
    ks = [k0_ln.gen(), (k1_gemma2 if os.environ.get("K1", "2") == "2" else k1_gemma).gen(), k2_fused.gen(), (k3_out2 if os.environ.get("K3", "2") == "2" else k3_out).gen()]
else:
    ks = [k0_lnkv.gen(), k1_gemma.gen(), k2_attn.gen(), k3_gemmb.gen()]
if os.environ.get("WARMK"):
    import warmk
    ks = [warmk.gen(int(os.environ["WARMK"]))] + ks
order = [int(x) for x in os.environ.get("ORDER", "").split(",") if x] or list(range(len(ks)))
if max(order) >= len(ks):
    ks.append(("empty_kernel", kernel_text("empty_kernel", [Ins("s_endpgm")], 8, 8), (256, 256, 0)))
s = HDR
for oi in order:
    name, txt, (g, b, lds) = ks[oi]
    if os.environ.get("PLAIN") == "1": s += f"; @launch grid=({g},1,1) block=({b},1,1) lds={lds}\n"
    else: s += f"; @launch kernel={name} grid=({g},1,1) block=({b},1,1) lds={lds}\n"
s += '.amdgcn_target "amdgcn-amd-amdhsa--gfx950"\n'
for name, txt, _ in ks: s += txt
s += '.text\nLcode_end:\n'
out = sys.argv[1] if len(sys.argv) > 1 else "cdna_kernels/%s.s" % NAME
open(out, "w").write(s)
print("wrote", out, len(s))
```

```python
from common import *
from k0_ln import ln_body
import math

LA1 = int(os.environ.get('LA1', '4'))
PSLEEP = int(os.environ.get('PSLEEP', '4'))
APOS = eval(os.environ.get('APOS', '[0, 32, 64, 96, 128]'))
PRIO_A = int(os.environ.get('PRIO_A', '1'))
PRIO_GELU = int(os.environ.get('PRIO_GELU', '2'))
WOIT = int(os.environ.get('WOIT', '3'))
SPINMAX = int(os.environ.get('SPINMAX', '20000'))
PFX = int(os.environ.get('PFX', '0'))
HTHR = int(os.environ.get('HTHR', '2'))
PRIO_G1 = int(os.environ.get('PRIO_G1', '0'))
SPLIT = int(os.environ.get('SPLIT', '13'))
SMIT = int(os.environ.get('SMIT', '15'))
TGATE = int(os.environ.get('TGATE', '1'))
PSLEEP2 = int(os.environ.get('PSLEEP2', '8'))
GMAP = int(os.environ.get('GMAP', '0'))
TAFTER = int(os.environ.get('TAFTER', '0'))
EPF = int(os.environ.get('EPF', '0'))
CSPOS = int(os.environ.get('CSPOS', '1'))
CPS = int(os.environ.get('CPS', '9'))
STG = 53248; WOFF = 16384
LNS = 3*STG
SY = LNS + 512
SY_KVP, SY_Q, SY_OK, SY_EA, SY_EG = 0, 16, 32, 48, 64
QST = 143360; KVR = 135168
TBL = STG
WBASE = 61440; WSEG = 32768; SPARE = 32768
F_PF = FLG; F_OF = FLG + 16*128; F_HF = FLG + 20*128; F_KV = FLG + 24*128; F_SF = FLG + 26*128; F_CF = FLG + 28*128

def flat(L): return [y for x in L for y in (x if isinstance(x, list) else [x])]

def lds_wait(q, lbl, vaddr, off, vtmp, cmp_src):
    q("s_mov_b32 s3, 0")
    q(f"{lbl}:")
    q(f"ds_read_b32 {vtmp}, {vaddr} offset:{off}")
    q("s_add_u32 s3, s3, 1")
    q("s_waitcnt lgkmcnt(0)")
    q(f"v_cmp_gt_u32 vcc, {cmp_src}, {vtmp}")
    q("s_nop 4")
    q(f"s_cbranch_vccz {lbl}_ok")
    q("s_sleep 1")
    q(f"s_cmp_lt_u32 s3, {SPINMAX*8}")
    q(f"s_cbranch_scc1 {lbl}")
    q(f"{lbl}_ok:")

def gpoll(q, lbl, load, vregs, val, cnt="s58", sleep=None):
    q(f"s_mov_b32 {cnt}, 0")
    q(f"{lbl}:")
    q(load)
    q(f"s_add_u32 {cnt}, {cnt}, 1")
    q("s_waitcnt vmcnt(0)")
    for r in vregs[1:]: q(f"v_and_b32 {vregs[0]}, {vregs[0]}, {r}")
    q(f"v_cmp_ne_u32 vcc, {val}, {vregs[0]}")
    q("s_nop 4")
    q(f"s_cbranch_vccz {lbl}_ok")
    q(f"s_sleep {PSLEEP if sleep is None else sleep}")
    q(f"s_cmp_lt_u32 {cnt}, {SPINMAX}")
    q(f"s_cbranch_scc1 {lbl}")
    q(f"{lbl}_ok:")

def gen():
    name = NAME + "_kernel"
    lds = 163840
    p = Prog()
    p("s_cmp_ge_u32 s2, 256")
    p("s_cbranch_scc1 L_end")
    stamp(p, 0)
    p(f"s_load_dwordx4 s[64:67], s[0:1], {KA['x']}")
    p(f"s_load_dwordx4 s[8:11], s[0:1], {KA['w1']}")
    p(f"s_load_dwordx2 s[6:7], s[0:1], {KA['ws']}")
    p(f"s_load_dwordx4 s[32:35], s[0:1], {KA['wk']}")
    p(f"s_load_dwordx2 s[62:63], s[0:1], {KA['dbg']}")
    p("v_and_b32 v1, 63, v0")
    p("v_lshrrev_b32 v2, 6, v0")
    p("v_readfirstlane_b32 s40, v2")
    p("v_lshlrev_b32 v5, 4, v1")
    p("s_and_b32 s41, s2, 1")
    p("s_lshl_b32 s41, s41, 3")
    p("s_bfe_u32 s68, s2, 0x30003")
    p("s_add_u32 s41, s41, s68")
    p("s_bfe_u32 s42, s2, 0x20001")
    p("s_lshl_b32 s42, s42, 2")
    p("s_lshr_b32 s43, s2, 6")
    p("s_add_u32 s42, s42, s43")
    p("s_add_u32 s68, s68, s43")
    p("s_lshl_b32 s36, s41, 4")
    p("s_add_u32 s36, s36, s42")
    p("v_and_b32 v3, 15, v1")
    p("v_lshrrev_b32 v4, 4, v1")
    p("v_and_b32 v255, 3, v1")
    p("v_lshlrev_b32 v255, 2, v255")
    p(f"v_add_u32 v255, {SY}, v255")
    p("s_cmp_ge_u32 s40, 4")
    p("s_cbranch_scc1 L_G")
    head = fix(p.ins)

    p = Prog()
    sgelu = (2.0 * math.sqrt(2.0/math.pi) * math.log2(math.e) * 0.044715) ** (1.0/3.0)
    qs = math.log2(math.e) / math.sqrt(32.0)
    p("v_lshrrev_b32 v6, 3, v1")
    p("v_and_b32 v7, 7, v1")
    p("v_xor_b32 v7, v7, v6")
    p("v_lshlrev_b32 v7, 4, v7")
    p("v_lshl_add_u32 v6, v6, 11, v7")
    p("s_lshl_b32 s46, s41, 2")
    p("s_add_u32 s46, s46, s40")
    p("s_lshl_b32 s46, s46, 16")
    p("v_add_u32 v6, s46, v6")
    p("s_and_b32 s46, s41, 8")
    p("v_add_u32 v7, 0x4000, v6")
    p("v_add_u32 v14, 0x8000, v6")
    p("v_add_u32 v15, 0xc000, v6")
    p("v_lshrrev_b32 v8, 5, v1")
    p("v_lshlrev_b32 v8, 1, v8")
    p("v_and_b32 v9, 3, v1")
    p("v_xor_b32 v8, v8, v9")
    p("v_lshlrev_b32 v8, 4, v8")
    p("v_lshrrev_b32 v9, 2, v1")
    p("s_lshl_b32 s47, s40, 4")
    p("v_add_u32 v9, s47, v9")
    p("v_mul_u32_u24 v10, 7168, v9")
    p("s_mul_i32 s47, s42, 448")
    p("v_add3_u32 v10, v10, v8, s47")
    p("v_lshl_add_u32 v9, v9, 11, v8")
    p("s_lshl_b32 s47, s42, 7")
    p("v_add_u32 v9, s47, v9")
    p("s_lshl_b32 s51, s40, 12")
    p("s_lshl_b32 s52, s40, 10")
    p(f"s_add_u32 s52, s52, {WOFF}")
    def set_stage(n):
        slot = (n % 3) * STG
        return [f"s_add_u32 s69, {n}, s68", "s_and_b32 s69, s69, 3", f"s_cselect_b32 s69, 0, {LA1}", f"s_add_u32 s69, s69, {n}", "s_add_u32 s69, s69, s46", "s_and_b32 s69, s69, 15",
                "s_lshl_b32 s53, s69, 7", "s_lshl_b32 s54, s69, 17", f"s_mul_i32 s55, s69, {64*7168}", f"s_add_u32 s56, s51, {slot}", f"s_add_u32 s57, s52, {slot}"]
    slot_of = {"q0": 0, "q1": 4, 0: 1, 1: 2, 2: 3, 3: 8, 4: 5, 5: 6, 6: 7}
    OPS = [[f"s_add_u32 m0, s56, {q*1024}", f"buffer_load_dwordx4 v{(6,7,14,15)[q]}, s[12:15], s53 offen lds"] for q in range(4)]
    for a in range(2): OPS.append([f"s_add_u32 m0, s57, {slot_of['q%d'%a]*4096 - a*64}", f"buffer_load_dwordx4 v9, s[16:19], s54 offen offset:{a*64} lds"])
    for a in range(7): OPS.append([f"s_add_u32 m0, s57, {slot_of[a]*4096 - a*64}", f"buffer_load_dwordx4 v10, s[20:23], s55 offen offset:{a*64} lds"])
    issued = []
    def emit(x, tag=None):
        if isinstance(x, tuple):
            if x[0] == "raw":
                p(x[1]); return
            if x[0] == "wait":
                last = max(k for k, t in enumerate(issued) if t == x[1])
                p(f"s_waitcnt vmcnt({min(63, len(issued)-1-last)})")
                return
            x, tag = x
        p(x)
        if x.startswith("buffer_load"): issued.append(tag)
    def weave(ops, side):
        n = len(ops); k = 0
        for i, (g, tag) in enumerate(ops):
            for x in g: emit(x, tag)
            upto = (len(side) * (i + 1)) // n
            while k < upto:
                for x in side[k]: emit(x)
                k += 1
    for x in set_stage(0): p(x)
    p("s_waitcnt lgkmcnt(0)")
    srd(p, 12, 64, 2048*1024*2)
    for k, g in enumerate(OPS):
        if k == 4: srd(p, 16, 66, 1024*1024*2)
        if k == 6: srd(p, 20, 8, 1024*3584*2)
        for x in g: emit(x, ("st", 0))
    srd(p, 24, 6, WS_SIZE)
    SX = 232; SF = 16; ST_ = 48; BR = 248; BF = 240
    CX = 128; CA = 176; SELC = 196
    KX = 16; KTM = 80; KW = 96; KA_ = 80; KT = 232; ONES = 188
    su = []
    def s_(x): su.append([x])
    for r in range(2): s_(f"v_mov_b64 {V(216+2*r,2)}, 0")
    for x in ["s_lshl_b32 s38, s41, 12", "s_lshl_b32 s39, s40, 10", "s_add_u32 s38, s38, s39", f"s_add_u32 s38, s38, {hex(FLG)}"]: s_(x)
    su.append(["s_cmp_eq_u32 s42, 0", "s_cbranch_scc0 LA_nz", "buffer_store_dwordx4 v[216:219], v5, s[24:27], s38 offen sc1", "LA_nz:"])
    for x in ["v_lshrrev_b32 v204, 5, v1", "v_and_b32 v205, 31, v1", "v_lshlrev_b32 v205, 4, v205", "v_lshl_add_u32 v205, v204, 11, v205",
              "s_lshl_b32 s37, s36, 2", "s_add_u32 s37, s37, s40", "s_lshl_b32 s50, s37, 6", f"s_add_u32 s50, s50, {hex(CS)}", "s_lshl_b32 s37, s37, 12", "v_lshlrev_b32 v206, 5, v204"]: s_(x)
    for x in ["s_sub_u32 s43, 9, s68", "s_and_b32 s43, s43, 7", "v_lshrrev_b32 v207, 2, v1", "v_lshl_add_u32 v207, v207, 6, v8",
              f"s_add_u32 s47, s51, {WOFF}", "v_add_u32 v222, s47, v207", f"v_add_u32 v223, {WOFF+32768}, v207",
              "v_lshrrev_b32 v208, 1, v3", "v_and_b32 v209, 1, v3", "v_lshlrev_b32 v209, 4, v209", "v_mov_b32 v210, 0x3f80", "v_lshlrev_b32 v209, v209, v210"]: s_(x)
    for r in range(4): su.append([f"v_cmp_eq_u32 vcc, {r}, v208", "s_nop 1", f"v_cndmask_b32 v{SELC+r}, 0, v209, vcc"])
    s_("s_and_b32 s44, s42, 3")
    su.append(["s_cmp_ge_u32 s44, 2", "s_cselect_b32 s32, s34, s32", "s_cselect_b32 s33, s35, s33", "s_cselect_b32 s47, 4, 5", "s_cselect_b32 s48, 5, 4"])
    for x in ["s_and_b32 s33, s33, 0xffff", "s_mov_b32 s34, 0x10000", "s_mov_b32 s35, 0x20000",
              "v_and_b32 v11, 1, v1", "v_lshlrev_b32 v11, s47, v11", "v_bfe_u32 v12, v1, 1, 3", "v_lshl_add_u32 v11, v12, 6, v11", "v_lshl_add_u32 v11, v4, 11, v11",
              "s_and_b32 s47, s44, 1", "s_lshl_b32 s47, s47, s48", "s_lshl_b32 s60, s40, 14", "s_add_u32 s60, s60, s47",
              "s_lshl_b32 s45, s41, 2", "s_lshr_b32 s47, s42, 2", "s_add_u32 s45, s45, s47", "s_lshl_b32 s61, s45, 16", "s_lshl_b32 s47, s40, 9", "s_add_u32 s61, s61, s47",
              "v_bfe_u32 v211, v1, 2, 2", "v_lshlrev_b32 v211, 13, v211", "v_and_b32 v212, 3, v1", "v_lshl_add_u32 v211, v212, 4, v211", "v_lshl_add_u32 v211, v4, 6, v211",
              "s_lshl_b32 s59, s40, 10", f"s_add_u32 s59, s59, {LNS}",
              "v_lshlrev_b32 v12, 8, v4", "v_bfe_u32 v13, v1, 2, 2", "v_lshl_add_u32 v12, v13, 5, v12", "v_and_b32 v13, 3, v1", "v_lshl_add_u32 v12, v13, 3, v12", "v_add_u32 v12, s59, v12"]: s_(x)
    for r in range(4): s_(f"v_mov_b32 v{ONES+r}, 0x3f803f80")
    for x in set_stage(1): p(x)
    weave([(g, ("st", 1)) for g in OPS], su)
    for x in set_stage(2): p(x)
    emit(("wait", ("st", 0)))
    p("s_barrier")
    stamp(p, 7)
    def kv_issue(k): return ["s_mov_b32 m0, s59", f"s_add_u32 s47, s60, {(k>>2)*8192+(k&3)*512}", ("buffer_load_dwordx4 v11, s[32:35], s47 offen lds", ("kv", k))]
    def kv_use(k): return [("wait", ("kv", k)), f"ds_read_b64_tr_b16 {V(KW+4*k,2)}, v12", f"ds_read_b64_tr_b16 {V(KW+4*k+2,2)}, v12 offset:128", "s_waitcnt lgkmcnt(0)"]
    def kx_ld(bt):
        return [[f"s_add_u32 s47, s61, {(bt&1)*32768+q*2048}", (f"buffer_load_dwordx4 {V(KX+bt*16+4*q,4)}, v211, s[12:15], s47 offen offset:{(bt>>1)*256}", ("kx", bt))] for q in range(4)]
    def kx_tr(bt):
        R = lambda q, d: KX + bt*16 + 4*q + d
        Tm = lambda q, d: KTM + 4*q + d
        out = [[("wait", ("kx", bt))]]
        for (src, dst, x, qp, m) in ((R, Tm, 1, "[1,0,3,2]", "0xaaaaaaaa"), (Tm, R, 2, "[2,3,0,1]", "0xcccccccc")):
            hi = [q for q in range(4) if q & x]; lo = [q for q in range(4) if not q & x]
            a_ = [f"s_mov_b32 vcc_lo, {m}", f"s_mov_b32 vcc_hi, {m}"]
            a_ += [f"v_cndmask_b32_dpp v{dst(q,d)}, v{src(q^x,d)}, v{src(q,d)}, vcc quad_perm:{qp} row_mask:0xf bank_mask:0xf" for q in hi for d in range(4)]
            b_ = ["s_not_b64 vcc, vcc"]
            b_ += [f"v_cndmask_b32_dpp v{dst(q,d)}, v{src(q^x,d)}, v{src(q,d)}, vcc quad_perm:{qp} row_mask:0xf bank_mask:0xf" for q in lo for d in range(4)]
            out += [a_, b_]
        return out
    kv_mm = []
    for k in range(8):
        z = "0" if k == 0 else None
        kv_mm.append([M16(V(KA_+4*u,4), V(KW+4*k,4), V(KX+((k>>2)*2+u)*16+4*(k&3),4), z) for u in range(2)] + [M16(V(KA_+8,4), V(KW+4*k,4), V(ONES,4), z)])
    st_ld = [[(f"buffer_load_dwordx4 {V(SX+4*q,4)}, v205, s[12:15], s37 offen offset:{q*512}", "sx")] for q in range(4)]
    def red32(v, t): return [[f"v_add_f32_dpp v{v}, v{v}, v{v} row_ror:{r} row_mask:0xf bank_mask:0xf"] for r in (8, 4, 2, 1)] + \
                            [[f"v_mov_b32 v{t}, v{v}"], [f"v_permlane16_swap_b32 v{v}, v{t}"], [f"v_add_f32 v{v}, v{v}, v{t}"], [f"v_mul_f32 v{v}, {f32(1.0/1024)}, v{v}"]]
    A0 = ST_
    st1 = [[("wait", "sx")]]
    for i in range(16): st1 += [[f"v_lshlrev_b32 v{SF+2*i}, 16, v{SX+i}"], [f"v_and_b32 v{SF+2*i+1}, 0xffff0000, v{SX+i}"]]
    st1 += [[f"v_add_f32 v{A0+c}, v{SF+c}, v{SF+4+c}"] for c in range(4)] + [[f"v_add_f32 v{A0+i%4}, v{A0+i%4}, v{SF+i}"] for i in range(8, 32)]
    st1 += [[f"v_add_f32 v{A0}, v{A0}, v{A0+1}"], [f"v_add_f32 v{A0+2}, v{A0+2}, v{A0+3}"], [f"v_add_f32 v{A0+8}, v{A0}, v{A0+2}"]] + red32(A0+8, A0+1)
    st2 = [[f"v_sub_f32 v{SF+i}, v{SF+i}, v{A0+8}"] for i in range(32)]
    st2 += [[f"v_mul_f32 v{A0+c}, v{SF+c}, v{SF+c}"] for c in range(4)] + [[f"v_fmac_f32 v{A0+i%4}, v{SF+i}, v{SF+i}"] for i in range(4, 32)]
    st2 += [[f"v_add_f32 v{A0}, v{A0}, v{A0+1}"], [f"v_add_f32 v{A0+2}, v{A0+2}, v{A0+3}"], [f"v_add_f32 v{A0+9}, v{A0}, v{A0+2}"]] + red32(A0+9, A0+1)
    st3 = [[x] for x in [f"v_add_f32 v{A0+10}, {f32(1e-5)}, v{A0+9}", f"v_rsq_f32 v{A0+10}, v{A0+10}", f"v_mul_f32 v{A0+11}, v{A0+10}, v{A0+10}", f"v_mul_f32 v{A0+11}, v{A0+11}, v{A0+9}",
           f"v_add_f32 v{A0+11}, {f32(1e-5)}, v{A0+11}", f"v_rsq_f32 v{A0+11}, v{A0+11}", f"v_mul_f32 v{A0+4}, {f32(qs)}, v{A0+10}", f"v_mul_f32 v{A0}, v{A0+10}, v{A0+11}",
           f"v_mul_f32 v{A0}, {f32(sgelu)}, v{A0}", f"v_mov_b32 v{A0+1}, v{A0}", f"v_mul_f32_e64 v{A0+2}, -v{A0}, v{A0+8}", f"v_mov_b32 v{A0+3}, v{A0+2}", f"v_mul_f32_e64 v{A0+5}, -v{A0+4}, v{A0+8}"]]
    st3.append(["s_mov_b32 exec_lo, 1", "s_mov_b32 exec_hi, 1", (f"buffer_store_dwordx4 {V(A0,4)}, v206, s[24:27], s50 offen sc1", "pub"),
                (f"buffer_store_dwordx2 {V(A0+4,2)}, v206, s[24:27], s50 offen offset:16 sc1", "pub"), "s_mov_b64 exec, -1"])
    ool = Prog()
    ool.label("LA_cs")
    ool("v_add_u32 v220, s58, v222")
    ool("v_add_u32 v221, s58, v223")
    for k in range(3):
        for q in range(4): ool(f"ds_read_b128 {V(CX+(k*4+q)*4,4)}, v{220 if k < 2 else 221} offset:{(k&1)*16384+q*1024}")
    ool("s_add_u32 s47, s43, s46")
    ool("s_lshl_b32 s48, s42, 4")
    ool("s_add_u32 s47, s47, s48")
    ool("s_lshl_b32 s47, s47, 11")
    ool("s_lshl_b32 s48, s40, 7")
    ool("s_add_u32 s48, s48, s47")
    ool("v_lshlrev_b32 v220, 5, v3")
    ool("v_lshl_add_u32 v220, v4, 4, v220")
    ool("s_waitcnt lgkmcnt(0)")
    for q in range(4):
        for k in range(3): ool(M16(V(CA+4*k,4), V(SELC,4), V(CX+(k*4+q)*4,4), "0" if q == 0 else None))
    for rr in (4, 8):
        for r in range(12): ool(f"v_add_f32_dpp v{CA+r}, v{CA+r}, v{CA+r} row_ror:{rr} row_mask:0xf bank_mask:0xf")
    ool("s_mov_b32 exec_lo, 0x000f000f")
    ool("s_mov_b32 exec_hi, 0")
    ool(f"buffer_store_dwordx4 {V(CA,4)}, v220, s[24:27], s48 offen sc1")
    ool(f"buffer_store_dwordx4 {V(CA+4,4)}, v220, s[24:27], s48 offen offset:512 sc1")
    ool(f"buffer_store_dwordx4 {V(CA+8,4)}, v220, s[24:27], s47 offen offset:1024 sc1")
    ool("s_mov_b64 exec, -1")
    ool("s_setpc_b64 s[62:63]")
    def cs_call(tau): return [f"s_cmp_eq_u32 s43, {tau}", f"s_cbranch_scc0 LA_cn{tau}", f"s_mov_b32 s58, {(tau%3)*STG}", "s_call_b64 s[62:63], LA_cs", f"LA_cn{tau}:"]
    def chk(name, load, regs, tag):
        c = [("wait", tag)] + [f"v_and_b32 {regs[0]}, {regs[0]}, {r}" for r in regs[1:]] + [f"v_cmp_ne_u32 vcc, 1, {regs[0]}", "s_nop 4", f"s_cbranch_vccnz {name}_s", f"{name}_r:"]
        ool.label(name + "_s")
        gpoll(ool, name, load, regs, "1", cnt="s39")
        ool(f"s_branch {name}_r")
        return [(load, tag)], c
    def step(s, side=(), pre_=(), tail=(), post=()):
        if s >= 0: p("s_barrier")
        for x in flat(list(pre_)): emit(x)
        ops = []
        if s >= 0: ops += [(g, ("st", s+2)) for g in OPS[SPLIT:]]
        hd = [list(g) for g in OPS[:SPLIT]]
        if s >= 0: hd[0] = set_stage(s+3) + hd[0]
        ops += [(g, ("st", s+3)) for g in hd]
        weave(ops, list(side))
        for x in tail: emit(x)
        emit(("wait", ("st", s+2)))
        for x in flat(list(post)): emit(x)
        p("s_waitcnt lgkmcnt(0)")
    def raw(prog): return [("raw", i.text) for i in prog.ins]
    p("s_mov_b32 s4, s62")
    p("s_mov_b32 s5, s63")
    fa = [[x] for x in ["s_mov_b32 s28, s4", "s_and_b32 s29, s5, 0xffff", "s_mov_b32 s30, 0x100", "s_mov_b32 s31, 0x20000", "v_mov_b32 v217, 1", "v_mov_b32 v219, 0", "v_lshlrev_b32 v216, 2, v3",
                        "v_lshlrev_b32 v224, 2, v1", "s_lshl_b32 s64, s41, 12", f"s_add_u32 s64, s64, {hex(F_SF)}", "s_lshl_b32 s65, s42, 12", f"s_add_u32 s65, s65, {hex(F_CF)}",
                        "s_lshl_b32 s66, s42, 2", "s_add_u32 s66, s66, s40", "s_lshl_b32 s66, s66, 2", "s_add_u32 s66, s66, s64",
                        "s_lshl_b32 s67, s41, 2", "s_add_u32 s67, s67, s40", "s_lshl_b32 s67, s67, 2", "s_add_u32 s67, s67, s65"]]
    l1, c1 = chk("LA_p1", "buffer_load_dword v218, v216, s[28:31], 0 offen sc1", ["v218"], "f1")
    l2, c2 = chk("LA_p2", "buffer_load_dword v218, v224, s[24:27], s64 offen sc1", ["v218"], "f2")
    l3, c3 = chk("LA_p4", "buffer_load_dword v218, v224, s[24:27], s65 offen sc1", ["v218"], "f3")
    def wflag(r): return ["s_mov_b64 exec, 1", f"buffer_store_dword v217, v219, s[24:27], {r} offen sc1", "s_mov_b64 exec, -1"]
    D0 = ["s_waitcnt vmcnt(0)"]
    def cp(t): return cs_call(t) if CSPOS == 0 else []
    def ct(t): return cs_call(t) if CSPOS == 1 else []
    step(-1, pre_=cp(0), tail=ct(0))
    step(0, st_ld + fa, pre_=["s_cmp_eq_u32 s42, 0", "s_cbranch_scc0 LA_nz2", "s_waitcnt vmcnt(0)", "LA_nz2:"] + cp(1) + kv_issue(0), tail=ct(1))
    step(1, st1, pre_=kv_use(0) + cp(2) + kv_issue(1), tail=ct(2))
    step(2, kx_ld(3) + st2, pre_=kv_use(1) + cp(3) + kv_issue(2), tail=ct(3))
    step(3, st3 + kx_tr(3) + [l1], pre_=kv_use(2) + cp(4) + kv_issue(3), tail=ct(4))
    step(4, kx_ld(0), pre_=D0 + c1 + wflag('s66') + kv_use(3) + cp(5) + kv_issue(4), tail=ct(5))
    step(5, kx_ld(1) + kx_tr(0), pre_=kv_use(4) + cp(6) + kv_issue(5), tail=ct(6))
    step(6, kx_ld(2) + kx_tr(1), pre_=kv_use(5) + cp(7) + kv_issue(6), tail=ct(7))
    step(7, kx_tr(2), pre_=D0 + wflag('s67') + kv_use(6) + kv_issue(7) + l2)
    g_ld = [[x] for x in ["v_lshlrev_b32 v214, 5, v3", "s_lshl_b32 s47, s45, 10", f"s_add_u32 s47, s47, {hex(CS)}"]]
    g_ld += [[(f"buffer_load_dwordx2 {V(KT+2*u,2)}, v214, s[24:27], s47 offen offset:{u*512+16} sc1", "ks")] for u in range(2)]
    g2 = [[x] for x in ["s_cmp_lt_u32 s40, 2", "s_cselect_b32 s47, 31, 7", "v_and_b32 v207, s47, v1", "v_lshlrev_b32 v207, 4, v207", "v_lshl_add_u32 v208, v204, 11, v207",
                        "s_lshl_b32 s58, s42, 15", "s_min_u32 s48, s40, 2", "s_lshl_b32 s48, s48, 9", "s_add_u32 s58, s58, s48"]]
    g2 += [[(f"buffer_load_dwordx4 {V(CX+4*q,4)}, v208, s[24:27], s58 offen sc1", "cg"), "s_add_u32 s58, s58, 4096"] for q in range(8)]
    cor = [[("wait", "ks")]]
    for u in range(2):
        for r in range(4): cor += [[f"v_mul_f32 v{KA_+4*u+r}, v{KT+2*u}, v{KA_+4*u+r}"], [f"v_fmac_f32 v{KA_+4*u+r}, v{KT+2*u+1}, v{KA_+8+r}"]]
    cor += [[x] for x in ["s_and_b32 s47, s40, 1", "s_lshl_b32 s47, s47, 11", f"s_add_u32 s47, s47, {LNS}", "v_add_u32 v13, s47, v5"]]
    cor.append(["s_cmp_lt_u32 s40, 2", "s_cbranch_scc1 LA_r1", f"ds_write_b128 v13, {V(KA_,4)}", f"ds_write_b128 v13, {V(KA_+4,4)} offset:1024", "LA_r1:"])
    gs = [[("wait", "cg")]]
    for q in range(1, 8): gs += [[f"v_add_f32 v{CX+r}, v{CX+r}, v{CX+4*q+r}"] for r in range(4)]
    for r in range(4): gs += [[f"v_mov_b32 v{CX+4+r}, v{CX+r}"]]
    for r in range(4): gs += [[f"v_permlane32_swap_b32 v{CX+r}, v{CX+4+r}"]]
    for r in range(4): gs += [[f"v_add_f32 v{CX+r}, v{CX+r}, v{CX+4+r}"]]
    step(8, kv_mm, pre_=kv_use(7) + c2 + g_ld)
    cpf = [code_srd(32, "LA_loop") + ["v_lshlrev_b32 v225, 7, v1", "s_lshl_b32 s47, s40, 13", ("buffer_load_dword v203, v225, s[32:35], s47 offen", "c")]] if PFX == 2 else []
    step(9, pre_=cor, tail=flat(cpf) if CPS == 9 else [])
    red = [f"ds_read_b128 {V(KT,4)}, v13", f"ds_read_b128 {V(KT+4,4)}, v13 offset:1024", "s_waitcnt lgkmcnt(0)"] + \
          [f"v_add_f32 v{KA_+r}, v{KA_+r}, v{KT+r}" for r in range(8)]
    b_ld = [["s_mov_b32 s28, s10", "s_and_b32 s29, s11, 0xffff", f"s_mov_b32 s30, {3584*2}", "s_mov_b32 s31, 0x20000", "v_lshlrev_b32 v208, 3, v1", "s_mul_i32 s47, s42, 448",
             (f"buffer_load_dwordx2 {V(BR,2)}, v208, s[28:31], s47 offen", "b")]]
    step(10, b_ld, pre_=["s_cmp_ge_u32 s40, 2", "s_cbranch_scc1 LA_r2"] + red + ["s_cmp_eq_u32 s40, 0", "s_cbranch_scc1 LA_r2",
               f"ds_write_b128 v13, {V(KA_,4)}", f"ds_write_b128 v13, {V(KA_+4,4)} offset:1024", "LA_r2:"])
    fin = Prog()
    fin("s_cmp_eq_u32 s40, 0")
    fin("s_cbranch_scc0 LA_kvd")
    fin("v_add_u32 v13, 2048, v13")
    for x in red: fin(x)
    for r in range(8): fin(f"v_mul_f32 v{KA_+r}, {f32(1.0/qs)}, v{KA_+r}")
    for r in range(4): fin(f"v_cvt_pk_bf16_f32 v{KT+r}, v{KA_+2*r}, v{KA_+2*r+1}")
    fin("s_lshl_b32 s38, s45, 12")
    fin(f"s_add_u32 s38, s38, {hex(KV)}")
    fin("s_and_b32 s39, s44, 1")
    fin("s_cmp_ge_u32 s44, 2")
    fin("s_cbranch_scc1 LA_kvv")
    fin("v_and_b32 v11, 1, v4")
    fin("v_lshlrev_b32 v11, 9, v11")
    fin("v_lshl_add_u32 v11, v3, 4, v11")
    fin("v_lshrrev_b32 v12, 1, v4")
    fin("v_lshl_add_u32 v11, v12, 3, v11")
    fin("s_lshl_b32 s39, s39, 10")
    fin("s_add_u32 s38, s38, s39")
    for u in range(2): fin(f"buffer_store_dwordx2 {V(KT+2*u,2)}, v11, s[24:27], s38 offen offset:{u*256} sc1")
    fin("s_branch LA_kvd")
    fin.label("LA_kvv")
    fin("v_bfe_u32 v12, v3, 2, 1")
    fin("v_lshlrev_b32 v11, 8, v12")
    fin("v_lshl_add_u32 v11, v4, 6, v11")
    fin("v_lshrrev_b32 v12, 3, v3")
    fin("v_lshl_add_u32 v11, v12, 3, v11")
    fin("v_and_b32 v12, 3, v3")
    fin("v_lshl_add_u32 v11, v12, 1, v11")
    fin(f"v_add_u32 v11, {LNS+2048}, v11")
    for u in range(2):
        for r in range(4):
            op = "ds_write_b16" if r % 2 == 0 else "ds_write_b16_d16_hi"
            fin(f"{op} v11, v{KT+2*u+(r>>1)} offset:{u*512+r*16}")
    fin(f"ds_read_b128 {V(KT+4,4)}, v13")
    fin("v_lshlrev_b32 v11, 9, v4")
    fin("v_lshl_add_u32 v11, v3, 4, v11")
    fin("s_lshl_b32 s39, s39, 8")
    fin("s_add_u32 s38, s38, s39")
    fin("s_waitcnt lgkmcnt(0)")
    fin(f"buffer_store_dwordx4 {V(KT+4,4)}, v11, s[24:27], s38 offen offset:2048 sc1")
    fin.label("LA_kvd")
    fin("v_lshlrev_b32 v11, 2, v1")
    fin(f"v_add_u32 v11, {SY}, v11")
    fin("ds_write_b32 v11, v219")
    bu = [[("wait", "b")]] + [[x] for x in [f"v_lshlrev_b32 v{BF}, 16, v{BR}", f"v_and_b32 v{BF+1}, 0xffff0000, v{BR}", f"v_lshlrev_b32 v{BF+2}, 16, v{BR+1}", f"v_and_b32 v{BF+3}, 0xffff0000, v{BR+1}"]]
    bu += [[f"v_mul_f32 v{BF+r}, {f32(sgelu)}, v{BF+r}"] for r in range(4)]
    step(11, bu, pre_=raw(fin), tail=flat(cpf) if CPS == 11 else [])
    pub = ["s_cmp_eq_u32 s40, 0", "s_cbranch_scc0 LA_np0", "s_lshl_b32 s38, s41, 12", "s_lshl_b32 s39, s42, 2", "s_add_u32 s38, s38, s39", f"s_add_u32 s38, s38, {hex(F_KV)}",
           "s_waitcnt vmcnt(0)", "s_mov_b64 exec, 1", "buffer_store_dword v217, v219, s[24:27], s38 offen sc1", "s_mov_b64 exec, -1", "LA_np0:"]
    step(12, pre_=pub + l3, post=c3)
    p("s_barrier")
    p(f"ds_write_b128 v5, {V(BF,4)} offset:{TBL+2048}")
    for g in OPS[SPLIT:]:
        for x in g: emit(x, ("st", 15))
    p("s_lshl_b32 s47, s40, 10")
    p(f"s_add_u32 m0, s47, {TBL+4096}")
    p("s_lshl_b32 s48, s41, 12")
    p("s_add_u32 s47, s47, s48")
    p(f"s_add_u32 s47, s47, {hex(CS)}")
    emit("buffer_load_dwordx4 v5, s[24:27], s47 offen sc1 lds", "tk")
    for x in flat(g2) + flat(gs): emit(x)
    p(f"s_add_u32 s47, s48, {TBL}")
    p("v_add_u32 v207, s47, v207")
    p(f"ds_write_b128 v207, {V(CX,4)}")
    p("s_lshl_b32 s39, s40, 2")
    p(f"s_add_u32 s39, s39, {SY}")
    p("v_mov_b32 v254, s39")
    p("s_waitcnt lgkmcnt(0)")
    p("s_barrier")
    stamp(p, 5)

    Q = {0: 16, 1: 24}; C = {0: 32, 1: 48}; Sx = {0: 64, 1: 80}; P = {0: 96, 1: 104}
    O = {0: 112, 1: 128}; L = {0: 144, 1: 148}; SEL = 152
    KF = {0: 156, 1: 164}; VF = {0: 172, 1: 180}; T = 188; IDX = 200; EP = 201; EPR = 202
    p(f"s_load_dwordx2 s[4:5], s[0:1], {KA['wo']}")
    p("v_lshlrev_b32 v6, 4, v3")
    p("v_lshrrev_b32 v7, 5, v1")
    p("v_lshl_add_u32 v6, v7, 8, v6")
    p("v_bfe_u32 v8, v1, 4, 1")
    p(f"s_mov_b32 s44, {OH_TILE}")
    p("v_mul_lo_u32 v7, v8, s44")
    p("v_add_u32 v7, v7, v6")
    p("v_lshl_add_u32 v6, v8, 11, v6")
    p(f"s_add_u32 s47, s51, {QST}")
    p("v_add_u32 v6, s47, v6")
    p("s_lshl_b32 s45, s41, 2")
    p("s_add_u32 s45, s45, s40")
    p(f"s_mul_i32 s47, s45, {2*OH_TILE}")
    p("s_lshl_b32 s46, s42, 11")
    p("s_add_u32 s47, s47, s46")
    p(f"s_add_u32 s47, s47, {hex(OH_F)}")
    p("s_lshl_b32 s53, s41, 12")
    p("s_lshl_b32 s54, s40, 7")
    p("s_add_u32 s53, s53, s54")
    p("s_lshl_b32 s54, s42, 2")
    p("s_add_u32 s53, s53, s54")
    p(f"s_add_u32 s53, s53, {hex(F_OF)}")
    srd(p, 12, 6, 262144, KV)
    p("v_and_b32 v8, 4, v1")
    p("v_cmp_eq_u32 vcc, 0, v8")
    p("v_mov_b32 v9, 0x3f803f80")
    p("v_mov_b32 v8, 0")
    for r in range(2): p(f"v_cndmask_b32 v{SEL+r}, v8, v9, vcc")
    for r in range(2): p(f"v_cndmask_b32 v{SEL+2+r}, v9, v8, vcc")
    p("v_and_b32 v8, 1, v1")
    p("v_mul_u32_u24 v8, 0xaaaa, v8")
    p(f"v_add_u32 v{IDX}, 0x4444, v8")
    for x in range(2):
        for r in range(8): p(f"v_mov_b64 {V(O[x]+2*r,2)}, 0")
        for r in range(2): p(f"v_mov_b64 {V(L[x]+2*r,2)}, 0")
    for r in range(4):
        p(f"v_mov_b64 {V(P[1]+2*r,2)}, 0")
        p(f"v_mov_b64 {V(VF[1]+2*r,2)}, 0")
    p(f"v_mov_b32 v{EP}, 1")
    p("v_lshlrev_b32 v12, 7, v1")
    p("s_waitcnt lgkmcnt(0)")
    srd(p, 20, 4, 1024*1024*2)
    for x in code_srd(16, "LG_tail"): p(x)
    p("s_lshl_b32 s49, s2, 13")
    p("s_sub_u32 s55, s40, 1")
    p("s_lshl_b32 s55, s55, 13")
    p("s_cmp_eq_u32 s40, 0")
    p("s_cselect_b32 s16, s20, s16")
    p("s_cselect_b32 s17, s21, s17")
    p("s_cselect_b32 s18, s22, s18")
    p("s_cselect_b32 s55, s49, s55")
    p("s_cmp_eq_u32 s40, 1")
    p("s_cbranch_scc0 LA_np")
    p("v_lshrrev_b32 v13, 2, v1")
    p("v_lshlrev_b32 v13, 12, v13")
    p("v_and_b32 v14, 3, v1")
    p("v_lshl_add_u32 v13, v14, 4, v13")
    p(f"s_mov_b32 s48, {hex(F_KV)}")
    gpoll(p, "LA_p3", f"buffer_load_dwordx4 {V(T,4)}, v13, s[24:27], s48 offen sc1", [f"v{T+r}" for r in range(4)], "1")
    p(f"ds_write_b32 v255, v{EP} offset:{SY_OK}")
    p.label("LA_np")
    lds_wait(p, "LA_w3", "v255", SY_OK, "v13", "1")
    stamp(p, 4)
    lds_wait(p, "LA_w2", "v255", SY_Q, "v13", "1")
    for x in range(2):
        for mf in range(2): p(f"ds_read_b128 {V(Q[x]+4*mf,4)}, v6 offset:{x*1024+mf*512}")
    stamp(p, 6)
    if PRIO_A: p(f"s_setprio {PRIO_A}")
    p("s_lshl_b32 s50, s40, 11")
    p("s_mov_b32 s51, s50")
    def kvd(slot): return [f"s_add_u32 m0, s51, {slot*8192}", "buffer_load_dwordx4 v5, s[12:15], s50 offen sc1 lds",
                           "buffer_load_dwordx4 v5, s[12:15], s50 offen offset:1024 sc1 lds", "s_add_u32 s50, s50, 0x2000"]
    for c in range(3):
        for x in kvd(c): p(x)
    p("s_waitcnt vmcnt(4)")
    p(f"ds_write_b32 v254, v{EP} offset:{SY_EA}")
    lds_wait(p, "LA_w4", "v255", SY_EA, "v13", "1")
    stamp(p, 1)
    def rdK(buf, tile): return [f"ds_read_b128 {V(KF[buf]+4*m,4)}, v5 offset:{(tile&7)*4096+m*1024}" for m in range(2)]
    def rdV(buf, tile): return [f"ds_read_b128 {V(VF[buf]+4*m,4)}, v5 offset:{(tile&7)*4096+2048+m*1024}" for m in range(2)]
    def QK(x, buf, c=None):
        cc = V(C[x],16) if c is None else c
        return [M32(V(Sx[x],16), V(KF[buf],4), V(Q[x],4), cc), M32(V(Sx[x],16), V(KF[buf]+4,4), V(Q[x]+4,4))]
    def PV(x, buf): return [M32(V(O[x],16), V(VF[buf],4), V(P[x],4)), M32(V(O[x],16), V(VF[buf]+4,4), V(P[x]+4,4))]
    def SUM(x): return [f"v_smfmac_f32_16x16x64_bf16 {V(L[x],4)}, {V(SEL,4)}, {V(P[x],8)}, v{IDX}"]
    def rowmax(q, x, dst, init=None):
        s = Sx[x]
        if init is None:
            q(f"v_max3_f32 v{dst}, v{s}, v{s+1}, v{s+2}")
            q(f"v_max_f32 v{dst}, v{dst}, v{s+3}")
            st = 4
        else: st = 0
        for i in range(st, 16, 2): q(f"v_max3_f32 v{dst}, v{dst}, v{s+i}, v{s+i+1}")
    def setC(q, x, src):
        q(f"v_mov_b32 v{T+8}, v{src}")
        q(f"v_permlane32_swap_b32 v{src}, v{T+8}")
        q(f"v_max_f32 v{src}, v{src}, v{T+8}")
        for r in range(16): q(f"v_sub_f32 v{C[x]+r}, 0, v{src}")
    for x in rdK(0, 0): p(x)
    p(f"v_add_u32 v{EP}, 1, v{EP}")
    p("s_waitcnt vmcnt(2)")
    p(f"ds_write_b32 v254, v{EP} offset:{SY_EA}")
    p("s_waitcnt lgkmcnt(0)")
    for x in range(2):
        for m in QK(x, 0, "0"): p(m)
    for x in range(2):
        rowmax(p, x, T+x)
        setC(p, x, T+x)
    for m in QK(0, 0): p(m)
    p("s_mov_b32 s59, 0")
    p("s_nop 15")
    pre = fix(p.ins, pre=head)
    b = Prog()
    b.label("LA_loop")
    def valu(x):
        v = []
        for i in range(8):
            v += [f"v_exp_f32 v{Sx[x]+2*i}, v{Sx[x]+2*i}", f"v_exp_f32 v{Sx[x]+2*i+1}, v{Sx[x]+2*i+1}"]
            if i >= 1: v.append(f"v_cvt_pk_bf16_f32 v{P[x]+i-1}, v{Sx[x]+2*i-2}, v{Sx[x]+2*i-1}")
        v.append(f"v_cvt_pk_bf16_f32 v{P[x]+7}, v{Sx[x]+14}, v{Sx[x]+15}")
        return v
    def phase(x, mf, extra):
        v = valu(x); out = []; cum = 0; mi = 0
        for ins in v:
            while mi < 5 and cum >= APOS[mi]:
                out += extra.get(("pre", mi), [])
                out.append(mf[mi]); out += extra.get(mi, []); mi += 1
            out.append(ins); cum += 8 if "exp" in ins else 4
        assert mi == 5
        return out
    for t in range(8):
        kb = t & 1; ch = t >> 1
        nk = rdK(kb^1, t+1); nv = rdV(kb, t)
        ex = {0: [nk[0]], 1: [nk[1]], 2: [nv[0]], 3: [nv[1]]}
        if kb == 0: ex[4] = [f"ds_read_b32 v{EPR}, v255 offset:{SY_EA}"]
        for x in phase(0, QK(1, kb) + PV(1, kb^1) + SUM(1), ex): b(x)
        ex = {("pre", 0): ["s_waitcnt lgkmcnt(0)"]}
        if kb == 0:
            d = kvd((ch + 3) & 3)
            ex[0] = [f"v_cmp_gt_u32 vcc, v{EP}, v{EPR}"]
            ex[1] = [f"s_cbranch_vccnz LA_sp{ch}", f"LA_spr{ch}:"]
            ex[2] = [d[0]]; ex[3] = [d[1]]; ex[4] = [d[2], d[3]]
            ool.label(f"LA_sp{ch}")
            lds_wait(ool, f"LA_spw{ch}", "v255", SY_EA, f"v{EPR}", f"v{EP}")
            ool(f"s_branch LA_spr{ch}")
        else:
            ex[0] = [f"v_add_u32 v{EP}, 1, v{EP}"]
            ex[1] = ["s_waitcnt vmcnt(2)", f"ds_write_b32 v254, v{EP} offset:{SY_EA}"]
            if t == 3: ex[3] = [f"s_cmp_eq_u32 s59, {WOIT}", "s_cbranch_scc1 LA_xt", "LA_xtr:"]
            if t == 7: ex[4] = ["s_add_u32 s59, s59, 1", "s_cmp_lt_u32 s59, 8"]
        for x in phase(1, QK(0, kb^1) + PV(0, kb) + SUM(0), ex): b(x)
    b("s_cbranch_scc1 LA_loop")
    ool.label("LA_xt")
    ool("buffer_load_dword v13, v12, s[16:19], s55 offen")
    ool("s_branch LA_xtr")
    rep = []
    body = fix(b.ins, pre=pre, report=rep)
    if rep: print("attn loop nops:", len(rep), rep[:5])
    assert not check_loop(body)
    e = Prog()
    stamp(e, 2)
    for m in PV(1, 1) + SUM(1): e(m)
    e("s_mov_b32 s60, 0")
    e.label("LA_fin")
    e("s_nop 15")
    for x in range(2): e(f"v_add_f32 v{L[x]}, v{L[x]}, v{L[x]+1}")
    e(f"s_mov_b32 s61, {f32(2.0**40)}")
    e(f"v_cmp_gt_f32 vcc, s61, v{L[0]}")
    e(f"v_cmp_gt_f32 s[62:63], s61, v{L[1]}")
    e("s_and_b64 vcc, vcc, s[62:63]")
    e("s_cmp_eq_u64 vcc, -1")
    e("s_cbranch_scc1 LA_store")
    e("s_cmp_eq_u32 s60, 0")
    e("s_cbranch_scc1 LA_slow")
    e.label("LA_store")
    for x in range(4): e(f"v_rcp_f32 v{T+x}, v{L[x>>1]}")
    for x in range(2):
        for r in range(8): e(f"v_pk_mul_f32 {V(O[x]+2*r,2)}, {V(O[x]+2*r,2)}, {V(T+2*x,2)}")
        for hh in range(2):
            o = P[x] + 4*hh
            src = [4*hh, 4*hh+2, 8+4*hh, 8+4*hh+2]
            for i, sr in enumerate(src): e(f"v_cvt_pk_bf16_f32 v{o+i}, v{O[x]+sr}, v{O[x]+sr+1}")
            e(f"buffer_store_dwordx4 {V(o,4)}, v7, s[24:27], s47 offen offset:{x*1024+hh*512} sc1")
    e("v_mov_b32 v8, 1")
    e("v_mov_b32 v9, 0")
    stamp(e, 3)
    e("s_waitcnt vmcnt(0)")
    e("s_mov_b64 exec, 1")
    e("buffer_store_dword v8, v9, s[24:27], s53 offen sc1")
    e("s_mov_b64 exec, -1")
    stamp_flush(e, 2, 9)
    e.label("L_end")
    e("s_endpgm")
    e.label("LA_slow")
    e("s_mov_b32 s60, 1")
    e(f"v_mov_b32 v{T}, 0xff800000")
    e(f"v_mov_b32 v{T+1}, 0xff800000")
    e("s_mov_b32 s52, 0")
    e.label("LA_s1")
    for m in range(2): e(f"buffer_load_dwordx4 {V(KF[0]+4*m,4)}, v5, s[12:15], s52 offen offset:{m*1024} sc1")
    e("s_waitcnt vmcnt(0)")
    for x in range(2):
        for m in QK(x, 0, "0"): e(m)
    e("s_nop 15")
    for x in range(2): rowmax(e, x, T+x, init=True)
    e("s_add_u32 s52, s52, 4096")
    e("s_cmp_lt_u32 s52, 0x40000")
    e("s_cbranch_scc1 LA_s1")
    for x in range(2):
        setC(e, x, T+x)
        for r in range(16): e(f"v_mov_b32 v{O[x]+r}, 0")
        for r in range(4): e(f"v_mov_b32 v{L[x]+r}, 0")
    e("s_mov_b32 s52, 0")
    e.label("LA_s2")
    for m in range(2): e(f"buffer_load_dwordx4 {V(KF[0]+4*m,4)}, v5, s[12:15], s52 offen offset:{m*1024} sc1")
    for m in range(2): e(f"buffer_load_dwordx4 {V(VF[0]+4*m,4)}, v5, s[12:15], s52 offen offset:{2048+m*1024} sc1")
    e("s_waitcnt vmcnt(0)")
    for x in range(2):
        for m in QK(x, 0): e(m)
    e("s_nop 15")
    for x in range(2):
        for v in valu(x): e(v)
    e("s_nop 3")
    for x in range(2):
        for m in PV(x, 0) + SUM(x): e(m)
    e("s_nop 15")
    e("s_add_u32 s52, s52, 4096")
    e("s_cmp_lt_u32 s52, 0x40000")
    e("s_cbranch_scc1 LA_s2")
    e("s_branch LA_fin")
    e.extend(ool)
    epi = fix(e.ins, pre=body)
    roleA = pre + [Ins(".p2align 6")] + body + epi
    import mega_g
    roleG = mega_g.gen(head)
    ins = head + roleA + roleG
    return name, kernel_text(name, ins, 256, 256), (256, 512, lds)
```

```python
from common import *
from mega import *
import math

FLP = int(os.environ.get('FLP', '26'))
CPM = int(os.environ.get('CPM', '31'))
def gen(head):
    ACC = 16
    def acc(u, t): return ACC + (u*9+t)*4
    XB = 160; WS_ = 192; RAW = 236; CSC = 250
    def XF(f, u): return XB + f*16 + u*4
    sa = list(range(9)); sb = [9, 10, 0, 1, 2, 3, 4, 5, 6]
    def WF(f, t): return WS_ + (sa if f == 0 else sb)[t]*4
    p = Prog()
    p.label("L_G")
    p("s_sub_u32 s40, s40, 4")
    p("s_lshr_b32 s44, s40, 1")
    p("s_and_b32 s45, s40, 1")
    if CODEPF:
        for x in code_srd(28, NAME + "_kernel", back=True): p(x)
        p("v_lshlrev_b32 v20, 7, v1")
        p("s_lshr_b32 s47, s2, 3")
        p(f"s_and_b32 s47, s47, {CPM}")
        p("s_lshl_b32 s47, s47, 13")
        p("s_cmp_eq_u32 s40, 0")
        p("s_cbranch_scc0 LG_nt")
        p("buffer_load_dword v253, v20, s[28:31], s47 offen")
        p.label("LG_nt")
    p("s_lshl_b32 s39, s40, 2")
    p(f"s_add_u32 s39, s39, {SY}")
    p("v_mov_b32 v254, s39")
    p("v_lshrrev_b32 v22, 4, v1")
    p("v_mul_u32_u24 v22, 7168, v22")
    p("v_min_u32 v23, 13, v3")
    p("v_lshl_add_u32 v22, v23, 7, v22")
    p("v_lshrrev_b32 v23, 2, v1")
    p("v_and_b32 v24, 3, v1")
    p("v_lshlrev_b32 v24, 7, v24")
    p("v_lshl_add_u32 v23, v23, 11, v24")
    p("s_lshr_b32 s47, s2, 3")
    p("s_bfe_u32 s48, s2, 0x20001")
    p("s_waitcnt lgkmcnt(0)")
    p("s_cmp_eq_u32 s40, 3")
    p("s_cbranch_scc1 LG_eq")
    srd(p, 20, 8, 1024*3584*2)
    p(f"s_mul_i32 s49, s47, {4*7168}")
    p("s_mul_i32 s50, s48, 1792")
    p("s_add_u32 s49, s49, s50")
    p("s_and_b32 s50, s2, 1")
    p("s_lshl_b32 s50, s50, 2")
    p("s_add_u32 s50, s50, s40")
    p(f"s_mul_i32 s50, s50, {128*7168}")
    p("s_add_u32 s49, s49, s50")
    for g in range(EPF):
        p("buffer_load_dword v253, v22, s[20:23], s49 offen")
        p(f"s_add_u32 s49, s49, {3*128*7168}")
    p("s_branch LG_ed")
    p.label("LG_eq")
    srd(p, 20, 66, 1024*1024*2)
    p("s_lshl_b32 s49, s47, 15")
    p("s_lshl_b32 s50, s48, 9")
    p("s_add_u32 s49, s49, s50")
    p("s_and_b32 s50, s2, 1")
    p("s_lshl_b32 s50, s50, 20")
    p("s_add_u32 s49, s49, s50")
    for g in range(EPF):
        p("buffer_load_dword v253, v23, s[20:23], s49 offen")
        p(f"s_add_u32 s49, s49, {512*2048}")
    p.label("LG_ed")
    p("v_and_b32 v11, 7, v3")
    p("v_xor_b32 v11, v11, v4")
    p("v_lshlrev_b32 v11, 4, v11")
    p("v_lshl_add_u32 v11, v3, 7, v11")
    p("s_lshl_b32 s47, s44, 13")
    p("v_add_u32 v11, s47, v11")
    p("v_xor_b32 v10, 64, v11")
    p("v_lshlrev_b32 v15, 9, v4")
    p("v_bfe_u32 v13, v1, 2, 2")
    p("v_lshl_add_u32 v15, v13, 6, v15")
    p("v_and_b32 v13, 3, v1")
    p("v_lshl_add_u32 v15, v13, 3, v15")
    p("v_and_b32 v13, 1, v4")
    p("v_lshl_add_u32 v15, v13, 5, v15")
    p("s_lshl_b32 s47, s45, 5")
    p("v_xor_b32 v14, s47, v15")
    p(f"v_add_u32 v14, {WOFF+32768}, v14")
    p("s_lshl_b32 s47, s45, 14")
    p(f"s_add_u32 s47, s47, {WOFF}")
    p("v_add_u32 v12, s47, v15")
    p("v_xor_b32 v13, 32, v12")
    srd(p, 24, 6, WS_SIZE)
    srd(p, 28, 62, 256)
    p("v_mov_b32 v6, 0")
    p("v_mov_b32 v7, 1")
    p("s_lshl_b32 s37, s41, 2")
    p("s_or_b32 s39, s42, s40")
    p("s_cmp_eq_u32 s39, 0")
    p("s_cselect_b32 s3, 2, 0")
    p("s_mov_b32 s58, 0")
    p(f"s_mov_b32 s60, {STG}")
    p(f"s_mov_b32 s61, {STG}")
    p("s_mov_b32 s59, 0")
    p("s_barrier")
    if PRIO_G1: p(f"s_setprio {PRIO_G1}")
    stamp(p, 1)
    if LOOPST: p("s_mov_b32 s71, 0")
    def rx(f, kk): return [f"ds_read_b128 {V(XF(f,u),4)}, v{11-kk} offset:{u*2048}" for u in range(4)]
    def rw(f, t, kk):
        if t < 8: return [f"ds_read_b64_tr_b16 {V(WF(f,t)+rho*2,2)}, v{12+(t&1)} offset:{(t>>1)*4096+kk*2048+rho*256}" for rho in range(2)]
        return [f"ds_read_b64_tr_b16 {V(WF(f,t)+rho*2,2)}, v14 offset:{kk*2048+rho*256}" for rho in range(2)]
    def mfmas(f, zero=False): return [M16(V(acc(u,t),4), V(WF(f,t),4), V(XF(f,u),4), "0" if zero else None) for t in range(9) for u in range(4)]
    for x in rx(0, 0): p(x)
    for t in range(9):
        for x in rw(0, t, 0): p(x)
    p("s_waitcnt lgkmcnt(0)")
    rot_v = [f"v_add_u32 v{r}, s61, v{r}" for r in (10, 11, 12, 13, 14)]
    rot_s = ["s_mov_b32 s58, s60", f"s_add_u32 s60, s58, {STG}", f"s_cmp_eq_u32 s60, {3*STG}", "s_cselect_b32 s60, 0, s60", "s_sub_u32 s61, s60, s58"]
    def phaseA(zero=False, extra=()):
        early = rx(1, 1) + rw(1, 0, 1) + rw(1, 1, 1)
        fill = [(i // 2, x) for i, x in enumerate(early)]
        for t in range(2, 9):
            r = rw(1, t, 1)
            fill += [(4*(t-2)+4, r[0]), (4*(t-2)+5, r[1])]
        fill.append((7, "s_waitcnt lgkmcnt(10)"))
        fill += [(30+i, x) for i, x in enumerate(rot_v)]
        return interleave(mfmas(0, zero), fill + list(extra))
    def phaseB(last=False, extra=()):
        fill = []
        if not last:
            early = rx(0, 0) + rw(0, 7, 0) + rw(0, 8, 0)
            fill = [(i, x) for i, x in enumerate(early)]
            for t in range(7):
                r = rw(0, t, 0)
                if t < 6: fill += [(4*(t+2)+4, r[0]), (4*(t+2)+5, r[1])]
                else: fill += [(35, r[0]), (35, r[1])]
            fill += [(8, rot_s[0]), (8, rot_s[1]), (9, rot_s[2]), (9, rot_s[3]), (10, rot_s[4])]
        return interleave(mfmas(1), fill + list(extra))
    for x in phaseA(zero=True): p(x)
    p("s_waitcnt lgkmcnt(0)")
    pre = fix(p.ins, pre=head)
    ool = Prog()
    b = Prog()
    b.label("LG_l1")
    loopstamp(b, "v2", "v9")
    b("s_barrier")
    loopstamp(b, "v2", "v9")
    for x in phaseB(extra=[(14, "s_add_u32 s59, s59, 1")]): b(x)
    b("s_waitcnt lgkmcnt(4)")
    for x in phaseA(extra=[(FLP, "s_cmp_eq_u32 s59, s3"), (FLP, "s_cbranch_scc1 LG_fl"), (FLP, "LG_flr:"), (35, "s_cmp_lt_u32 s59, 15")]): b(x)
    b("s_waitcnt lgkmcnt(0)")
    b("s_cbranch_scc1 LG_l1")
    ool.label("LG_fl")
    ool("s_mov_b64 exec, 1")
    ool("buffer_store_dword v7, v6, s[28:31], s37 offen sc1")
    ool("s_mov_b64 exec, -1")
    ool("s_nop 3")
    ool("s_branch LG_flr")
    rep = []
    body = fix(b.ins, pre=pre, report=rep)
    if rep: print("gemm1 loop nops:", len(rep), rep[:5])
    assert not check_loop(body)
    e = Prog()
    sgelu = (2.0 * math.sqrt(2.0/math.pi) * math.log2(math.e) * 0.044715) ** (1.0/3.0)
    kappa = 2.0 * math.sqrt(2.0/math.pi) * math.log2(math.e) / sgelu
    qs = math.log2(math.e) / math.sqrt(32.0)
    TK = XB
    QP = RAW
    QC = WS_ + 28
    su = Prog()
    su(f"s_mov_b32 s62, {f32(sgelu)}")
    su(f"s_mov_b32 s63, {f32(sgelu)}")
    su("s_lshl_b32 s47, s44, 11")
    su(f"s_add_u32 s47, s47, {TBL+4096}")
    su("v_lshlrev_b32 v12, 5, v3")
    su("v_add_u32 v12, s47, v12")
    su("s_lshl_b32 s47, s45, 9")
    su(f"s_add_u32 s47, s47, {TBL}")
    su("v_lshlrev_b32 v13, 4, v4")
    su("v_add_u32 v14, s47, v13")
    for u in range(4): su(f"ds_read_b64 {V(QP+2*u,2)}, v12 offset:{u*512+16}")
    for t in range(2): su(f"ds_read_b128 {V(QC+4*t,4)}, v14 offset:{t*64}")
    for u in range(4): su(f"ds_read_b128 {V(TK+4*u,4)}, v12 offset:{u*512}")
    su("s_lshl_b32 s47, s45, 9")
    su(f"s_add_u32 s47, s47, {TBL}")
    su("v_add_u32 v12, s47, v13")
    su("s_lshl_b32 s47, s45, 6")
    su(f"s_add_u32 s47, s47, {TBL+384}")
    su("v_add_u32 v13, s47, v13")
    su("s_lshl_b32 s46, s41, 3")
    su("s_lshl_b32 s47, s44, 2")
    su("s_add_u32 s46, s46, s47")
    su(f"s_mul_i32 s48, s46, {OH_TILE}")
    su("s_mul_i32 s49, s42, 7168")
    su("s_add_u32 s48, s48, s49")
    su(f"s_add_u32 s48, s48, {hex(OH_F+32*1024)}")
    for u in range(1, 4): su(f"s_add_u32 s{48+u}, s48, {u*OH_TILE}")
    su("s_lshl_b32 s47, s45, 12")
    su("v_add_u32 v6, s47, v5")
    su("s_lshl_b32 s47, s45, 3")
    su("v_add_u32 v7, s47, v5")
    su("s_lshl_b32 s47, s44, 13")
    su("s_lshl_b32 s52, s45, 10")
    su("s_add_u32 s47, s47, s52")
    su(f"s_add_u32 s47, s47, {QST}")
    su("v_add_u32 v10, s47, v5")
    su(f"v_mov_b32 v8, {f32(kappa)}")
    su(f"v_mov_b32 v9, {f32(kappa)}")
    su("v_mov_b32 v11, 1")
    st = [i.text for i in su.ins]
    qv = ["s_waitcnt lgkmcnt(0)"]
    for u in range(4):
        for t in range(2):
            for r in range(4): qv += [f"v_mul_f32 v{acc(u,t)+r}, v{QP+2*u}, v{acc(u,t)+r}", f"v_fmac_f32 v{acc(u,t)+r}, v{QP+2*u+1}, v{QC+4*t+r}"]
    ex = [(i // 3, x) for i, x in enumerate(st)] + [(17 + i // 2, x) for i, x in enumerate(qv[:39])]
    for x in phaseB(last=True, extra=ex): e(x)
    stamp(e, 2)
    e.label("LG_epi")
    if PRIO_GELU: e(f"s_setprio {PRIO_GELU}")
    T = XB + 16; TB = WS_; PB_ = [WS_ + 16, RAW]
    def prm(grp, buf):
        if grp < 3: return [f"ds_read_b128 {V(buf+4*k,4)}, v12 offset:{(2048 if k >= 2 else 128)+grp*128+(k&1)*64}" for k in range(4)]
        return [f"ds_read_b128 {V(buf,4)}, v13 offset:640", f"ds_read_b128 {V(buf+8,4)}, v13 offset:2048"]
    PB0 = WS_ + 8
    for x in prm(0, PB0): e(x)
    for x in qv[39:]: e(x)
    for u in range(4):
        o = T + u*4
        for t in range(2):
            for h in range(2): e(f"v_cvt_pk_bf16_f32 v{o+2*t+h}, v{acc(u,t)+2*h}, v{acc(u,t)+2*h+1}")
        e(f"ds_write_b128 v10, {V(o,4)} offset:{u*2048}")
    e(f"ds_write_b32 v254, v11 offset:{SY_Q}")
    e(f"s_load_dwordx2 s[4:5], s[0:1], {KA['wo']}")
    e(f"s_load_dwordx4 s[8:11], s[0:1], {KA['w2']}")
    e(f"s_load_dwordx2 s[32:33], s[0:1], {KA['x']}")
    e(f"s_load_dwordx2 s[34:35], s[0:1], {KA['out']}")
    bufs = [PB0, RAW]
    TBS = [WS_, WS_ + 24]
    tcnt = [0]
    def gelu(items, out, buf):
        prs = [(acc(u,t)+2*h, buf+4*k+2*h, buf+8+4*k+2*h, u) for (u, t, k) in items for h in range(2)]
        n = len(prs)
        tb = TBS[tcnt[0] % 2]; tcnt[0] += 1
        for i, (a, cs, bb, u) in enumerate(prs): e(f"v_pk_fma_f32 {V(tb+2*i,2)}, {V(cs,2)}, {V(TK+4*u+2,2)}, {V(bb,2)}")
        for i, (a, cs, bb, u) in enumerate(prs): e(f"v_pk_fma_f32 {V(a,2)}, {V(a,2)}, {V(TK+4*u,2)}, {V(tb+2*i,2)}")
        for i, (a, cs, bb, u) in enumerate(prs): e(f"v_pk_fma_f32 {V(tb+2*i,2)}, {V(a,2)}, {V(a,2)}, v[8:9]")
        for i, (a, cs, bb, u) in enumerate(prs): e(f"v_pk_mul_f32 {V(tb+2*i,2)}, {V(tb+2*i,2)}, {V(a,2)} neg_lo:[0,1] neg_hi:[0,1]")
        for i in range(2*n): e(f"v_exp_f32 v{tb+i}, v{tb+i}")
        for i in range(n): e(f"v_pk_fma_f32 {V(tb+2*i,2)}, {V(tb+2*i,2)}, s[62:63], s[62:63]")
        for i in range(2*n): e(f"v_rcp_f32 v{tb+i}, v{tb+i}")
        for i, (a, cs, bb, u) in enumerate(prs): e(f"v_pk_mul_f32 {V(a,2)}, {V(a,2)}, {V(tb+2*i,2)}")
        for i, (a, cs, bb, u) in enumerate(prs): e(f"v_cvt_pk_bf16_f32 v{out+i}, v{a}, v{a+1}")
    ocnt = [0]
    def outreg():
        r = T + (ocnt[0] % 4) * 4; ocnt[0] += 1
        return r
    for grp in range(4):
        e("s_waitcnt lgkmcnt(0)")
        if grp < 3:
            for x in prm(grp+1, bufs[(grp+1) & 1]): e(x)
            for u in range(4):
                o = outreg()
                gelu([(u, 2+2*grp, 0), (u, 3+2*grp, 1)], o, bufs[grp & 1])
                if HTHR >= 0: e(f"s_waitcnt vmcnt({HTHR})")
                e(f"buffer_store_dwordx4 {V(o,4)}, v6, s[24:27], s{48+u} offen offset:{grp*1024} sc1")
        else:
            for u in (0, 2):
                o = outreg()
                gelu([(u, 8, 0), (u+1, 8, 0)], o, bufs[grp & 1])
                e(f"buffer_store_dwordx2 {V(o,2)}, v7, s[24:27], s{48+u} offen offset:3072 sc1")
                e(f"buffer_store_dwordx2 {V(o+2,2)}, v7, s[24:27], s{49+u} offen offset:3072 sc1")
    stamp(e, 3)
    e("s_lshl_b32 s37, s41, 5")
    e("s_lshr_b32 s38, s42, 3")
    e("s_lshl_b32 s38, s38, 1")
    e("s_add_u32 s37, s37, s38")
    e("s_add_u32 s37, s37, s44")
    e("s_lshl_b32 s37, s37, 7")
    e("s_and_b32 s38, s42, 7")
    e("s_lshl_b32 s38, s38, 1")
    e("s_add_u32 s38, s38, s45")
    e("s_lshl_b32 s38, s38, 2")
    e("s_add_u32 s37, s37, s38")
    e(f"s_add_u32 s37, s37, {hex(F_HF)}")

    def acc2(u, t): return ACC + (u*8+t)*4
    XR = 80
    def XF2(sg, kb, u): return XR + ((sg*4+kb)*2+u)*4
    WB = 144
    def WF2(f, t): return WB + f*32 + t*4
    TG = 208; EP = 240; EPR = 241
    p = e
    if GMAP == 1:
        p("s_and_b32 s41, s2, 7")
        p("s_lshl_b32 s41, s41, 1")
        p("s_bfe_u32 s43, s2, 0x10003")
        p("s_add_u32 s41, s41, s43")
        p("s_bfe_u32 s44, s2, 0x10004")
    else:
        p("s_and_b32 s41, s2, 3")
        p("s_lshl_b32 s41, s41, 2")
        p("s_bfe_u32 s43, s2, 0x20003")
        p("s_add_u32 s41, s41, s43")
        p("s_bfe_u32 s44, s2, 0x10002")
    p("s_lshr_b32 s42, s2, 5")
    p("v_and_b32 v13, 3, v1")
    p("v_lshlrev_b32 v13, 4, v13")
    p("s_lshl_b32 s47, s44, 1")
    p("v_xor_b32 v14, s47, v4")
    p("v_lshl_add_u32 v13, v14, 6, v13")
    p("v_bfe_u32 v14, v1, 2, 2")
    p("v_lshl_add_u32 v8, v14, 11, v13")
    p("s_lshl_b32 s47, s40, 16")
    p("v_add_u32 v8, s47, v8")
    p("v_xor_b32 v9, 32, v8")
    p("s_lshl_b32 s52, s40, 13")
    p(f"s_add_u32 s52, s52, {WBASE}")
    p(f"s_mul_i32 s54, s44, {1792*2048}")
    p("s_lshl_b32 s48, s42, 8")
    p("s_add_u32 s54, s54, s48")
    p(f"s_mul_i32 s53, s44, {56*1024}")
    p("s_add_u32 s53, s53, 0x8000")
    p("s_mov_b32 s56, s52")
    p("s_movk_i32 s57, 0x2000")
    srd(p, 16, 8, 3584*1024*2)
    srd(p, 20, 6, 128*OH_TILE, OH_F)
    p("s_lshl_b32 s46, s41, 3")
    p("s_lshl_b32 s47, s40, 1")
    p("s_add_u32 s46, s46, s47")
    p(f"s_mul_i32 s47, s46, {OH_TILE}")
    p("v_add_u32 v6, s47, v5")
    p(f"v_add_u32 v7, {OH_TILE}, v6")
    p("s_and_b32 s5, s5, 0xffff")
    p("v_lshlrev_b32 v12, 9, v4")
    p("v_add_u32 v12, v12, v15")
    p(f"v_add_u32 v12, {WBASE}, v12")
    p("v_xor_b32 v13, 32, v12")
    p("v_mov_b32 v242, v15")
    p("s_lshl_b32 s45, s44, 7")
    p("s_add_u32 s45, s45, s48")
    p("s_lshl_b32 s62, s40, 17")
    p("v_lshrrev_b32 v10, 5, v1")
    p("v_lshlrev_b32 v243, 1, v10")
    p("v_and_b32 v14, 3, v1")
    p("v_xor_b32 v243, v243, v14")
    p("v_lshlrev_b32 v243, 4, v243")
    p("v_bfe_u32 v14, v1, 4, 1")
    p("v_lshl_add_u32 v243, v14, 6, v243")
    p("v_bfe_u32 v14, v1, 2, 2")
    p("v_lshl_add_u32 v10, v10, 2, v14")
    p("v_lshl_add_u32 v10, v10, 11, v243")
    p("v_add_u32 v10, s45, v10")
    RRX = TG; RRB = TG + 16
    srd(p, 64, 32, 2048*1024*2)
    p("s_mov_b32 s28, s34")
    p("s_mov_b32 s29, s35")
    srd(p, 32, 10, 2048)
    p("v_and_b32 v15, 7, v1")
    p("v_lshlrev_b32 v15, 4, v15")
    p("v_lshrrev_b32 v14, 3, v1")
    p("v_lshl_add_u32 v14, v14, 11, v15")
    p("s_lshl_b32 s31, s46, 15")
    p("s_add_u32 s31, s31, s45")
    for i in range(32): p(f"v_mov_b64 {V(ACC+2*i,2)}, 0")
    p(f"v_mov_b32 v{EP}, 1")
    p("v_mov_b32 v244, 0")
    p("v_lshlrev_b32 v245, 2, v3")
    p("s_lshl_b32 s38, s41, 5")
    p("s_lshl_b32 s39, s44, 1")
    p("s_add_u32 s38, s38, s39")
    p("s_lshr_b32 s39, s40, 1")
    p("s_add_u32 s38, s38, s39")
    p("s_lshl_b32 s38, s38, 7")
    p(f"s_add_u32 s38, s38, {hex(F_HF)}")
    p("s_waitcnt vmcnt(0)")
    p("s_mov_b64 exec, 1")
    p("buffer_store_dword v11, v244, s[24:27], s37 offen sc1")
    p("s_mov_b64 exec, -1")
    stamp(p, 4)
    def wdma(q): return [f"s_add_u32 m0, s56, {q*1024}", ("s_mov_b32 s55, s54" if q == 0 else "s_add_u32 s55, s55, s57"), f"buffer_load_dwordx4 v{8+(q&1)}, s[16:19], s55 offen lds"]
    def xld(sg, kb): return [f"buffer_load_dwordx4 {V(XF2(sg,kb,u),4)}, v{6+u}, s[20:23], s53 offen offset:{kb*1024} sc1" for u in range(2)]
    lds_wait(p, "LG_w1", "v255", SY_EA, f"v{EPR}", "1")
    for n in range(2):
        for q in range(8):
            for x in wdma(q): p(x)
        p("s_add_u32 s54, s54, 0x40000")
        p(f"s_add_u32 s56, s56, {WSEG}")
    gpoll(p, "LG_p1", "buffer_load_dword v246, v245, s[24:27], s38 offen sc1", ["v246"], "1")
    p(f"ds_write_b32 v254, v{EP} offset:{SY_EG}")
    for n in range(2):
        for kb in range(4):
            for x in xld(n, kb): p(x)
        p("s_add_u32 s53, s53, 0x1000")
    lds_wait(p, "LG_w2", "v255", SY_EG, f"v{EPR}", "1")
    def wreads(f, kb): return [f"ds_read_b64_tr_b16 {V(WF2(f,t)+rho*2,2)}, v{12+(t&1)} offset:{kb*8192+rho*4096+(t>>1)*256}" for t in range(8) for rho in range(2)]
    def mf2(f, sg, kb): return [M16(V(acc2(u,t),4), V(WF2(f,t),4), V(XF2(sg,kb,u),4)) for t in range(8) for u in range(2)]
    for x in wreads(0, 0): p(x)
    p("s_mov_b32 s58, 0")
    p("s_mov_b32 s59, 3")
    p("s_mov_b32 s63, 0")
    p("s_waitcnt vmcnt(0)")
    p("s_setprio 0")
    stamp(p, 5)
    mid = fix(p.ins, pre=body)
    sgc = [0]
    def seg_early(): return ["s_add_u32 s54, s54, 0x40000", "s_add_u32 s56, s52, s63", f"s_add_u32 s63, s63, {WSEG}", f"s_cmp_eq_u32 s63, {3*WSEG}", "s_cselect_b32 s63, 0, s63"]
    def seg_setup(q0):
        q0("s_add_u32 s53, s53, 0x1000")
        sgc[0] += 1
        q0("s_add_u32 s59, s59, 1")
        q0("s_cmp_ge_u32 s59, 15")
        q0(f"s_cbranch_scc1 LG_so{sgc[0]}")
        q0(f"LG_sg{sgc[0]}:")
        q = ool
        q(f"LG_so{sgc[0]}:")
        q("s_mov_b32 s16, s4")
        q("s_mov_b32 s17, s5")
        q("s_mov_b32 s18, 0x200000")
        q("s_mov_b32 s54, s62")
        q("s_add_u32 s62, s62, 0x80000")
        q("s_movk_i32 s57, 0x4000")
        q("s_mov_b32 s22, 0")
        q("s_setprio 2")
        q("v_mov_b32 v8, v10")
        q("v_mov_b32 v9, v10")
        q("s_setprio 0")
        q("s_cmp_ge_u32 s59, 16")
        q(f"s_cbranch_scc1 LG_sg{sgc[0]}")
        for k in range(4):
            q(f"s_add_u32 s55, s31, {k*16384}")
            q(f"buffer_load_dwordx4 {V(RRX+4*k,4)}, v14, s[64:67], s55 offen")
        q(f"buffer_load_dwordx4 {V(RRB,4)}, v15, s[32:35], s45 offen")
        q("s_lshl_b32 s60, s40, 13")
        q(f"s_add_u32 s60, s60, {SPARE}")
        q("s_add_u32 s55, s54, 0x180000")
        for k in range(8):
            if k == 4:
                q("s_cmp_eq_u32 s40, 3")
                q(f"s_cbranch_scc1 LG_sg{sgc[0]}")
            q(f"s_add_u32 m0, s60, {k*1024}")
            q("s_nop 0")
            q("buffer_load_dwordx4 v10, s[16:19], s55 offen lds")
            q("s_add_u32 s55, s55, 0x4000")
        q(f"s_branch LG_sg{sgc[0]}")
    b = Prog()
    b.label("LG_l2")
    for sg in range(2):
        for kb in range(4):
            f = kb & 1
            if kb < 3:
                b("s_waitcnt vmcnt(28) lgkmcnt(0)")
                fill = [(i // 2, x) for i, x in enumerate(wreads(f^1, kb+1))]
                wpos = (8, 10)
            else:
                b("s_waitcnt vmcnt(14) lgkmcnt(0)")
                b(f"ds_write_b32 v254, v{EP} offset:{SY_EG}")
                fill = [(2, f"ds_read_b32 v{EPR}, v255 offset:{SY_EG}"),
                        (6, "s_waitcnt lgkmcnt(0)"), (6, "s_setprio 2"), (6, f"v_cmp_gt_u32 vcc, v{EP}, v{EPR}"), (6, "s_setprio 0"),
                        (7, f"s_cbranch_vccnz LG_sp{sg}"), (7, f"LG_spr{sg}:")]
                fill += [(7 + i // 2, x) for i, x in enumerate(wreads(f^1, 0))]
                wpos = (0, 3)
                ool.label(f"LG_sp{sg}")
                ool("s_setprio 2")
                lds_wait(ool, f"LG_spw{sg}", "v255", SY_EG, f"v{EPR}", f"v{EP}")
                ool("s_setprio 0")
                ool(f"s_branch LG_spr{sg}")
            for q, ps in zip((2*kb, 2*kb+1), wpos):
                wd = wdma(q)
                fill += [(ps, wd[0]), (ps, wd[1]), (ps+1, wd[2])]
            if kb == 2:
                fill += [(12, f"s_add_u32 s60, s58, {WSEG}"), (12, f"s_cmp_eq_u32 s60, {3*WSEG}"), (12, "s_cselect_b32 s60, 0, s60"),
                         (13, "s_sub_u32 s61, s60, s58"), (13, "s_mov_b32 s58, s60"),
                         (14, "s_setprio 2"), (14, "v_add_u32 v12, s61, v12"), (14, "v_add_u32 v13, s61, v13"), (14, f"v_add_u32 v{EP}, 1, v{EP}"), (14, "s_setprio 0")]
            if kb == 3:
                se = seg_early()
                fill += [(5, se[0]), (5, se[1]), (15, se[2]), (15, se[3]), (15, se[4])]
            fill += [(15, x) for x in xld(sg, kb)]
            for x in interleave(mf2(f, sg, kb), fill): b(x)
        seg_setup(b)
    b("s_cmp_lt_u32 s59, 17")
    b("s_cbranch_scc1 LG_l2")
    rep = []
    body2 = fix(b.ins, pre=mid, report=rep)
    if rep: print("gemm2 loop nops:", len(rep), rep[:5])
    assert not check_loop(body2)
    e = Prog()
    stamp(e, 6)
    e.label("LG_tail")
    for q in range(8):
        for x in wdma(q): e(x)
    e("s_lshl_b32 s47, s41, 3")
    e("s_add_u32 s47, s47, s42")
    e("s_lshl_b32 s47, s47, 1")
    e("s_add_u32 s47, s47, s44")
    e("s_xor_b32 s49, s47, 1")
    e("s_lshl_b32 s50, s47, 2")
    e("s_add_u32 s50, s50, s40")
    e("s_lshl_b32 s50, s50, 12")
    e(f"s_add_u32 s50, s50, {hex(PART)}")
    e("s_waitcnt lgkmcnt(0)")
    for u in range(2):
        for tp in range(2):
            o = WB + (u*2+tp)*4
            for h in range(2):
                t = 4 + 2*tp + h
                e(f"v_cvt_pk_bf16_f32 v{o+2*h}, v{acc2(u,t)}, v{acc2(u,t)+1}")
                e(f"v_cvt_pk_bf16_f32 v{o+2*h+1}, v{acc2(u,t)+2}, v{acc2(u,t)+3}")
    for k in range(4): e(f"buffer_store_dwordx4 {V(WB+4*k,4)}, v5, s[24:27], s50 offen offset:{k*1024} sc1")
    e("s_lshl_b32 s47, s47, 7")
    e("s_lshl_b32 s55, s41, 9")
    e("s_add_u32 s55, s55, s40")
    e("s_lshl_b32 s55, s55, 2")
    e("s_add_u32 s47, s47, s55")
    e(f"s_add_u32 s47, s47, {hex(F_PF)}")
    e("s_lshl_b32 s53, s49, 7")
    e("s_add_u32 s53, s53, s55")
    e(f"s_add_u32 s53, s53, {hex(F_PF)}")
    e("s_lshl_b32 s50, s49, 2")
    e("s_add_u32 s50, s50, s40")
    e("s_lshl_b32 s50, s50, 12")
    e(f"s_add_u32 s50, s50, {hex(PART)}")
    QB = [WBASE + 2*WSEG, WBASE, WBASE + WSEG, SPARE]
    e(f"v_add_u32 v12, {QB[0]}, v242")
    e("v_xor_b32 v13, 32, v12")
    def SUMR(i): return (acc2(0, 4) + i) if i < 16 else (WB + 48 + i - 16)
    PRW = acc2(1, 4); TT = TG + 20
    for i in range(4):
        e(f"v_lshlrev_b32 v{TT+2*i}, 16, v{RRB+i}")
        e(f"v_and_b32 v{TT+2*i+1}, 0xffff0000, v{RRB+i}")
    for i in range(16):
        e(f"v_lshlrev_b32 v{SUMR(2*i)}, 16, v{RRX+i}")
        e(f"v_and_b32 v{SUMR(2*i)+1}, 0xffff0000, v{RRX+i}")
        e(f"v_pk_add_f32 {V(SUMR(2*i),2)}, {V(SUMR(2*i),2)}, {V(TT+2*(i&3),2)}")
    e(f"s_mov_b32 s22, {128*OH_TILE}")
    e("s_lshl_b32 s55, s41, 5")
    e("s_add_u32 s55, s55, s40")
    e("s_lshl_b32 s55, s55, 7")
    e(f"s_add_u32 s55, s55, {hex(F_OF)}")
    e("s_mov_b32 s37, s55")
    srd(e, 64, 28, 2048*1024*2)
    e("v_add_u32 v247, 0, v242")
    e("v_xor_b32 v248, 32, v247")
    e(f"v_add_u32 v{EP}, 1, v{EP}")
    e("v_mov_b32 v249, 34")
    e("s_waitcnt vmcnt(0)")
    e("s_mov_b64 exec, 1")
    e("buffer_store_dword v11, v244, s[24:27], s47 offen sc1")
    e("s_mov_b64 exec, -1")
    e(f"ds_write_b32 v254, v{EP} offset:{SY_EG}")
    def WF3(f, t): return WB + f*16 + t*4
    def wr3(b_):
        if b_ == 31: return [f"ds_read_b64_tr_b16 {V(WF3(b_%3,t)+rho*2,2)}, v{247+(t&1)} offset:{rho*2048+(t>>1)*256}" for t in range(4) for rho in range(2)]
        return [f"ds_read_b64_tr_b16 {V(WF3(b_%3,t)+rho*2,2)}, v{12+(t&1)} offset:{(b_&7)*4096+rho*2048+(t>>1)*256}" for t in range(4) for rho in range(2)]
    for x in wr3(0) + wr3(1): e(x)
    if TGATE: lds_wait(e, "LG_w3", "v255", SY_EA, f"v{EPR}", "v249")
    stamp(e, 7)
    gpoll(e, "LG_p2", "buffer_load_dword v246, v245, s[24:27], s37 offen sc1", ["v246"], "1", sleep=PSLEEP2)
    e("s_mov_b32 s36, s53")
    LAB = 8
    def XF3(b_, u): return XR + ((b_ % LAB)*2+u)*4
    def xop(b_):
        L_ = []
        if (b_ & 3) == 0: L_.append(f"s_mov_b32 s53, {(b_>>2)*4096}")
        L_ += [f"buffer_load_dwordx4 {V(XF3(b_,u),4)}, v{6+u}, s[20:23], s53 offen offset:{(b_&3)*1024} sc1" for u in range(2)]
        return L_
    for b_ in range(LAB-1):
        for x in xop(b_): e(x)
    for x in ["v_xor_b32 v8, v3, v4", "v_lshlrev_b32 v8, 4, v8", "v_lshl_add_u32 v8, v3, 8, v8", "s_lshl_b32 s56, s40, 12", f"s_add_u32 s56, s56, {QB[0]}",
              "v_add_u32 v8, s56, v8", "v_xor_b32 v9, 64, v8", "v_mov_b32 v250, v10", "v_xor_b32 v10, 0x80, v8", "v_xor_b32 v11, 0xc0, v8"]: e(x)
    NBK = 32; PB = 14; PA = (26, 27)
    def padd(u, i):
        tt = TT + 2*(i & 3)
        return [f"v_lshlrev_b32 v{tt}, 16, v{PRW+u*8+i}", f"v_and_b32 v{tt+1}, 0xffff0000, v{PRW+u*8+i}",
                f"v_add_f32 v{acc2(u,0)+2*i}, v{acc2(u,0)+2*i}, v{tt}", f"v_add_f32 v{acc2(u,0)+2*i+1}, v{acc2(u,0)+2*i+1}, v{tt+1}"]
    issued = [("x", b_) for b_ in range(LAB-1) for u in range(2)]
    for b_ in range(NBK):
        last = max(k for k, t in enumerate(issued) if t == ("x", b_))
        if b_ in PA: last = max(last, issued.index(("p", 3)))
        if b_ == PB: last = max(last, issued.index(("f",)))
        if b_ == 29: last = max(last, issued.index(("w31",)))
        e(f"s_waitcnt vmcnt({len(issued)-1-last}) lgkmcnt({8 if b_ < NBK-1 else 0})")
        if b_ == 6: lds_wait(e, "LG_w4", "v255", SY_EG, f"v{EPR}", f"v{EP}")
        if b_ == PB:
            e("v_cmp_ne_u32 vcc, 1, v246")
            e("s_nop 4")
            e("s_cbranch_vccnz LG_pp")
            e.label("LG_ppr")
            ool.label("LG_pp")
            gpoll(ool, "LG_p3", "buffer_load_dword v246, v244, s[24:27], s36 offen sc1", ["v246"], "1")
            ool("s_branch LG_ppr")
        if b_ == 16:
            e("s_barrier")
            e("s_lshl_b32 s55, s40, 14")
            e("s_add_u32 s55, s55, 0x1f0000")
            e("s_lshl_b32 m0, s40, 10")
            e("s_nop 0")
            e("buffer_load_dwordx4 v250, s[16:19], s55 offen lds")
            issued.append(("w31",))
        if b_ == 29: e("s_barrier")
        if (b_ + 2) % 8 == 0 and b_ + 2 < NBK:
            d = QB[(b_+2)//8] - QB[(b_+2)//8 - 1]
            e(f"v_add_u32 v12, {d & 0xffffffff:#x}, v12")
            e(f"v_add_u32 v13, {d & 0xffffffff:#x}, v13")
        rd = wr3(b_+2) if b_ + 2 < NBK else []
        mf = [M16(V(acc2(u,t),4), V(WF3(b_%3,t),4), V(XF3(b_,u),4)) for t in range(4) for u in range(2)]
        for i, m in enumerate(mf):
            e(m)
            for x in rd[i:i+1]: e(x)
            nb_ = b_ + LAB - 1
            if nb_ < NBK:
                xo = xop(nb_)
                if i == 0: [e(x) for x in xo[:-2]]
                if i == 1: e(xo[-2]); issued.append(("x", nb_))
                if i == 4: e(xo[-1]); issued.append(("x", nb_))
            if i == 6 and b_ == 8:
                e("buffer_load_dword v246, v244, s[24:27], s36 offen sc1")
                issued.append(("f",))
            if i == 6 and PB <= b_ < PB + 4:
                k = b_ - PB
                e(f"buffer_load_dwordx4 {V(PRW+4*k,4)}, v5, s[24:27], s50 offen offset:{k*1024} sc1")
                issued.append(("p", k))
            if b_ in PA:
                m_ = (i + 5) % 8
                for x in padd(m_ & 1, 2*(m_ >> 1) + (b_ & 1)): e(x)
    e("v_lshrrev_b32 v6, 3, v1")
    e("v_and_b32 v7, 7, v1")
    e("v_lshlrev_b32 v7, 1, v7")
    e("v_xor_b32 v7, v7, v6")
    e("v_lshlrev_b32 v7, 4, v7")
    e("v_lshl_add_u32 v6, v6, 8, v7")
    e("v_add_u32 v6, s56, v6")
    e("v_xor_b32 v7, 16, v6")
    e("v_xor_b32 v12, 0x80, v6")
    e("v_xor_b32 v13, 0x90, v6")
    RB = XR
    ra = {(0,0): 6, (0,1): 7, (1,0): 12, (1,1): 13}
    for u in range(2):
        for t in range(4): e(f"ds_write_b128 v{8+t}, {V(acc2(u,t),4)}")
        for q in range(2):
            for h in range(2): e(f"ds_read_b128 {V(RB+(u*2+q)*8+h*4,4)}, v{ra[(q,h)]} offset:{q*2048}")
    wl = [10, 8, 2, 0]
    for q in range(4):
        e(f"s_waitcnt lgkmcnt({wl[q]})")
        for r in range(4): e(f"v_pk_add_f32 {V(RB+q*8+2*r,2)}, {V(RB+q*8+2*r,2)}, {V(SUMR(q*8+2*r),2)}")
        for r in range(4): e(f"v_cvt_pk_bf16_f32 v{WB+q*4+r}, v{RB+q*8+2*r}, v{RB+q*8+2*r+1}")
        e(f"s_add_u32 s55, s31, {q*16384}")
        e(f"buffer_store_dwordx4 {V(WB+q*4,4)}, v14, s[64:67], s55 offen {ST_OUT}")
    if LOOPST: e("v_mov_b32 v3, v2")
    stamp_flush(e, 2, 9)
    loopstamp_flush(e, "v3", 2)
    e("s_endpgm")
    e.extend(ool)
    tail = fix(e.ins, pre=body2)
    return pre + [Ins(".p2align 6")] + body + mid + [Ins(".p2align 6")] + body2 + tail
```

```python
from common import *
def gen(mode):
    name = f"warm{mode}_kernel"
    p = Prog()
    p("s_cmp_ge_u32 s2, 256")
    p(f"s_cbranch_scc1 LW_end{mode}")
    p("s_load_dwordx16 s[16:31], s[0:1], 0")
    p("s_load_dwordx8 s[32:39], s[0:1], 64")
    p("s_load_dwordx2 s[40:41], s[0:1], 96")
    p("s_waitcnt lgkmcnt(0)")
    bufs = [(16, 4<<20), (18, 2<<20), (20, 65536), (22, 65536), (24, 2<<20), (28, 1024*3584*2), (30, 7168), (32, 1024*3584*2), (34, 2048), (36, 4<<20), (40, 0x3000000)]
    k = 0
    for ptr, size in bufs:
        if mode == 2 and ptr in (36, 40): continue
        srd(p, 8, ptr, size)
        if mode == 0:
            p("v_lshlrev_b32 v1, 21, v0"); n = 1; step = 0
            p("s_mov_b32 s4, 0")
        elif mode == 1:
            p("s_lshr_b32 s4, s2, 3"); p("s_lshl_b32 s4, s4, 21")
            p("v_lshlrev_b32 v1, 15, v0"); n = 1; step = 0
        else:
            p("s_lshl_b32 s4, s2, 13")
            p("v_lshlrev_b32 v1, 7, v0"); n = (size + (2<<20) - 1) // (2<<20); step = 2 << 20
        for i in range(n):
            p(f"buffer_load_dword v{2+k%32}, v1, s[8:11], s4 offen"); k += 1
            if step: p(f"s_add_u32 s4, s4, {step}")
    p.label(f"LW_end{mode}")
    p("s_endpgm")
    return name, kernel_text(name, fix(p.ins), 40, 40), (256, 64, 0)
```

```python
from common import *
from mega import *
import math

FLP = int(os.environ.get('FLP', '26'))
CPM = int(os.environ.get('CPM', '31'))
TLBW = int(os.environ.get('TLBW', '1'))
def gen(head):
    ACC = 16
    def acc(u, t): return ACC + (u*9+t)*4
    XB = 160; WS_ = 192; RAW = 236; CSC = 250
    def XF(f, u): return XB + f*16 + u*4
    sa = list(range(9)); sb = [9, 10, 0, 1, 2, 3, 4, 5, 6]
    def WF(f, t): return WS_ + (sa if f == 0 else sb)[t]*4
    p = Prog()
    p.label("L_G")
    p("s_sub_u32 s40, s40, 4")
    p("s_lshr_b32 s44, s40, 1")
    p("s_and_b32 s45, s40, 1")
    if CODEPF:
        for x in code_srd(28, NAME + "_kernel", back=True): p(x)
        p("v_lshlrev_b32 v20, 7, v1")
        p("s_lshr_b32 s47, s2, 3")
        p(f"s_and_b32 s47, s47, {CPM}")
        p("s_lshl_b32 s47, s47, 13")
        p("s_cmp_eq_u32 s40, 0")
        p("s_cbranch_scc0 LG_nt")
        p("buffer_load_dword v253, v20, s[28:31], s47 offen")
        p.label("LG_nt")
    p("s_lshl_b32 s39, s40, 2")
    p(f"s_add_u32 s39, s39, {SY}")
    p("v_mov_b32 v254, s39")
    p("v_lshrrev_b32 v22, 4, v1")
    p("v_mul_u32_u24 v22, 7168, v22")
    p("v_min_u32 v23, 13, v3")
    p("v_lshl_add_u32 v22, v23, 7, v22")
    p("v_lshrrev_b32 v23, 2, v1")
    p("v_and_b32 v24, 3, v1")
    p("v_lshlrev_b32 v24, 7, v24")
    p("v_lshl_add_u32 v23, v23, 11, v24")
    p("s_lshr_b32 s47, s2, 3")
    p("s_bfe_u32 s48, s2, 0x20001")
    if TLBW:
        p(f"s_load_dwordx2 s[12:13], s[0:1], {KA['wo']}")
        p(f"s_load_dwordx4 s[16:19], s[0:1], {KA['w2']}")
        p(f"s_load_dwordx2 s[14:15], s[0:1], {KA['out']}")
    p("s_waitcnt lgkmcnt(0)")
    if TLBW:
        M2 = 2 << 20
        pg = [(8, k*M2) for k in range(4)] + [(64, 0), (64, M2), (66, 0), (32, 0), (34, 0), (10, 0), (62, 0), (6, XN_F), (6, CS), (6, FLG)]
        pg += [(6, OH_F + k*M2) for k in range(9)] + [(16, k*M2) for k in range(4)] + [(12, 0), (18, 0), (14, 0), (14, M2), (6, PART), (6, PART + M2)]
        for w in range(4):
            if w < 3:
                p(f"s_cmp_eq_u32 s40, {w}")
                p(f"s_cbranch_scc0 LG_tw{w}")
            for k, (b_, off) in enumerate(pg[w::4]):
                p(f"s_mov_b32 s46, {hex(off)}")
                p(f"s_load_dword s{51+k}, s[{b_}:{b_+1}], s46")
            if w < 3:
                p("s_branch LG_twd")
                p.label(f"LG_tw{w}")
        p.label("LG_twd")
    p("s_cmp_eq_u32 s40, 3")
    p("s_cbranch_scc1 LG_eq")
    srd(p, 20, 8, 1024*3584*2)
    p(f"s_mul_i32 s49, s47, {4*7168}")
    p("s_mul_i32 s50, s48, 1792")
    p("s_add_u32 s49, s49, s50")
    p("s_and_b32 s50, s2, 1")
    p("s_lshl_b32 s50, s50, 2")
    p("s_add_u32 s50, s50, s40")
    p(f"s_mul_i32 s50, s50, {128*7168}")
    p("s_add_u32 s49, s49, s50")
    for g in range(EPF):
        p("buffer_load_dword v253, v22, s[20:23], s49 offen")
        p(f"s_add_u32 s49, s49, {3*128*7168}")
    p("s_branch LG_ed")
    p.label("LG_eq")
    srd(p, 20, 66, 1024*1024*2)
    p("s_lshl_b32 s49, s47, 15")
    p("s_lshl_b32 s50, s48, 9")
    p("s_add_u32 s49, s49, s50")
    p("s_and_b32 s50, s2, 1")
    p("s_lshl_b32 s50, s50, 20")
    p("s_add_u32 s49, s49, s50")
    for g in range(EPF):
        p("buffer_load_dword v253, v23, s[20:23], s49 offen")
        p(f"s_add_u32 s49, s49, {512*2048}")
    p.label("LG_ed")
    p("v_and_b32 v11, 7, v3")
    p("v_xor_b32 v11, v11, v4")
    p("v_lshlrev_b32 v11, 4, v11")
    p("v_lshl_add_u32 v11, v3, 7, v11")
    p("s_lshl_b32 s47, s44, 13")
    p("v_add_u32 v11, s47, v11")
    p("v_xor_b32 v10, 64, v11")
    p("v_lshlrev_b32 v15, 9, v4")
    p("v_bfe_u32 v13, v1, 2, 2")
    p("v_lshl_add_u32 v15, v13, 6, v15")
    p("v_and_b32 v13, 3, v1")
    p("v_lshl_add_u32 v15, v13, 3, v15")
    p("v_and_b32 v13, 1, v4")
    p("v_lshl_add_u32 v15, v13, 5, v15")
    p("s_lshl_b32 s47, s45, 5")
    p("v_xor_b32 v14, s47, v15")
    p(f"v_add_u32 v14, {WOFF+32768}, v14")
    p("s_lshl_b32 s47, s45, 14")
    p(f"s_add_u32 s47, s47, {WOFF}")
    p("v_add_u32 v12, s47, v15")
    p("v_xor_b32 v13, 32, v12")
    srd(p, 24, 6, WS_SIZE)
    srd(p, 28, 62, 256)
    p("v_mov_b32 v6, 0")
    p("v_mov_b32 v7, 1")
    p("s_lshl_b32 s37, s41, 2")
    p("s_or_b32 s39, s42, s40")
    p("s_cmp_eq_u32 s39, 0")
    p("s_cselect_b32 s3, 2, 0")
    if TLBW: p("s_waitcnt lgkmcnt(0)")
    p("s_mov_b32 s58, 0")
    p(f"s_mov_b32 s60, {STG}")
    p(f"s_mov_b32 s61, {STG}")
    p("s_mov_b32 s59, 0")
    p("s_barrier")
    if PRIO_G1: p(f"s_setprio {PRIO_G1}")
    stamp(p, 1)
    if LOOPST: p("s_mov_b32 s71, 0")
    def rx(f, kk): return [f"ds_read_b128 {V(XF(f,u),4)}, v{11-kk} offset:{u*2048}" for u in range(4)]
    def rw(f, t, kk):
        if t < 8: return [f"ds_read_b64_tr_b16 {V(WF(f,t)+rho*2,2)}, v{12+(t&1)} offset:{(t>>1)*4096+kk*2048+rho*256}" for rho in range(2)]
        return [f"ds_read_b64_tr_b16 {V(WF(f,t)+rho*2,2)}, v14 offset:{kk*2048+rho*256}" for rho in range(2)]
    def mfmas(f, zero=False): return [M16(V(acc(u,t),4), V(WF(f,t),4), V(XF(f,u),4), "0" if zero else None) for t in range(9) for u in range(4)]
    for x in rx(0, 0): p(x)
    for t in range(9):
        for x in rw(0, t, 0): p(x)
    p("s_waitcnt lgkmcnt(0)")
    rot_v = [f"v_add_u32 v{r}, s61, v{r}" for r in (10, 11, 12, 13, 14)]
    rot_s = ["s_mov_b32 s58, s60", f"s_add_u32 s60, s58, {STG}", f"s_cmp_eq_u32 s60, {3*STG}", "s_cselect_b32 s60, 0, s60", "s_sub_u32 s61, s60, s58"]
    def phaseA(zero=False, extra=()):
        early = rx(1, 1) + rw(1, 0, 1) + rw(1, 1, 1)
        fill = [(i // 2, x) for i, x in enumerate(early)]
        for t in range(2, 9):
            r = rw(1, t, 1)
            fill += [(4*(t-2)+4, r[0]), (4*(t-2)+5, r[1])]
        fill.append((7, "s_waitcnt lgkmcnt(10)"))
        fill += [(30+i, x) for i, x in enumerate(rot_v)]
        return interleave(mfmas(0, zero), fill + list(extra))
    def phaseB(last=False, extra=()):
        fill = []
        if not last:
            early = rx(0, 0) + rw(0, 7, 0) + rw(0, 8, 0)
            fill = [(i, x) for i, x in enumerate(early)]
            for t in range(7):
                r = rw(0, t, 0)
                if t < 6: fill += [(4*(t+2)+4, r[0]), (4*(t+2)+5, r[1])]
                else: fill += [(35, r[0]), (35, r[1])]
            fill += [(8, rot_s[0]), (8, rot_s[1]), (9, rot_s[2]), (9, rot_s[3]), (10, rot_s[4])]
        return interleave(mfmas(1), fill + list(extra))
    for x in phaseA(zero=True): p(x)
    p("s_waitcnt lgkmcnt(0)")
    pre = fix(p.ins, pre=head)
    ool = Prog()
    b = Prog()
    b.label("LG_l1")
    loopstamp(b, "v2", "v9")
    b("s_barrier")
    loopstamp(b, "v2", "v9")
    for x in phaseB(extra=[(14, "s_add_u32 s59, s59, 1")]): b(x)
    b("s_waitcnt lgkmcnt(4)")
    for x in phaseA(extra=[(FLP, "s_cmp_eq_u32 s59, s3"), (FLP, "s_cbranch_scc1 LG_fl"), (FLP, "LG_flr:"), (35, "s_cmp_lt_u32 s59, 15")]): b(x)
    b("s_waitcnt lgkmcnt(0)")
    b("s_cbranch_scc1 LG_l1")
    ool.label("LG_fl")
    ool("s_mov_b64 exec, 1")
    ool("buffer_store_dword v7, v6, s[28:31], s37 offen sc1")
    ool("s_mov_b64 exec, -1")
    ool("s_nop 3")
    ool("s_branch LG_flr")
    rep = []
    body = fix(b.ins, pre=pre, report=rep)
    if rep: print("gemm1 loop nops:", len(rep), rep[:5])
    assert not check_loop(body)
    e = Prog()
    sgelu = (2.0 * math.sqrt(2.0/math.pi) * math.log2(math.e) * 0.044715) ** (1.0/3.0)
    kappa = 2.0 * math.sqrt(2.0/math.pi) * math.log2(math.e) / sgelu
    qs = math.log2(math.e) / math.sqrt(32.0)
    TK = XB
    QP = RAW
    QC = WS_ + 28
    su = Prog()
    su(f"s_mov_b32 s62, {f32(sgelu)}")
    su(f"s_mov_b32 s63, {f32(sgelu)}")
    su("s_lshl_b32 s47, s44, 11")
    su(f"s_add_u32 s47, s47, {TBL+4096}")
    su("v_lshlrev_b32 v12, 5, v3")
    su("v_add_u32 v12, s47, v12")
    su("s_lshl_b32 s47, s45, 9")
    su(f"s_add_u32 s47, s47, {TBL}")
    su("v_lshlrev_b32 v13, 4, v4")
    su("v_add_u32 v14, s47, v13")
    for u in range(4): su(f"ds_read_b64 {V(QP+2*u,2)}, v12 offset:{u*512+16}")
    for t in range(2): su(f"ds_read_b128 {V(QC+4*t,4)}, v14 offset:{t*64}")
    for u in range(4): su(f"ds_read_b128 {V(TK+4*u,4)}, v12 offset:{u*512}")
    su("s_lshl_b32 s47, s45, 9")
    su(f"s_add_u32 s47, s47, {TBL}")
    su("v_add_u32 v12, s47, v13")
    su("s_lshl_b32 s47, s45, 6")
    su(f"s_add_u32 s47, s47, {TBL+384}")
    su("v_add_u32 v13, s47, v13")
    su("s_lshl_b32 s46, s41, 3")
    su("s_lshl_b32 s47, s44, 2")
    su("s_add_u32 s46, s46, s47")
    su(f"s_mul_i32 s48, s46, {OH_TILE}")
    su("s_mul_i32 s49, s42, 7168")
    su("s_add_u32 s48, s48, s49")
    su(f"s_add_u32 s48, s48, {hex(OH_F+32*1024)}")
    for u in range(1, 4): su(f"s_add_u32 s{48+u}, s48, {u*OH_TILE}")
    su("s_lshl_b32 s47, s45, 12")
    su("v_add_u32 v6, s47, v5")
    su("s_lshl_b32 s47, s45, 3")
    su("v_add_u32 v7, s47, v5")
    su("s_lshl_b32 s47, s44, 13")
    su("s_lshl_b32 s52, s45, 10")
    su("s_add_u32 s47, s47, s52")
    su(f"s_add_u32 s47, s47, {QST}")
    su("v_add_u32 v10, s47, v5")
    su(f"v_mov_b32 v8, {f32(kappa)}")
    su(f"v_mov_b32 v9, {f32(kappa)}")
    su("v_mov_b32 v11, 1")
    st = [i.text for i in su.ins]
    qv = ["s_waitcnt lgkmcnt(0)"]
    for u in range(4):
        for t in range(2):
            for r in range(4): qv += [f"v_mul_f32 v{acc(u,t)+r}, v{QP+2*u}, v{acc(u,t)+r}", f"v_fmac_f32 v{acc(u,t)+r}, v{QP+2*u+1}, v{QC+4*t+r}"]
    ex = [(i // 3, x) for i, x in enumerate(st)] + [(17 + i // 2, x) for i, x in enumerate(qv[:39])]
    for x in phaseB(last=True, extra=ex): e(x)
    stamp(e, 2)
    e.label("LG_epi")
    if PRIO_GELU: e(f"s_setprio {PRIO_GELU}")
    T = XB + 16; TB = WS_; PB_ = [WS_ + 16, RAW]
    def prm(grp, buf):
        if grp < 3: return [f"ds_read_b128 {V(buf+4*k,4)}, v12 offset:{(2048 if k >= 2 else 128)+grp*128+(k&1)*64}" for k in range(4)]
        return [f"ds_read_b128 {V(buf,4)}, v13 offset:640", f"ds_read_b128 {V(buf+8,4)}, v13 offset:2048"]
    PB0 = WS_ + 8
    for x in prm(0, PB0): e(x)
    for x in qv[39:]: e(x)
    for u in range(4):
        o = T + u*4
        for t in range(2):
            for h in range(2): e(f"v_cvt_pk_bf16_f32 v{o+2*t+h}, v{acc(u,t)+2*h}, v{acc(u,t)+2*h+1}")
        e(f"ds_write_b128 v10, {V(o,4)} offset:{u*2048}")
    e(f"ds_write_b32 v254, v11 offset:{SY_Q}")
    e(f"s_load_dwordx2 s[4:5], s[0:1], {KA['wo']}")
    e(f"s_load_dwordx4 s[8:11], s[0:1], {KA['w2']}")
    e(f"s_load_dwordx2 s[32:33], s[0:1], {KA['x']}")
    e(f"s_load_dwordx2 s[34:35], s[0:1], {KA['out']}")
    bufs = [PB0, RAW]
    TBS = [WS_, WS_ + 24]
    tcnt = [0]
    def gelu(items, out, buf):
        prs = [(acc(u,t)+2*h, buf+4*k+2*h, buf+8+4*k+2*h, u) for (u, t, k) in items for h in range(2)]
        n = len(prs)
        tb = TBS[tcnt[0] % 2]; tcnt[0] += 1
        for i, (a, cs, bb, u) in enumerate(prs): e(f"v_pk_fma_f32 {V(tb+2*i,2)}, {V(cs,2)}, {V(TK+4*u+2,2)}, {V(bb,2)}")
        for i, (a, cs, bb, u) in enumerate(prs): e(f"v_pk_fma_f32 {V(a,2)}, {V(a,2)}, {V(TK+4*u,2)}, {V(tb+2*i,2)}")
        for i, (a, cs, bb, u) in enumerate(prs): e(f"v_pk_fma_f32 {V(tb+2*i,2)}, {V(a,2)}, {V(a,2)}, v[8:9]")
        for i, (a, cs, bb, u) in enumerate(prs): e(f"v_pk_mul_f32 {V(tb+2*i,2)}, {V(tb+2*i,2)}, {V(a,2)} neg_lo:[0,1] neg_hi:[0,1]")
        for i in range(2*n): e(f"v_exp_f32 v{tb+i}, v{tb+i}")
        for i in range(n): e(f"v_pk_fma_f32 {V(tb+2*i,2)}, {V(tb+2*i,2)}, s[62:63], s[62:63]")
        for i in range(2*n): e(f"v_rcp_f32 v{tb+i}, v{tb+i}")
        for i, (a, cs, bb, u) in enumerate(prs): e(f"v_pk_mul_f32 {V(a,2)}, {V(a,2)}, {V(tb+2*i,2)}")
        for i, (a, cs, bb, u) in enumerate(prs): e(f"v_cvt_pk_bf16_f32 v{out+i}, v{a}, v{a+1}")
    ocnt = [0]
    def outreg():
        r = T + (ocnt[0] % 4) * 4; ocnt[0] += 1
        return r
    for grp in range(4):
        e("s_waitcnt lgkmcnt(0)")
        if grp < 3:
            for x in prm(grp+1, bufs[(grp+1) & 1]): e(x)
            for u in range(4):
                o = outreg()
                gelu([(u, 2+2*grp, 0), (u, 3+2*grp, 1)], o, bufs[grp & 1])
                if HTHR >= 0: e(f"s_waitcnt vmcnt({HTHR})")
                e(f"buffer_store_dwordx4 {V(o,4)}, v6, s[24:27], s{48+u} offen offset:{grp*1024} sc1")
        else:
            for u in (0, 2):
                o = outreg()
                gelu([(u, 8, 0), (u+1, 8, 0)], o, bufs[grp & 1])
                e(f"buffer_store_dwordx2 {V(o,2)}, v7, s[24:27], s{48+u} offen offset:3072 sc1")
                e(f"buffer_store_dwordx2 {V(o+2,2)}, v7, s[24:27], s{49+u} offen offset:3072 sc1")
    stamp(e, 3)
    e("s_lshl_b32 s37, s41, 5")
    e("s_lshr_b32 s38, s42, 3")
    e("s_lshl_b32 s38, s38, 1")
    e("s_add_u32 s37, s37, s38")
    e("s_add_u32 s37, s37, s44")
    e("s_lshl_b32 s37, s37, 7")
    e("s_and_b32 s38, s42, 7")
    e("s_lshl_b32 s38, s38, 1")
    e("s_add_u32 s38, s38, s45")
    e("s_lshl_b32 s38, s38, 2")
    e("s_add_u32 s37, s37, s38")
    e(f"s_add_u32 s37, s37, {hex(F_HF)}")

    def acc2(u, t): return ACC + (u*8+t)*4
    XR = 80
    def XF2(sg, kb, u): return XR + ((sg*4+kb)*2+u)*4
    WB = 144
    def WF2(f, t): return WB + f*32 + t*4
    TG = 208; EP = 240; EPR = 241
    p = e
    if GMAP == 1:
        p("s_and_b32 s41, s2, 7")
        p("s_lshl_b32 s41, s41, 1")
        p("s_bfe_u32 s43, s2, 0x10003")
        p("s_add_u32 s41, s41, s43")
        p("s_bfe_u32 s44, s2, 0x10004")
    else:
        p("s_and_b32 s41, s2, 3")
        p("s_lshl_b32 s41, s41, 2")
        p("s_bfe_u32 s43, s2, 0x20003")
        p("s_add_u32 s41, s41, s43")
        p("s_bfe_u32 s44, s2, 0x10002")
    p("s_lshr_b32 s42, s2, 5")
    p("v_and_b32 v13, 3, v1")
    p("v_lshlrev_b32 v13, 4, v13")
    p("s_lshl_b32 s47, s44, 1")
    p("v_xor_b32 v14, s47, v4")
    p("v_lshl_add_u32 v13, v14, 6, v13")
    p("v_bfe_u32 v14, v1, 2, 2")
    p("v_lshl_add_u32 v8, v14, 11, v13")
    p("s_lshl_b32 s47, s40, 16")
    p("v_add_u32 v8, s47, v8")
    p("v_xor_b32 v9, 32, v8")
    p("s_lshl_b32 s52, s40, 13")
    p(f"s_add_u32 s52, s52, {WBASE}")
    p(f"s_mul_i32 s54, s44, {1792*2048}")
    p("s_lshl_b32 s48, s42, 8")
    p("s_add_u32 s54, s54, s48")
    p(f"s_mul_i32 s53, s44, {56*1024}")
    p("s_add_u32 s53, s53, 0x8000")
    p("s_mov_b32 s56, s52")
    p("s_movk_i32 s57, 0x2000")
    srd(p, 16, 8, 3584*1024*2)
    srd(p, 20, 6, 128*OH_TILE, OH_F)
    p("s_lshl_b32 s46, s41, 3")
    p("s_lshl_b32 s47, s40, 1")
    p("s_add_u32 s46, s46, s47")
    p(f"s_mul_i32 s47, s46, {OH_TILE}")
    p("v_add_u32 v6, s47, v5")
    p(f"v_add_u32 v7, {OH_TILE}, v6")
    p("s_and_b32 s5, s5, 0xffff")
    p("v_lshlrev_b32 v12, 9, v4")
    p("v_add_u32 v12, v12, v15")
    p(f"v_add_u32 v12, {WBASE}, v12")
    p("v_xor_b32 v13, 32, v12")
    p("v_mov_b32 v242, v15")
    p("s_lshl_b32 s45, s44, 7")
    p("s_add_u32 s45, s45, s48")
    p("s_lshl_b32 s62, s40, 17")
    p("v_lshrrev_b32 v10, 5, v1")
    p("v_lshlrev_b32 v243, 1, v10")
    p("v_and_b32 v14, 3, v1")
    p("v_xor_b32 v243, v243, v14")
    p("v_lshlrev_b32 v243, 4, v243")
    p("v_bfe_u32 v14, v1, 4, 1")
    p("v_lshl_add_u32 v243, v14, 6, v243")
    p("v_bfe_u32 v14, v1, 2, 2")
    p("v_lshl_add_u32 v10, v10, 2, v14")
    p("v_lshl_add_u32 v10, v10, 11, v243")
    p("v_add_u32 v10, s45, v10")
    RRX = TG; RRB = TG + 16
    srd(p, 64, 32, 2048*1024*2)
    p("s_mov_b32 s28, s34")
    p("s_mov_b32 s29, s35")
    srd(p, 32, 10, 2048)
    p("v_and_b32 v15, 7, v1")
    p("v_lshlrev_b32 v15, 4, v15")
    p("v_lshrrev_b32 v14, 3, v1")
    p("v_lshl_add_u32 v14, v14, 11, v15")
    p("s_lshl_b32 s31, s46, 15")
    p("s_add_u32 s31, s31, s45")
    for i in range(32): p(f"v_mov_b64 {V(ACC+2*i,2)}, 0")
    p(f"v_mov_b32 v{EP}, 1")
    p("v_mov_b32 v244, 0")
    p("v_lshlrev_b32 v245, 2, v3")
    p("s_lshl_b32 s38, s41, 5")
    p("s_lshl_b32 s39, s44, 1")
    p("s_add_u32 s38, s38, s39")
    p("s_lshr_b32 s39, s40, 1")
    p("s_add_u32 s38, s38, s39")
    p("s_lshl_b32 s38, s38, 7")
    p(f"s_add_u32 s38, s38, {hex(F_HF)}")
    p("s_waitcnt vmcnt(0)")
    p("s_mov_b64 exec, 1")
    p("buffer_store_dword v11, v244, s[24:27], s37 offen sc1")
    p("s_mov_b64 exec, -1")
    stamp(p, 4)
    def wdma(q): return [f"s_add_u32 m0, s56, {q*1024}", ("s_mov_b32 s55, s54" if q == 0 else "s_add_u32 s55, s55, s57"), f"buffer_load_dwordx4 v{8+(q&1)}, s[16:19], s55 offen lds"]
    def xld(sg, kb): return [f"buffer_load_dwordx4 {V(XF2(sg,kb,u),4)}, v{6+u}, s[20:23], s53 offen offset:{kb*1024} sc1" for u in range(2)]
    lds_wait(p, "LG_w1", "v255", SY_EA, f"v{EPR}", "1")
    for n in range(2):
        for q in range(8):
            for x in wdma(q): p(x)
        p("s_add_u32 s54, s54, 0x40000")
        p(f"s_add_u32 s56, s56, {WSEG}")
    gpoll(p, "LG_p1", "buffer_load_dword v246, v245, s[24:27], s38 offen sc1", ["v246"], "1")
    p(f"ds_write_b32 v254, v{EP} offset:{SY_EG}")
    for n in range(2):
        for kb in range(4):
            for x in xld(n, kb): p(x)
        p("s_add_u32 s53, s53, 0x1000")
    lds_wait(p, "LG_w2", "v255", SY_EG, f"v{EPR}", "1")
    def wreads(f, kb): return [f"ds_read_b64_tr_b16 {V(WF2(f,t)+rho*2,2)}, v{12+(t&1)} offset:{kb*8192+rho*4096+(t>>1)*256}" for t in range(8) for rho in range(2)]
    def mf2(f, sg, kb): return [M16(V(acc2(u,t),4), V(WF2(f,t),4), V(XF2(sg,kb,u),4)) for t in range(8) for u in range(2)]
    for x in wreads(0, 0): p(x)
    p("s_mov_b32 s58, 0")
    p("s_mov_b32 s59, 3")
    p("s_mov_b32 s63, 0")
    p("s_waitcnt vmcnt(0)")
    p("s_setprio 0")
    stamp(p, 5)
    mid = fix(p.ins, pre=body)
    sgc = [0]
    def seg_early(): return ["s_add_u32 s54, s54, 0x40000", "s_add_u32 s56, s52, s63", f"s_add_u32 s63, s63, {WSEG}", f"s_cmp_eq_u32 s63, {3*WSEG}", "s_cselect_b32 s63, 0, s63"]
    def seg_setup(q0):
        q0("s_add_u32 s53, s53, 0x1000")
        sgc[0] += 1
        q0("s_add_u32 s59, s59, 1")
        q0("s_cmp_ge_u32 s59, 15")
        q0(f"s_cbranch_scc1 LG_so{sgc[0]}")
        q0(f"LG_sg{sgc[0]}:")
        q = ool
        q(f"LG_so{sgc[0]}:")
        q("s_mov_b32 s16, s4")
        q("s_mov_b32 s17, s5")
        q("s_mov_b32 s18, 0x200000")
        q("s_mov_b32 s54, s62")
        q("s_add_u32 s62, s62, 0x80000")
        q("s_movk_i32 s57, 0x4000")
        q("s_mov_b32 s22, 0")
        q("s_setprio 2")
        q("v_mov_b32 v8, v10")
        q("v_mov_b32 v9, v10")
        q("s_setprio 0")
        q("s_cmp_ge_u32 s59, 16")
        q(f"s_cbranch_scc1 LG_sg{sgc[0]}")
        for k in range(4):
            q(f"s_add_u32 s55, s31, {k*16384}")
            q(f"buffer_load_dwordx4 {V(RRX+4*k,4)}, v14, s[64:67], s55 offen")
        q(f"buffer_load_dwordx4 {V(RRB,4)}, v15, s[32:35], s45 offen")
        q("s_lshl_b32 s60, s40, 13")
        q(f"s_add_u32 s60, s60, {SPARE}")
        q("s_add_u32 s55, s54, 0x180000")
        for k in range(8):
            if k == 4:
                q("s_cmp_eq_u32 s40, 3")
                q(f"s_cbranch_scc1 LG_sg{sgc[0]}")
            q(f"s_add_u32 m0, s60, {k*1024}")
            q("s_nop 0")
            q("buffer_load_dwordx4 v10, s[16:19], s55 offen lds")
            q("s_add_u32 s55, s55, 0x4000")
        q(f"s_branch LG_sg{sgc[0]}")
    b = Prog()
    b.label("LG_l2")
    for sg in range(2):
        for kb in range(4):
            f = kb & 1
            if kb < 3:
                b("s_waitcnt vmcnt(28) lgkmcnt(0)")
                fill = [(i // 2, x) for i, x in enumerate(wreads(f^1, kb+1))]
                wpos = (8, 10)
            else:
                b("s_waitcnt vmcnt(14) lgkmcnt(0)")
                b(f"ds_write_b32 v254, v{EP} offset:{SY_EG}")
                fill = [(2, f"ds_read_b32 v{EPR}, v255 offset:{SY_EG}"),
                        (6, "s_waitcnt lgkmcnt(0)"), (6, "s_setprio 2"), (6, f"v_cmp_gt_u32 vcc, v{EP}, v{EPR}"), (6, "s_setprio 0"),
                        (7, f"s_cbranch_vccnz LG_sp{sg}"), (7, f"LG_spr{sg}:")]
                fill += [(7 + i // 2, x) for i, x in enumerate(wreads(f^1, 0))]
                wpos = (0, 3)
                ool.label(f"LG_sp{sg}")
                ool("s_setprio 2")
                lds_wait(ool, f"LG_spw{sg}", "v255", SY_EG, f"v{EPR}", f"v{EP}")
                ool("s_setprio 0")
                ool(f"s_branch LG_spr{sg}")
            for q, ps in zip((2*kb, 2*kb+1), wpos):
                wd = wdma(q)
                fill += [(ps, wd[0]), (ps, wd[1]), (ps+1, wd[2])]
            if kb == 2:
                fill += [(12, f"s_add_u32 s60, s58, {WSEG}"), (12, f"s_cmp_eq_u32 s60, {3*WSEG}"), (12, "s_cselect_b32 s60, 0, s60"),
                         (13, "s_sub_u32 s61, s60, s58"), (13, "s_mov_b32 s58, s60"),
                         (14, "s_setprio 2"), (14, "v_add_u32 v12, s61, v12"), (14, "v_add_u32 v13, s61, v13"), (14, f"v_add_u32 v{EP}, 1, v{EP}"), (14, "s_setprio 0")]
            if kb == 3:
                se = seg_early()
                fill += [(5, se[0]), (5, se[1]), (15, se[2]), (15, se[3]), (15, se[4])]
            fill += [(15, x) for x in xld(sg, kb)]
            for x in interleave(mf2(f, sg, kb), fill): b(x)
        seg_setup(b)
    b("s_cmp_lt_u32 s59, 17")
    b("s_cbranch_scc1 LG_l2")
    rep = []
    body2 = fix(b.ins, pre=mid, report=rep)
    if rep: print("gemm2 loop nops:", len(rep), rep[:5])
    assert not check_loop(body2)
    e = Prog()
    stamp(e, 6)
    e.label("LG_tail")
    for q in range(8):
        for x in wdma(q): e(x)
    e("s_lshl_b32 s47, s41, 3")
    e("s_add_u32 s47, s47, s42")
    e("s_lshl_b32 s47, s47, 1")
    e("s_add_u32 s47, s47, s44")
    e("s_xor_b32 s49, s47, 1")
    e("s_lshl_b32 s50, s47, 2")
    e("s_add_u32 s50, s50, s40")
    e("s_lshl_b32 s50, s50, 12")
    e(f"s_add_u32 s50, s50, {hex(PART)}")
    e("s_waitcnt lgkmcnt(0)")
    for u in range(2):
        for tp in range(2):
            o = WB + (u*2+tp)*4
            for h in range(2):
                t = 4 + 2*tp + h
                e(f"v_cvt_pk_bf16_f32 v{o+2*h}, v{acc2(u,t)}, v{acc2(u,t)+1}")
                e(f"v_cvt_pk_bf16_f32 v{o+2*h+1}, v{acc2(u,t)+2}, v{acc2(u,t)+3}")
    for k in range(4): e(f"buffer_store_dwordx4 {V(WB+4*k,4)}, v5, s[24:27], s50 offen offset:{k*1024} sc1")
    e("s_lshl_b32 s47, s47, 7")
    e("s_lshl_b32 s55, s41, 9")
    e("s_add_u32 s55, s55, s40")
    e("s_lshl_b32 s55, s55, 2")
    e("s_add_u32 s47, s47, s55")
    e(f"s_add_u32 s47, s47, {hex(F_PF)}")
    e("s_lshl_b32 s53, s49, 7")
    e("s_add_u32 s53, s53, s55")
    e(f"s_add_u32 s53, s53, {hex(F_PF)}")
    e("s_lshl_b32 s50, s49, 2")
    e("s_add_u32 s50, s50, s40")
    e("s_lshl_b32 s50, s50, 12")
    e(f"s_add_u32 s50, s50, {hex(PART)}")
    QB = [WBASE + 2*WSEG, WBASE, WBASE + WSEG, SPARE]
    e(f"v_add_u32 v12, {QB[0]}, v242")
    e("v_xor_b32 v13, 32, v12")
    def SUMR(i): return (acc2(0, 4) + i) if i < 16 else (WB + 48 + i - 16)
    PRW = acc2(1, 4); TT = TG + 20
    for i in range(4):
        e(f"v_lshlrev_b32 v{TT+2*i}, 16, v{RRB+i}")
        e(f"v_and_b32 v{TT+2*i+1}, 0xffff0000, v{RRB+i}")
    for i in range(16):
        e(f"v_lshlrev_b32 v{SUMR(2*i)}, 16, v{RRX+i}")
        e(f"v_and_b32 v{SUMR(2*i)+1}, 0xffff0000, v{RRX+i}")
        e(f"v_pk_add_f32 {V(SUMR(2*i),2)}, {V(SUMR(2*i),2)}, {V(TT+2*(i&3),2)}")
    e(f"s_mov_b32 s22, {128*OH_TILE}")
    e("s_lshl_b32 s55, s41, 5")
    e("s_add_u32 s55, s55, s40")
    e("s_lshl_b32 s55, s55, 7")
    e(f"s_add_u32 s55, s55, {hex(F_OF)}")
    e("s_mov_b32 s37, s55")
    srd(e, 64, 28, 2048*1024*2)
    e("v_add_u32 v247, 0, v242")
    e("v_xor_b32 v248, 32, v247")
    e(f"v_add_u32 v{EP}, 1, v{EP}")
    e("v_mov_b32 v249, 34")
    e("s_waitcnt vmcnt(0)")
    e("s_mov_b64 exec, 1")
    e("buffer_store_dword v11, v244, s[24:27], s47 offen sc1")
    e("s_mov_b64 exec, -1")
    e(f"ds_write_b32 v254, v{EP} offset:{SY_EG}")
    def WF3(f, t): return WB + f*16 + t*4
    def wr3(b_):
        if b_ == 31: return [f"ds_read_b64_tr_b16 {V(WF3(b_%3,t)+rho*2,2)}, v{247+(t&1)} offset:{rho*2048+(t>>1)*256}" for t in range(4) for rho in range(2)]
        return [f"ds_read_b64_tr_b16 {V(WF3(b_%3,t)+rho*2,2)}, v{12+(t&1)} offset:{(b_&7)*4096+rho*2048+(t>>1)*256}" for t in range(4) for rho in range(2)]
    for x in wr3(0) + wr3(1): e(x)
    if TGATE: lds_wait(e, "LG_w3", "v255", SY_EA, f"v{EPR}", "v249")
    stamp(e, 7)
    gpoll(e, "LG_p2", "buffer_load_dword v246, v245, s[24:27], s37 offen sc1", ["v246"], "1", sleep=PSLEEP2)
    e("s_mov_b32 s36, s53")
    LAB = 8
    def XF3(b_, u): return XR + ((b_ % LAB)*2+u)*4
    def xop(b_):
        L_ = []
        if (b_ & 3) == 0: L_.append(f"s_mov_b32 s53, {(b_>>2)*4096}")
        L_ += [f"buffer_load_dwordx4 {V(XF3(b_,u),4)}, v{6+u}, s[20:23], s53 offen offset:{(b_&3)*1024} sc1" for u in range(2)]
        return L_
    for b_ in range(LAB-1):
        for x in xop(b_): e(x)
    for x in ["v_xor_b32 v8, v3, v4", "v_lshlrev_b32 v8, 4, v8", "v_lshl_add_u32 v8, v3, 8, v8", "s_lshl_b32 s56, s40, 12", f"s_add_u32 s56, s56, {QB[0]}",
              "v_add_u32 v8, s56, v8", "v_xor_b32 v9, 64, v8", "v_mov_b32 v250, v10", "v_xor_b32 v10, 0x80, v8", "v_xor_b32 v11, 0xc0, v8"]: e(x)
    NBK = 32; PB = 14; PA = (26, 27)
    def padd(u, i):
        tt = TT + 2*(i & 3)
        return [f"v_lshlrev_b32 v{tt}, 16, v{PRW+u*8+i}", f"v_and_b32 v{tt+1}, 0xffff0000, v{PRW+u*8+i}",
                f"v_add_f32 v{acc2(u,0)+2*i}, v{acc2(u,0)+2*i}, v{tt}", f"v_add_f32 v{acc2(u,0)+2*i+1}, v{acc2(u,0)+2*i+1}, v{tt+1}"]
    issued = [("x", b_) for b_ in range(LAB-1) for u in range(2)]
    for b_ in range(NBK):
        last = max(k for k, t in enumerate(issued) if t == ("x", b_))
        if b_ in PA: last = max(last, issued.index(("p", 3)))
        if b_ == PB: last = max(last, issued.index(("f",)))
        if b_ == 29: last = max(last, issued.index(("w31",)))
        e(f"s_waitcnt vmcnt({len(issued)-1-last}) lgkmcnt({8 if b_ < NBK-1 else 0})")
        if b_ == 6: lds_wait(e, "LG_w4", "v255", SY_EG, f"v{EPR}", f"v{EP}")
        if b_ == PB:
            e("v_cmp_ne_u32 vcc, 1, v246")
            e("s_nop 4")
            e("s_cbranch_vccnz LG_pp")
            e.label("LG_ppr")
            ool.label("LG_pp")
            gpoll(ool, "LG_p3", "buffer_load_dword v246, v244, s[24:27], s36 offen sc1", ["v246"], "1")
            ool("s_branch LG_ppr")
        if b_ == 16:
            e("s_barrier")
            e("s_lshl_b32 s55, s40, 14")
            e("s_add_u32 s55, s55, 0x1f0000")
            e("s_lshl_b32 m0, s40, 10")
            e("s_nop 0")
            e("buffer_load_dwordx4 v250, s[16:19], s55 offen lds")
            issued.append(("w31",))
        if b_ == 29: e("s_barrier")
        if (b_ + 2) % 8 == 0 and b_ + 2 < NBK:
            d = QB[(b_+2)//8] - QB[(b_+2)//8 - 1]
            e(f"v_add_u32 v12, {d & 0xffffffff:#x}, v12")
            e(f"v_add_u32 v13, {d & 0xffffffff:#x}, v13")
        rd = wr3(b_+2) if b_ + 2 < NBK else []
        mf = [M16(V(acc2(u,t),4), V(WF3(b_%3,t),4), V(XF3(b_,u),4)) for t in range(4) for u in range(2)]
        for i, m in enumerate(mf):
            e(m)
            for x in rd[i:i+1]: e(x)
            nb_ = b_ + LAB - 1
            if nb_ < NBK:
                xo = xop(nb_)
                if i == 0: [e(x) for x in xo[:-2]]
                if i == 1: e(xo[-2]); issued.append(("x", nb_))
                if i == 4: e(xo[-1]); issued.append(("x", nb_))
            if i == 6 and b_ == 8:
                e("buffer_load_dword v246, v244, s[24:27], s36 offen sc1")
                issued.append(("f",))
            if i == 6 and PB <= b_ < PB + 4:
                k = b_ - PB
                e(f"buffer_load_dwordx4 {V(PRW+4*k,4)}, v5, s[24:27], s50 offen offset:{k*1024} sc1")
                issued.append(("p", k))
            if b_ in PA:
                m_ = (i + 5) % 8
                for x in padd(m_ & 1, 2*(m_ >> 1) + (b_ & 1)): e(x)
    e("v_lshrrev_b32 v6, 3, v1")
    e("v_and_b32 v7, 7, v1")
    e("v_lshlrev_b32 v7, 1, v7")
    e("v_xor_b32 v7, v7, v6")
    e("v_lshlrev_b32 v7, 4, v7")
    e("v_lshl_add_u32 v6, v6, 8, v7")
    e("v_add_u32 v6, s56, v6")
    e("v_xor_b32 v7, 16, v6")
    e("v_xor_b32 v12, 0x80, v6")
    e("v_xor_b32 v13, 0x90, v6")
    RB = XR
    ra = {(0,0): 6, (0,1): 7, (1,0): 12, (1,1): 13}
    for u in range(2):
        for t in range(4): e(f"ds_write_b128 v{8+t}, {V(acc2(u,t),4)}")
        for q in range(2):
            for h in range(2): e(f"ds_read_b128 {V(RB+(u*2+q)*8+h*4,4)}, v{ra[(q,h)]} offset:{q*2048}")
    wl = [10, 8, 2, 0]
    for q in range(4):
        e(f"s_waitcnt lgkmcnt({wl[q]})")
        for r in range(4): e(f"v_pk_add_f32 {V(RB+q*8+2*r,2)}, {V(RB+q*8+2*r,2)}, {V(SUMR(q*8+2*r),2)}")
        for r in range(4): e(f"v_cvt_pk_bf16_f32 v{WB+q*4+r}, v{RB+q*8+2*r}, v{RB+q*8+2*r+1}")
        e(f"s_add_u32 s55, s31, {q*16384}")
        e(f"buffer_store_dwordx4 {V(WB+q*4,4)}, v14, s[64:67], s55 offen {ST_OUT}")
    if LOOPST: e("v_mov_b32 v3, v2")
    stamp_flush(e, 2, 9)
    loopstamp_flush(e, "v3", 2)
    e("s_endpgm")
    e.extend(ool)
    tail = fix(e.ins, pre=body2)
    return pre + [Ins(".p2align 6")] + body + mid + [Ins(".p2align 6")] + body2 + tail
```

```python
from common import *
from k0_ln import ln_body
import math

LA1 = int(os.environ.get('LA1', '4'))
PSLEEP = int(os.environ.get('PSLEEP', '4'))
APOS = eval(os.environ.get('APOS', '[0, 32, 64, 96, 128]'))
PRIO_A = int(os.environ.get('PRIO_A', '1'))
PRIO_GELU = int(os.environ.get('PRIO_GELU', '2'))
WOIT = int(os.environ.get('WOIT', '3'))
SPINMAX = int(os.environ.get('SPINMAX', '20000'))
PFX = int(os.environ.get('PFX', '0'))
HTHR = int(os.environ.get('HTHR', '2'))
PRIO_G1 = int(os.environ.get('PRIO_G1', '0'))
SPLIT = int(os.environ.get('SPLIT', '13'))
SMIT = int(os.environ.get('SMIT', '15'))
TGATE = int(os.environ.get('TGATE', '1'))
PSLEEP2 = int(os.environ.get('PSLEEP2', '8'))
GMAP = int(os.environ.get('GMAP', '0'))
TAFTER = int(os.environ.get('TAFTER', '0'))
EPF = int(os.environ.get('EPF', '0'))
CSPOS = int(os.environ.get('CSPOS', '1'))
CPS = int(os.environ.get('CPS', '9'))
APK = int(os.environ.get('APK', '0'))
AHOLD = int(os.environ.get('AHOLD', '0'))
SPL = (eval(os.environ.get('SPL', '[]')) + [SPLIT]*16)[:16]
STPOS = int(os.environ.get('STPOS', '1'))
AW2 = int(os.environ.get('AW2', '0'))
AQ2 = int(os.environ.get('AQ2', '1'))
PFW2A = int(os.environ.get('PFW2A', '0'))
STG = 53248; WOFF = 16384
LNS = 3*STG
SY = LNS + 512
SY_KVP, SY_Q, SY_OK, SY_EA, SY_EG = 0, 16, 32, 48, 64
QST = 143360; KVR = 135168
TBL = STG
F_OFW = FLG + 0x20000; F_HFW = FLG + 0x40000
WIDE = int(os.environ.get('WIDE', '0'))
WBASE = 61440; WSEG = 32768; SPARE = 32768
F_PF = FLG; F_OF = FLG + 16*128; F_HF = FLG + 20*128; F_KV = FLG + 24*128; F_SF = FLG + 26*128; F_CF = FLG + 28*128

def flat(L): return [y for x in L for y in (x if isinstance(x, list) else [x])]

def lds_wait(q, lbl, vaddr, off, vtmp, cmp_src):
    q("s_mov_b32 s3, 0")
    q(f"{lbl}:")
    q(f"ds_read_b32 {vtmp}, {vaddr} offset:{off}")
    q("s_add_u32 s3, s3, 1")
    q("s_waitcnt lgkmcnt(0)")
    q(f"v_cmp_gt_u32 vcc, {cmp_src}, {vtmp}")
    q("s_nop 4")
    q(f"s_cbranch_vccz {lbl}_ok")
    q("s_sleep 1")
    q(f"s_cmp_lt_u32 s3, {SPINMAX*8}")
    q(f"s_cbranch_scc1 {lbl}")
    q(f"{lbl}_ok:")

def gpoll(q, lbl, load, vregs, val, cnt="s58", sleep=None):
    q(f"s_mov_b32 {cnt}, 0")
    q(f"{lbl}:")
    q(load)
    q(f"s_add_u32 {cnt}, {cnt}, 1")
    q("s_waitcnt vmcnt(0)")
    for r in vregs[1:]: q(f"v_and_b32 {vregs[0]}, {vregs[0]}, {r}")
    q(f"v_cmp_ne_u32 vcc, {val}, {vregs[0]}")
    q("s_nop 4")
    q(f"s_cbranch_vccz {lbl}_ok")
    q(f"s_sleep {PSLEEP if sleep is None else sleep}")
    q(f"s_cmp_lt_u32 {cnt}, {SPINMAX}")
    q(f"s_cbranch_scc1 {lbl}")
    q(f"{lbl}_ok:")

def gen():
    name = NAME + "_kernel"
    lds = 163840
    p = Prog()
    p("s_cmp_ge_u32 s2, 256")
    p("s_cbranch_scc1 L_end")
    stamp(p, 0)
    p(f"s_load_dwordx4 s[64:67], s[0:1], {KA['x']}")
    p(f"s_load_dwordx4 s[8:11], s[0:1], {KA['w1']}")
    p(f"s_load_dwordx2 s[6:7], s[0:1], {KA['ws']}")
    p(f"s_load_dwordx4 s[32:35], s[0:1], {KA['wk']}")
    p(f"s_load_dwordx2 s[62:63], s[0:1], {KA['dbg']}")
    p("v_and_b32 v1, 63, v0")
    p("v_lshrrev_b32 v2, 6, v0")
    p("v_readfirstlane_b32 s40, v2")
    p("v_lshlrev_b32 v5, 4, v1")
    p("s_and_b32 s41, s2, 1")
    p("s_lshl_b32 s41, s41, 3")
    p("s_bfe_u32 s68, s2, 0x30003")
    p("s_add_u32 s41, s41, s68")
    p("s_bfe_u32 s42, s2, 0x20001")
    p("s_lshl_b32 s42, s42, 2")
    p("s_lshr_b32 s43, s2, 6")
    p("s_add_u32 s42, s42, s43")
    p("s_add_u32 s68, s68, s43")
    p("s_lshl_b32 s36, s41, 4")
    p("s_add_u32 s36, s36, s42")
    p("v_and_b32 v3, 15, v1")
    p("v_lshrrev_b32 v4, 4, v1")
    p("v_and_b32 v255, 3, v1")
    p("v_lshlrev_b32 v255, 2, v255")
    p(f"v_add_u32 v255, {SY}, v255")
    p("s_cmp_ge_u32 s40, 4")
    p("s_cbranch_scc1 L_G")
    head = fix(p.ins)

    p = Prog()
    sgelu = (2.0 * math.sqrt(2.0/math.pi) * math.log2(math.e) * 0.044715) ** (1.0/3.0)
    qs = math.log2(math.e) / math.sqrt(32.0)
    p("v_lshrrev_b32 v6, 3, v1")
    p("v_and_b32 v7, 7, v1")
    p("v_xor_b32 v7, v7, v6")
    p("v_lshlrev_b32 v7, 4, v7")
    p("v_lshl_add_u32 v6, v6, 11, v7")
    p("s_lshl_b32 s46, s41, 2")
    p("s_add_u32 s46, s46, s40")
    p("s_lshl_b32 s46, s46, 16")
    p("v_add_u32 v6, s46, v6")
    p("s_and_b32 s46, s41, 8")
    p("v_add_u32 v7, 0x4000, v6")
    p("v_add_u32 v14, 0x8000, v6")
    p("v_add_u32 v15, 0xc000, v6")
    p("v_lshrrev_b32 v8, 5, v1")
    p("v_lshlrev_b32 v8, 1, v8")
    p("v_and_b32 v9, 3, v1")
    p("v_xor_b32 v8, v8, v9")
    p("v_lshlrev_b32 v8, 4, v8")
    p("v_lshrrev_b32 v9, 2, v1")
    p("s_lshl_b32 s47, s40, 4")
    p("v_add_u32 v9, s47, v9")
    p("v_mul_u32_u24 v10, 7168, v9")
    p("s_mul_i32 s47, s42, 448")
    p("v_add3_u32 v10, v10, v8, s47")
    p("v_lshl_add_u32 v9, v9, 11, v8")
    p("s_lshl_b32 s47, s42, 7")
    p("v_add_u32 v9, s47, v9")
    p("s_lshl_b32 s51, s40, 12")
    p("s_lshl_b32 s52, s40, 10")
    p(f"s_add_u32 s52, s52, {WOFF}")
    def set_stage(n):
        slot = (n % 3) * STG
        return [f"s_add_u32 s69, {n}, s68", "s_and_b32 s69, s69, 3", f"s_cselect_b32 s69, 0, {LA1}", f"s_add_u32 s69, s69, {n}", "s_add_u32 s69, s69, s46", "s_and_b32 s69, s69, 15",
                "s_lshl_b32 s53, s69, 7", "s_lshl_b32 s54, s69, 17", f"s_mul_i32 s55, s69, {64*7168}", f"s_add_u32 s56, s51, {slot}", f"s_add_u32 s57, s52, {slot}"]
    slot_of = {"q0": 0, "q1": 4, 0: 1, 1: 2, 2: 3, 3: 8, 4: 5, 5: 6, 6: 7}
    OPS = [[f"s_add_u32 m0, s56, {q*1024}", f"buffer_load_dwordx4 v{(6,7,14,15)[q]}, s[12:15], s53 offen lds"] for q in range(4)]
    for a in range(2): OPS.append([f"s_add_u32 m0, s57, {slot_of['q%d'%a]*4096 - a*64}", f"buffer_load_dwordx4 v9, s[16:19], s54 offen offset:{a*64} lds"])
    for a in range(7): OPS.append([f"s_add_u32 m0, s57, {slot_of[a]*4096 - a*64}", f"buffer_load_dwordx4 v10, s[20:23], s55 offen offset:{a*64} lds"])
    issued = []
    def emit(x, tag=None):
        if isinstance(x, tuple):
            if x[0] == "raw":
                p(x[1]); return
            if x[0] == "wait":
                last = max(k for k, t in enumerate(issued) if t == x[1])
                p(f"s_waitcnt vmcnt({min(63, len(issued)-1-last)})")
                return
            x, tag = x
        p(x)
        if x.startswith("buffer_load"): issued.append(tag)
    def weave(ops, side):
        n = len(ops); k = 0
        for i, (g, tag) in enumerate(ops):
            for x in g: emit(x, tag)
            upto = (len(side) * (i + 1)) // n
            while k < upto:
                for x in side[k]: emit(x)
                k += 1
    for x in ["v_lshrrev_b32 v204, 5, v1", "v_and_b32 v205, 31, v1", "v_lshlrev_b32 v205, 4, v205", "v_lshl_add_u32 v205, v204, 11, v205",
              "s_lshl_b32 s37, s36, 2", "s_add_u32 s37, s37, s40", "s_lshl_b32 s50, s37, 6", f"s_add_u32 s50, s50, {hex(CS)}", "s_lshl_b32 s37, s37, 12", "v_lshlrev_b32 v206, 5, v204"]: p(x)
    SX = 232
    st_ld = [[(f"buffer_load_dwordx4 {V(SX+4*q,4)}, v205, s[12:15], s37 offen offset:{q*512}", "sx")] for q in range(4)]
    for x in set_stage(0): p(x)
    p("s_waitcnt lgkmcnt(0)")
    srd(p, 12, 64, 2048*1024*2)
    if STPOS == -1:
        for x in flat(st_ld): emit(x)
    for k, g in enumerate(OPS):
        if k == 4: srd(p, 16, 66, 1024*1024*2)
        if k == 6: srd(p, 20, 8, 1024*3584*2)
        for x in g: emit(x, ("st", 0))
    if STPOS == 0:
        for x in flat(st_ld): emit(x)
    srd(p, 24, 6, WS_SIZE)
    SX = 232; SF = 16; ST_ = 48; BR = 248; BF = 240
    CX = 128; CA = 176; SELC = 196
    KX = 16; KTM = 80; KW = 96; KA_ = 80; KT = 232; ONES = 188
    su = []
    def s_(x): su.append([x])
    for r in range(2): s_(f"v_mov_b64 {V(216+2*r,2)}, 0")
    for x in ["s_lshl_b32 s38, s41, 12", "s_lshl_b32 s39, s40, 10", "s_add_u32 s38, s38, s39", f"s_add_u32 s38, s38, {hex(FLG)}"]: s_(x)
    for x in ["v_lshlrev_b32 v226, 7, v1", "s_lshl_b32 s39, s41, 13", "s_and_b32 s47, s40, 1", "s_lshl_b32 s47, s47, 17", "s_add_u32 s39, s39, s47", f"s_add_u32 s39, s39, {hex(F_OFW)}"]: s_(x)
    su.append(["s_cmp_eq_u32 s42, 0", "s_cbranch_scc0 LA_nz", "buffer_store_dwordx4 v[216:219], v5, s[24:27], s38 offen sc1"] +
              (["s_cmp_lt_u32 s40, 2", "s_cbranch_scc0 LA_nz", "buffer_store_dword v216, v226, s[24:27], s39 offen sc1"] if WIDE else []) + ["LA_nz:"])
    for x in ["s_sub_u32 s43, 9, s68", "s_and_b32 s43, s43, 7", "v_lshrrev_b32 v207, 2, v1", "v_lshl_add_u32 v207, v207, 6, v8",
              f"s_add_u32 s47, s51, {WOFF}", "v_add_u32 v222, s47, v207", f"v_add_u32 v223, {WOFF+32768}, v207",
              "v_lshrrev_b32 v208, 1, v3", "v_and_b32 v209, 1, v3", "v_lshlrev_b32 v209, 4, v209", "v_mov_b32 v210, 0x3f80", "v_lshlrev_b32 v209, v209, v210"]: s_(x)
    for r in range(4): su.append([f"v_cmp_eq_u32 vcc, {r}, v208", "s_nop 1", f"v_cndmask_b32 v{SELC+r}, 0, v209, vcc"])
    s_("s_and_b32 s44, s42, 3")
    su.append(["s_cmp_ge_u32 s44, 2", "s_cselect_b32 s32, s34, s32", "s_cselect_b32 s33, s35, s33", "s_cselect_b32 s47, 4, 5", "s_cselect_b32 s48, 5, 4"])
    for x in ["s_and_b32 s33, s33, 0xffff", "s_mov_b32 s34, 0x10000", "s_mov_b32 s35, 0x20000",
              "v_and_b32 v11, 1, v1", "v_lshlrev_b32 v11, s47, v11", "v_bfe_u32 v12, v1, 1, 3", "v_lshl_add_u32 v11, v12, 6, v11", "v_lshl_add_u32 v11, v4, 11, v11",
              "s_and_b32 s47, s44, 1", "s_lshl_b32 s47, s47, s48", "s_lshl_b32 s60, s40, 14", "s_add_u32 s60, s60, s47",
              "s_lshl_b32 s45, s41, 2", "s_lshr_b32 s47, s42, 2", "s_add_u32 s45, s45, s47", "s_lshl_b32 s61, s45, 16", "s_lshl_b32 s47, s40, 9", "s_add_u32 s61, s61, s47",
              "v_bfe_u32 v211, v1, 2, 2", "v_lshlrev_b32 v211, 13, v211", "v_and_b32 v212, 3, v1", "v_lshl_add_u32 v211, v212, 4, v211", "v_lshl_add_u32 v211, v4, 6, v211",
              "s_lshl_b32 s59, s40, 10", f"s_add_u32 s59, s59, {LNS}",
              "v_lshlrev_b32 v12, 8, v4", "v_bfe_u32 v13, v1, 2, 2", "v_lshl_add_u32 v12, v13, 5, v12", "v_and_b32 v13, 3, v1", "v_lshl_add_u32 v12, v13, 3, v12", "v_add_u32 v12, s59, v12"]: s_(x)
    for r in range(4): s_(f"v_mov_b32 v{ONES+r}, 0x3f803f80")
    for x in set_stage(1): p(x)
    weave([(g, ("st", 1)) for g in OPS], su)
    for x in set_stage(2): p(x)
    emit(("wait", ("st", 0)))
    p("s_barrier")
    stamp(p, 7)
    def kv_issue(k): return ["s_mov_b32 m0, s59", f"s_add_u32 s47, s60, {(k>>2)*8192+(k&3)*512}", ("buffer_load_dwordx4 v11, s[32:35], s47 offen lds", ("kv", k))]
    def kv_use(k): return [("wait", ("kv", k)), f"ds_read_b64_tr_b16 {V(KW+4*k,2)}, v12", f"ds_read_b64_tr_b16 {V(KW+4*k+2,2)}, v12 offset:128", "s_waitcnt lgkmcnt(0)"]
    def kx_ld(bt):
        return [[f"s_add_u32 s47, s61, {(bt&1)*32768+q*2048}", (f"buffer_load_dwordx4 {V(KX+bt*16+4*q,4)}, v211, s[12:15], s47 offen offset:{(bt>>1)*256}", ("kx", bt))] for q in range(4)]
    def kx_tr(bt):
        R = lambda q, d: KX + bt*16 + 4*q + d
        Tm = lambda q, d: KTM + 4*q + d
        out = [[("wait", ("kx", bt))]]
        for (src, dst, x, qp, m) in ((R, Tm, 1, "[1,0,3,2]", "0xaaaaaaaa"), (Tm, R, 2, "[2,3,0,1]", "0xcccccccc")):
            hi = [q for q in range(4) if q & x]; lo = [q for q in range(4) if not q & x]
            a_ = [f"s_mov_b32 vcc_lo, {m}", f"s_mov_b32 vcc_hi, {m}"]
            a_ += [f"v_cndmask_b32_dpp v{dst(q,d)}, v{src(q^x,d)}, v{src(q,d)}, vcc quad_perm:{qp} row_mask:0xf bank_mask:0xf" for q in hi for d in range(4)]
            b_ = ["s_not_b64 vcc, vcc"]
            b_ += [f"v_cndmask_b32_dpp v{dst(q,d)}, v{src(q^x,d)}, v{src(q,d)}, vcc quad_perm:{qp} row_mask:0xf bank_mask:0xf" for q in lo for d in range(4)]
            out += [a_, b_]
        return out
    kv_mm = []
    for k in range(8):
        z = "0" if k == 0 else None
        kv_mm.append([M16(V(KA_+4*u,4), V(KW+4*k,4), V(KX+((k>>2)*2+u)*16+4*(k&3),4), z) for u in range(2)] + [M16(V(KA_+8,4), V(KW+4*k,4), V(ONES,4), z)])
    def red32(v, t): return [[f"v_add_f32_dpp v{v}, v{v}, v{v} row_ror:{r} row_mask:0xf bank_mask:0xf"] for r in (8, 4, 2, 1)] + \
                            [[f"v_mov_b32 v{t}, v{v}"], [f"v_permlane16_swap_b32 v{v}, v{t}"], [f"v_add_f32 v{v}, v{v}, v{t}"], [f"v_mul_f32 v{v}, {f32(1.0/1024)}, v{v}"]]
    A0 = ST_
    st1 = [[("wait", "sx")]]
    for i in range(16): st1 += [[f"v_lshlrev_b32 v{SF+2*i}, 16, v{SX+i}"], [f"v_and_b32 v{SF+2*i+1}, 0xffff0000, v{SX+i}"]]
    st1 += [[f"v_add_f32 v{A0+c}, v{SF+c}, v{SF+4+c}"] for c in range(4)] + [[f"v_add_f32 v{A0+i%4}, v{A0+i%4}, v{SF+i}"] for i in range(8, 32)]
    st1 += [[f"v_add_f32 v{A0}, v{A0}, v{A0+1}"], [f"v_add_f32 v{A0+2}, v{A0+2}, v{A0+3}"], [f"v_add_f32 v{A0+8}, v{A0}, v{A0+2}"]] + red32(A0+8, A0+1)
    st2 = [[f"v_sub_f32 v{SF+i}, v{SF+i}, v{A0+8}"] for i in range(32)]
    st2 += [[f"v_mul_f32 v{A0+c}, v{SF+c}, v{SF+c}"] for c in range(4)] + [[f"v_fmac_f32 v{A0+i%4}, v{SF+i}, v{SF+i}"] for i in range(4, 32)]
    st2 += [[f"v_add_f32 v{A0}, v{A0}, v{A0+1}"], [f"v_add_f32 v{A0+2}, v{A0+2}, v{A0+3}"], [f"v_add_f32 v{A0+9}, v{A0}, v{A0+2}"]] + red32(A0+9, A0+1)
    st3 = [[x] for x in [f"v_add_f32 v{A0+10}, {f32(1e-5)}, v{A0+9}", f"v_rsq_f32 v{A0+10}, v{A0+10}", f"v_mul_f32 v{A0+11}, v{A0+10}, v{A0+10}", f"v_mul_f32 v{A0+11}, v{A0+11}, v{A0+9}",
           f"v_add_f32 v{A0+11}, {f32(1e-5)}, v{A0+11}", f"v_rsq_f32 v{A0+11}, v{A0+11}", f"v_mul_f32 v{A0+4}, {f32(qs)}, v{A0+10}", f"v_mul_f32 v{A0}, v{A0+10}, v{A0+11}",
           f"v_mul_f32 v{A0}, {f32(sgelu)}, v{A0}", f"v_mov_b32 v{A0+1}, v{A0}", f"v_mul_f32_e64 v{A0+2}, -v{A0}, v{A0+8}", f"v_mov_b32 v{A0+3}, v{A0+2}", f"v_mul_f32_e64 v{A0+5}, -v{A0+4}, v{A0+8}"]]
    st3.append(["s_mov_b32 exec_lo, 1", "s_mov_b32 exec_hi, 1", (f"buffer_store_dwordx4 {V(A0,4)}, v206, s[24:27], s50 offen sc1", "pub"),
                (f"buffer_store_dwordx2 {V(A0+4,2)}, v206, s[24:27], s50 offen offset:16 sc1", "pub"), "s_mov_b64 exec, -1"])
    ool = Prog()
    ool.label("LA_cs")
    ool("v_add_u32 v220, s58, v222")
    ool("v_add_u32 v221, s58, v223")
    for k in range(3):
        for q in range(4): ool(f"ds_read_b128 {V(CX+(k*4+q)*4,4)}, v{220 if k < 2 else 221} offset:{(k&1)*16384+q*1024}")
    ool("s_add_u32 s47, s43, s46")
    ool("s_lshl_b32 s48, s42, 4")
    ool("s_add_u32 s47, s47, s48")
    ool("s_lshl_b32 s47, s47, 11")
    ool("s_lshl_b32 s48, s40, 7")
    ool("s_add_u32 s48, s48, s47")
    ool("v_lshlrev_b32 v220, 5, v3")
    ool("v_lshl_add_u32 v220, v4, 4, v220")
    ool("s_waitcnt lgkmcnt(0)")
    for q in range(4):
        for k in range(3): ool(M16(V(CA+4*k,4), V(SELC,4), V(CX+(k*4+q)*4,4), "0" if q == 0 else None))
    for rr in (4, 8):
        for r in range(12): ool(f"v_add_f32_dpp v{CA+r}, v{CA+r}, v{CA+r} row_ror:{rr} row_mask:0xf bank_mask:0xf")
    ool("s_mov_b32 exec_lo, 0x000f000f")
    ool("s_mov_b32 exec_hi, 0")
    ool(f"buffer_store_dwordx4 {V(CA,4)}, v220, s[24:27], s48 offen sc1")
    ool(f"buffer_store_dwordx4 {V(CA+4,4)}, v220, s[24:27], s48 offen offset:512 sc1")
    ool(f"buffer_store_dwordx4 {V(CA+8,4)}, v220, s[24:27], s47 offen offset:1024 sc1")
    ool("s_mov_b64 exec, -1")
    ool("s_setpc_b64 s[62:63]")
    def cs_call(tau): return [f"s_cmp_eq_u32 s43, {tau}", f"s_cbranch_scc0 LA_cn{tau}", f"s_mov_b32 s58, {(tau%3)*STG}", "s_call_b64 s[62:63], LA_cs", f"LA_cn{tau}:"]
    def chk(name, load, regs, tag):
        c = [("wait", tag)] + [f"v_and_b32 {regs[0]}, {regs[0]}, {r}" for r in regs[1:]] + [f"v_cmp_ne_u32 vcc, 1, {regs[0]}", "s_nop 4", f"s_cbranch_vccnz {name}_s", f"{name}_r:"]
        ool.label(name + "_s")
        gpoll(ool, name, load, regs, "1", cnt="s39")
        ool(f"s_branch {name}_r")
        return [(load, tag)], c
    def step(s, side=(), pre_=(), tail=(), post=()):
        if s >= 0: p("s_barrier")
        for x in flat(list(pre_)): emit(x)
        ops = []
        if s >= 0: ops += [(g, ("st", s+2)) for g in OPS[SPL[s+2]:]]
        hd = [list(g) for g in OPS[:SPL[s+3]]]
        if s >= 0: hd[0] = set_stage(s+3) + hd[0]
        ops += [(g, ("st", s+3)) for g in hd]
        weave(ops, list(side))
        for x in tail: emit(x)
        emit(("wait", ("st", s+2)))
        for x in flat(list(post)): emit(x)
        p("s_waitcnt lgkmcnt(0)")
    def raw(prog): return [("raw", i.text) for i in prog.ins]
    p("s_mov_b32 s4, s62")
    p("s_mov_b32 s5, s63")
    fa = [[x] for x in ["s_mov_b32 s28, s4", "s_and_b32 s29, s5, 0xffff", "s_mov_b32 s30, 0x100", "s_mov_b32 s31, 0x20000", "v_mov_b32 v217, 1", "v_mov_b32 v219, 0", "v_lshlrev_b32 v216, 2, v3",
                        "v_lshlrev_b32 v224, 2, v1", "s_lshl_b32 s64, s41, 12", f"s_add_u32 s64, s64, {hex(F_SF)}", "s_lshl_b32 s65, s42, 12", f"s_add_u32 s65, s65, {hex(F_CF)}",
                        "s_lshl_b32 s66, s42, 2", "s_add_u32 s66, s66, s40", "s_lshl_b32 s66, s66, 2", "s_add_u32 s66, s66, s64",
                        "s_lshl_b32 s67, s41, 2", "s_add_u32 s67, s67, s40", "s_lshl_b32 s67, s67, 2", "s_add_u32 s67, s67, s65"]]
    l1, c1 = chk("LA_p1", "buffer_load_dword v218, v216, s[28:31], 0 offen sc1", ["v218"], "f1")
    l2, c2 = chk("LA_p2", "buffer_load_dword v218, v224, s[24:27], s64 offen sc1", ["v218"], "f2")
    l3, c3 = chk("LA_p4", "buffer_load_dword v218, v224, s[24:27], s65 offen sc1", ["v218"], "f3")
    def wflag(r): return ["s_mov_b64 exec, 1", f"buffer_store_dword v217, v219, s[24:27], {r} offen sc1", "s_mov_b64 exec, -1"]
    D0 = ["s_waitcnt vmcnt(0)"]
    def cp(t): return cs_call(t) if CSPOS == 0 else []
    def ct(t): return cs_call(t) if CSPOS == 1 else []
    step(-1, pre_=cp(0), tail=ct(0))
    step(0, (st_ld if STPOS == 1 else []) + fa, pre_=["s_cmp_eq_u32 s42, 0", "s_cbranch_scc0 LA_nz2", "s_waitcnt vmcnt(0)", "LA_nz2:"] + cp(1) + kv_issue(0), tail=ct(1))
    step(1, st1, pre_=kv_use(0) + cp(2) + kv_issue(1), tail=ct(2))
    step(2, kx_ld(3) + st2, pre_=kv_use(1) + cp(3) + kv_issue(2), tail=ct(3))
    step(3, st3 + kx_tr(3) + [l1], pre_=kv_use(2) + cp(4) + kv_issue(3), tail=ct(4))
    step(4, kx_ld(0), pre_=D0 + c1 + wflag('s66') + kv_use(3) + cp(5) + kv_issue(4), tail=ct(5))
    step(5, kx_ld(1) + kx_tr(0), pre_=kv_use(4) + cp(6) + kv_issue(5), tail=ct(6))
    step(6, kx_ld(2) + kx_tr(1), pre_=kv_use(5) + cp(7) + kv_issue(6), tail=ct(7))
    step(7, kx_tr(2), pre_=D0 + wflag('s67') + kv_use(6) + kv_issue(7) + l2)
    g_ld = [[x] for x in ["v_lshlrev_b32 v214, 5, v3", "s_lshl_b32 s47, s45, 10", f"s_add_u32 s47, s47, {hex(CS)}"]]
    g_ld += [[(f"buffer_load_dwordx2 {V(KT+2*u,2)}, v214, s[24:27], s47 offen offset:{u*512+16} sc1", "ks")] for u in range(2)]
    g2 = [[x] for x in ["s_cmp_lt_u32 s40, 2", "s_cselect_b32 s47, 31, 7", "v_and_b32 v207, s47, v1", "v_lshlrev_b32 v207, 4, v207", "v_lshl_add_u32 v208, v204, 11, v207",
                        "s_lshl_b32 s58, s42, 15", "s_min_u32 s48, s40, 2", "s_lshl_b32 s48, s48, 9", "s_add_u32 s58, s58, s48"]]
    g2 += [[(f"buffer_load_dwordx4 {V(CX+4*q,4)}, v208, s[24:27], s58 offen sc1", "cg"), "s_add_u32 s58, s58, 4096"] for q in range(8)]
    cor = [[("wait", "ks")]]
    for u in range(2):
        for r in range(4): cor += [[f"v_mul_f32 v{KA_+4*u+r}, v{KT+2*u}, v{KA_+4*u+r}"], [f"v_fmac_f32 v{KA_+4*u+r}, v{KT+2*u+1}, v{KA_+8+r}"]]
    cor += [[x] for x in ["s_and_b32 s47, s40, 1", "s_lshl_b32 s47, s47, 11", f"s_add_u32 s47, s47, {LNS}", "v_add_u32 v13, s47, v5"]]
    cor.append(["s_cmp_lt_u32 s40, 2", "s_cbranch_scc1 LA_r1", f"ds_write_b128 v13, {V(KA_,4)}", f"ds_write_b128 v13, {V(KA_+4,4)} offset:1024", "LA_r1:"])
    gs = [[("wait", "cg")]]
    for q in range(1, 8): gs += [[f"v_add_f32 v{CX+r}, v{CX+r}, v{CX+4*q+r}"] for r in range(4)]
    for r in range(4): gs += [[f"v_mov_b32 v{CX+4+r}, v{CX+r}"]]
    for r in range(4): gs += [[f"v_permlane32_swap_b32 v{CX+r}, v{CX+4+r}"]]
    for r in range(4): gs += [[f"v_add_f32 v{CX+r}, v{CX+r}, v{CX+4+r}"]]
    step(8, kv_mm, pre_=kv_use(7) + c2 + g_ld)
    cpf = [code_srd(32, "LA_loop") + ["v_lshlrev_b32 v225, 7, v1", "s_lshl_b32 s47, s40, 13", ("buffer_load_dword v203, v225, s[32:35], s47 offen", "c")]] if PFX == 2 else []
    step(9, pre_=cor, tail=flat(cpf) if CPS == 9 else [])
    red = [f"ds_read_b128 {V(KT,4)}, v13", f"ds_read_b128 {V(KT+4,4)}, v13 offset:1024", "s_waitcnt lgkmcnt(0)"] + \
          [f"v_add_f32 v{KA_+r}, v{KA_+r}, v{KT+r}" for r in range(8)]
    b_ld = [["s_mov_b32 s28, s10", "s_and_b32 s29, s11, 0xffff", f"s_mov_b32 s30, {3584*2}", "s_mov_b32 s31, 0x20000", "v_lshlrev_b32 v208, 3, v1", "s_mul_i32 s47, s42, 448",
             (f"buffer_load_dwordx2 {V(BR,2)}, v208, s[28:31], s47 offen", "b")]]
    step(10, b_ld, pre_=["s_cmp_ge_u32 s40, 2", "s_cbranch_scc1 LA_r2"] + red + ["s_cmp_eq_u32 s40, 0", "s_cbranch_scc1 LA_r2",
               f"ds_write_b128 v13, {V(KA_,4)}", f"ds_write_b128 v13, {V(KA_+4,4)} offset:1024", "LA_r2:"])
    fin = Prog()
    fin("s_cmp_eq_u32 s40, 0")
    fin("s_cbranch_scc0 LA_kvd")
    fin("v_add_u32 v13, 2048, v13")
    for x in red: fin(x)
    for r in range(8): fin(f"v_mul_f32 v{KA_+r}, {f32(1.0/qs)}, v{KA_+r}")
    for r in range(4): fin(f"v_cvt_pk_bf16_f32 v{KT+r}, v{KA_+2*r}, v{KA_+2*r+1}")
    fin("s_lshl_b32 s38, s45, 12")
    fin(f"s_add_u32 s38, s38, {hex(KV)}")
    fin("s_and_b32 s39, s44, 1")
    fin("s_cmp_ge_u32 s44, 2")
    fin("s_cbranch_scc1 LA_kvv")
    fin("v_and_b32 v11, 1, v4")
    fin("v_lshlrev_b32 v11, 9, v11")
    fin("v_lshl_add_u32 v11, v3, 4, v11")
    fin("v_lshrrev_b32 v12, 1, v4")
    fin("v_lshl_add_u32 v11, v12, 3, v11")
    fin("s_lshl_b32 s39, s39, 10")
    fin("s_add_u32 s38, s38, s39")
    for u in range(2): fin(f"buffer_store_dwordx2 {V(KT+2*u,2)}, v11, s[24:27], s38 offen offset:{u*256} sc1")
    fin("s_branch LA_kvd")
    fin.label("LA_kvv")
    fin("v_bfe_u32 v12, v3, 2, 1")
    fin("v_lshlrev_b32 v11, 8, v12")
    fin("v_lshl_add_u32 v11, v4, 6, v11")
    fin("v_lshrrev_b32 v12, 3, v3")
    fin("v_lshl_add_u32 v11, v12, 3, v11")
    fin("v_and_b32 v12, 3, v3")
    fin("v_lshl_add_u32 v11, v12, 1, v11")
    fin(f"v_add_u32 v11, {LNS+2048}, v11")
    for u in range(2):
        for r in range(4):
            op = "ds_write_b16" if r % 2 == 0 else "ds_write_b16_d16_hi"
            fin(f"{op} v11, v{KT+2*u+(r>>1)} offset:{u*512+r*16}")
    fin(f"ds_read_b128 {V(KT+4,4)}, v13")
    fin("v_lshlrev_b32 v11, 9, v4")
    fin("v_lshl_add_u32 v11, v3, 4, v11")
    fin("s_lshl_b32 s39, s39, 8")
    fin("s_add_u32 s38, s38, s39")
    fin("s_waitcnt lgkmcnt(0)")
    fin(f"buffer_store_dwordx4 {V(KT+4,4)}, v11, s[24:27], s38 offen offset:2048 sc1")
    fin.label("LA_kvd")
    fin("v_lshlrev_b32 v11, 2, v1")
    fin(f"v_add_u32 v11, {SY}, v11")
    fin("ds_write_b32 v11, v219")
    bu = [[("wait", "b")]] + [[x] for x in [f"v_lshlrev_b32 v{BF}, 16, v{BR}", f"v_and_b32 v{BF+1}, 0xffff0000, v{BR}", f"v_lshlrev_b32 v{BF+2}, 16, v{BR+1}", f"v_and_b32 v{BF+3}, 0xffff0000, v{BR+1}"]]
    bu += [[f"v_mul_f32 v{BF+r}, {f32(sgelu)}, v{BF+r}"] for r in range(4)]
    w2t = []
    if PFW2A:
        w2t = [f"s_load_dwordx2 s[8:9], s[0:1], {KA['w2']}", "s_waitcnt lgkmcnt(0)", "s_mov_b32 s32, s8", "s_and_b32 s33, s9, 0xffff", f"s_mov_b32 s34, {3584*1024*2}", "s_mov_b32 s35, 0x20000",
               "v_lshlrev_b32 v225, 7, v1", "s_lshl_b32 s47, s2, 2", "s_add_u32 s47, s47, s40", "s_lshl_b32 s47, s47, 13", ("buffer_load_dword v203, v225, s[32:35], s47 offen", "w2")]
    step(11, bu, pre_=raw(fin), tail=(flat(cpf) if CPS == 11 else []) + (w2t if PFW2A == 11 else []))
    pub = ["s_cmp_eq_u32 s40, 0", "s_cbranch_scc0 LA_np0", "s_lshl_b32 s38, s41, 12", "s_lshl_b32 s39, s42, 2", "s_add_u32 s38, s38, s39", f"s_add_u32 s38, s38, {hex(F_KV)}",
           "s_waitcnt vmcnt(0)", "s_mov_b64 exec, 1", "buffer_store_dword v217, v219, s[24:27], s38 offen sc1", "s_mov_b64 exec, -1", "LA_np0:"]
    step(12, pre_=pub + l3, post=c3, tail=w2t if PFW2A == 12 else [])
    p("s_barrier")
    p(f"ds_write_b128 v5, {V(BF,4)} offset:{TBL+2048}")
    for g in OPS[SPL[15]:]:
        for x in g: emit(x, ("st", 15))
    p("s_lshl_b32 s47, s40, 10")
    p(f"s_add_u32 m0, s47, {TBL+4096}")
    p("s_lshl_b32 s48, s41, 12")
    p("s_add_u32 s47, s47, s48")
    p(f"s_add_u32 s47, s47, {hex(CS)}")
    emit("buffer_load_dwordx4 v5, s[24:27], s47 offen sc1 lds", "tk")
    for x in flat(g2) + flat(gs): emit(x)
    p(f"s_add_u32 s47, s48, {TBL}")
    p("v_add_u32 v207, s47, v207")
    p(f"ds_write_b128 v207, {V(CX,4)}")
    p("s_lshl_b32 s39, s40, 2")
    p(f"s_add_u32 s39, s39, {SY}")
    p("v_mov_b32 v254, s39")
    p("s_waitcnt lgkmcnt(0)")
    if AW2:
        p(f"s_load_dwordx2 s[8:9], s[0:1], {KA['w2']}")
        assert GMAP == 0
        p("s_bfe_u32 s44, s2, 0x10002")
        p("v_and_b32 v13, 3, v1")
        p("v_lshlrev_b32 v13, 4, v13")
        p("s_lshl_b32 s47, s44, 1")
        p("v_xor_b32 v14, s47, v4")
        p("v_lshl_add_u32 v13, v14, 6, v13")
        p("v_bfe_u32 v14, v1, 2, 2")
        p("v_lshl_add_u32 v8, v14, 11, v13")
        p("s_lshl_b32 s47, s40, 16")
        p("v_add_u32 v8, s47, v8")
        p("v_xor_b32 v9, 32, v8")
        p("s_lshl_b32 s56, s40, 13")
        p(f"s_mul_i32 s54, s44, {1792*2048}")
        p("s_lshr_b32 s48, s2, 5")
        p("s_lshl_b32 s48, s48, 8")
        p("s_add_u32 s54, s54, s48")
        p("s_waitcnt lgkmcnt(0)")
        srd(p, 16, 8, 3584*1024*2)
    p("s_barrier")
    if AW2:
        for n in range(AW2):
            for q in range(8):
                p(f"s_add_u32 m0, s56, {WBASE+n*WSEG+q*1024}")
                p(f"s_add_u32 s55, s54, {n*0x40000+q*0x2000}")
                p(f"buffer_load_dwordx4 v{8+(q&1)}, s[16:19], s55 offen lds")
    stamp(p, 5)

    Q = {0: 16, 1: 24}; C = {0: 32, 1: 48}; Sx = {0: 64, 1: 80}; P = {0: 96, 1: 104}
    O = {0: 112, 1: 128}; L = {0: 144, 1: 148}; SEL = 152
    KF = {0: 156, 1: 164}; VF = {0: 172, 1: 180}; T = 188; IDX = 200; EP = 201; EPR = 202
    p(f"s_load_dwordx2 s[4:5], s[0:1], {KA['wo']}")
    p("v_lshlrev_b32 v6, 4, v3")
    p("v_lshrrev_b32 v7, 5, v1")
    p("v_lshl_add_u32 v6, v7, 8, v6")
    p("v_bfe_u32 v8, v1, 4, 1")
    p(f"s_mov_b32 s44, {OH_TILE}")
    p("v_mul_lo_u32 v7, v8, s44")
    p("v_add_u32 v7, v7, v6")
    p("v_lshl_add_u32 v6, v8, 11, v6")
    p(f"s_add_u32 s47, s51, {QST}")
    p("v_add_u32 v6, s47, v6")
    p("s_lshl_b32 s45, s41, 2")
    p("s_add_u32 s45, s45, s40")
    p(f"s_mul_i32 s47, s45, {2*OH_TILE}")
    p("s_lshl_b32 s46, s42, 11")
    p("s_add_u32 s47, s47, s46")
    p(f"s_add_u32 s47, s47, {hex(OH_F)}")
    p("s_lshl_b32 s53, s41, 12")
    p("s_lshl_b32 s54, s40, 7")
    p("s_add_u32 s53, s53, s54")
    p("s_lshl_b32 s54, s42, 2")
    p("s_add_u32 s53, s53, s54")
    p(f"s_add_u32 s53, s53, {hex(F_OF)}")
    if WIDE:
        p("s_lshl_b32 s53, s45, 4")
        p("s_add_u32 s53, s53, s42")
        p("s_lshl_b32 s53, s53, 7")
        p(f"s_add_u32 s53, s53, {hex(F_OFW)}")
    srd(p, 12, 6, 262144, KV)
    p("v_and_b32 v8, 4, v1")
    p("v_cmp_eq_u32 vcc, 0, v8")
    p("v_mov_b32 v9, 0x3f803f80")
    p("v_mov_b32 v8, 0")
    for r in range(2): p(f"v_cndmask_b32 v{SEL+r}, v8, v9, vcc")
    for r in range(2): p(f"v_cndmask_b32 v{SEL+2+r}, v9, v8, vcc")
    p("v_and_b32 v8, 1, v1")
    p("v_mul_u32_u24 v8, 0xaaaa, v8")
    p(f"v_add_u32 v{IDX}, 0x4444, v8")
    for x in range(2):
        for r in range(8): p(f"v_mov_b64 {V(O[x]+2*r,2)}, 0")
        for r in range(2): p(f"v_mov_b64 {V(L[x]+2*r,2)}, 0")
    for r in range(4):
        p(f"v_mov_b64 {V(P[1]+2*r,2)}, 0")
        p(f"v_mov_b64 {V(VF[1]+2*r,2)}, 0")
    p(f"v_mov_b32 v{EP}, 1")
    p("v_lshlrev_b32 v12, 7, v1")
    p("s_waitcnt lgkmcnt(0)")
    srd(p, 20, 4, 1024*1024*2)
    for x in code_srd(16, "LG_tail"): p(x)
    p("s_lshl_b32 s49, s2, 13")
    p("s_sub_u32 s55, s40, 1")
    p("s_lshl_b32 s55, s55, 13")
    p("s_cmp_eq_u32 s40, 0")
    p("s_cselect_b32 s16, s20, s16")
    p("s_cselect_b32 s17, s21, s17")
    p("s_cselect_b32 s18, s22, s18")
    p("s_cselect_b32 s55, s49, s55")
    p("s_cmp_eq_u32 s40, 1")
    p("s_cbranch_scc0 LA_np")
    p("v_lshrrev_b32 v13, 2, v1")
    p("v_lshlrev_b32 v13, 12, v13")
    p("v_and_b32 v14, 3, v1")
    p("v_lshl_add_u32 v13, v14, 4, v13")
    p(f"s_mov_b32 s48, {hex(F_KV)}")
    gpoll(p, "LA_p3", f"buffer_load_dwordx4 {V(T,4)}, v13, s[24:27], s48 offen sc1", [f"v{T+r}" for r in range(4)], "1")
    p(f"ds_write_b32 v255, v{EP} offset:{SY_OK}")
    p.label("LA_np")
    lds_wait(p, "LA_w3", "v255", SY_OK, "v13", "1")
    stamp(p, 4)
    lds_wait(p, "LA_w2", "v255", SY_Q, "v13", "1")
    for x in range(2):
        for mf in range(2): p(f"ds_read_b128 {V(Q[x]+4*mf,4)}, v6 offset:{x*1024+mf*512}")
    stamp(p, 6)
    if PRIO_A: p(f"s_setprio {PRIO_A}")
    p("s_lshl_b32 s50, s40, 11")
    p("s_mov_b32 s51, s50")
    def kvd(slot): return [f"s_add_u32 m0, s51, {slot*8192}", "buffer_load_dwordx4 v5, s[12:15], s50 offen sc1 lds",
                           "buffer_load_dwordx4 v5, s[12:15], s50 offen offset:1024 sc1 lds", "s_add_u32 s50, s50, 0x2000"]
    for c in range(3):
        for x in kvd(c): p(x)
    p("s_waitcnt vmcnt(4)")
    p(f"ds_write_b32 v254, v{EP} offset:{SY_EA}")
    lds_wait(p, "LA_w4", "v255", SY_EA, "v13", "1")
    stamp(p, 1)
    def rdK(buf, tile): return [f"ds_read_b128 {V(KF[buf]+4*m,4)}, v5 offset:{(tile&7)*4096+m*1024}" for m in range(2)]
    def rdV(buf, tile): return [f"ds_read_b128 {V(VF[buf]+4*m,4)}, v5 offset:{(tile&7)*4096+2048+m*1024}" for m in range(2)]
    def QK(x, buf, c=None):
        cc = V(C[x],16) if c is None else c
        return [M32(V(Sx[x],16), V(KF[buf],4), V(Q[x],4), cc), M32(V(Sx[x],16), V(KF[buf]+4,4), V(Q[x]+4,4))]
    def PV(x, buf): return [M32(V(O[x],16), V(VF[buf],4), V(P[x],4)), M32(V(O[x],16), V(VF[buf]+4,4), V(P[x]+4,4))]
    def SUM(x): return [f"v_smfmac_f32_16x16x64_bf16 {V(L[x],4)}, {V(SEL,4)}, {V(P[x],8)}, v{IDX}"]
    def rowmax(q, x, dst, init=None):
        s = Sx[x]
        if init is None:
            q(f"v_max3_f32 v{dst}, v{s}, v{s+1}, v{s+2}")
            q(f"v_max_f32 v{dst}, v{dst}, v{s+3}")
            st = 4
        else: st = 0
        for i in range(st, 16, 2): q(f"v_max3_f32 v{dst}, v{dst}, v{s+i}, v{s+i+1}")
    def setC(q, x, src):
        q(f"v_mov_b32 v{T+8}, v{src}")
        q(f"v_permlane32_swap_b32 v{src}, v{T+8}")
        q(f"v_max_f32 v{src}, v{src}, v{T+8}")
        for r in range(16): q(f"v_sub_f32 v{C[x]+r}, 0, v{src}")
    for x in rdK(0, 0): p(x)
    p(f"v_add_u32 v{EP}, 1, v{EP}")
    p("s_waitcnt vmcnt(2)")
    p(f"ds_write_b32 v254, v{EP} offset:{SY_EA}")
    p("s_waitcnt lgkmcnt(0)")
    for x in range(2):
        for m in QK(x, 0, "0"): p(m)
    for x in range(2):
        rowmax(p, x, T+x)
        setC(p, x, T+x)
    for m in QK(0, 0): p(m)
    if AHOLD: lds_wait(p, "LA_w5", "v255", SY_Q, "v13", "2")
    p("s_mov_b32 s59, 0")
    p("s_nop 15")
    pre = fix(p.ins, pre=head)
    b = Prog()
    b.label("LA_loop")
    def valu(x):
        v = []
        for i in range(8):
            v += [f"v_exp_f32 v{Sx[x]+2*i}, v{Sx[x]+2*i}", f"v_exp_f32 v{Sx[x]+2*i+1}, v{Sx[x]+2*i+1}"]
            if i >= 1: v.append(f"v_cvt_pk_bf16_f32 v{P[x]+i-1}, v{Sx[x]+2*i-2}, v{Sx[x]+2*i-1}")
        v.append(f"v_cvt_pk_bf16_f32 v{P[x]+7}, v{Sx[x]+14}, v{Sx[x]+15}")
        return v
    def phase(x, mf, extra):
        v = valu(x); out = []; cum = 0; mi = 0
        for ins in v:
            while mi < 5 and cum >= APOS[mi]:
                out += extra.get(("pre", mi), [])
                out.append(mf[mi]); out += extra.get(mi, []); mi += 1
            out.append(ins); cum += 8 if "exp" in ins else 4
        assert mi == 5
        return out
    for t in range(8):
        kb = t & 1; ch = t >> 1
        nk = rdK(kb^1, t+1); nv = rdV(kb, t)
        ex = {0: [nk[0]], 1: [nk[1]], 2: [nv[0]], 3: [nv[1]]}
        if kb == 0: ex[4] = [f"ds_read_b32 v{EPR}, v255 offset:{SY_EA}"]
        for x in phase(0, QK(1, kb) + PV(1, kb^1) + SUM(1), ex): b(x)
        ex = {("pre", 0): ["s_waitcnt lgkmcnt(0)"]}
        if kb == 0:
            d = kvd((ch + 3) & 3)
            ex[0] = [f"v_cmp_gt_u32 vcc, v{EP}, v{EPR}"]
            ex[1] = [f"s_cbranch_vccnz LA_sp{ch}", f"LA_spr{ch}:"]
            ex[2] = [d[0]]; ex[3] = [d[1]]; ex[4] = [d[2], d[3]]
            ool.label(f"LA_sp{ch}")
            lds_wait(ool, f"LA_spw{ch}", "v255", SY_EA, f"v{EPR}", f"v{EP}")
            ool(f"s_branch LA_spr{ch}")
        else:
            ex[0] = [f"v_add_u32 v{EP}, 1, v{EP}"]
            ex[1] = ["s_waitcnt vmcnt(2)", f"ds_write_b32 v254, v{EP} offset:{SY_EA}"]
            if t == 3: ex[3] = [f"s_cmp_eq_u32 s59, {WOIT}", "s_cbranch_scc1 LA_xt", "LA_xtr:"]
            if t == 7: ex[4] = ["s_add_u32 s59, s59, 1", "s_cmp_lt_u32 s59, 8"]
        for x in phase(1, QK(0, kb^1) + PV(0, kb) + SUM(0), ex): b(x)
    b("s_cbranch_scc1 LA_loop")
    ool.label("LA_xt")
    ool("buffer_load_dword v13, v12, s[16:19], s55 offen")
    ool("s_branch LA_xtr")
    if os.environ.get("ADROP"):
        dr = os.environ["ADROP"].split(",")
        b.ins = [i for i in b.ins if not any(i.text.startswith(d) for d in dr)]
    rep = []
    body = fix(b.ins, pre=pre, report=rep)
    if rep: print("attn loop nops:", len(rep), rep[:5])
    assert not check_loop(body)
    e = Prog()
    stamp(e, 2)
    for m in PV(1, 1) + SUM(1): e(m)
    e("s_mov_b32 s60, 0")
    e.label("LA_fin")
    e("s_nop 15")
    for x in range(2): e(f"v_add_f32 v{L[x]}, v{L[x]}, v{L[x]+1}")
    e(f"s_mov_b32 s61, {f32(2.0**40)}")
    e(f"v_cmp_gt_f32 vcc, s61, v{L[0]}")
    e(f"v_cmp_gt_f32 s[62:63], s61, v{L[1]}")
    e("s_and_b64 vcc, vcc, s[62:63]")
    e("s_cmp_eq_u64 vcc, -1")
    e("s_cbranch_scc1 LA_store")
    e("s_cmp_eq_u32 s60, 0")
    e("s_cbranch_scc1 LA_slow")
    e.label("LA_store")
    for x in range(4): e(f"v_rcp_f32 v{T+x}, v{L[x>>1]}")
    for x in range(2):
        if APK:
            for r in range(8): e(f"v_pk_mul_f32 {V(O[x]+2*r,2)}, {V(O[x]+2*r,2)}, {V(T+2*x,2)}")
        else:
            for r in range(16): e(f"v_mul_f32 v{O[x]+r}, v{O[x]+r}, v{T+2*x}")
        for hh in range(2):
            o = P[x] + 4*hh
            src = [4*hh, 4*hh+2, 8+4*hh, 8+4*hh+2]
            for i, sr in enumerate(src): e(f"v_cvt_pk_bf16_f32 v{o+i}, v{O[x]+sr}, v{O[x]+sr+1}")
            e(f"buffer_store_dwordx4 {V(o,4)}, v7, s[24:27], s47 offen offset:{x*1024+hh*512} sc1")
    e("v_mov_b32 v8, 1")
    e("v_mov_b32 v9, 0")
    stamp(e, 3)
    e("s_waitcnt vmcnt(0)")
    e("s_mov_b64 exec, 1")
    e("buffer_store_dword v8, v9, s[24:27], s53 offen sc1")
    e("s_mov_b64 exec, -1")
    if AQ2:
        e("v_lshrrev_b32 v10, 5, v1")
        e("v_lshlrev_b32 v11, 1, v10")
        e("v_and_b32 v14, 3, v1")
        e("v_xor_b32 v11, v11, v14")
        e("v_lshlrev_b32 v11, 4, v11")
        e("v_bfe_u32 v14, v1, 4, 1")
        e("v_lshl_add_u32 v11, v14, 6, v11")
        e("v_bfe_u32 v14, v1, 2, 2")
        e("v_lshl_add_u32 v10, v10, 2, v14")
        e("v_lshl_add_u32 v10, v10, 11, v11")
        e("s_lshr_b32 s48, s2, 5")
        e("s_lshl_b32 s48, s48, 8")
        e("s_bfe_u32 s49, s2, 0x10002")
        e("s_lshl_b32 s49, s49, 7")
        e("s_add_u32 s48, s48, s49")
        e("s_lshl_b32 s49, s40, 17")
        e("s_add_u32 s48, s48, s49")
        e("s_lshl_b32 s49, s40, 13")
        e(f"v_add_u32 v{EP}, 1, v{EP}")
        e(f"ds_write_b32 v254, v{EP} offset:{SY_EA}")
        lds_wait(e, "LA_w6", "v255", SY_EA, "v13", f"v{EP}")
        for q in range(8):
            e(f"s_add_u32 m0, s49, {q*1024}")
            e(f"s_add_u32 s50, s48, {0x100000+q*0x4000}")
            e("buffer_load_dwordx4 v10, s[20:23], s50 offen lds")
        e("s_waitcnt vmcnt(0)")
    stamp_flush(e, 2, 9)
    e.label("L_end")
    e("s_endpgm")
    e.label("LA_slow")
    e("s_mov_b32 s60, 1")
    e(f"v_mov_b32 v{T}, 0xff800000")
    e(f"v_mov_b32 v{T+1}, 0xff800000")
    e("s_mov_b32 s52, 0")
    e.label("LA_s1")
    for m in range(2): e(f"buffer_load_dwordx4 {V(KF[0]+4*m,4)}, v5, s[12:15], s52 offen offset:{m*1024} sc1")
    e("s_waitcnt vmcnt(0)")
    for x in range(2):
        for m in QK(x, 0, "0"): e(m)
    e("s_nop 15")
    for x in range(2): rowmax(e, x, T+x, init=True)
    e("s_add_u32 s52, s52, 4096")
    e("s_cmp_lt_u32 s52, 0x40000")
    e("s_cbranch_scc1 LA_s1")
    for x in range(2):
        setC(e, x, T+x)
        for r in range(16): e(f"v_mov_b32 v{O[x]+r}, 0")
        for r in range(4): e(f"v_mov_b32 v{L[x]+r}, 0")
    e("s_mov_b32 s52, 0")
    e.label("LA_s2")
    for m in range(2): e(f"buffer_load_dwordx4 {V(KF[0]+4*m,4)}, v5, s[12:15], s52 offen offset:{m*1024} sc1")
    for m in range(2): e(f"buffer_load_dwordx4 {V(VF[0]+4*m,4)}, v5, s[12:15], s52 offen offset:{2048+m*1024} sc1")
    e("s_waitcnt vmcnt(0)")
    for x in range(2):
        for m in QK(x, 0): e(m)
    e("s_nop 15")
    for x in range(2):
        for v in valu(x): e(v)
    e("s_nop 3")
    for x in range(2):
        for m in PV(x, 0) + SUM(x): e(m)
    e("s_nop 15")
    e("s_add_u32 s52, s52, 4096")
    e("s_cmp_lt_u32 s52, 0x40000")
    e("s_cbranch_scc1 LA_s2")
    e("s_branch LA_fin")
    e.extend(ool)
    epi = fix(e.ins, pre=body)
    roleA = pre + [Ins(".p2align 6")] + body + epi
    import mega_g
    roleG = mega_g.gen(head)
    ins = head + roleA + roleG
    return name, kernel_text(name, ins, 256, 256), (256, 512, lds)
```

```python
from common import *
from mega import *
import math

FLP = int(os.environ.get('FLP', '26'))
CPM = int(os.environ.get('CPM', '31'))
TLBW = int(os.environ.get('TLBW', '0'))
GBOOST = int(os.environ.get('GBOOST', '0'))
SPF = int(os.environ.get('SPF', '0'))
SPFK = eval(os.environ.get('SPFK', '[1, 2, 3, 5, 6, 7]'))
EARLYO = int(os.environ.get('EARLYO', '0'))
NSP = int(os.environ.get('NSP', '3'))
def gen(head):
    ACC = 16
    def acc(u, t): return ACC + (u*9+t)*4
    XB = 160; WS_ = 192; RAW = 236; CSC = 250
    def XF(f, u): return XB + f*16 + u*4
    sa = list(range(9)); sb = list(range(9, 9+NSP)) + list(range(9-NSP))
    def WF(f, t): return WS_ + (sa if f == 0 else sb)[t]*4
    p = Prog()
    p.label("L_G")
    p("s_sub_u32 s40, s40, 4")
    p("s_lshr_b32 s44, s40, 1")
    p("s_and_b32 s45, s40, 1")
    if CODEPF:
        for x in code_srd(28, NAME + "_kernel", back=True): p(x)
        p("v_lshlrev_b32 v20, 7, v1")
        p("s_lshr_b32 s47, s2, 3")
        p(f"s_and_b32 s47, s47, {CPM}")
        p("s_lshl_b32 s47, s47, 13")
        p("s_cmp_eq_u32 s40, 0")
        p("s_cbranch_scc0 LG_nt")
        p("buffer_load_dword v253, v20, s[28:31], s47 offen")
        p.label("LG_nt")
    p("s_lshl_b32 s39, s40, 2")
    p(f"s_add_u32 s39, s39, {SY}")
    p("v_mov_b32 v254, s39")
    p("v_lshrrev_b32 v22, 4, v1")
    p("v_mul_u32_u24 v22, 7168, v22")
    p("v_min_u32 v23, 13, v3")
    p("v_lshl_add_u32 v22, v23, 7, v22")
    p("v_lshrrev_b32 v23, 2, v1")
    p("v_and_b32 v24, 3, v1")
    p("v_lshlrev_b32 v24, 7, v24")
    p("v_lshl_add_u32 v23, v23, 11, v24")
    p("s_lshr_b32 s47, s2, 3")
    p("s_bfe_u32 s48, s2, 0x20001")
    if TLBW:
        p(f"s_load_dwordx2 s[12:13], s[0:1], {KA['wo']}")
        p(f"s_load_dwordx4 s[16:19], s[0:1], {KA['w2']}")
        p(f"s_load_dwordx2 s[14:15], s[0:1], {KA['out']}")
    p("s_waitcnt lgkmcnt(0)")
    if SPF:
        p("s_lshr_b32 s46, s2, 3")
        p("s_lshl_b32 s46, s46, 2")
        p("s_add_u32 s46, s46, s40")
        p("s_and_b32 s49, s2, 1")
        p("s_lshl_b32 s50, s49, 21")
        p("s_lshl_b32 s51, s46, 14")
        p("s_add_u32 s50, s50, s51")
        p("s_lshl_b32 s51, s49, 10")
        p("s_add_u32 s50, s50, s51")
        p("s_add_u32 s12, s64, s50")
        p("s_addc_u32 s13, s65, 0")
        p("s_lshr_b32 s50, s46, 1")
        p("s_lshl_b32 s51, s49, 9")
        p("s_add_u32 s50, s50, s51")
        p("s_and_b32 s46, s46, 1")
        p("s_mul_i32 s51, s50, 7168")
        p("s_mul_i32 s52, s48, 1792")
        p("s_add_u32 s51, s51, s52")
        p("s_mul_i32 s52, s46, 896")
        p("s_add_u32 s51, s51, s52")
        p("s_add_u32 s14, s8, s51")
        p("s_addc_u32 s15, s9, 0")
        p("s_lshl_b32 s51, s50, 11")
        p("s_lshl_b32 s52, s48, 9")
        p("s_add_u32 s51, s51, s52")
        p("s_lshl_b32 s52, s46, 8")
        p("s_add_u32 s51, s51, s52")
        p("s_add_u32 s16, s66, s51")
        p("s_addc_u32 s17, s67, 0")
        prev = 0
        for k in SPFK[:SPF]:
            p(f"s_add_u32 s14, s14, {(k-prev)*64*7168}")
            p("s_addc_u32 s15, s15, 0")
            prev = k
            for n in range(7): p(f"s_load_dword s53, s[14:15], {n*128}")
            for n in range(8): p(f"s_load_dword s53, s[12:13], {n*2048+k*128}")
            for n in range(2): p(f"s_load_dword s53, s[16:17], {k*64*2048+n*128}")
    if TLBW:
        M2 = 2 << 20
        pg = [(8, k*M2) for k in range(4)] + [(64, 0), (64, M2), (66, 0), (32, 0), (34, 0), (10, 0), (62, 0), (6, XN_F), (6, CS), (6, FLG)]
        pg += [(6, OH_F + k*M2) for k in range(9)] + [(16, k*M2) for k in range(4)] + [(12, 0), (18, 0), (14, 0), (14, M2), (6, PART), (6, PART + M2)]
        for w in range(4):
            if w < 3:
                p(f"s_cmp_eq_u32 s40, {w}")
                p(f"s_cbranch_scc0 LG_tw{w}")
            for k, (b_, off) in enumerate(pg[w::4]):
                p(f"s_mov_b32 s46, {hex(off)}")
                p(f"s_load_dword s{51+k}, s[{b_}:{b_+1}], s46")
            if w < 3:
                p("s_branch LG_twd")
                p.label(f"LG_tw{w}")
        p.label("LG_twd")
    p("s_cmp_eq_u32 s40, 3")
    p("s_cbranch_scc1 LG_eq")
    srd(p, 20, 8, 1024*3584*2)
    p(f"s_mul_i32 s49, s47, {4*7168}")
    p("s_mul_i32 s50, s48, 1792")
    p("s_add_u32 s49, s49, s50")
    p("s_and_b32 s50, s2, 1")
    p("s_lshl_b32 s50, s50, 2")
    p("s_add_u32 s50, s50, s40")
    p(f"s_mul_i32 s50, s50, {128*7168}")
    p("s_add_u32 s49, s49, s50")
    for g in range(EPF):
        p("buffer_load_dword v253, v22, s[20:23], s49 offen")
        p(f"s_add_u32 s49, s49, {3*128*7168}")
    p("s_branch LG_ed")
    p.label("LG_eq")
    srd(p, 20, 66, 1024*1024*2)
    p("s_lshl_b32 s49, s47, 15")
    p("s_lshl_b32 s50, s48, 9")
    p("s_add_u32 s49, s49, s50")
    p("s_and_b32 s50, s2, 1")
    p("s_lshl_b32 s50, s50, 20")
    p("s_add_u32 s49, s49, s50")
    for g in range(EPF):
        p("buffer_load_dword v253, v23, s[20:23], s49 offen")
        p(f"s_add_u32 s49, s49, {512*2048}")
    p.label("LG_ed")
    p("v_and_b32 v11, 7, v3")
    p("v_xor_b32 v11, v11, v4")
    p("v_lshlrev_b32 v11, 4, v11")
    p("v_lshl_add_u32 v11, v3, 7, v11")
    p("s_lshl_b32 s47, s44, 13")
    p("v_add_u32 v11, s47, v11")
    p("v_xor_b32 v10, 64, v11")
    p("v_lshlrev_b32 v15, 9, v4")
    p("v_bfe_u32 v13, v1, 2, 2")
    p("v_lshl_add_u32 v15, v13, 6, v15")
    p("v_and_b32 v13, 3, v1")
    p("v_lshl_add_u32 v15, v13, 3, v15")
    p("v_and_b32 v13, 1, v4")
    p("v_lshl_add_u32 v15, v13, 5, v15")
    p("s_lshl_b32 s47, s45, 5")
    p("v_xor_b32 v14, s47, v15")
    p(f"v_add_u32 v14, {WOFF+32768}, v14")
    p("s_lshl_b32 s47, s45, 14")
    p(f"s_add_u32 s47, s47, {WOFF}")
    p("v_add_u32 v12, s47, v15")
    p("v_xor_b32 v13, 32, v12")
    srd(p, 24, 6, WS_SIZE)
    srd(p, 28, 62, 256)
    p("v_mov_b32 v6, 0")
    p("v_mov_b32 v7, 1")
    p("s_lshl_b32 s37, s41, 2")
    p("s_or_b32 s39, s42, s40")
    p("s_cmp_eq_u32 s39, 0")
    p("s_cselect_b32 s3, 2, 0")
    if TLBW or SPF: p("s_waitcnt lgkmcnt(0)")
    p("s_mov_b32 s58, 0")
    p(f"s_mov_b32 s60, {STG}")
    p(f"s_mov_b32 s61, {STG}")
    p("s_mov_b32 s59, 0")
    p("s_barrier")
    if PRIO_G1: p(f"s_setprio {PRIO_G1}")
    stamp(p, 1)
    if LOOPST: p("s_mov_b32 s71, 0")
    def rx(f, kk): return [f"ds_read_b128 {V(XF(f,u),4)}, v{11-kk} offset:{u*2048}" for u in range(4)]
    def rw(f, t, kk):
        if t < 8: return [f"ds_read_b64_tr_b16 {V(WF(f,t)+rho*2,2)}, v{12+(t&1)} offset:{(t>>1)*4096+kk*2048+rho*256}" for rho in range(2)]
        return [f"ds_read_b64_tr_b16 {V(WF(f,t)+rho*2,2)}, v14 offset:{kk*2048+rho*256}" for rho in range(2)]
    def mfmas(f, zero=False): return [M16(V(acc(u,t),4), V(WF(f,t),4), V(XF(f,u),4), "0" if zero else None) for t in range(9) for u in range(4)]
    for x in rx(0, 0): p(x)
    for t in range(9):
        for x in rw(0, t, 0): p(x)
    p("s_waitcnt lgkmcnt(0)")
    rot_v = [f"v_add_u32 v{r}, s61, v{r}" for r in (10, 11, 12, 13, 14)]
    rot_s = ["s_mov_b32 s58, s60", f"s_add_u32 s60, s58, {STG}", f"s_cmp_eq_u32 s60, {3*STG}", "s_cselect_b32 s60, 0, s60", "s_sub_u32 s61, s60, s58"]
    def phaseA(zero=False, extra=()):
        early = rx(1, 1) + sum([rw(1, t, 1) for t in range(NSP)], [])
        fill = [(i // 2, x) for i, x in enumerate(early)]
        for t in range(NSP, 9):
            r = rw(1, t, 1)
            fill += [(4*(t-NSP)+5, r[0]), (4*(t-NSP)+6, r[1])] if NSP > 2 else [(4*(t-NSP)+4, r[0]), (4*(t-NSP)+5, r[1])]
        fill.append((7, f"s_waitcnt lgkmcnt({len(early)+2})"))
        fill += [(30+i, x) for i, x in enumerate(rot_v)]
        return interleave(mfmas(0, zero), fill + list(extra))
    def phaseB(last=False, extra=()):
        fill = []
        if not last:
            early = rx(0, 0) + sum([rw(0, t, 0) for t in range(9-NSP, 9)], [])
            fill = [(i, x) for i, x in enumerate(early)]
            for t in range(9-NSP):
                r = rw(0, t, 0)
                if t < 8-NSP: fill += [(4*(t+NSP)+4, r[0]), (4*(t+NSP)+5, r[1])]
                else: fill += [(35, r[0]), (35, r[1])]
            fill += [(10, rot_s[0]), (10, rot_s[1]), (11, rot_s[2]), (11, rot_s[3]), (14, rot_s[4])]
        return interleave(mfmas(1), fill + list(extra))
    for x in phaseA(zero=True): p(x)
    p("s_waitcnt lgkmcnt(0)")
    pre = fix(p.ins, pre=head)
    ool = Prog()
    b = Prog()
    b.label("LG_l1")
    loopstamp(b, "v2", "v9")
    b("s_barrier")
    loopstamp(b, "v2", "v9")
    for x in phaseB(extra=[(15, "s_add_u32 s59, s59, 1")]): b(x)
    b("s_waitcnt lgkmcnt(4)")
    for x in phaseA(extra=[(FLP, "s_cmp_eq_u32 s59, s3"), (FLP, "s_cbranch_scc1 LG_fl"), (FLP, "LG_flr:"), (35, "s_cmp_lt_u32 s59, 15")]): b(x)
    b("s_waitcnt lgkmcnt(0)")
    b("s_cbranch_scc1 LG_l1")
    ool.label("LG_fl")
    ool("s_mov_b64 exec, 1")
    ool("buffer_store_dword v7, v6, s[28:31], s37 offen sc1")
    ool("s_mov_b64 exec, -1")
    ool("s_nop 3")
    ool("s_branch LG_flr")
    rep = []
    body = fix(b.ins, pre=pre, report=rep)
    if rep: print("gemm1 loop nops:", len(rep), rep[:5])
    assert not check_loop(body)
    e = Prog()
    sgelu = (2.0 * math.sqrt(2.0/math.pi) * math.log2(math.e) * 0.044715) ** (1.0/3.0)
    kappa = 2.0 * math.sqrt(2.0/math.pi) * math.log2(math.e) / sgelu
    qs = math.log2(math.e) / math.sqrt(32.0)
    TK = XB
    QP = 240
    QC = WS_ + 28
    su = Prog()
    su(f"s_mov_b32 s62, {f32(sgelu)}")
    su(f"s_mov_b32 s63, {f32(sgelu)}")
    su("s_lshl_b32 s47, s44, 11")
    su(f"s_add_u32 s47, s47, {TBL+4096}")
    su("v_lshlrev_b32 v12, 5, v3")
    su("v_add_u32 v12, s47, v12")
    su("s_lshl_b32 s47, s45, 9")
    su(f"s_add_u32 s47, s47, {TBL}")
    su("v_lshlrev_b32 v13, 4, v4")
    su("v_add_u32 v14, s47, v13")
    for u in range(4): su(f"ds_read_b64 {V(QP+2*u,2)}, v12 offset:{u*512+16}")
    for t in range(2): su(f"ds_read_b128 {V(QC+4*t,4)}, v14 offset:{t*64}")
    for u in range(4): su(f"ds_read_b128 {V(TK+4*u,4)}, v12 offset:{u*512}")
    su("s_lshl_b32 s47, s45, 9")
    su(f"s_add_u32 s47, s47, {TBL}")
    su("v_add_u32 v12, s47, v13")
    su("s_lshl_b32 s47, s45, 6")
    su(f"s_add_u32 s47, s47, {TBL+384}")
    su("v_add_u32 v13, s47, v13")
    su("s_lshl_b32 s46, s41, 3")
    su("s_lshl_b32 s47, s44, 2")
    su("s_add_u32 s46, s46, s47")
    su(f"s_mul_i32 s48, s46, {OH_TILE}")
    su("s_mul_i32 s49, s42, 7168")
    su("s_add_u32 s48, s48, s49")
    su(f"s_add_u32 s48, s48, {hex(OH_F+32*1024)}")
    for u in range(1, 4): su(f"s_add_u32 s{48+u}, s48, {u*OH_TILE}")
    su("s_lshl_b32 s47, s45, 12")
    su("v_add_u32 v6, s47, v5")
    su("s_lshl_b32 s47, s45, 3")
    su("v_add_u32 v7, s47, v5")
    su("s_lshl_b32 s47, s44, 13")
    su("s_lshl_b32 s52, s45, 10")
    su("s_add_u32 s47, s47, s52")
    su(f"s_add_u32 s47, s47, {QST}")
    su("v_add_u32 v10, s47, v5")
    su(f"v_mov_b32 v8, {f32(kappa)}")
    su(f"v_mov_b32 v9, {f32(kappa)}")
    su("v_mov_b32 v11, 1")
    st = [i.text for i in su.ins]
    qv = ["s_waitcnt lgkmcnt(0)"]
    for u in range(4):
        for t in range(2):
            for r in range(4): qv += [f"v_mul_f32 v{acc(u,t)+r}, v{QP+2*u}, v{acc(u,t)+r}", f"v_fmac_f32 v{acc(u,t)+r}, v{QP+2*u+1}, v{QC+4*t+r}"]
    ex = [(i // 3, x) for i, x in enumerate(st)] + [(17 + i // 2, x) for i, x in enumerate(qv[:39])]
    for x in phaseB(last=True, extra=ex): e(x)
    stamp(e, 2)
    e.label("LG_epi")
    if PRIO_GELU: e(f"s_setprio {PRIO_GELU}")
    T = XB + 16; TB = WS_; PB_ = [WS_ + 16, RAW]
    def prm(grp, buf):
        if grp < 3: return [f"ds_read_b128 {V(buf+4*k,4)}, v12 offset:{(2048 if k >= 2 else 128)+grp*128+(k&1)*64}" for k in range(4)]
        return [f"ds_read_b128 {V(buf,4)}, v13 offset:640", f"ds_read_b128 {V(buf+8,4)}, v13 offset:2048"]
    PB0 = WS_ + 8
    for x in prm(0, PB0): e(x)
    for x in qv[39:]: e(x)
    for u in range(4):
        o = T + u*4
        for t in range(2):
            for h in range(2): e(f"v_cvt_pk_bf16_f32 v{o+2*t+h}, v{acc(u,t)+2*h}, v{acc(u,t)+2*h+1}")
        e(f"ds_write_b128 v10, {V(o,4)} offset:{u*2048}")
    e(f"ds_write_b32 v254, v11 offset:{SY_Q}")
    e(f"s_load_dwordx2 s[4:5], s[0:1], {KA['wo']}")
    e(f"s_load_dwordx4 s[8:11], s[0:1], {KA['w2']}")
    e(f"s_load_dwordx2 s[32:33], s[0:1], {KA['x']}")
    e(f"s_load_dwordx2 s[34:35], s[0:1], {KA['out']}")
    bufs = [PB0, 232]
    TBS = [WS_, WS_ + 24]
    tcnt = [0]
    def gelu(items, out, buf):
        prs = [(acc(u,t)+2*h, buf+4*k+2*h, buf+8+4*k+2*h, u) for (u, t, k) in items for h in range(2)]
        n = len(prs)
        tb = TBS[tcnt[0] % 2]; tcnt[0] += 1
        for i, (a, cs, bb, u) in enumerate(prs): e(f"v_pk_fma_f32 {V(tb+2*i,2)}, {V(cs,2)}, {V(TK+4*u+2,2)}, {V(bb,2)}")
        for i, (a, cs, bb, u) in enumerate(prs): e(f"v_pk_fma_f32 {V(a,2)}, {V(a,2)}, {V(TK+4*u,2)}, {V(tb+2*i,2)}")
        for i, (a, cs, bb, u) in enumerate(prs): e(f"v_pk_fma_f32 {V(tb+2*i,2)}, {V(a,2)}, {V(a,2)}, v[8:9]")
        for i, (a, cs, bb, u) in enumerate(prs): e(f"v_pk_mul_f32 {V(tb+2*i,2)}, {V(tb+2*i,2)}, {V(a,2)} neg_lo:[0,1] neg_hi:[0,1]")
        for i in range(2*n): e(f"v_exp_f32 v{tb+i}, v{tb+i}")
        for i in range(n): e(f"v_pk_fma_f32 {V(tb+2*i,2)}, {V(tb+2*i,2)}, s[62:63], s[62:63]")
        for i in range(2*n): e(f"v_rcp_f32 v{tb+i}, v{tb+i}")
        for i, (a, cs, bb, u) in enumerate(prs): e(f"v_pk_mul_f32 {V(a,2)}, {V(a,2)}, {V(tb+2*i,2)}")
        for i, (a, cs, bb, u) in enumerate(prs): e(f"v_cvt_pk_bf16_f32 v{out+i}, v{a}, v{a+1}")
    ocnt = [0]
    def outreg():
        r = T + (ocnt[0] % 4) * 4; ocnt[0] += 1
        return r
    for grp in range(4):
        if AHOLD and grp == AHOLD:
            e("v_mov_b32 v14, 2")
            e(f"ds_write_b32 v254, v14 offset:{SY_Q}")
        e("s_waitcnt lgkmcnt(0)")
        if grp < 3:
            for x in prm(grp+1, bufs[(grp+1) & 1]): e(x)
            for u in range(4):
                o = outreg()
                gelu([(u, 2+2*grp, 0), (u, 3+2*grp, 1)], o, bufs[grp & 1])
                if HTHR >= 0: e(f"s_waitcnt vmcnt({HTHR})")
                e(f"buffer_store_dwordx4 {V(o,4)}, v6, s[24:27], s{48+u} offen offset:{grp*1024} sc1")
        else:
            for u in (0, 2):
                o = outreg()
                gelu([(u, 8, 0), (u+1, 8, 0)], o, bufs[grp & 1])
                e(f"buffer_store_dwordx2 {V(o,2)}, v7, s[24:27], s{48+u} offen offset:3072 sc1")
                e(f"buffer_store_dwordx2 {V(o+2,2)}, v7, s[24:27], s{49+u} offen offset:3072 sc1")
    stamp(e, 3)
    e("s_lshl_b32 s37, s41, 5")
    e("s_lshr_b32 s38, s42, 3")
    e("s_lshl_b32 s38, s38, 1")
    e("s_add_u32 s37, s37, s38")
    e("s_add_u32 s37, s37, s44")
    e("s_lshl_b32 s37, s37, 7")
    e("s_and_b32 s38, s42, 7")
    e("s_lshl_b32 s38, s38, 1")
    e("s_add_u32 s38, s38, s45")
    e("s_lshl_b32 s38, s38, 2")
    e("s_add_u32 s37, s37, s38")
    e(f"s_add_u32 s37, s37, {hex(F_HF)}")
    if WIDE:
        e("s_lshl_b32 s37, s41, 2")
        e("s_lshr_b32 s39, s42, 3")
        e("s_lshl_b32 s39, s39, 1")
        e("s_add_u32 s37, s37, s39")
        e("s_add_u32 s37, s37, s44")
        e("s_lshl_b32 s37, s37, 11")
        e("s_lshl_b32 s38, s38, 5")
        e("s_add_u32 s37, s37, s38")
        e(f"s_add_u32 s37, s37, {hex(F_HFW)}")

    def acc2(u, t): return ACC + (u*8+t)*4
    XR = 80
    def XF2(sg, kb, u): return XR + ((sg*4+kb)*2+u)*4
    WB = 144
    def WF2(f, t): return WB + f*32 + t*4
    TG = 208; EP = 240; EPR = 241
    p = e
    if GMAP == 1:
        p("s_and_b32 s41, s2, 7")
        p("s_lshl_b32 s41, s41, 1")
        p("s_bfe_u32 s43, s2, 0x10003")
        p("s_add_u32 s41, s41, s43")
        p("s_bfe_u32 s44, s2, 0x10004")
    else:
        p("s_and_b32 s41, s2, 3")
        p("s_lshl_b32 s41, s41, 2")
        p("s_bfe_u32 s43, s2, 0x20003")
        p("s_add_u32 s41, s41, s43")
        p("s_bfe_u32 s44, s2, 0x10002")
    p("s_lshr_b32 s42, s2, 5")
    p("v_and_b32 v13, 3, v1")
    p("v_lshlrev_b32 v13, 4, v13")
    p("s_lshl_b32 s47, s44, 1")
    p("v_xor_b32 v14, s47, v4")
    p("v_lshl_add_u32 v13, v14, 6, v13")
    p("v_bfe_u32 v14, v1, 2, 2")
    p("v_lshl_add_u32 v8, v14, 11, v13")
    p("s_lshl_b32 s47, s40, 16")
    p("v_add_u32 v8, s47, v8")
    p("v_xor_b32 v9, 32, v8")
    p("s_lshl_b32 s52, s40, 13")
    p(f"s_add_u32 s52, s52, {WBASE}")
    p(f"s_mul_i32 s54, s44, {1792*2048}")
    p("s_lshl_b32 s48, s42, 8")
    p("s_add_u32 s54, s54, s48")
    p(f"s_mul_i32 s53, s44, {56*1024}")
    p("s_add_u32 s53, s53, 0x8000")
    p("s_mov_b32 s56, s52")
    p("s_movk_i32 s57, 0x2000")
    srd(p, 16, 8, 3584*1024*2)
    srd(p, 20, 6, 128*OH_TILE, OH_F)
    p("s_lshl_b32 s46, s41, 3")
    p("s_lshl_b32 s47, s40, 1")
    p("s_add_u32 s46, s46, s47")
    p(f"s_mul_i32 s47, s46, {OH_TILE}")
    p("v_add_u32 v6, s47, v5")
    p(f"v_add_u32 v7, {OH_TILE}, v6")
    p("s_and_b32 s5, s5, 0xffff")
    p("v_lshlrev_b32 v12, 9, v4")
    p("v_add_u32 v12, v12, v15")
    p(f"v_add_u32 v12, {WBASE}, v12")
    p("v_xor_b32 v13, 32, v12")
    p("v_mov_b32 v242, v15")
    p("s_lshl_b32 s45, s44, 7")
    p("s_add_u32 s45, s45, s48")
    p("s_lshl_b32 s62, s40, 17")
    p("v_lshrrev_b32 v10, 5, v1")
    p("v_lshlrev_b32 v243, 1, v10")
    p("v_and_b32 v14, 3, v1")
    p("v_xor_b32 v243, v243, v14")
    p("v_lshlrev_b32 v243, 4, v243")
    p("v_bfe_u32 v14, v1, 4, 1")
    p("v_lshl_add_u32 v243, v14, 6, v243")
    p("v_bfe_u32 v14, v1, 2, 2")
    p("v_lshl_add_u32 v10, v10, 2, v14")
    p("v_lshl_add_u32 v10, v10, 11, v243")
    p("v_add_u32 v10, s45, v10")
    RRX = TG; RRB = TG + 16
    srd(p, 64, 32, 2048*1024*2)
    p("s_mov_b32 s28, s34")
    p("s_mov_b32 s29, s35")
    srd(p, 32, 10, 2048)
    p("v_and_b32 v15, 7, v1")
    p("v_lshlrev_b32 v15, 4, v15")
    p("v_lshrrev_b32 v14, 3, v1")
    p("v_lshl_add_u32 v14, v14, 11, v15")
    p("s_lshl_b32 s31, s46, 15")
    p("s_add_u32 s31, s31, s45")
    for i in range(32): p(f"v_mov_b64 {V(ACC+2*i,2)}, 0")
    p(f"v_mov_b32 v{EP}, 1")
    p("v_mov_b32 v244, 0")
    p(f"v_lshlrev_b32 v245, {7 if WIDE else 2}, v3")
    p("s_lshl_b32 s36, s41, 5")
    p("s_add_u32 s36, s36, s40")
    p("s_lshl_b32 s36, s36, 7")
    p(f"s_add_u32 s36, s36, {hex(F_OF)}")
    if WIDE:
        p("s_lshl_b32 s36, s41, 2")
        p("s_add_u32 s36, s36, s40")
        p("s_lshl_b32 s36, s36, 11")
        p(f"s_add_u32 s36, s36, {hex(F_OFW)}")
    p("s_lshl_b32 s38, s41, 5")
    p("s_lshl_b32 s39, s44, 1")
    p("s_add_u32 s38, s38, s39")
    p("s_lshr_b32 s39, s40, 1")
    p("s_add_u32 s38, s38, s39")
    p("s_lshl_b32 s38, s38, 7")
    p(f"s_add_u32 s38, s38, {hex(F_HF)}")
    if WIDE:
        p("s_lshl_b32 s38, s41, 2")
        p("s_lshl_b32 s39, s44, 1")
        p("s_add_u32 s38, s38, s39")
        p("s_lshr_b32 s39, s40, 1")
        p("s_add_u32 s38, s38, s39")
        p("s_lshl_b32 s38, s38, 11")
        p(f"s_add_u32 s38, s38, {hex(F_HFW)}")
    p("s_waitcnt vmcnt(0)")
    p("s_mov_b64 exec, 1")
    p("buffer_store_dword v11, v244, s[24:27], s37 offen sc1")
    p("s_mov_b64 exec, -1")
    stamp(p, 4)
    def wdma(q): return [f"s_add_u32 m0, s56, {q*1024}", ("s_mov_b32 s55, s54" if q == 0 else "s_add_u32 s55, s55, s57"), f"buffer_load_dwordx4 v{8+(q&1)}, s[16:19], s55 offen lds"]
    def xld(sg, kb): return [f"buffer_load_dwordx4 {V(XF2(sg,kb,u),4)}, v{6+u}, s[20:23], s53 offen offset:{kb*1024} sc1" for u in range(2)]
    lds_wait(p, "LG_w1", "v255", SY_EA, f"v{EPR}", "1")
    for n in range(2):
        for q in range(8):
            if n < AW2: continue
            for x in wdma(q): p(x)
        p("s_add_u32 s54, s54, 0x40000")
        p(f"s_add_u32 s56, s56, {WSEG}")
    gpoll(p, "LG_p1", "buffer_load_dword v246, v245, s[24:27], s38 offen sc1", ["v246"], "1")
    p(f"ds_write_b32 v254, v{EP} offset:{SY_EG}")
    for n in range(2):
        for kb in range(4):
            for x in xld(n, kb): p(x)
        p("s_add_u32 s53, s53, 0x1000")
    lds_wait(p, "LG_w2", "v255", SY_EG, f"v{EPR}", "1")
    def wreads(f, kb): return [f"ds_read_b64_tr_b16 {V(WF2(f,t)+rho*2,2)}, v{12+(t&1)} offset:{kb*8192+rho*4096+(t>>1)*256}" for t in range(8) for rho in range(2)]
    def mf2(f, sg, kb): return [M16(V(acc2(u,t),4), V(WF2(f,t),4), V(XF2(sg,kb,u),4)) for t in range(8) for u in range(2)]
    for x in wreads(0, 0): p(x)
    p("s_mov_b32 s58, 0")
    p("s_mov_b32 s59, 3")
    p("s_mov_b32 s63, 0")
    p("s_waitcnt vmcnt(0)")
    p("s_setprio 0")
    stamp(p, 5)
    mid = fix(p.ins, pre=body)
    sgc = [0]
    def seg_early(): return ["s_add_u32 s54, s54, 0x40000", "s_add_u32 s56, s52, s63", f"s_add_u32 s63, s63, {WSEG}", f"s_cmp_eq_u32 s63, {3*WSEG}", "s_cselect_b32 s63, 0, s63"]
    def seg_setup(q0):
        q0("s_add_u32 s53, s53, 0x1000")
        sgc[0] += 1
        q0("s_add_u32 s59, s59, 1")
        q0("s_cmp_ge_u32 s59, 15")
        q0(f"s_cbranch_scc1 LG_so{sgc[0]}")
        q0(f"LG_sg{sgc[0]}:")
        q = ool
        q(f"LG_so{sgc[0]}:")
        q("s_mov_b32 s16, s4")
        q("s_mov_b32 s17, s5")
        q("s_mov_b32 s18, 0x200000")
        q("s_mov_b32 s54, s62")
        q("s_add_u32 s62, s62, 0x80000")
        q("s_movk_i32 s57, 0x4000")
        q("s_mov_b32 s22, 0")
        q("s_setprio 2")
        q("v_mov_b32 v8, v10")
        q("v_mov_b32 v9, v10")
        q("s_setprio 0")
        if EARLYO == 1: q("buffer_load_dword v246, v245, s[24:27], s36 offen sc1")
        q("s_cmp_ge_u32 s59, 16")
        q(f"s_cbranch_scc1 LG_sg{sgc[0]}")
        for k in range(4):
            q(f"s_add_u32 s55, s31, {k*16384}")
            q(f"buffer_load_dwordx4 {V(RRX+4*k,4)}, v14, s[64:67], s55 offen")
        q(f"buffer_load_dwordx4 {V(RRB,4)}, v15, s[32:35], s45 offen")
        q("s_lshl_b32 s60, s40, 13")
        q(f"s_add_u32 s60, s60, {SPARE}")
        q("s_add_u32 s55, s54, 0x180000")
        for k in range(8):
            if k == 4:
                q("s_cmp_eq_u32 s40, 3")
                q(f"s_cbranch_scc1 LG_sg{sgc[0]}")
            q(f"s_add_u32 m0, s60, {k*1024}")
            q("s_nop 0")
            q("buffer_load_dwordx4 v10, s[16:19], s55 offen lds")
            q("s_add_u32 s55, s55, 0x4000")
        q(f"s_branch LG_sg{sgc[0]}")
    b = Prog()
    b.label("LG_l2")
    for sg in range(2):
        for kb in range(4):
            f = kb & 1
            if kb < 3:
                b("s_waitcnt vmcnt(28) lgkmcnt(0)")
                fill = [(i // 2, x) for i, x in enumerate(wreads(f^1, kb+1))]
                wpos = (8, 10)
            else:
                b("s_waitcnt vmcnt(14) lgkmcnt(0)")
                b(f"ds_write_b32 v254, v{EP} offset:{SY_EG}")
                fill = [(2, f"ds_read_b32 v{EPR}, v255 offset:{SY_EG}"),
                        (6, "s_waitcnt lgkmcnt(0)"), (6, "s_setprio 2"), (6, f"v_cmp_gt_u32 vcc, v{EP}, v{EPR}"), (6, "s_setprio 0"),
                        (7, f"s_cbranch_vccnz LG_sp{sg}"), (7, f"LG_spr{sg}:")]
                fill += [(7 + i // 2, x) for i, x in enumerate(wreads(f^1, 0))]
                wpos = (0, 3)
                ool.label(f"LG_sp{sg}")
                ool("s_setprio 2")
                lds_wait(ool, f"LG_spw{sg}", "v255", SY_EG, f"v{EPR}", f"v{EP}")
                ool("s_setprio 0")
                ool(f"s_branch LG_spr{sg}")
            for q, ps in zip((2*kb, 2*kb+1), wpos):
                wd = wdma(q)
                fill += [(ps, wd[0]), (ps, wd[1]), (ps+1, wd[2])]
            if kb == 0 and GBOOST: fill += [(-1, "s_setprio 2"), (GBOOST-1, "s_setprio 0")]
            if kb == 2:
                fill += [(12, f"s_add_u32 s60, s58, {WSEG}"), (12, f"s_cmp_eq_u32 s60, {3*WSEG}"), (12, "s_cselect_b32 s60, 0, s60"),
                         (13, "s_sub_u32 s61, s60, s58"), (13, "s_mov_b32 s58, s60"),
                         (14, "s_setprio 2"), (14, "v_add_u32 v12, s61, v12"), (14, "v_add_u32 v13, s61, v13"), (14, f"v_add_u32 v{EP}, 1, v{EP}"), (14, "s_setprio 0")]
            if kb == 3:
                se = seg_early()
                fill += [(5, se[0]), (5, se[1]), (15, se[2]), (15, se[3]), (15, se[4])]
            fill += [(15, x) for x in xld(sg, kb)]
            for x in interleave(mf2(f, sg, kb), fill): b(x)
        seg_setup(b)
    b("s_cmp_lt_u32 s59, 17")
    b("s_cbranch_scc1 LG_l2")
    if os.environ.get("GDROP"):
        k_ = [0]
        def keep(i):
            if i.text.startswith("ds_read_b64_tr"):
                k_[0] += 1
                return k_[0] % 2 == 0
            return True
        b.ins = [i for i in b.ins if keep(i)]
    rep = []
    body2 = fix(b.ins, pre=mid, report=rep)
    if rep: print("gemm2 loop nops:", len(rep), rep[:5])
    assert not check_loop(body2)
    e = Prog()
    stamp(e, 6)
    e.label("LG_tail")
    if EARLYO == 2: e("buffer_load_dword v246, v245, s[24:27], s36 offen sc1")
    if AQ2:
        e("s_lshl_b32 s55, s40, 14")
        e("s_add_u32 s55, s55, 0x1f0000")
        e("s_lshl_b32 s56, s40, 10")
        e(f"s_add_u32 m0, s56, {WBASE+WSEG}")
        e("s_nop 0")
        e("buffer_load_dwordx4 v10, s[16:19], s55 offen lds")
    else:
        for q in range(8):
            for x in wdma(q): e(x)
    e("s_lshl_b32 s47, s41, 3")
    e("s_add_u32 s47, s47, s42")
    e("s_lshl_b32 s47, s47, 1")
    e("s_add_u32 s47, s47, s44")
    e("s_xor_b32 s49, s47, 1")
    e("s_lshl_b32 s50, s47, 2")
    e("s_add_u32 s50, s50, s40")
    e("s_lshl_b32 s50, s50, 12")
    e(f"s_add_u32 s50, s50, {hex(PART)}")
    e("s_waitcnt lgkmcnt(0)")
    for u in range(2):
        for tp in range(2):
            o = WB + (u*2+tp)*4
            for h in range(2):
                t = 4 + 2*tp + h
                e(f"v_cvt_pk_bf16_f32 v{o+2*h}, v{acc2(u,t)}, v{acc2(u,t)+1}")
                e(f"v_cvt_pk_bf16_f32 v{o+2*h+1}, v{acc2(u,t)+2}, v{acc2(u,t)+3}")
    for k in range(4): e(f"buffer_store_dwordx4 {V(WB+4*k,4)}, v5, s[24:27], s50 offen offset:{k*1024} sc1")
    e("s_lshl_b32 s47, s47, 7")
    e("s_lshl_b32 s55, s41, 9")
    e("s_add_u32 s55, s55, s40")
    e("s_lshl_b32 s55, s55, 2")
    e("s_add_u32 s47, s47, s55")
    e(f"s_add_u32 s47, s47, {hex(F_PF)}")
    e("s_lshl_b32 s53, s49, 7")
    e("s_add_u32 s53, s53, s55")
    e(f"s_add_u32 s53, s53, {hex(F_PF)}")
    e("s_lshl_b32 s50, s49, 2")
    e("s_add_u32 s50, s50, s40")
    e("s_lshl_b32 s50, s50, 12")
    e(f"s_add_u32 s50, s50, {hex(PART)}")
    QB = [WBASE + 2*WSEG, WBASE, 0 if AQ2 else WBASE + WSEG, SPARE]
    e(f"v_add_u32 v12, {QB[0]}, v242")
    e("v_xor_b32 v13, 32, v12")
    def SUMR(i): return (acc2(0, 4) + i) if i < 16 else (WB + 48 + i - 16)
    PRW = acc2(1, 4); TT = TG + 20
    for i in range(4):
        e(f"v_lshlrev_b32 v{TT+2*i}, 16, v{RRB+i}")
        e(f"v_and_b32 v{TT+2*i+1}, 0xffff0000, v{RRB+i}")
    for i in range(16):
        e(f"v_lshlrev_b32 v{SUMR(2*i)}, 16, v{RRX+i}")
        e(f"v_and_b32 v{SUMR(2*i)+1}, 0xffff0000, v{RRX+i}")
        e(f"v_pk_add_f32 {V(SUMR(2*i),2)}, {V(SUMR(2*i),2)}, {V(TT+2*(i&3),2)}")
    e(f"s_mov_b32 s22, {128*OH_TILE}")
    e("s_mov_b32 s37, s36")
    e("s_mov_b32 s36, s53")
    srd(e, 64, 28, 2048*1024*2)
    e(f"v_add_u32 v247, {WBASE+WSEG if AQ2 else 0}, v242")
    e("v_xor_b32 v248, 32, v247")
    e(f"v_add_u32 v{EP}, 1, v{EP}")
    e("v_mov_b32 v249, 34")
    LAB = 8
    def XF3(b_, u): return XR + ((b_ % LAB)*2+u)*4
    def xop(b_):
        L_ = []
        if (b_ & 3) == 0: L_.append(f"s_mov_b32 s53, {(b_>>2)*4096}")
        L_ += [f"buffer_load_dwordx4 {V(XF3(b_,u),4)}, v{6+u}, s[20:23], s53 offen offset:{(b_&3)*1024} sc1" for u in range(2)]
        return L_
    if EARLYO:
        e("s_waitcnt vmcnt(8)")
        e("v_cmp_ne_u32 vcc, 1, v246")
        e("s_mov_b32 s59, 0")
        e("s_nop 3")
        e("s_cbranch_vccnz LG_ne")
        e("s_mov_b32 s59, 1")
        for b_ in range(LAB-1):
            for x in xop(b_): e(x)
        e.label("LG_ne")
    e("s_waitcnt vmcnt(0)")
    e("s_mov_b64 exec, 1")
    e("buffer_store_dword v11, v244, s[24:27], s47 offen sc1")
    e("s_mov_b64 exec, -1")
    e(f"ds_write_b32 v254, v{EP} offset:{SY_EG}")
    def WF3(f, t): return WB + f*16 + t*4
    def wr3(b_):
        if b_ == 31: return [f"ds_read_b64_tr_b16 {V(WF3(b_%3,t)+rho*2,2)}, v{247+(t&1)} offset:{rho*2048+(t>>1)*256}" for t in range(4) for rho in range(2)]
        return [f"ds_read_b64_tr_b16 {V(WF3(b_%3,t)+rho*2,2)}, v{12+(t&1)} offset:{(b_&7)*4096+rho*2048+(t>>1)*256}" for t in range(4) for rho in range(2)]
    for x in wr3(0) + wr3(1): e(x)
    if EARLYO:
        e("s_cmp_eq_u32 s59, 1")
        e("s_cbranch_scc1 LG_go7")
    if TGATE: lds_wait(e, "LG_w3", "v255", SY_EA, f"v{EPR}", "v249")
    stamp(e, 7)
    gpoll(e, "LG_p2", "buffer_load_dword v246, v245, s[24:27], s37 offen sc1", ["v246"], "1", sleep=PSLEEP2)
    for b_ in range(LAB-1):
        for x in xop(b_): e(x)
    e.label("LG_go7")
    for x in ["v_xor_b32 v8, v3, v4", "v_lshlrev_b32 v8, 4, v8", "v_lshl_add_u32 v8, v3, 8, v8", "s_lshl_b32 s56, s40, 12", f"s_add_u32 s56, s56, {QB[0]}",
              "v_add_u32 v8, s56, v8", "v_xor_b32 v9, 64, v8", "v_mov_b32 v250, v10", "v_xor_b32 v10, 0x80, v8", "v_xor_b32 v11, 0xc0, v8"]: e(x)
    NBK = 32; PB = 14; PA = (26, 27)
    def padd(u, i):
        tt = TT + 2*(i & 3)
        return [f"v_lshlrev_b32 v{tt}, 16, v{PRW+u*8+i}", f"v_and_b32 v{tt+1}, 0xffff0000, v{PRW+u*8+i}",
                f"v_add_f32 v{acc2(u,0)+2*i}, v{acc2(u,0)+2*i}, v{tt}", f"v_add_f32 v{acc2(u,0)+2*i+1}, v{acc2(u,0)+2*i+1}, v{tt+1}"]
    issued = [("x", b_) for b_ in range(LAB-1) for u in range(2)]
    for b_ in range(NBK):
        last = max(k for k, t in enumerate(issued) if t == ("x", b_))
        if b_ in PA: last = max(last, issued.index(("p", 3)))
        if b_ == PB: last = max(last, issued.index(("f",)))
        if b_ == 29 and not AQ2: last = max(last, issued.index(("w31",)))
        e(f"s_waitcnt vmcnt({len(issued)-1-last}) lgkmcnt({8 if b_ < NBK-1 else 0})")
        if b_ == 6: lds_wait(e, "LG_w4", "v255", SY_EG, f"v{EPR}", f"v{EP}")
        if b_ == PB:
            e("v_cmp_ne_u32 vcc, 1, v246")
            e("s_nop 4")
            e("s_cbranch_vccnz LG_pp")
            e.label("LG_ppr")
            ool.label("LG_pp")
            gpoll(ool, "LG_p3", "buffer_load_dword v246, v244, s[24:27], s36 offen sc1", ["v246"], "1")
            ool("s_branch LG_ppr")
        if b_ == 14 and AQ2: e("s_barrier")
        if b_ == 16 and not AQ2:
            e("s_barrier")
            e("s_lshl_b32 s55, s40, 14")
            e("s_add_u32 s55, s55, 0x1f0000")
            e("s_lshl_b32 m0, s40, 10")
            e("s_nop 0")
            e("buffer_load_dwordx4 v250, s[16:19], s55 offen lds")
            issued.append(("w31",))
        if b_ == 29 and not AQ2: e("s_barrier")
        if (b_ + 2) % 8 == 0 and b_ + 2 < NBK:
            d = QB[(b_+2)//8] - QB[(b_+2)//8 - 1]
            e(f"v_add_u32 v12, {d & 0xffffffff:#x}, v12")
            e(f"v_add_u32 v13, {d & 0xffffffff:#x}, v13")
        rd = wr3(b_+2) if b_ + 2 < NBK else []
        mf = [M16(V(acc2(u,t),4), V(WF3(b_%3,t),4), V(XF3(b_,u),4)) for t in range(4) for u in range(2)]
        for i, m in enumerate(mf):
            e(m)
            for x in rd[i:i+1]: e(x)
            nb_ = b_ + LAB - 1
            if nb_ < NBK:
                xo = xop(nb_)
                if i == 0: [e(x) for x in xo[:-2]]
                if i == 1: e(xo[-2]); issued.append(("x", nb_))
                if i == 4: e(xo[-1]); issued.append(("x", nb_))
            if i == 6 and b_ == 8:
                e("buffer_load_dword v246, v244, s[24:27], s36 offen sc1")
                issued.append(("f",))
            if i == 6 and PB <= b_ < PB + 4:
                k = b_ - PB
                e(f"buffer_load_dwordx4 {V(PRW+4*k,4)}, v5, s[24:27], s50 offen offset:{k*1024} sc1")
                issued.append(("p", k))
            if b_ in PA:
                m_ = (i + 5) % 8
                for x in padd(m_ & 1, 2*(m_ >> 1) + (b_ & 1)): e(x)
    e("v_lshrrev_b32 v6, 3, v1")
    e("v_and_b32 v7, 7, v1")
    e("v_lshlrev_b32 v7, 1, v7")
    e("v_xor_b32 v7, v7, v6")
    e("v_lshlrev_b32 v7, 4, v7")
    e("v_lshl_add_u32 v6, v6, 8, v7")
    e("v_add_u32 v6, s56, v6")
    e("v_xor_b32 v7, 16, v6")
    e("v_xor_b32 v12, 0x80, v6")
    e("v_xor_b32 v13, 0x90, v6")
    RB = XR
    ra = {(0,0): 6, (0,1): 7, (1,0): 12, (1,1): 13}
    for u in range(2):
        for t in range(4): e(f"ds_write_b128 v{8+t}, {V(acc2(u,t),4)}")
        for q in range(2):
            for h in range(2): e(f"ds_read_b128 {V(RB+(u*2+q)*8+h*4,4)}, v{ra[(q,h)]} offset:{q*2048}")
    wl = [10, 8, 2, 0]
    for q in range(4):
        e(f"s_waitcnt lgkmcnt({wl[q]})")
        for r in range(4): e(f"v_pk_add_f32 {V(RB+q*8+2*r,2)}, {V(RB+q*8+2*r,2)}, {V(SUMR(q*8+2*r),2)}")
        for r in range(4): e(f"v_cvt_pk_bf16_f32 v{WB+q*4+r}, v{RB+q*8+2*r}, v{RB+q*8+2*r+1}")
        e(f"s_add_u32 s55, s31, {q*16384}")
        e(f"buffer_store_dwordx4 {V(WB+q*4,4)}, v14, s[64:67], s55 offen {ST_OUT}")
    if LOOPST: e("v_mov_b32 v3, v2")
    stamp_flush(e, 2, 9)
    loopstamp_flush(e, "v3", 2)
    e("s_endpgm")
    e.extend(ool)
    tail = fix(e.ins, pre=body2)
    return pre + [Ins(".p2align 6")] + body + mid + [Ins(".p2align 6")] + body2 + tail
```

```python
from common import *
from k0_ln import ln_body
import math

LA1 = int(os.environ.get('LA1', '4'))
PSLEEP = int(os.environ.get('PSLEEP', '4'))
APOS = eval(os.environ.get('APOS', '[0, 32, 64, 96, 128]'))
PRIO_A = int(os.environ.get('PRIO_A', '1'))
PRIO_GELU = int(os.environ.get('PRIO_GELU', '2'))
WOIT = int(os.environ.get('WOIT', '3'))
SPINMAX = int(os.environ.get('SPINMAX', '20000'))
PFX = int(os.environ.get('PFX', '0'))
HTHR = int(os.environ.get('HTHR', '2'))
PRIO_G1 = int(os.environ.get('PRIO_G1', '0'))
SPLIT = int(os.environ.get('SPLIT', '13'))
SMIT = int(os.environ.get('SMIT', '15'))
TGATE = int(os.environ.get('TGATE', '1'))
PSLEEP2 = int(os.environ.get('PSLEEP2', '8'))
GMAP = int(os.environ.get('GMAP', '0'))
TAFTER = int(os.environ.get('TAFTER', '0'))
EPF = int(os.environ.get('EPF', '0'))
CSPOS = int(os.environ.get('CSPOS', '1'))
CPS = int(os.environ.get('CPS', '9'))
APK = int(os.environ.get('APK', '0'))
AHOLD = int(os.environ.get('AHOLD', '0'))
SPL = (eval(os.environ.get('SPL', '[]')) + [SPLIT]*16)[:16]
STPOS = int(os.environ.get('STPOS', '1'))
AW2 = int(os.environ.get('AW2', '0'))
AQ2 = int(os.environ.get('AQ2', '1'))
PFW2A = int(os.environ.get('PFW2A', '0'))
STG = 53248; WOFF = 16384
LNS = 3*STG
SY = LNS + 512
SY_KVP, SY_Q, SY_OK, SY_EA, SY_EG = 0, 16, 32, 48, 64
QST = 143360; KVR = 135168
TBL = STG
F_OFW = FLG + 0x20000; F_HFW = FLG + 0x40000
WIDE = int(os.environ.get('WIDE', '0'))
WBASE = 61440; WSEG = 32768; SPARE = 32768
F_PF = FLG; F_OF = FLG + 16*128; F_HF = FLG + 20*128; F_KV = FLG + 24*128; F_SF = FLG + 26*128; F_CF = FLG + 28*128

def flat(L): return [y for x in L for y in (x if isinstance(x, list) else [x])]

def lds_wait(q, lbl, vaddr, off, vtmp, cmp_src):
    q("s_mov_b32 s3, 0")
    q(f"{lbl}:")
    q(f"ds_read_b32 {vtmp}, {vaddr} offset:{off}")
    q("s_add_u32 s3, s3, 1")
    q("s_waitcnt lgkmcnt(0)")
    q(f"v_cmp_gt_u32 vcc, {cmp_src}, {vtmp}")
    q("s_nop 4")
    q(f"s_cbranch_vccz {lbl}_ok")
    q("s_sleep 1")
    q(f"s_cmp_lt_u32 s3, {SPINMAX*8}")
    q(f"s_cbranch_scc1 {lbl}")
    q(f"{lbl}_ok:")

def gpoll(q, lbl, load, vregs, val, cnt="s58", sleep=None):
    q(f"s_mov_b32 {cnt}, 0")
    q(f"{lbl}:")
    q(load)
    q(f"s_add_u32 {cnt}, {cnt}, 1")
    q("s_waitcnt vmcnt(0)")
    for r in vregs[1:]: q(f"v_and_b32 {vregs[0]}, {vregs[0]}, {r}")
    q(f"v_cmp_ne_u32 vcc, {val}, {vregs[0]}")
    q("s_nop 4")
    q(f"s_cbranch_vccz {lbl}_ok")
    q(f"s_sleep {PSLEEP if sleep is None else sleep}")
    q(f"s_cmp_lt_u32 {cnt}, {SPINMAX}")
    q(f"s_cbranch_scc1 {lbl}")
    q(f"{lbl}_ok:")

def gen():
    name = NAME + "_kernel"
    lds = 163840
    p = Prog()
    p("s_cmp_ge_u32 s2, 256")
    p("s_cbranch_scc1 L_end")
    stamp(p, 0)
    p(f"s_load_dwordx4 s[64:67], s[0:1], {KA['x']}")
    p(f"s_load_dwordx4 s[8:11], s[0:1], {KA['w1']}")
    p(f"s_load_dwordx2 s[6:7], s[0:1], {KA['ws']}")
    p(f"s_load_dwordx4 s[32:35], s[0:1], {KA['wk']}")
    p(f"s_load_dwordx2 s[62:63], s[0:1], {KA['dbg']}")
    p("v_and_b32 v1, 63, v0")
    p("v_lshrrev_b32 v2, 6, v0")
    p("v_readfirstlane_b32 s40, v2")
    p("v_lshlrev_b32 v5, 4, v1")
    p("s_and_b32 s41, s2, 1")
    p("s_lshl_b32 s41, s41, 3")
    p("s_bfe_u32 s68, s2, 0x30003")
    p("s_add_u32 s41, s41, s68")
    p("s_bfe_u32 s42, s2, 0x20001")
    p("s_lshl_b32 s42, s42, 2")
    p("s_lshr_b32 s43, s2, 6")
    p("s_add_u32 s42, s42, s43")
    p("s_add_u32 s68, s68, s43")
    p("s_lshl_b32 s36, s41, 4")
    p("s_add_u32 s36, s36, s42")
    p("v_and_b32 v3, 15, v1")
    p("v_lshrrev_b32 v4, 4, v1")
    p("v_and_b32 v255, 3, v1")
    p("v_lshlrev_b32 v255, 2, v255")
    p(f"v_add_u32 v255, {SY}, v255")
    p("s_cmp_ge_u32 s40, 4")
    p("s_cbranch_scc1 L_G")
    head = fix(p.ins)

    p = Prog()
    sgelu = (2.0 * math.sqrt(2.0/math.pi) * math.log2(math.e) * 0.044715) ** (1.0/3.0)
    qs = math.log2(math.e) / math.sqrt(32.0)
    p("v_lshrrev_b32 v6, 3, v1")
    p("v_and_b32 v7, 7, v1")
    p("v_xor_b32 v7, v7, v6")
    p("v_lshlrev_b32 v7, 4, v7")
    p("v_lshl_add_u32 v6, v6, 11, v7")
    p("s_lshl_b32 s46, s41, 2")
    p("s_add_u32 s46, s46, s40")
    p("s_lshl_b32 s46, s46, 16")
    p("v_add_u32 v6, s46, v6")
    p("s_and_b32 s46, s41, 8")
    p("v_add_u32 v7, 0x4000, v6")
    p("v_add_u32 v14, 0x8000, v6")
    p("v_add_u32 v15, 0xc000, v6")
    p("v_lshrrev_b32 v8, 5, v1")
    p("v_lshlrev_b32 v8, 1, v8")
    p("v_and_b32 v9, 3, v1")
    p("v_xor_b32 v8, v8, v9")
    p("v_lshlrev_b32 v8, 4, v8")
    p("v_lshrrev_b32 v9, 2, v1")
    p("s_lshl_b32 s47, s40, 4")
    p("v_add_u32 v9, s47, v9")
    p("v_mul_u32_u24 v10, 7168, v9")
    p("s_mul_i32 s47, s42, 448")
    p("v_add3_u32 v10, v10, v8, s47")
    p("v_lshl_add_u32 v9, v9, 11, v8")
    p("s_lshl_b32 s47, s42, 7")
    p("v_add_u32 v9, s47, v9")
    p("s_lshl_b32 s51, s40, 12")
    p("s_lshl_b32 s52, s40, 10")
    p(f"s_add_u32 s52, s52, {WOFF}")
    def set_stage(n):
        slot = (n % 3) * STG
        return [f"s_add_u32 s69, {n}, s68", "s_and_b32 s69, s69, 3", f"s_cselect_b32 s69, 0, {LA1}", f"s_add_u32 s69, s69, {n}", "s_add_u32 s69, s69, s46", "s_and_b32 s69, s69, 15",
                "s_lshl_b32 s53, s69, 7", "s_lshl_b32 s54, s69, 17", f"s_mul_i32 s55, s69, {64*7168}", f"s_add_u32 s56, s51, {slot}", f"s_add_u32 s57, s52, {slot}"]
    slot_of = {"q0": 0, "q1": 4, 0: 1, 1: 2, 2: 3, 3: 8, 4: 5, 5: 6, 6: 7}
    OPS = [[f"s_add_u32 m0, s56, {q*1024}", f"buffer_load_dwordx4 v{(6,7,14,15)[q]}, s[12:15], s53 offen lds"] for q in range(4)]
    for a in range(2): OPS.append([f"s_add_u32 m0, s57, {slot_of['q%d'%a]*4096 - a*64}", f"buffer_load_dwordx4 v9, s[16:19], s54 offen offset:{a*64} lds"])
    for a in range(7): OPS.append([f"s_add_u32 m0, s57, {slot_of[a]*4096 - a*64}", f"buffer_load_dwordx4 v10, s[20:23], s55 offen offset:{a*64} lds"])
    issued = []
    def emit(x, tag=None):
        if isinstance(x, tuple):
            if x[0] == "raw":
                p(x[1]); return
            if x[0] == "wait":
                last = max(k for k, t in enumerate(issued) if t == x[1])
                p(f"s_waitcnt vmcnt({min(63, len(issued)-1-last)})")
                return
            x, tag = x
        p(x)
        if x.startswith("buffer_load"): issued.append(tag)
    def weave(ops, side):
        n = len(ops); k = 0
        for i, (g, tag) in enumerate(ops):
            for x in g: emit(x, tag)
            upto = (len(side) * (i + 1)) // n
            while k < upto:
                for x in side[k]: emit(x)
                k += 1
    for x in ["v_lshrrev_b32 v204, 5, v1", "v_and_b32 v205, 31, v1", "v_lshlrev_b32 v205, 4, v205", "v_lshl_add_u32 v205, v204, 11, v205",
              "s_lshl_b32 s37, s36, 2", "s_add_u32 s37, s37, s40", "s_lshl_b32 s50, s37, 6", f"s_add_u32 s50, s50, {hex(CS)}", "s_lshl_b32 s37, s37, 12", "v_lshlrev_b32 v206, 5, v204"]: p(x)
    SX = 232
    st_ld = [[(f"buffer_load_dwordx4 {V(SX+4*q,4)}, v205, s[12:15], s37 offen offset:{q*512}", "sx")] for q in range(4)]
    for x in set_stage(0): p(x)
    p("s_waitcnt lgkmcnt(0)")
    srd(p, 12, 64, 2048*1024*2)
    if STPOS == -1:
        for x in flat(st_ld): emit(x)
    for k, g in enumerate(OPS):
        if k == 4: srd(p, 16, 66, 1024*1024*2)
        if k == 6: srd(p, 20, 8, 1024*3584*2)
        for x in g: emit(x, ("st", 0))
    if STPOS == 0:
        for x in flat(st_ld): emit(x)
    srd(p, 24, 6, WS_SIZE)
    SX = 232; SF = 16; ST_ = 48; BR = 248; BF = 240
    CX = 128; CA = 176; SELC = 196
    KX = 16; KTM = 80; KW = 96; KA_ = 80; KT = 232; ONES = 188
    su = []
    def s_(x): su.append([x])
    for r in range(2): s_(f"v_mov_b64 {V(216+2*r,2)}, 0")
    for x in ["s_lshl_b32 s38, s41, 12", "s_lshl_b32 s39, s40, 10", "s_add_u32 s38, s38, s39", f"s_add_u32 s38, s38, {hex(FLG)}"]: s_(x)
    for x in ["v_lshlrev_b32 v226, 7, v1", "s_lshl_b32 s39, s41, 13", "s_and_b32 s47, s40, 1", "s_lshl_b32 s47, s47, 17", "s_add_u32 s39, s39, s47", f"s_add_u32 s39, s39, {hex(F_OFW)}"]: s_(x)
    su.append(["s_cmp_eq_u32 s42, 0", "s_cbranch_scc0 LA_nz", "buffer_store_dwordx4 v[216:219], v5, s[24:27], s38 offen sc1"] +
              (["s_cmp_lt_u32 s40, 2", "s_cbranch_scc0 LA_nz", "buffer_store_dword v216, v226, s[24:27], s39 offen sc1"] if WIDE else []) + ["LA_nz:"])
    for x in ["s_sub_u32 s43, 9, s68", "s_and_b32 s43, s43, 7", "v_lshrrev_b32 v207, 2, v1", "v_lshl_add_u32 v207, v207, 6, v8",
              f"s_add_u32 s47, s51, {WOFF}", "v_add_u32 v222, s47, v207", f"v_add_u32 v223, {WOFF+32768}, v207",
              "v_lshrrev_b32 v208, 1, v3", "v_and_b32 v209, 1, v3", "v_lshlrev_b32 v209, 4, v209", "v_mov_b32 v210, 0x3f80", "v_lshlrev_b32 v209, v209, v210"]: s_(x)
    for r in range(4): su.append([f"v_cmp_eq_u32 vcc, {r}, v208", "s_nop 1", f"v_cndmask_b32 v{SELC+r}, 0, v209, vcc"])
    s_("s_and_b32 s44, s42, 3")
    su.append(["s_cmp_ge_u32 s44, 2", "s_cselect_b32 s32, s34, s32", "s_cselect_b32 s33, s35, s33", "s_cselect_b32 s47, 4, 5", "s_cselect_b32 s48, 5, 4"])
    for x in ["s_and_b32 s33, s33, 0xffff", "s_mov_b32 s34, 0x10000", "s_mov_b32 s35, 0x20000",
              "v_and_b32 v11, 1, v1", "v_lshlrev_b32 v11, s47, v11", "v_bfe_u32 v12, v1, 1, 3", "v_lshl_add_u32 v11, v12, 6, v11", "v_lshl_add_u32 v11, v4, 11, v11",
              "s_and_b32 s47, s44, 1", "s_lshl_b32 s47, s47, s48", "s_lshl_b32 s60, s40, 14", "s_add_u32 s60, s60, s47",
              "s_lshl_b32 s45, s41, 2", "s_lshr_b32 s47, s42, 2", "s_add_u32 s45, s45, s47", "s_lshl_b32 s61, s45, 16", "s_lshl_b32 s47, s40, 9", "s_add_u32 s61, s61, s47",
              "v_bfe_u32 v211, v1, 2, 2", "v_lshlrev_b32 v211, 13, v211", "v_and_b32 v212, 3, v1", "v_lshl_add_u32 v211, v212, 4, v211", "v_lshl_add_u32 v211, v4, 6, v211",
              "s_lshl_b32 s59, s40, 10", f"s_add_u32 s59, s59, {LNS}",
              "v_lshlrev_b32 v12, 8, v4", "v_bfe_u32 v13, v1, 2, 2", "v_lshl_add_u32 v12, v13, 5, v12", "v_and_b32 v13, 3, v1", "v_lshl_add_u32 v12, v13, 3, v12", "v_add_u32 v12, s59, v12"]: s_(x)
    for r in range(4): s_(f"v_mov_b32 v{ONES+r}, 0x3f803f80")
    for x in set_stage(1): p(x)
    weave([(g, ("st", 1)) for g in OPS], su)
    for x in set_stage(2): p(x)
    emit(("wait", ("st", 0)))
    p("s_barrier")
    stamp(p, 7)
    def kv_issue(k): return ["s_mov_b32 m0, s59", f"s_add_u32 s47, s60, {(k>>2)*8192+(k&3)*512}", ("buffer_load_dwordx4 v11, s[32:35], s47 offen lds", ("kv", k))]
    def kv_use(k): return [("wait", ("kv", k)), f"ds_read_b64_tr_b16 {V(KW+4*k,2)}, v12", f"ds_read_b64_tr_b16 {V(KW+4*k+2,2)}, v12 offset:128", "s_waitcnt lgkmcnt(0)"]
    def kx_ld(bt):
        return [[f"s_add_u32 s47, s61, {(bt&1)*32768+q*2048}", (f"buffer_load_dwordx4 {V(KX+bt*16+4*q,4)}, v211, s[12:15], s47 offen offset:{(bt>>1)*256}", ("kx", bt))] for q in range(4)]
    def kx_tr(bt):
        R = lambda q, d: KX + bt*16 + 4*q + d
        Tm = lambda q, d: KTM + 4*q + d
        out = [[("wait", ("kx", bt))]]
        for (src, dst, x, qp, m) in ((R, Tm, 1, "[1,0,3,2]", "0xaaaaaaaa"), (Tm, R, 2, "[2,3,0,1]", "0xcccccccc")):
            hi = [q for q in range(4) if q & x]; lo = [q for q in range(4) if not q & x]
            a_ = [f"s_mov_b32 vcc_lo, {m}", f"s_mov_b32 vcc_hi, {m}"]
            a_ += [f"v_cndmask_b32_dpp v{dst(q,d)}, v{src(q^x,d)}, v{src(q,d)}, vcc quad_perm:{qp} row_mask:0xf bank_mask:0xf" for q in hi for d in range(4)]
            b_ = ["s_not_b64 vcc, vcc"]
            b_ += [f"v_cndmask_b32_dpp v{dst(q,d)}, v{src(q^x,d)}, v{src(q,d)}, vcc quad_perm:{qp} row_mask:0xf bank_mask:0xf" for q in lo for d in range(4)]
            out += [a_, b_]
        return out
    kv_mm = []
    for k in range(8):
        z = "0" if k == 0 else None
        kv_mm.append([M16(V(KA_+4*u,4), V(KW+4*k,4), V(KX+((k>>2)*2+u)*16+4*(k&3),4), z) for u in range(2)] + [M16(V(KA_+8,4), V(KW+4*k,4), V(ONES,4), z)])
    def red32(v, t): return [[f"v_add_f32_dpp v{v}, v{v}, v{v} row_ror:{r} row_mask:0xf bank_mask:0xf"] for r in (8, 4, 2, 1)] + \
                            [[f"v_mov_b32 v{t}, v{v}"], [f"v_permlane16_swap_b32 v{v}, v{t}"], [f"v_add_f32 v{v}, v{v}, v{t}"], [f"v_mul_f32 v{v}, {f32(1.0/1024)}, v{v}"]]
    A0 = ST_
    st1 = [[("wait", "sx")]]
    for i in range(16): st1 += [[f"v_lshlrev_b32 v{SF+2*i}, 16, v{SX+i}"], [f"v_and_b32 v{SF+2*i+1}, 0xffff0000, v{SX+i}"]]
    st1 += [[f"v_add_f32 v{A0+c}, v{SF+c}, v{SF+4+c}"] for c in range(4)] + [[f"v_add_f32 v{A0+i%4}, v{A0+i%4}, v{SF+i}"] for i in range(8, 32)]
    st1 += [[f"v_add_f32 v{A0}, v{A0}, v{A0+1}"], [f"v_add_f32 v{A0+2}, v{A0+2}, v{A0+3}"], [f"v_add_f32 v{A0+8}, v{A0}, v{A0+2}"]] + red32(A0+8, A0+1)
    st2 = [[f"v_sub_f32 v{SF+i}, v{SF+i}, v{A0+8}"] for i in range(32)]
    st2 += [[f"v_mul_f32 v{A0+c}, v{SF+c}, v{SF+c}"] for c in range(4)] + [[f"v_fmac_f32 v{A0+i%4}, v{SF+i}, v{SF+i}"] for i in range(4, 32)]
    st2 += [[f"v_add_f32 v{A0}, v{A0}, v{A0+1}"], [f"v_add_f32 v{A0+2}, v{A0+2}, v{A0+3}"], [f"v_add_f32 v{A0+9}, v{A0}, v{A0+2}"]] + red32(A0+9, A0+1)
    st3 = [[x] for x in [f"v_add_f32 v{A0+10}, {f32(1e-5)}, v{A0+9}", f"v_rsq_f32 v{A0+10}, v{A0+10}", f"v_mul_f32 v{A0+11}, v{A0+10}, v{A0+10}", f"v_mul_f32 v{A0+11}, v{A0+11}, v{A0+9}",
           f"v_add_f32 v{A0+11}, {f32(1e-5)}, v{A0+11}", f"v_rsq_f32 v{A0+11}, v{A0+11}", f"v_mul_f32 v{A0+4}, {f32(qs)}, v{A0+10}", f"v_mul_f32 v{A0}, v{A0+10}, v{A0+11}",
           f"v_mul_f32 v{A0}, {f32(sgelu)}, v{A0}", f"v_mov_b32 v{A0+1}, v{A0}", f"v_mul_f32_e64 v{A0+2}, -v{A0}, v{A0+8}", f"v_mov_b32 v{A0+3}, v{A0+2}", f"v_mul_f32_e64 v{A0+5}, -v{A0+4}, v{A0+8}"]]
    st3.append(["s_mov_b32 exec_lo, 1", "s_mov_b32 exec_hi, 1", (f"buffer_store_dwordx4 {V(A0,4)}, v206, s[24:27], s50 offen sc1", "pub"),
                (f"buffer_store_dwordx2 {V(A0+4,2)}, v206, s[24:27], s50 offen offset:16 sc1", "pub"), "s_mov_b64 exec, -1"])
    ool = Prog()
    ool.label("LA_cs")
    ool("v_add_u32 v220, s58, v222")
    ool("v_add_u32 v221, s58, v223")
    for k in range(3):
        for q in range(4): ool(f"ds_read_b128 {V(CX+(k*4+q)*4,4)}, v{220 if k < 2 else 221} offset:{(k&1)*16384+q*1024}")
    ool("s_add_u32 s47, s43, s46")
    ool("s_lshl_b32 s48, s42, 4")
    ool("s_add_u32 s47, s47, s48")
    ool("s_lshl_b32 s47, s47, 11")
    ool("s_lshl_b32 s48, s40, 7")
    ool("s_add_u32 s48, s48, s47")
    ool("v_lshlrev_b32 v220, 5, v3")
    ool("v_lshl_add_u32 v220, v4, 4, v220")
    ool("s_waitcnt lgkmcnt(0)")
    for q in range(4):
        for k in range(3): ool(M16(V(CA+4*k,4), V(SELC,4), V(CX+(k*4+q)*4,4), "0" if q == 0 else None))
    for rr in (4, 8):
        for r in range(12): ool(f"v_add_f32_dpp v{CA+r}, v{CA+r}, v{CA+r} row_ror:{rr} row_mask:0xf bank_mask:0xf")
    ool("s_mov_b32 exec_lo, 0x000f000f")
    ool("s_mov_b32 exec_hi, 0")
    ool(f"buffer_store_dwordx4 {V(CA,4)}, v220, s[24:27], s48 offen sc1")
    ool(f"buffer_store_dwordx4 {V(CA+4,4)}, v220, s[24:27], s48 offen offset:512 sc1")
    ool(f"buffer_store_dwordx4 {V(CA+8,4)}, v220, s[24:27], s47 offen offset:1024 sc1")
    ool("s_mov_b64 exec, -1")
    ool("s_setpc_b64 s[62:63]")
    def cs_call(tau): return [f"s_cmp_eq_u32 s43, {tau}", f"s_cbranch_scc0 LA_cn{tau}", f"s_mov_b32 s58, {(tau%3)*STG}", "s_call_b64 s[62:63], LA_cs", f"LA_cn{tau}:"]
    def chk(name, load, regs, tag):
        c = [("wait", tag)] + [f"v_and_b32 {regs[0]}, {regs[0]}, {r}" for r in regs[1:]] + [f"v_cmp_ne_u32 vcc, 1, {regs[0]}", "s_nop 4", f"s_cbranch_vccnz {name}_s", f"{name}_r:"]
        ool.label(name + "_s")
        gpoll(ool, name, load, regs, "1", cnt="s39")
        ool(f"s_branch {name}_r")
        return [(load, tag)], c
    def step(s, side=(), pre_=(), tail=(), post=()):
        if s >= 0: p("s_barrier")
        for x in flat(list(pre_)): emit(x)
        ops = []
        if s >= 0: ops += [(g, ("st", s+2)) for g in OPS[SPL[s+2]:]]
        hd = [list(g) for g in OPS[:SPL[s+3]]]
        if s >= 0: hd[0] = set_stage(s+3) + hd[0]
        ops += [(g, ("st", s+3)) for g in hd]
        weave(ops, list(side))
        for x in tail: emit(x)
        emit(("wait", ("st", s+2)))
        for x in flat(list(post)): emit(x)
        p("s_waitcnt lgkmcnt(0)")
    def raw(prog): return [("raw", i.text) for i in prog.ins]
    p("s_mov_b32 s4, s62")
    p("s_mov_b32 s5, s63")
    fa = [[x] for x in ["s_mov_b32 s28, s4", "s_and_b32 s29, s5, 0xffff", "s_mov_b32 s30, 0x100", "s_mov_b32 s31, 0x20000", "v_mov_b32 v217, 1", "v_mov_b32 v219, 0", "v_lshlrev_b32 v216, 2, v3",
                        "v_lshlrev_b32 v224, 2, v1", "s_lshl_b32 s64, s41, 12", f"s_add_u32 s64, s64, {hex(F_SF)}", "s_lshl_b32 s65, s42, 12", f"s_add_u32 s65, s65, {hex(F_CF)}",
                        "s_lshl_b32 s66, s42, 2", "s_add_u32 s66, s66, s40", "s_lshl_b32 s66, s66, 2", "s_add_u32 s66, s66, s64",
                        "s_lshl_b32 s67, s41, 2", "s_add_u32 s67, s67, s40", "s_lshl_b32 s67, s67, 2", "s_add_u32 s67, s67, s65"]]
    l1, c1 = chk("LA_p1", "buffer_load_dword v218, v216, s[28:31], 0 offen sc1", ["v218"], "f1")
    l2, c2 = chk("LA_p2", "buffer_load_dword v218, v224, s[24:27], s64 offen sc1", ["v218"], "f2")
    l3, c3 = chk("LA_p4", "buffer_load_dword v218, v224, s[24:27], s65 offen sc1", ["v218"], "f3")
    def wflag(r): return ["s_mov_b64 exec, 1", f"buffer_store_dword v217, v219, s[24:27], {r} offen sc1", "s_mov_b64 exec, -1"]
    D0 = ["s_waitcnt vmcnt(0)"]
    def cp(t): return cs_call(t) if CSPOS == 0 else []
    def ct(t): return cs_call(t) if CSPOS == 1 else []
    step(-1, pre_=cp(0), tail=ct(0))
    step(0, (st_ld if STPOS == 1 else []) + fa, pre_=["s_cmp_eq_u32 s42, 0", "s_cbranch_scc0 LA_nz2", "s_waitcnt vmcnt(0)", "LA_nz2:"] + cp(1) + kv_issue(0), tail=ct(1))
    step(1, st1, pre_=kv_use(0) + cp(2) + kv_issue(1), tail=ct(2))
    step(2, kx_ld(3) + st2, pre_=kv_use(1) + cp(3) + kv_issue(2), tail=ct(3))
    step(3, st3 + kx_tr(3) + [l1], pre_=kv_use(2) + cp(4) + kv_issue(3), tail=ct(4))
    step(4, kx_ld(0), pre_=D0 + c1 + wflag('s66') + kv_use(3) + cp(5) + kv_issue(4), tail=ct(5))
    step(5, kx_ld(1) + kx_tr(0), pre_=kv_use(4) + cp(6) + kv_issue(5), tail=ct(6))
    step(6, kx_ld(2) + kx_tr(1), pre_=kv_use(5) + cp(7) + kv_issue(6), tail=ct(7))
    step(7, kx_tr(2), pre_=D0 + wflag('s67') + kv_use(6) + kv_issue(7) + l2)
    g_ld = [[x] for x in ["v_lshlrev_b32 v214, 5, v3", "s_lshl_b32 s47, s45, 10", f"s_add_u32 s47, s47, {hex(CS)}"]]
    g_ld += [[(f"buffer_load_dwordx2 {V(KT+2*u,2)}, v214, s[24:27], s47 offen offset:{u*512+16} sc1", "ks")] for u in range(2)]
    g2 = [[x] for x in ["s_cmp_lt_u32 s40, 2", "s_cselect_b32 s47, 31, 7", "v_and_b32 v207, s47, v1", "v_lshlrev_b32 v207, 4, v207", "v_lshl_add_u32 v208, v204, 11, v207",
                        "s_lshl_b32 s58, s42, 15", "s_min_u32 s48, s40, 2", "s_lshl_b32 s48, s48, 9", "s_add_u32 s58, s58, s48"]]
    g2 += [[(f"buffer_load_dwordx4 {V(CX+4*q,4)}, v208, s[24:27], s58 offen sc1", "cg"), "s_add_u32 s58, s58, 4096"] for q in range(8)]
    cor = [[("wait", "ks")]]
    for u in range(2):
        for r in range(4): cor += [[f"v_mul_f32 v{KA_+4*u+r}, v{KT+2*u}, v{KA_+4*u+r}"], [f"v_fmac_f32 v{KA_+4*u+r}, v{KT+2*u+1}, v{KA_+8+r}"]]
    cor += [[x] for x in ["s_and_b32 s47, s40, 1", "s_lshl_b32 s47, s47, 11", f"s_add_u32 s47, s47, {LNS}", "v_add_u32 v13, s47, v5"]]
    cor.append(["s_cmp_lt_u32 s40, 2", "s_cbranch_scc1 LA_r1", f"ds_write_b128 v13, {V(KA_,4)}", f"ds_write_b128 v13, {V(KA_+4,4)} offset:1024", "LA_r1:"])
    gs = [[("wait", "cg")]]
    for q in range(1, 8): gs += [[f"v_add_f32 v{CX+r}, v{CX+r}, v{CX+4*q+r}"] for r in range(4)]
    for r in range(4): gs += [[f"v_mov_b32 v{CX+4+r}, v{CX+r}"]]
    for r in range(4): gs += [[f"v_permlane32_swap_b32 v{CX+r}, v{CX+4+r}"]]
    for r in range(4): gs += [[f"v_add_f32 v{CX+r}, v{CX+r}, v{CX+4+r}"]]
    w2t = []
    if PFW2A:
        w2t = [f"s_load_dwordx2 s[8:9], s[0:1], {KA['w2']}", "s_waitcnt lgkmcnt(0)", "s_mov_b32 s32, s8", "s_and_b32 s33, s9, 0xffff", f"s_mov_b32 s34, {3584*1024*2}", "s_mov_b32 s35, 0x20000",
               "v_lshlrev_b32 v225, 7, v1", "s_lshl_b32 s47, s2, 2", "s_add_u32 s47, s47, s40", "s_lshl_b32 s47, s47, 13", ("buffer_load_dword v203, v225, s[32:35], s47 offen", "w2")]
    def w2s(k):
        if PFW2A != 1: return []
        return [f"s_cmp_eq_u32 s40, {k}", f"s_cbranch_scc0 LA_w2s{k}"] + [("raw", x if isinstance(x, str) else x[0]) for x in w2t] + [f"LA_w2s{k}:"]
    step(8, kv_mm, pre_=kv_use(7) + c2 + g_ld, tail=w2s(0))
    cpf = [code_srd(32, "LA_loop") + ["v_lshlrev_b32 v225, 7, v1", "s_lshl_b32 s47, s40, 13", ("buffer_load_dword v203, v225, s[32:35], s47 offen", "c")]] if PFX == 2 else []
    step(9, pre_=cor, tail=(flat(cpf) if CPS == 9 else []) + w2s(1))
    red = [f"ds_read_b128 {V(KT,4)}, v13", f"ds_read_b128 {V(KT+4,4)}, v13 offset:1024", "s_waitcnt lgkmcnt(0)"] + \
          [f"v_add_f32 v{KA_+r}, v{KA_+r}, v{KT+r}" for r in range(8)]
    b_ld = [["s_mov_b32 s28, s10", "s_and_b32 s29, s11, 0xffff", f"s_mov_b32 s30, {3584*2}", "s_mov_b32 s31, 0x20000", "v_lshlrev_b32 v208, 3, v1", "s_mul_i32 s47, s42, 448",
             (f"buffer_load_dwordx2 {V(BR,2)}, v208, s[28:31], s47 offen", "b")]]
    step(10, b_ld, tail=w2s(2), pre_=["s_cmp_ge_u32 s40, 2", "s_cbranch_scc1 LA_r2"] + red + ["s_cmp_eq_u32 s40, 0", "s_cbranch_scc1 LA_r2",
               f"ds_write_b128 v13, {V(KA_,4)}", f"ds_write_b128 v13, {V(KA_+4,4)} offset:1024", "LA_r2:"])
    fin = Prog()
    fin("s_cmp_eq_u32 s40, 0")
    fin("s_cbranch_scc0 LA_kvd")
    fin("v_add_u32 v13, 2048, v13")
    for x in red: fin(x)
    for r in range(8): fin(f"v_mul_f32 v{KA_+r}, {f32(1.0/qs)}, v{KA_+r}")
    for r in range(4): fin(f"v_cvt_pk_bf16_f32 v{KT+r}, v{KA_+2*r}, v{KA_+2*r+1}")
    fin("s_lshl_b32 s38, s45, 12")
    fin(f"s_add_u32 s38, s38, {hex(KV)}")
    fin("s_and_b32 s39, s44, 1")
    fin("s_cmp_ge_u32 s44, 2")
    fin("s_cbranch_scc1 LA_kvv")
    fin("v_and_b32 v11, 1, v4")
    fin("v_lshlrev_b32 v11, 9, v11")
    fin("v_lshl_add_u32 v11, v3, 4, v11")
    fin("v_lshrrev_b32 v12, 1, v4")
    fin("v_lshl_add_u32 v11, v12, 3, v11")
    fin("s_lshl_b32 s39, s39, 10")
    fin("s_add_u32 s38, s38, s39")
    for u in range(2): fin(f"buffer_store_dwordx2 {V(KT+2*u,2)}, v11, s[24:27], s38 offen offset:{u*256} sc1")
    fin("s_branch LA_kvd")
    fin.label("LA_kvv")
    fin("v_bfe_u32 v12, v3, 2, 1")
    fin("v_lshlrev_b32 v11, 8, v12")
    fin("v_lshl_add_u32 v11, v4, 6, v11")
    fin("v_lshrrev_b32 v12, 3, v3")
    fin("v_lshl_add_u32 v11, v12, 3, v11")
    fin("v_and_b32 v12, 3, v3")
    fin("v_lshl_add_u32 v11, v12, 1, v11")
    fin(f"v_add_u32 v11, {LNS+2048}, v11")
    for u in range(2):
        for r in range(4):
            op = "ds_write_b16" if r % 2 == 0 else "ds_write_b16_d16_hi"
            fin(f"{op} v11, v{KT+2*u+(r>>1)} offset:{u*512+r*16}")
    fin(f"ds_read_b128 {V(KT+4,4)}, v13")
    fin("v_lshlrev_b32 v11, 9, v4")
    fin("v_lshl_add_u32 v11, v3, 4, v11")
    fin("s_lshl_b32 s39, s39, 8")
    fin("s_add_u32 s38, s38, s39")
    fin("s_waitcnt lgkmcnt(0)")
    fin(f"buffer_store_dwordx4 {V(KT+4,4)}, v11, s[24:27], s38 offen offset:2048 sc1")
    fin.label("LA_kvd")
    fin("v_lshlrev_b32 v11, 2, v1")
    fin(f"v_add_u32 v11, {SY}, v11")
    fin("ds_write_b32 v11, v219")
    bu = [[("wait", "b")]] + [[x] for x in [f"v_lshlrev_b32 v{BF}, 16, v{BR}", f"v_and_b32 v{BF+1}, 0xffff0000, v{BR}", f"v_lshlrev_b32 v{BF+2}, 16, v{BR+1}", f"v_and_b32 v{BF+3}, 0xffff0000, v{BR+1}"]]
    bu += [[f"v_mul_f32 v{BF+r}, {f32(sgelu)}, v{BF+r}"] for r in range(4)]
    step(11, bu, pre_=raw(fin), tail=(flat(cpf) if CPS == 11 else []) + (w2t if PFW2A == 11 else []) + w2s(3))
    pub = ["s_cmp_eq_u32 s40, 0", "s_cbranch_scc0 LA_np0", "s_lshl_b32 s38, s41, 12", "s_lshl_b32 s39, s42, 2", "s_add_u32 s38, s38, s39", f"s_add_u32 s38, s38, {hex(F_KV)}",
           "s_waitcnt vmcnt(0)", "s_mov_b64 exec, 1", "buffer_store_dword v217, v219, s[24:27], s38 offen sc1", "s_mov_b64 exec, -1", "LA_np0:"]
    step(12, pre_=pub + l3, post=c3, tail=w2t if PFW2A == 12 else [])
    p("s_barrier")
    p(f"ds_write_b128 v5, {V(BF,4)} offset:{TBL+2048}")
    for g in OPS[SPL[15]:]:
        for x in g: emit(x, ("st", 15))
    p("s_lshl_b32 s47, s40, 10")
    p(f"s_add_u32 m0, s47, {TBL+4096}")
    p("s_lshl_b32 s48, s41, 12")
    p("s_add_u32 s47, s47, s48")
    p(f"s_add_u32 s47, s47, {hex(CS)}")
    emit("buffer_load_dwordx4 v5, s[24:27], s47 offen sc1 lds", "tk")
    for x in flat(g2) + flat(gs): emit(x)
    p(f"s_add_u32 s47, s48, {TBL}")
    p("v_add_u32 v207, s47, v207")
    p(f"ds_write_b128 v207, {V(CX,4)}")
    p("s_lshl_b32 s39, s40, 2")
    p(f"s_add_u32 s39, s39, {SY}")
    p("v_mov_b32 v254, s39")
    p("s_waitcnt lgkmcnt(0)")
    if AW2:
        p(f"s_load_dwordx2 s[8:9], s[0:1], {KA['w2']}")
        assert GMAP == 0
        p("s_bfe_u32 s44, s2, 0x10002")
        p("v_and_b32 v13, 3, v1")
        p("v_lshlrev_b32 v13, 4, v13")
        p("s_lshl_b32 s47, s44, 1")
        p("v_xor_b32 v14, s47, v4")
        p("v_lshl_add_u32 v13, v14, 6, v13")
        p("v_bfe_u32 v14, v1, 2, 2")
        p("v_lshl_add_u32 v8, v14, 11, v13")
        p("s_lshl_b32 s47, s40, 16")
        p("v_add_u32 v8, s47, v8")
        p("v_xor_b32 v9, 32, v8")
        p("s_lshl_b32 s56, s40, 13")
        p(f"s_mul_i32 s54, s44, {1792*2048}")
        p("s_lshr_b32 s48, s2, 5")
        p("s_lshl_b32 s48, s48, 8")
        p("s_add_u32 s54, s54, s48")
        p("s_waitcnt lgkmcnt(0)")
        srd(p, 16, 8, 3584*1024*2)
    p("s_barrier")
    if AW2:
        for n in range(AW2):
            for q in range(8):
                p(f"s_add_u32 m0, s56, {WBASE+n*WSEG+q*1024}")
                p(f"s_add_u32 s55, s54, {n*0x40000+q*0x2000}")
                p(f"buffer_load_dwordx4 v{8+(q&1)}, s[16:19], s55 offen lds")
    stamp(p, 5)

    Q = {0: 16, 1: 24}; C = {0: 32, 1: 48}; Sx = {0: 64, 1: 80}; P = {0: 96, 1: 104}
    O = {0: 112, 1: 128}; L = {0: 144, 1: 148}; SEL = 152
    KF = {0: 156, 1: 164}; VF = {0: 172, 1: 180}; T = 188; IDX = 200; EP = 201; EPR = 202
    p(f"s_load_dwordx2 s[4:5], s[0:1], {KA['wo']}")
    p("v_lshlrev_b32 v6, 4, v3")
    p("v_lshrrev_b32 v7, 5, v1")
    p("v_lshl_add_u32 v6, v7, 8, v6")
    p("v_bfe_u32 v8, v1, 4, 1")
    p(f"s_mov_b32 s44, {OH_TILE}")
    p("v_mul_lo_u32 v7, v8, s44")
    p("v_add_u32 v7, v7, v6")
    p("v_lshl_add_u32 v6, v8, 11, v6")
    p(f"s_add_u32 s47, s51, {QST}")
    p("v_add_u32 v6, s47, v6")
    p("s_lshl_b32 s45, s41, 2")
    p("s_add_u32 s45, s45, s40")
    p(f"s_mul_i32 s47, s45, {2*OH_TILE}")
    p("s_lshl_b32 s46, s42, 11")
    p("s_add_u32 s47, s47, s46")
    p(f"s_add_u32 s47, s47, {hex(OH_F)}")
    p("s_lshl_b32 s53, s41, 12")
    p("s_lshl_b32 s54, s40, 7")
    p("s_add_u32 s53, s53, s54")
    p("s_lshl_b32 s54, s42, 2")
    p("s_add_u32 s53, s53, s54")
    p(f"s_add_u32 s53, s53, {hex(F_OF)}")
    if WIDE:
        p("s_lshl_b32 s53, s45, 4")
        p("s_add_u32 s53, s53, s42")
        p("s_lshl_b32 s53, s53, 7")
        p(f"s_add_u32 s53, s53, {hex(F_OFW)}")
    srd(p, 12, 6, 262144, KV)
    p("v_and_b32 v8, 4, v1")
    p("v_cmp_eq_u32 vcc, 0, v8")
    p("v_mov_b32 v9, 0x3f803f80")
    p("v_mov_b32 v8, 0")
    for r in range(2): p(f"v_cndmask_b32 v{SEL+r}, v8, v9, vcc")
    for r in range(2): p(f"v_cndmask_b32 v{SEL+2+r}, v9, v8, vcc")
    p("v_and_b32 v8, 1, v1")
    p("v_mul_u32_u24 v8, 0xaaaa, v8")
    p(f"v_add_u32 v{IDX}, 0x4444, v8")
    for x in range(2):
        for r in range(8): p(f"v_mov_b64 {V(O[x]+2*r,2)}, 0")
        for r in range(2): p(f"v_mov_b64 {V(L[x]+2*r,2)}, 0")
    for r in range(4):
        p(f"v_mov_b64 {V(P[1]+2*r,2)}, 0")
        p(f"v_mov_b64 {V(VF[1]+2*r,2)}, 0")
    p(f"v_mov_b32 v{EP}, 1")
    p("v_lshlrev_b32 v12, 7, v1")
    p("s_waitcnt lgkmcnt(0)")
    srd(p, 20, 4, 1024*1024*2)
    for x in code_srd(16, "LG_tail"): p(x)
    p("s_lshl_b32 s49, s2, 13")
    p("s_sub_u32 s55, s40, 1")
    p("s_lshl_b32 s55, s55, 13")
    p("s_cmp_eq_u32 s40, 0")
    p("s_cselect_b32 s16, s20, s16")
    p("s_cselect_b32 s17, s21, s17")
    p("s_cselect_b32 s18, s22, s18")
    p("s_cselect_b32 s55, s49, s55")
    p("s_cmp_eq_u32 s40, 1")
    p("s_cbranch_scc0 LA_np")
    p("v_lshrrev_b32 v13, 2, v1")
    p("v_lshlrev_b32 v13, 12, v13")
    p("v_and_b32 v14, 3, v1")
    p("v_lshl_add_u32 v13, v14, 4, v13")
    p(f"s_mov_b32 s48, {hex(F_KV)}")
    gpoll(p, "LA_p3", f"buffer_load_dwordx4 {V(T,4)}, v13, s[24:27], s48 offen sc1", [f"v{T+r}" for r in range(4)], "1")
    p(f"ds_write_b32 v255, v{EP} offset:{SY_OK}")
    p.label("LA_np")
    lds_wait(p, "LA_w3", "v255", SY_OK, "v13", "1")
    stamp(p, 4)
    lds_wait(p, "LA_w2", "v255", SY_Q, "v13", "1")
    for x in range(2):
        for mf in range(2): p(f"ds_read_b128 {V(Q[x]+4*mf,4)}, v6 offset:{x*1024+mf*512}")
    stamp(p, 6)
    if PRIO_A: p(f"s_setprio {PRIO_A}")
    p("s_lshl_b32 s50, s40, 11")
    p("s_mov_b32 s51, s50")
    def kvd(slot): return [f"s_add_u32 m0, s51, {slot*8192}", "buffer_load_dwordx4 v5, s[12:15], s50 offen sc1 lds",
                           "buffer_load_dwordx4 v5, s[12:15], s50 offen offset:1024 sc1 lds", "s_add_u32 s50, s50, 0x2000"]
    for c in range(3):
        for x in kvd(c): p(x)
    p("s_waitcnt vmcnt(4)")
    p(f"ds_write_b32 v254, v{EP} offset:{SY_EA}")
    lds_wait(p, "LA_w4", "v255", SY_EA, "v13", "1")
    stamp(p, 1)
    def rdK(buf, tile): return [f"ds_read_b128 {V(KF[buf]+4*m,4)}, v5 offset:{(tile&7)*4096+m*1024}" for m in range(2)]
    def rdV(buf, tile): return [f"ds_read_b128 {V(VF[buf]+4*m,4)}, v5 offset:{(tile&7)*4096+2048+m*1024}" for m in range(2)]
    def QK(x, buf, c=None):
        cc = V(C[x],16) if c is None else c
        return [M32(V(Sx[x],16), V(KF[buf],4), V(Q[x],4), cc), M32(V(Sx[x],16), V(KF[buf]+4,4), V(Q[x]+4,4))]
    def PV(x, buf): return [M32(V(O[x],16), V(VF[buf],4), V(P[x],4)), M32(V(O[x],16), V(VF[buf]+4,4), V(P[x]+4,4))]
    def SUM(x): return [f"v_smfmac_f32_16x16x64_bf16 {V(L[x],4)}, {V(SEL,4)}, {V(P[x],8)}, v{IDX}"]
    def rowmax(q, x, dst, init=None):
        s = Sx[x]
        if init is None:
            q(f"v_max3_f32 v{dst}, v{s}, v{s+1}, v{s+2}")
            q(f"v_max_f32 v{dst}, v{dst}, v{s+3}")
            st = 4
        else: st = 0
        for i in range(st, 16, 2): q(f"v_max3_f32 v{dst}, v{dst}, v{s+i}, v{s+i+1}")
    def setC(q, x, src):
        q(f"v_mov_b32 v{T+8}, v{src}")
        q(f"v_permlane32_swap_b32 v{src}, v{T+8}")
        q(f"v_max_f32 v{src}, v{src}, v{T+8}")
        for r in range(16): q(f"v_sub_f32 v{C[x]+r}, 0, v{src}")
    for x in rdK(0, 0): p(x)
    p(f"v_add_u32 v{EP}, 1, v{EP}")
    p("s_waitcnt vmcnt(2)")
    p(f"ds_write_b32 v254, v{EP} offset:{SY_EA}")
    p("s_waitcnt lgkmcnt(0)")
    for x in range(2):
        for m in QK(x, 0, "0"): p(m)
    for x in range(2):
        rowmax(p, x, T+x)
        setC(p, x, T+x)
    for m in QK(0, 0): p(m)
    if AHOLD: lds_wait(p, "LA_w5", "v255", SY_Q, "v13", "2")
    p("s_mov_b32 s59, 0")
    p("s_nop 15")
    pre = fix(p.ins, pre=head)
    b = Prog()
    b.label("LA_loop")
    def valu(x):
        v = []
        for i in range(8):
            v += [f"v_exp_f32 v{Sx[x]+2*i}, v{Sx[x]+2*i}", f"v_exp_f32 v{Sx[x]+2*i+1}, v{Sx[x]+2*i+1}"]
            if i >= 1: v.append(f"v_cvt_pk_bf16_f32 v{P[x]+i-1}, v{Sx[x]+2*i-2}, v{Sx[x]+2*i-1}")
        v.append(f"v_cvt_pk_bf16_f32 v{P[x]+7}, v{Sx[x]+14}, v{Sx[x]+15}")
        return v
    def phase(x, mf, extra):
        v = valu(x); out = []; cum = 0; mi = 0
        for ins in v:
            while mi < 5 and cum >= APOS[mi]:
                out += extra.get(("pre", mi), [])
                out.append(mf[mi]); out += extra.get(mi, []); mi += 1
            out.append(ins); cum += 8 if "exp" in ins else 4
        assert mi == 5
        return out
    for t in range(8):
        kb = t & 1; ch = t >> 1
        nk = rdK(kb^1, t+1); nv = rdV(kb, t)
        ex = {0: [nk[0]], 1: [nk[1]], 2: [nv[0]], 3: [nv[1]]}
        if kb == 0: ex[4] = [f"ds_read_b32 v{EPR}, v255 offset:{SY_EA}"]
        for x in phase(0, QK(1, kb) + PV(1, kb^1) + SUM(1), ex): b(x)
        ex = {("pre", 0): ["s_waitcnt lgkmcnt(0)"]}
        if kb == 0:
            d = kvd((ch + 3) & 3)
            ex[0] = [f"v_cmp_gt_u32 vcc, v{EP}, v{EPR}"]
            ex[1] = [f"s_cbranch_vccnz LA_sp{ch}", f"LA_spr{ch}:"]
            ex[2] = [d[0]]; ex[3] = [d[1]]; ex[4] = [d[2], d[3]]
            ool.label(f"LA_sp{ch}")
            lds_wait(ool, f"LA_spw{ch}", "v255", SY_EA, f"v{EPR}", f"v{EP}")
            ool(f"s_branch LA_spr{ch}")
        else:
            ex[0] = [f"v_add_u32 v{EP}, 1, v{EP}"]
            ex[1] = ["s_waitcnt vmcnt(2)", f"ds_write_b32 v254, v{EP} offset:{SY_EA}"]
            if t == 3: ex[3] = [f"s_cmp_eq_u32 s59, {WOIT}", "s_cbranch_scc1 LA_xt", "LA_xtr:"]
            if t == 7: ex[4] = ["s_add_u32 s59, s59, 1", "s_cmp_lt_u32 s59, 8"]
        for x in phase(1, QK(0, kb^1) + PV(0, kb) + SUM(0), ex): b(x)
    b("s_cbranch_scc1 LA_loop")
    ool.label("LA_xt")
    ool("buffer_load_dword v13, v12, s[16:19], s55 offen")
    ool("s_branch LA_xtr")
    if os.environ.get("ADROP"):
        dr = os.environ["ADROP"].split(",")
        b.ins = [i for i in b.ins if not any(i.text.startswith(d) for d in dr)]
    rep = []
    body = fix(b.ins, pre=pre, report=rep)
    if rep: print("attn loop nops:", len(rep), rep[:5])
    assert not check_loop(body)
    e = Prog()
    stamp(e, 2)
    for m in PV(1, 1) + SUM(1): e(m)
    e("s_mov_b32 s60, 0")
    e.label("LA_fin")
    e("s_nop 15")
    for x in range(2): e(f"v_add_f32 v{L[x]}, v{L[x]}, v{L[x]+1}")
    e(f"s_mov_b32 s61, {f32(2.0**40)}")
    e(f"v_cmp_gt_f32 vcc, s61, v{L[0]}")
    e(f"v_cmp_gt_f32 s[62:63], s61, v{L[1]}")
    e("s_and_b64 vcc, vcc, s[62:63]")
    e("s_cmp_eq_u64 vcc, -1")
    e("s_cbranch_scc1 LA_store")
    e("s_cmp_eq_u32 s60, 0")
    e("s_cbranch_scc1 LA_slow")
    e.label("LA_store")
    for x in range(4): e(f"v_rcp_f32 v{T+x}, v{L[x>>1]}")
    for x in range(2):
        if APK:
            for r in range(8): e(f"v_pk_mul_f32 {V(O[x]+2*r,2)}, {V(O[x]+2*r,2)}, {V(T+2*x,2)}")
        else:
            for r in range(16): e(f"v_mul_f32 v{O[x]+r}, v{O[x]+r}, v{T+2*x}")
        for hh in range(2):
            o = P[x] + 4*hh
            src = [4*hh, 4*hh+2, 8+4*hh, 8+4*hh+2]
            for i, sr in enumerate(src): e(f"v_cvt_pk_bf16_f32 v{o+i}, v{O[x]+sr}, v{O[x]+sr+1}")
            e(f"buffer_store_dwordx4 {V(o,4)}, v7, s[24:27], s47 offen offset:{x*1024+hh*512} sc1")
    e("v_mov_b32 v8, 1")
    e("v_mov_b32 v9, 0")
    stamp(e, 3)
    e("s_waitcnt vmcnt(0)")
    e("s_mov_b64 exec, 1")
    e("buffer_store_dword v8, v9, s[24:27], s53 offen sc1")
    e("s_mov_b64 exec, -1")
    if AQ2:
        e("v_lshrrev_b32 v10, 5, v1")
        e("v_lshlrev_b32 v11, 1, v10")
        e("v_and_b32 v14, 3, v1")
        e("v_xor_b32 v11, v11, v14")
        e("v_lshlrev_b32 v11, 4, v11")
        e("v_bfe_u32 v14, v1, 4, 1")
        e("v_lshl_add_u32 v11, v14, 6, v11")
        e("v_bfe_u32 v14, v1, 2, 2")
        e("v_lshl_add_u32 v10, v10, 2, v14")
        e("v_lshl_add_u32 v10, v10, 11, v11")
        e("s_lshr_b32 s48, s2, 5")
        e("s_lshl_b32 s48, s48, 8")
        e("s_bfe_u32 s49, s2, 0x10002")
        e("s_lshl_b32 s49, s49, 7")
        e("s_add_u32 s48, s48, s49")
        e("s_lshl_b32 s49, s40, 17")
        e("s_add_u32 s48, s48, s49")
        e("s_lshl_b32 s49, s40, 13")
        e(f"v_add_u32 v{EP}, 1, v{EP}")
        e(f"ds_write_b32 v254, v{EP} offset:{SY_EA}")
        lds_wait(e, "LA_w6", "v255", SY_EA, "v13", f"v{EP}")
        for q in range(8):
            e(f"s_add_u32 m0, s49, {q*1024}")
            e(f"s_add_u32 s50, s48, {0x100000+q*0x4000}")
            e("buffer_load_dwordx4 v10, s[20:23], s50 offen lds")
        e("s_waitcnt vmcnt(0)")
    stamp_flush(e, 2, 9)
    e.label("L_end")
    e("s_endpgm")
    e.label("LA_slow")
    e("s_mov_b32 s60, 1")
    e(f"v_mov_b32 v{T}, 0xff800000")
    e(f"v_mov_b32 v{T+1}, 0xff800000")
    e("s_mov_b32 s52, 0")
    e.label("LA_s1")
    for m in range(2): e(f"buffer_load_dwordx4 {V(KF[0]+4*m,4)}, v5, s[12:15], s52 offen offset:{m*1024} sc1")
    e("s_waitcnt vmcnt(0)")
    for x in range(2):
        for m in QK(x, 0, "0"): e(m)
    e("s_nop 15")
    for x in range(2): rowmax(e, x, T+x, init=True)
    e("s_add_u32 s52, s52, 4096")
    e("s_cmp_lt_u32 s52, 0x40000")
    e("s_cbranch_scc1 LA_s1")
    for x in range(2):
        setC(e, x, T+x)
        for r in range(16): e(f"v_mov_b32 v{O[x]+r}, 0")
        for r in range(4): e(f"v_mov_b32 v{L[x]+r}, 0")
    e("s_mov_b32 s52, 0")
    e.label("LA_s2")
    for m in range(2): e(f"buffer_load_dwordx4 {V(KF[0]+4*m,4)}, v5, s[12:15], s52 offen offset:{m*1024} sc1")
    for m in range(2): e(f"buffer_load_dwordx4 {V(VF[0]+4*m,4)}, v5, s[12:15], s52 offen offset:{2048+m*1024} sc1")
    e("s_waitcnt vmcnt(0)")
    for x in range(2):
        for m in QK(x, 0): e(m)
    e("s_nop 15")
    for x in range(2):
        for v in valu(x): e(v)
    e("s_nop 3")
    for x in range(2):
        for m in PV(x, 0) + SUM(x): e(m)
    e("s_nop 15")
    e("s_add_u32 s52, s52, 4096")
    e("s_cmp_lt_u32 s52, 0x40000")
    e("s_cbranch_scc1 LA_s2")
    e("s_branch LA_fin")
    e.extend(ool)
    epi = fix(e.ins, pre=body)
    roleA = pre + [Ins(".p2align 6")] + body + epi
    import mega_g
    roleG = mega_g.gen(head)
    ins = head + roleA + roleG
    return name, kernel_text(name, ins, 256, 256), (256, 512, lds)
```

```python
from common import *
from mega import *
import math

FLP = int(os.environ.get('FLP', '26'))
CPM = int(os.environ.get('CPM', '31'))
TLBW = int(os.environ.get('TLBW', '0'))
GBOOST = int(os.environ.get('GBOOST', '0'))
SPF = int(os.environ.get('SPF', '0'))
SPFK = eval(os.environ.get('SPFK', '[1, 2, 3, 5, 6, 7]'))
EARLYO = int(os.environ.get('EARLYO', '0'))
NSP = int(os.environ.get('NSP', '3'))
def gen(head):
    ACC = 16
    def acc(u, t): return ACC + (u*9+t)*4
    XB = 160; WS_ = 192; RAW = 236; CSC = 250
    def XF(f, u): return XB + f*16 + u*4
    sa = list(range(9)); sb = list(range(9, 9+NSP)) + list(range(9-NSP))
    def WF(f, t): return WS_ + (sa if f == 0 else sb)[t]*4
    p = Prog()
    p.label("L_G")
    p("s_sub_u32 s40, s40, 4")
    p("s_lshr_b32 s44, s40, 1")
    p("s_and_b32 s45, s40, 1")
    if CODEPF:
        for x in code_srd(28, NAME + "_kernel", back=True): p(x)
        p("v_lshlrev_b32 v20, 7, v1")
        p("s_lshr_b32 s47, s2, 3")
        p(f"s_and_b32 s47, s47, {CPM}")
        p("s_lshl_b32 s47, s47, 13")
        p("s_cmp_eq_u32 s40, 0")
        p("s_cbranch_scc0 LG_nt")
        p("buffer_load_dword v253, v20, s[28:31], s47 offen")
        p.label("LG_nt")
    p("s_lshl_b32 s39, s40, 2")
    p(f"s_add_u32 s39, s39, {SY}")
    p("v_mov_b32 v254, s39")
    p("v_lshrrev_b32 v22, 4, v1")
    p("v_mul_u32_u24 v22, 7168, v22")
    p("v_min_u32 v23, 13, v3")
    p("v_lshl_add_u32 v22, v23, 7, v22")
    p("v_lshrrev_b32 v23, 2, v1")
    p("v_and_b32 v24, 3, v1")
    p("v_lshlrev_b32 v24, 7, v24")
    p("v_lshl_add_u32 v23, v23, 11, v24")
    p("s_lshr_b32 s47, s2, 3")
    p("s_bfe_u32 s48, s2, 0x20001")
    if TLBW:
        p(f"s_load_dwordx2 s[12:13], s[0:1], {KA['wo']}")
        p(f"s_load_dwordx4 s[16:19], s[0:1], {KA['w2']}")
        p(f"s_load_dwordx2 s[14:15], s[0:1], {KA['out']}")
    p("s_waitcnt lgkmcnt(0)")
    if SPF:
        p("s_lshr_b32 s46, s2, 3")
        p("s_lshl_b32 s46, s46, 2")
        p("s_add_u32 s46, s46, s40")
        p("s_and_b32 s49, s2, 1")
        p("s_lshl_b32 s50, s49, 21")
        p("s_lshl_b32 s51, s46, 14")
        p("s_add_u32 s50, s50, s51")
        p("s_lshl_b32 s51, s49, 10")
        p("s_add_u32 s50, s50, s51")
        p("s_add_u32 s12, s64, s50")
        p("s_addc_u32 s13, s65, 0")
        p("s_lshr_b32 s50, s46, 1")
        p("s_lshl_b32 s51, s49, 9")
        p("s_add_u32 s50, s50, s51")
        p("s_and_b32 s46, s46, 1")
        p("s_mul_i32 s51, s50, 7168")
        p("s_mul_i32 s52, s48, 1792")
        p("s_add_u32 s51, s51, s52")
        p("s_mul_i32 s52, s46, 896")
        p("s_add_u32 s51, s51, s52")
        p("s_add_u32 s14, s8, s51")
        p("s_addc_u32 s15, s9, 0")
        p("s_lshl_b32 s51, s50, 11")
        p("s_lshl_b32 s52, s48, 9")
        p("s_add_u32 s51, s51, s52")
        p("s_lshl_b32 s52, s46, 8")
        p("s_add_u32 s51, s51, s52")
        p("s_add_u32 s16, s66, s51")
        p("s_addc_u32 s17, s67, 0")
        prev = 0
        for k in SPFK[:SPF]:
            p(f"s_add_u32 s14, s14, {(k-prev)*64*7168}")
            p("s_addc_u32 s15, s15, 0")
            prev = k
            for n in range(7): p(f"s_load_dword s53, s[14:15], {n*128}")
            for n in range(8): p(f"s_load_dword s53, s[12:13], {n*2048+k*128}")
            for n in range(2): p(f"s_load_dword s53, s[16:17], {k*64*2048+n*128}")
    if TLBW:
        M2 = 2 << 20
        pg = [(8, k*M2) for k in range(4)] + [(64, 0), (64, M2), (66, 0), (32, 0), (34, 0), (10, 0), (62, 0), (6, XN_F), (6, CS), (6, FLG)]
        pg += [(6, OH_F + k*M2) for k in range(9)] + [(16, k*M2) for k in range(4)] + [(12, 0), (18, 0), (14, 0), (14, M2), (6, PART), (6, PART + M2)]
        for w in range(4):
            if w < 3:
                p(f"s_cmp_eq_u32 s40, {w}")
                p(f"s_cbranch_scc0 LG_tw{w}")
            for k, (b_, off) in enumerate(pg[w::4]):
                p(f"s_mov_b32 s46, {hex(off)}")
                p(f"s_load_dword s{51+k}, s[{b_}:{b_+1}], s46")
            if w < 3:
                p("s_branch LG_twd")
                p.label(f"LG_tw{w}")
        p.label("LG_twd")
    p("s_cmp_eq_u32 s40, 3")
    p("s_cbranch_scc1 LG_eq")
    srd(p, 20, 8, 1024*3584*2)
    p(f"s_mul_i32 s49, s47, {4*7168}")
    p("s_mul_i32 s50, s48, 1792")
    p("s_add_u32 s49, s49, s50")
    p("s_and_b32 s50, s2, 1")
    p("s_lshl_b32 s50, s50, 2")
    p("s_add_u32 s50, s50, s40")
    p(f"s_mul_i32 s50, s50, {128*7168}")
    p("s_add_u32 s49, s49, s50")
    for g in range(EPF):
        p("buffer_load_dword v253, v22, s[20:23], s49 offen")
        p(f"s_add_u32 s49, s49, {3*128*7168}")
    p("s_branch LG_ed")
    p.label("LG_eq")
    srd(p, 20, 66, 1024*1024*2)
    p("s_lshl_b32 s49, s47, 15")
    p("s_lshl_b32 s50, s48, 9")
    p("s_add_u32 s49, s49, s50")
    p("s_and_b32 s50, s2, 1")
    p("s_lshl_b32 s50, s50, 20")
    p("s_add_u32 s49, s49, s50")
    for g in range(EPF):
        p("buffer_load_dword v253, v23, s[20:23], s49 offen")
        p(f"s_add_u32 s49, s49, {512*2048}")
    p.label("LG_ed")
    p("v_and_b32 v11, 7, v3")
    p("v_xor_b32 v11, v11, v4")
    p("v_lshlrev_b32 v11, 4, v11")
    p("v_lshl_add_u32 v11, v3, 7, v11")
    p("s_lshl_b32 s47, s44, 13")
    p("v_add_u32 v11, s47, v11")
    p("v_xor_b32 v10, 64, v11")
    p("v_lshlrev_b32 v15, 9, v4")
    p("v_bfe_u32 v13, v1, 2, 2")
    p("v_lshl_add_u32 v15, v13, 6, v15")
    p("v_and_b32 v13, 3, v1")
    p("v_lshl_add_u32 v15, v13, 3, v15")
    p("v_and_b32 v13, 1, v4")
    p("v_lshl_add_u32 v15, v13, 5, v15")
    p("s_lshl_b32 s47, s45, 5")
    p("v_xor_b32 v14, s47, v15")
    p(f"v_add_u32 v14, {WOFF+32768}, v14")
    p("s_lshl_b32 s47, s45, 14")
    p(f"s_add_u32 s47, s47, {WOFF}")
    p("v_add_u32 v12, s47, v15")
    p("v_xor_b32 v13, 32, v12")
    srd(p, 24, 6, WS_SIZE)
    srd(p, 28, 62, 256)
    p("v_mov_b32 v6, 0")
    p("v_mov_b32 v7, 1")
    p("s_lshl_b32 s37, s41, 2")
    p("s_or_b32 s39, s42, s40")
    p("s_cmp_eq_u32 s39, 0")
    p("s_cselect_b32 s3, 2, 0")
    if TLBW or SPF: p("s_waitcnt lgkmcnt(0)")
    p("s_mov_b32 s58, 0")
    p(f"s_mov_b32 s60, {STG}")
    p(f"s_mov_b32 s61, {STG}")
    p("s_mov_b32 s59, 0")
    p("s_barrier")
    if PRIO_G1: p(f"s_setprio {PRIO_G1}")
    stamp(p, 1)
    if LOOPST: p("s_mov_b32 s71, 0")
    def rx(f, kk): return [f"ds_read_b128 {V(XF(f,u),4)}, v{11-kk} offset:{u*2048}" for u in range(4)]
    def rw(f, t, kk):
        if t < 8: return [f"ds_read_b64_tr_b16 {V(WF(f,t)+rho*2,2)}, v{12+(t&1)} offset:{(t>>1)*4096+kk*2048+rho*256}" for rho in range(2)]
        return [f"ds_read_b64_tr_b16 {V(WF(f,t)+rho*2,2)}, v14 offset:{kk*2048+rho*256}" for rho in range(2)]
    def mfmas(f, zero=False): return [M16(V(acc(u,t),4), V(WF(f,t),4), V(XF(f,u),4), "0" if zero else None) for t in range(9) for u in range(4)]
    for x in rx(0, 0): p(x)
    for t in range(9):
        for x in rw(0, t, 0): p(x)
    p("s_waitcnt lgkmcnt(0)")
    rot_v = [f"v_add_u32 v{r}, s61, v{r}" for r in (10, 11, 12, 13, 14)]
    rot_s = ["s_mov_b32 s58, s60", f"s_add_u32 s60, s58, {STG}", f"s_cmp_eq_u32 s60, {3*STG}", "s_cselect_b32 s60, 0, s60", "s_sub_u32 s61, s60, s58"]
    def phaseA(zero=False, extra=()):
        early = rx(1, 1) + sum([rw(1, t, 1) for t in range(NSP)], [])
        fill = [(i // 2, x) for i, x in enumerate(early)]
        for t in range(NSP, 9):
            r = rw(1, t, 1)
            fill += [(4*(t-NSP)+5, r[0]), (4*(t-NSP)+6, r[1])] if NSP > 2 else [(4*(t-NSP)+4, r[0]), (4*(t-NSP)+5, r[1])]
        fill.append((7, f"s_waitcnt lgkmcnt({len(early)+2})"))
        fill += [(30+i, x) for i, x in enumerate(rot_v)]
        return interleave(mfmas(0, zero), fill + list(extra))
    def phaseB(last=False, extra=()):
        fill = []
        if not last:
            early = rx(0, 0) + sum([rw(0, t, 0) for t in range(9-NSP, 9)], [])
            fill = [(i, x) for i, x in enumerate(early)]
            for t in range(9-NSP):
                r = rw(0, t, 0)
                if t < 8-NSP: fill += [(4*(t+NSP)+4, r[0]), (4*(t+NSP)+5, r[1])]
                else: fill += [(35, r[0]), (35, r[1])]
            fill += [(10, rot_s[0]), (10, rot_s[1]), (11, rot_s[2]), (11, rot_s[3]), (14, rot_s[4])]
        return interleave(mfmas(1), fill + list(extra))
    for x in phaseA(zero=True): p(x)
    p("s_waitcnt lgkmcnt(0)")
    pre = fix(p.ins, pre=head)
    ool = Prog()
    b = Prog()
    b.label("LG_l1")
    loopstamp(b, "v2", "v9")
    b("s_barrier")
    loopstamp(b, "v2", "v9")
    for x in phaseB(extra=[(15, "s_add_u32 s59, s59, 1")]): b(x)
    b("s_waitcnt lgkmcnt(4)")
    for x in phaseA(extra=[(FLP, "s_cmp_eq_u32 s59, s3"), (FLP, "s_cbranch_scc1 LG_fl"), (FLP, "LG_flr:"), (35, "s_cmp_lt_u32 s59, 15")]): b(x)
    b("s_waitcnt lgkmcnt(0)")
    b("s_cbranch_scc1 LG_l1")
    ool.label("LG_fl")
    ool("s_mov_b64 exec, 1")
    ool("buffer_store_dword v7, v6, s[28:31], s37 offen sc1")
    ool("s_mov_b64 exec, -1")
    ool("s_nop 3")
    ool("s_branch LG_flr")
    rep = []
    body = fix(b.ins, pre=pre, report=rep)
    if rep: print("gemm1 loop nops:", len(rep), rep[:5])
    assert not check_loop(body)
    e = Prog()
    sgelu = (2.0 * math.sqrt(2.0/math.pi) * math.log2(math.e) * 0.044715) ** (1.0/3.0)
    kappa = 2.0 * math.sqrt(2.0/math.pi) * math.log2(math.e) / sgelu
    qs = math.log2(math.e) / math.sqrt(32.0)
    TK = XB
    QP = 240
    QC = WS_ + 28
    su = Prog()
    su(f"s_mov_b32 s62, {f32(sgelu)}")
    su(f"s_mov_b32 s63, {f32(sgelu)}")
    su("s_lshl_b32 s47, s44, 11")
    su(f"s_add_u32 s47, s47, {TBL+4096}")
    su("v_lshlrev_b32 v12, 5, v3")
    su("v_add_u32 v12, s47, v12")
    su("s_lshl_b32 s47, s45, 9")
    su(f"s_add_u32 s47, s47, {TBL}")
    su("v_lshlrev_b32 v13, 4, v4")
    su("v_add_u32 v14, s47, v13")
    for u in range(4): su(f"ds_read_b64 {V(QP+2*u,2)}, v12 offset:{u*512+16}")
    for t in range(2): su(f"ds_read_b128 {V(QC+4*t,4)}, v14 offset:{t*64}")
    for u in range(4): su(f"ds_read_b128 {V(TK+4*u,4)}, v12 offset:{u*512}")
    su("s_lshl_b32 s47, s45, 9")
    su(f"s_add_u32 s47, s47, {TBL}")
    su("v_add_u32 v12, s47, v13")
    su("s_lshl_b32 s47, s45, 6")
    su(f"s_add_u32 s47, s47, {TBL+384}")
    su("v_add_u32 v13, s47, v13")
    su("s_lshl_b32 s46, s41, 3")
    su("s_lshl_b32 s47, s44, 2")
    su("s_add_u32 s46, s46, s47")
    su(f"s_mul_i32 s48, s46, {OH_TILE}")
    su("s_mul_i32 s49, s42, 7168")
    su("s_add_u32 s48, s48, s49")
    su(f"s_add_u32 s48, s48, {hex(OH_F+32*1024)}")
    for u in range(1, 4): su(f"s_add_u32 s{48+u}, s48, {u*OH_TILE}")
    su("s_lshl_b32 s47, s45, 12")
    su("v_add_u32 v6, s47, v5")
    su("s_lshl_b32 s47, s45, 3")
    su("v_add_u32 v7, s47, v5")
    su("s_lshl_b32 s47, s44, 13")
    su("s_lshl_b32 s52, s45, 10")
    su("s_add_u32 s47, s47, s52")
    su(f"s_add_u32 s47, s47, {QST}")
    su("v_add_u32 v10, s47, v5")
    su(f"v_mov_b32 v8, {f32(kappa)}")
    su(f"v_mov_b32 v9, {f32(kappa)}")
    su("v_mov_b32 v11, 1")
    st = [i.text for i in su.ins]
    qv = ["s_waitcnt lgkmcnt(0)"]
    for u in range(4):
        for t in range(2):
            for r in range(4): qv += [f"v_mul_f32 v{acc(u,t)+r}, v{QP+2*u}, v{acc(u,t)+r}", f"v_fmac_f32 v{acc(u,t)+r}, v{QP+2*u+1}, v{QC+4*t+r}"]
    ex = [(i // 3, x) for i, x in enumerate(st)] + [(17 + i // 2, x) for i, x in enumerate(qv[:39])]
    for x in phaseB(last=True, extra=ex): e(x)
    stamp(e, 2)
    e.label("LG_epi")
    if PRIO_GELU: e(f"s_setprio {PRIO_GELU}")
    T = XB + 16; TB = WS_; PB_ = [WS_ + 16, RAW]
    def prm(grp, buf):
        if grp < 3: return [f"ds_read_b128 {V(buf+4*k,4)}, v12 offset:{(2048 if k >= 2 else 128)+grp*128+(k&1)*64}" for k in range(4)]
        return [f"ds_read_b128 {V(buf,4)}, v13 offset:640", f"ds_read_b128 {V(buf+8,4)}, v13 offset:2048"]
    PB0 = WS_ + 8
    for x in prm(0, PB0): e(x)
    for x in qv[39:]: e(x)
    for u in range(4):
        o = T + u*4
        for t in range(2):
            for h in range(2): e(f"v_cvt_pk_bf16_f32 v{o+2*t+h}, v{acc(u,t)+2*h}, v{acc(u,t)+2*h+1}")
        e(f"ds_write_b128 v10, {V(o,4)} offset:{u*2048}")
    e(f"ds_write_b32 v254, v11 offset:{SY_Q}")
    e(f"s_load_dwordx2 s[4:5], s[0:1], {KA['wo']}")
    e(f"s_load_dwordx4 s[8:11], s[0:1], {KA['w2']}")
    e(f"s_load_dwordx2 s[32:33], s[0:1], {KA['x']}")
    e(f"s_load_dwordx2 s[34:35], s[0:1], {KA['out']}")
    bufs = [PB0, 232]
    TBS = [WS_, WS_ + 24]
    tcnt = [0]
    def gelu(items, out, buf):
        prs = [(acc(u,t)+2*h, buf+4*k+2*h, buf+8+4*k+2*h, u) for (u, t, k) in items for h in range(2)]
        n = len(prs)
        tb = TBS[tcnt[0] % 2]; tcnt[0] += 1
        for i, (a, cs, bb, u) in enumerate(prs): e(f"v_pk_fma_f32 {V(tb+2*i,2)}, {V(cs,2)}, {V(TK+4*u+2,2)}, {V(bb,2)}")
        for i, (a, cs, bb, u) in enumerate(prs): e(f"v_pk_fma_f32 {V(a,2)}, {V(a,2)}, {V(TK+4*u,2)}, {V(tb+2*i,2)}")
        for i, (a, cs, bb, u) in enumerate(prs): e(f"v_pk_fma_f32 {V(tb+2*i,2)}, {V(a,2)}, {V(a,2)}, v[8:9]")
        for i, (a, cs, bb, u) in enumerate(prs): e(f"v_pk_mul_f32 {V(tb+2*i,2)}, {V(tb+2*i,2)}, {V(a,2)} neg_lo:[0,1] neg_hi:[0,1]")
        for i in range(2*n): e(f"v_exp_f32 v{tb+i}, v{tb+i}")
        for i in range(n): e(f"v_pk_fma_f32 {V(tb+2*i,2)}, {V(tb+2*i,2)}, s[62:63], s[62:63]")
        for i in range(2*n): e(f"v_rcp_f32 v{tb+i}, v{tb+i}")
        for i, (a, cs, bb, u) in enumerate(prs): e(f"v_pk_mul_f32 {V(a,2)}, {V(a,2)}, {V(tb+2*i,2)}")
        for i, (a, cs, bb, u) in enumerate(prs): e(f"v_cvt_pk_bf16_f32 v{out+i}, v{a}, v{a+1}")
    ocnt = [0]
    def outreg():
        r = T + (ocnt[0] % 4) * 4; ocnt[0] += 1
        return r
    for grp in range(4):
        if AHOLD and grp == AHOLD:
            e("v_mov_b32 v14, 2")
            e(f"ds_write_b32 v254, v14 offset:{SY_Q}")
        e("s_waitcnt lgkmcnt(0)")
        if grp < 3:
            for x in prm(grp+1, bufs[(grp+1) & 1]): e(x)
            for u in range(4):
                o = outreg()
                gelu([(u, 2+2*grp, 0), (u, 3+2*grp, 1)], o, bufs[grp & 1])
                if HTHR >= 0: e(f"s_waitcnt vmcnt({HTHR})")
                e(f"buffer_store_dwordx4 {V(o,4)}, v6, s[24:27], s{48+u} offen offset:{grp*1024} sc1")
        else:
            for u in (0, 2):
                o = outreg()
                gelu([(u, 8, 0), (u+1, 8, 0)], o, bufs[grp & 1])
                e(f"buffer_store_dwordx2 {V(o,2)}, v7, s[24:27], s{48+u} offen offset:3072 sc1")
                e(f"buffer_store_dwordx2 {V(o+2,2)}, v7, s[24:27], s{49+u} offen offset:3072 sc1")
    stamp(e, 3)
    e("s_lshl_b32 s37, s41, 5")
    e("s_lshr_b32 s38, s42, 3")
    e("s_lshl_b32 s38, s38, 1")
    e("s_add_u32 s37, s37, s38")
    e("s_add_u32 s37, s37, s44")
    e("s_lshl_b32 s37, s37, 7")
    e("s_and_b32 s38, s42, 7")
    e("s_lshl_b32 s38, s38, 1")
    e("s_add_u32 s38, s38, s45")
    e("s_lshl_b32 s38, s38, 2")
    e("s_add_u32 s37, s37, s38")
    e(f"s_add_u32 s37, s37, {hex(F_HF)}")
    if WIDE:
        e("s_lshl_b32 s37, s41, 2")
        e("s_lshr_b32 s39, s42, 3")
        e("s_lshl_b32 s39, s39, 1")
        e("s_add_u32 s37, s37, s39")
        e("s_add_u32 s37, s37, s44")
        e("s_lshl_b32 s37, s37, 11")
        e("s_lshl_b32 s38, s38, 5")
        e("s_add_u32 s37, s37, s38")
        e(f"s_add_u32 s37, s37, {hex(F_HFW)}")

    def acc2(u, t): return ACC + (u*8+t)*4
    XR = 80
    def XF2(sg, kb, u): return XR + ((sg*4+kb)*2+u)*4
    WB = 144
    def WF2(f, t): return WB + f*32 + t*4
    TG = 208; EP = 240; EPR = 241
    p = e
    if GMAP == 1:
        p("s_and_b32 s41, s2, 7")
        p("s_lshl_b32 s41, s41, 1")
        p("s_bfe_u32 s43, s2, 0x10003")
        p("s_add_u32 s41, s41, s43")
        p("s_bfe_u32 s44, s2, 0x10004")
    else:
        p("s_and_b32 s41, s2, 3")
        p("s_lshl_b32 s41, s41, 2")
        p("s_bfe_u32 s43, s2, 0x20003")
        p("s_add_u32 s41, s41, s43")
        p("s_bfe_u32 s44, s2, 0x10002")
    p("s_lshr_b32 s42, s2, 5")
    p("v_and_b32 v13, 3, v1")
    p("v_lshlrev_b32 v13, 4, v13")
    p("s_lshl_b32 s47, s44, 1")
    p("v_xor_b32 v14, s47, v4")
    p("v_lshl_add_u32 v13, v14, 6, v13")
    p("v_bfe_u32 v14, v1, 2, 2")
    p("v_lshl_add_u32 v8, v14, 11, v13")
    p("s_lshl_b32 s47, s40, 16")
    p("v_add_u32 v8, s47, v8")
    p("v_xor_b32 v9, 32, v8")
    p("s_lshl_b32 s52, s40, 13")
    p(f"s_add_u32 s52, s52, {WBASE}")
    p(f"s_mul_i32 s54, s44, {1792*2048}")
    p("s_lshl_b32 s48, s42, 8")
    p("s_add_u32 s54, s54, s48")
    p(f"s_mul_i32 s53, s44, {56*1024}")
    p("s_add_u32 s53, s53, 0x8000")
    p("s_mov_b32 s56, s52")
    p("s_movk_i32 s57, 0x2000")
    srd(p, 16, 8, 3584*1024*2)
    srd(p, 20, 6, 128*OH_TILE, OH_F)
    p("s_lshl_b32 s46, s41, 3")
    p("s_lshl_b32 s47, s40, 1")
    p("s_add_u32 s46, s46, s47")
    p(f"s_mul_i32 s47, s46, {OH_TILE}")
    p("v_add_u32 v6, s47, v5")
    p(f"v_add_u32 v7, {OH_TILE}, v6")
    p("s_and_b32 s5, s5, 0xffff")
    p("v_lshlrev_b32 v12, 9, v4")
    p("v_add_u32 v12, v12, v15")
    p(f"v_add_u32 v12, {WBASE}, v12")
    p("v_xor_b32 v13, 32, v12")
    p("v_mov_b32 v242, v15")
    p("s_lshl_b32 s45, s44, 7")
    p("s_add_u32 s45, s45, s48")
    p("s_lshl_b32 s62, s40, 17")
    p("v_lshrrev_b32 v10, 5, v1")
    p("v_lshlrev_b32 v243, 1, v10")
    p("v_and_b32 v14, 3, v1")
    p("v_xor_b32 v243, v243, v14")
    p("v_lshlrev_b32 v243, 4, v243")
    p("v_bfe_u32 v14, v1, 4, 1")
    p("v_lshl_add_u32 v243, v14, 6, v243")
    p("v_bfe_u32 v14, v1, 2, 2")
    p("v_lshl_add_u32 v10, v10, 2, v14")
    p("v_lshl_add_u32 v10, v10, 11, v243")
    p("v_add_u32 v10, s45, v10")
    RRX = TG; RRB = TG + 16
    srd(p, 64, 32, 2048*1024*2)
    p("s_mov_b32 s28, s34")
    p("s_mov_b32 s29, s35")
    srd(p, 32, 10, 2048)
    p("v_and_b32 v15, 7, v1")
    p("v_lshlrev_b32 v15, 4, v15")
    p("v_lshrrev_b32 v14, 3, v1")
    p("v_lshl_add_u32 v14, v14, 11, v15")
    p("s_lshl_b32 s31, s46, 15")
    p("s_add_u32 s31, s31, s45")
    for i in range(32): p(f"v_mov_b64 {V(ACC+2*i,2)}, 0")
    p(f"v_mov_b32 v{EP}, 1")
    p("v_mov_b32 v244, 0")
    p(f"v_lshlrev_b32 v245, {7 if WIDE else 2}, v3")
    p("s_lshl_b32 s36, s41, 5")
    p("s_add_u32 s36, s36, s40")
    p("s_lshl_b32 s36, s36, 7")
    p(f"s_add_u32 s36, s36, {hex(F_OF)}")
    if WIDE:
        p("s_lshl_b32 s36, s41, 2")
        p("s_add_u32 s36, s36, s40")
        p("s_lshl_b32 s36, s36, 11")
        p(f"s_add_u32 s36, s36, {hex(F_OFW)}")
    p("s_lshl_b32 s38, s41, 5")
    p("s_lshl_b32 s39, s44, 1")
    p("s_add_u32 s38, s38, s39")
    p("s_lshr_b32 s39, s40, 1")
    p("s_add_u32 s38, s38, s39")
    p("s_lshl_b32 s38, s38, 7")
    p(f"s_add_u32 s38, s38, {hex(F_HF)}")
    if WIDE:
        p("s_lshl_b32 s38, s41, 2")
        p("s_lshl_b32 s39, s44, 1")
        p("s_add_u32 s38, s38, s39")
        p("s_lshr_b32 s39, s40, 1")
        p("s_add_u32 s38, s38, s39")
        p("s_lshl_b32 s38, s38, 11")
        p(f"s_add_u32 s38, s38, {hex(F_HFW)}")
    p("s_waitcnt vmcnt(0)")
    p("s_mov_b64 exec, 1")
    p("buffer_store_dword v11, v244, s[24:27], s37 offen sc1")
    p("s_mov_b64 exec, -1")
    stamp(p, 4)
    def wdma(q): return [f"s_add_u32 m0, s56, {q*1024}", ("s_mov_b32 s55, s54" if q == 0 else "s_add_u32 s55, s55, s57"), f"buffer_load_dwordx4 v{8+(q&1)}, s[16:19], s55 offen lds"]
    def xld(sg, kb): return [f"buffer_load_dwordx4 {V(XF2(sg,kb,u),4)}, v{6+u}, s[20:23], s53 offen offset:{kb*1024} sc1" for u in range(2)]
    lds_wait(p, "LG_w1", "v255", SY_EA, f"v{EPR}", "1")
    for n in range(2):
        for q in range(8):
            if n < AW2: continue
            for x in wdma(q): p(x)
        p("s_add_u32 s54, s54, 0x40000")
        p(f"s_add_u32 s56, s56, {WSEG}")
    gpoll(p, "LG_p1", "buffer_load_dword v246, v245, s[24:27], s38 offen sc1", ["v246"], "1")
    p(f"ds_write_b32 v254, v{EP} offset:{SY_EG}")
    for n in range(2):
        for kb in range(4):
            for x in xld(n, kb): p(x)
        p("s_add_u32 s53, s53, 0x1000")
    lds_wait(p, "LG_w2", "v255", SY_EG, f"v{EPR}", "1")
    def wreads(f, kb): return [f"ds_read_b64_tr_b16 {V(WF2(f,t)+rho*2,2)}, v{12+(t&1)} offset:{kb*8192+rho*4096+(t>>1)*256}" for t in range(8) for rho in range(2)]
    def mf2(f, sg, kb): return [M16(V(acc2(u,t),4), V(WF2(f,t),4), V(XF2(sg,kb,u),4)) for t in range(8) for u in range(2)]
    for x in wreads(0, 0): p(x)
    p("s_mov_b32 s58, 0")
    p("s_mov_b32 s59, 3")
    p("s_mov_b32 s63, 0")
    p("s_waitcnt vmcnt(0)")
    p("s_setprio 0")
    stamp(p, 5)
    mid = fix(p.ins, pre=body)
    sgc = [0]
    def seg_early(): return ["s_add_u32 s54, s54, 0x40000", "s_add_u32 s56, s52, s63", f"s_add_u32 s63, s63, {WSEG}", f"s_cmp_eq_u32 s63, {3*WSEG}", "s_cselect_b32 s63, 0, s63"]
    def seg_setup(q0):
        q0("s_add_u32 s53, s53, 0x1000")
        sgc[0] += 1
        q0("s_add_u32 s59, s59, 1")
        q0("s_cmp_ge_u32 s59, 15")
        q0(f"s_cbranch_scc1 LG_so{sgc[0]}")
        q0(f"LG_sg{sgc[0]}:")
        q = ool
        q(f"LG_so{sgc[0]}:")
        q("s_mov_b32 s16, s4")
        q("s_mov_b32 s17, s5")
        q("s_mov_b32 s18, 0x200000")
        q("s_mov_b32 s54, s62")
        q("s_add_u32 s62, s62, 0x80000")
        q("s_movk_i32 s57, 0x4000")
        q("s_mov_b32 s22, 0")
        q("s_setprio 2")
        q("v_mov_b32 v8, v10")
        q("v_mov_b32 v9, v10")
        q("s_setprio 0")
        if EARLYO == 1: q("buffer_load_dword v246, v245, s[24:27], s36 offen sc1")
        q("s_cmp_ge_u32 s59, 16")
        q(f"s_cbranch_scc1 LG_sg{sgc[0]}")
        for k in range(4):
            q(f"s_add_u32 s55, s31, {k*16384}")
            q(f"buffer_load_dwordx4 {V(RRX+4*k,4)}, v14, s[64:67], s55 offen")
        q(f"buffer_load_dwordx4 {V(RRB,4)}, v15, s[32:35], s45 offen")
        q("s_lshl_b32 s60, s40, 13")
        q(f"s_add_u32 s60, s60, {SPARE}")
        q("s_add_u32 s55, s54, 0x180000")
        for k in range(8):
            if k == 4:
                q("s_cmp_eq_u32 s40, 3")
                q(f"s_cbranch_scc1 LG_sg{sgc[0]}")
            q(f"s_add_u32 m0, s60, {k*1024}")
            q("s_nop 0")
            q("buffer_load_dwordx4 v10, s[16:19], s55 offen lds")
            q("s_add_u32 s55, s55, 0x4000")
        q(f"s_branch LG_sg{sgc[0]}")
    b = Prog()
    b.label("LG_l2")
    for sg in range(2):
        for kb in range(4):
            f = kb & 1
            if kb < 3:
                b("s_waitcnt vmcnt(28) lgkmcnt(0)")
                fill = [(i // 2, x) for i, x in enumerate(wreads(f^1, kb+1))]
                wpos = (8, 10)
            else:
                b("s_waitcnt vmcnt(14) lgkmcnt(0)")
                b(f"ds_write_b32 v254, v{EP} offset:{SY_EG}")
                fill = [(2, f"ds_read_b32 v{EPR}, v255 offset:{SY_EG}"),
                        (6, "s_waitcnt lgkmcnt(0)"), (6, "s_setprio 2"), (6, f"v_cmp_gt_u32 vcc, v{EP}, v{EPR}"), (6, "s_setprio 0"),
                        (7, f"s_cbranch_vccnz LG_sp{sg}"), (7, f"LG_spr{sg}:")]
                fill += [(7 + i // 2, x) for i, x in enumerate(wreads(f^1, 0))]
                wpos = (0, 3)
                ool.label(f"LG_sp{sg}")
                ool("s_setprio 2")
                lds_wait(ool, f"LG_spw{sg}", "v255", SY_EG, f"v{EPR}", f"v{EP}")
                ool("s_setprio 0")
                ool(f"s_branch LG_spr{sg}")
            for q, ps in zip((2*kb, 2*kb+1), wpos):
                wd = wdma(q)
                fill += [(ps, wd[0]), (ps, wd[1]), (ps+1, wd[2])]
            if kb == 0 and GBOOST: fill += [(-1, "s_setprio 2"), (GBOOST-1, "s_setprio 0")]
            if kb == 2:
                fill += [(12, f"s_add_u32 s60, s58, {WSEG}"), (12, f"s_cmp_eq_u32 s60, {3*WSEG}"), (12, "s_cselect_b32 s60, 0, s60"),
                         (13, "s_sub_u32 s61, s60, s58"), (13, "s_mov_b32 s58, s60"),
                         (14, "s_setprio 2"), (14, "v_add_u32 v12, s61, v12"), (14, "v_add_u32 v13, s61, v13"), (14, f"v_add_u32 v{EP}, 1, v{EP}"), (14, "s_setprio 0")]
            if kb == 3:
                se = seg_early()
                fill += [(5, se[0]), (5, se[1]), (15, se[2]), (15, se[3]), (15, se[4])]
            fill += [(15, x) for x in xld(sg, kb)]
            for x in interleave(mf2(f, sg, kb), fill): b(x)
        seg_setup(b)
    b("s_cmp_lt_u32 s59, 17")
    b("s_cbranch_scc1 LG_l2")
    if os.environ.get("GDROP"):
        k_ = [0]
        def keep(i):
            if i.text.startswith("ds_read_b64_tr"):
                k_[0] += 1
                return k_[0] % 2 == 0
            return True
        b.ins = [i for i in b.ins if keep(i)]
    rep = []
    body2 = fix(b.ins, pre=mid, report=rep)
    if rep: print("gemm2 loop nops:", len(rep), rep[:5])
    assert not check_loop(body2)
    e = Prog()
    stamp(e, 6)
    e.label("LG_tail")
    if EARLYO == 2: e("buffer_load_dword v246, v245, s[24:27], s36 offen sc1")
    if AQ2:
        e("s_lshl_b32 s55, s40, 14")
        e("s_add_u32 s55, s55, 0x1f0000")
        e("s_lshl_b32 s56, s40, 10")
        e(f"s_add_u32 m0, s56, {WBASE+WSEG}")
        e("s_nop 0")
        e("buffer_load_dwordx4 v10, s[16:19], s55 offen lds")
    else:
        for q in range(8):
            for x in wdma(q): e(x)
    e("s_lshl_b32 s47, s41, 3")
    e("s_add_u32 s47, s47, s42")
    e("s_lshl_b32 s47, s47, 1")
    e("s_add_u32 s47, s47, s44")
    e("s_xor_b32 s49, s47, 1")
    e("s_lshl_b32 s50, s47, 2")
    e("s_add_u32 s50, s50, s40")
    e("s_lshl_b32 s50, s50, 12")
    e(f"s_add_u32 s50, s50, {hex(PART)}")
    e("s_waitcnt lgkmcnt(0)")
    for u in range(2):
        for tp in range(2):
            o = WB + (u*2+tp)*4
            for h in range(2):
                t = 4 + 2*tp + h
                e(f"v_cvt_pk_bf16_f32 v{o+2*h}, v{acc2(u,t)}, v{acc2(u,t)+1}")
                e(f"v_cvt_pk_bf16_f32 v{o+2*h+1}, v{acc2(u,t)+2}, v{acc2(u,t)+3}")
    for k in range(4): e(f"buffer_store_dwordx4 {V(WB+4*k,4)}, v5, s[24:27], s50 offen offset:{k*1024} sc1")
    e("s_lshl_b32 s47, s47, 7")
    e("s_lshl_b32 s55, s41, 9")
    e("s_add_u32 s55, s55, s40")
    e("s_lshl_b32 s55, s55, 2")
    e("s_add_u32 s47, s47, s55")
    e(f"s_add_u32 s47, s47, {hex(F_PF)}")
    e("s_lshl_b32 s53, s49, 7")
    e("s_add_u32 s53, s53, s55")
    e(f"s_add_u32 s53, s53, {hex(F_PF)}")
    e("s_lshl_b32 s50, s49, 2")
    e("s_add_u32 s50, s50, s40")
    e("s_lshl_b32 s50, s50, 12")
    e(f"s_add_u32 s50, s50, {hex(PART)}")
    QB = [WBASE + 2*WSEG, WBASE, 0 if AQ2 else WBASE + WSEG, SPARE]
    e(f"v_add_u32 v12, {QB[0]}, v242")
    e("v_xor_b32 v13, 32, v12")
    def SUMR(i): return (acc2(0, 4) + i) if i < 16 else (WB + 48 + i - 16)
    PRW = acc2(1, 4); TT = TG + 20
    for i in range(4):
        e(f"v_lshlrev_b32 v{TT+2*i}, 16, v{RRB+i}")
        e(f"v_and_b32 v{TT+2*i+1}, 0xffff0000, v{RRB+i}")
    for i in range(16):
        e(f"v_lshlrev_b32 v{SUMR(2*i)}, 16, v{RRX+i}")
        e(f"v_and_b32 v{SUMR(2*i)+1}, 0xffff0000, v{RRX+i}")
        e(f"v_pk_add_f32 {V(SUMR(2*i),2)}, {V(SUMR(2*i),2)}, {V(TT+2*(i&3),2)}")
    e(f"s_mov_b32 s22, {128*OH_TILE}")
    e("s_mov_b32 s37, s36")
    e("s_mov_b32 s36, s53")
    srd(e, 64, 28, 2048*1024*2)
    e(f"v_add_u32 v247, {WBASE+WSEG if AQ2 else 0}, v242")
    e("v_xor_b32 v248, 32, v247")
    e(f"v_add_u32 v{EP}, 1, v{EP}")
    e("v_mov_b32 v249, 34")
    LAB = 8
    def XF3(b_, u): return XR + ((b_ % LAB)*2+u)*4
    def xop(b_):
        L_ = []
        if (b_ & 3) == 0: L_.append(f"s_mov_b32 s53, {(b_>>2)*4096}")
        L_ += [f"buffer_load_dwordx4 {V(XF3(b_,u),4)}, v{6+u}, s[20:23], s53 offen offset:{(b_&3)*1024} sc1" for u in range(2)]
        return L_
    if EARLYO:
        e("s_waitcnt vmcnt(8)")
        e("v_cmp_ne_u32 vcc, 1, v246")
        e("s_mov_b32 s59, 0")
        e("s_nop 3")
        e("s_cbranch_vccnz LG_ne")
        e("s_mov_b32 s59, 1")
        for b_ in range(LAB-1):
            for x in xop(b_): e(x)
        e.label("LG_ne")
    e("s_waitcnt vmcnt(0)")
    e("s_mov_b64 exec, 1")
    e("buffer_store_dword v11, v244, s[24:27], s47 offen sc1")
    e("s_mov_b64 exec, -1")
    e(f"ds_write_b32 v254, v{EP} offset:{SY_EG}")
    def WF3(f, t): return WB + f*16 + t*4
    def wr3(b_):
        if b_ == 31: return [f"ds_read_b64_tr_b16 {V(WF3(b_%3,t)+rho*2,2)}, v{247+(t&1)} offset:{rho*2048+(t>>1)*256}" for t in range(4) for rho in range(2)]
        return [f"ds_read_b64_tr_b16 {V(WF3(b_%3,t)+rho*2,2)}, v{12+(t&1)} offset:{(b_&7)*4096+rho*2048+(t>>1)*256}" for t in range(4) for rho in range(2)]
    for x in wr3(0) + wr3(1): e(x)
    if EARLYO:
        e("s_cmp_eq_u32 s59, 1")
        e("s_cbranch_scc1 LG_go7")
    if TGATE: lds_wait(e, "LG_w3", "v255", SY_EA, f"v{EPR}", "v249")
    stamp(e, 7)
    gpoll(e, "LG_p2", "buffer_load_dword v246, v245, s[24:27], s37 offen sc1", ["v246"], "1", sleep=PSLEEP2)
    for b_ in range(LAB-1):
        for x in xop(b_): e(x)
    e.label("LG_go7")
    for x in ["v_xor_b32 v8, v3, v4", "v_lshlrev_b32 v8, 4, v8", "v_lshl_add_u32 v8, v3, 8, v8", "s_lshl_b32 s56, s40, 12", f"s_add_u32 s56, s56, {QB[0]}",
              "v_add_u32 v8, s56, v8", "v_xor_b32 v9, 64, v8", "v_mov_b32 v250, v10", "v_xor_b32 v10, 0x80, v8", "v_xor_b32 v11, 0xc0, v8"]: e(x)
    NBK = 32; PB = 14; PA = (26, 27)
    def padd(u, i):
        tt = TT + 2*(i & 3)
        return [f"v_lshlrev_b32 v{tt}, 16, v{PRW+u*8+i}", f"v_and_b32 v{tt+1}, 0xffff0000, v{PRW+u*8+i}",
                f"v_add_f32 v{acc2(u,0)+2*i}, v{acc2(u,0)+2*i}, v{tt}", f"v_add_f32 v{acc2(u,0)+2*i+1}, v{acc2(u,0)+2*i+1}, v{tt+1}"]
    issued = [("x", b_) for b_ in range(LAB-1) for u in range(2)]
    for b_ in range(NBK):
        last = max(k for k, t in enumerate(issued) if t == ("x", b_))
        if b_ in PA: last = max(last, issued.index(("p", 3)))
        if b_ == PB: last = max(last, issued.index(("f",)))
        if b_ == 29 and not AQ2: last = max(last, issued.index(("w31",)))
        e(f"s_waitcnt vmcnt({len(issued)-1-last}) lgkmcnt({8 if b_ < NBK-1 else 0})")
        if b_ == 6: lds_wait(e, "LG_w4", "v255", SY_EG, f"v{EPR}", f"v{EP}")
        if b_ == PB:
            e("v_cmp_ne_u32 vcc, 1, v246")
            e("s_nop 4")
            e("s_cbranch_vccnz LG_pp")
            e.label("LG_ppr")
            ool.label("LG_pp")
            gpoll(ool, "LG_p3", "buffer_load_dword v246, v244, s[24:27], s36 offen sc1", ["v246"], "1")
            ool("s_branch LG_ppr")
        if b_ == 14 and AQ2: e("s_barrier")
        if b_ == 16 and not AQ2:
            e("s_barrier")
            e("s_lshl_b32 s55, s40, 14")
            e("s_add_u32 s55, s55, 0x1f0000")
            e("s_lshl_b32 m0, s40, 10")
            e("s_nop 0")
            e("buffer_load_dwordx4 v250, s[16:19], s55 offen lds")
            issued.append(("w31",))
        if b_ == 29 and not AQ2: e("s_barrier")
        if (b_ + 2) % 8 == 0 and b_ + 2 < NBK:
            d = QB[(b_+2)//8] - QB[(b_+2)//8 - 1]
            e(f"v_add_u32 v12, {d & 0xffffffff:#x}, v12")
            e(f"v_add_u32 v13, {d & 0xffffffff:#x}, v13")
        rd = wr3(b_+2) if b_ + 2 < NBK else []
        mf = [M16(V(acc2(u,t),4), V(WF3(b_%3,t),4), V(XF3(b_,u),4)) for t in range(4) for u in range(2)]
        for i, m in enumerate(mf):
            e(m)
            for x in rd[i:i+1]: e(x)
            nb_ = b_ + LAB - 1
            if nb_ < NBK:
                xo = xop(nb_)
                if i == 0: [e(x) for x in xo[:-2]]
                if i == 1: e(xo[-2]); issued.append(("x", nb_))
                if i == 4: e(xo[-1]); issued.append(("x", nb_))
            if i == 6 and b_ == 8:
                e("buffer_load_dword v246, v244, s[24:27], s36 offen sc1")
                issued.append(("f",))
            if i == 6 and PB <= b_ < PB + 4:
                k = b_ - PB
                e(f"buffer_load_dwordx4 {V(PRW+4*k,4)}, v5, s[24:27], s50 offen offset:{k*1024} sc1")
                issued.append(("p", k))
            if b_ in PA:
                m_ = (i + 5) % 8
                for x in padd(m_ & 1, 2*(m_ >> 1) + (b_ & 1)): e(x)
    e("v_lshrrev_b32 v6, 3, v1")
    e("v_and_b32 v7, 7, v1")
    e("v_lshlrev_b32 v7, 1, v7")
    e("v_xor_b32 v7, v7, v6")
    e("v_lshlrev_b32 v7, 4, v7")
    e("v_lshl_add_u32 v6, v6, 8, v7")
    e("v_add_u32 v6, s56, v6")
    e("v_xor_b32 v7, 16, v6")
    e("v_xor_b32 v12, 0x80, v6")
    e("v_xor_b32 v13, 0x90, v6")
    RB = XR
    ra = {(0,0): 6, (0,1): 7, (1,0): 12, (1,1): 13}
    for u in range(2):
        for t in range(4): e(f"ds_write_b128 v{8+t}, {V(acc2(u,t),4)}")
        for q in range(2):
            for h in range(2): e(f"ds_read_b128 {V(RB+(u*2+q)*8+h*4,4)}, v{ra[(q,h)]} offset:{q*2048}")
    wl = [10, 8, 2, 0]
    for q in range(4):
        e(f"s_waitcnt lgkmcnt({wl[q]})")
        for r in range(4): e(f"v_pk_add_f32 {V(RB+q*8+2*r,2)}, {V(RB+q*8+2*r,2)}, {V(SUMR(q*8+2*r),2)}")
        for r in range(4): e(f"v_cvt_pk_bf16_f32 v{WB+q*4+r}, v{RB+q*8+2*r}, v{RB+q*8+2*r+1}")
        e(f"s_add_u32 s55, s31, {q*16384}")
        e(f"buffer_store_dwordx4 {V(WB+q*4,4)}, v14, s[64:67], s55 offen {ST_OUT}")
    if LOOPST: e("v_mov_b32 v3, v2")
    stamp_flush(e, 2, 9)
    loopstamp_flush(e, "v3", 2)
    if os.environ.get("PROBE"):
        a_, b_, m_ = [int(x) for x in os.environ["PROBE"].split(",")]
        e("s_cmp_eq_u32 s2, 9")
        e("s_cbranch_scc0 LG_pend")
        e(f"s_sub_u32 s46, s{72+2*b_}, s{72+2*a_}")
        e(f"s_mul_i32 s46, s46, {m_}")
        e.label("LG_pl")
        e("s_memrealtime s[48:49]")
        e("s_waitcnt lgkmcnt(0)")
        e("s_sub_u32 s48, s48, s88")
        e("s_cmp_lt_u32 s48, s46")
        e("s_cbranch_scc1 LG_pl")
        e.label("LG_pend")
    e("s_endpgm")
    e.extend(ool)
    tail = fix(e.ins, pre=body2)
    return pre + [Ins(".p2align 6")] + body + mid + [Ins(".p2align 6")] + body2 + tail
```

```python
from common import *
from k0_ln import ln_body
import math

LA1 = int(os.environ.get('LA1', '4'))
PSLEEP = int(os.environ.get('PSLEEP', '4'))
APOS = eval(os.environ.get('APOS', '[0, 32, 64, 96, 128]'))
PRIO_A = int(os.environ.get('PRIO_A', '1'))
PRIO_GELU = int(os.environ.get('PRIO_GELU', '2'))
WOIT = int(os.environ.get('WOIT', '3'))
SPINMAX = int(os.environ.get('SPINMAX', '20000'))
PFX = int(os.environ.get('PFX', '0'))
HTHR = int(os.environ.get('HTHR', '2'))
PRIO_G1 = int(os.environ.get('PRIO_G1', '0'))
SPLIT = int(os.environ.get('SPLIT', '13'))
SMIT = int(os.environ.get('SMIT', '15'))
TGATE = int(os.environ.get('TGATE', '1'))
PSLEEP2 = int(os.environ.get('PSLEEP2', '8'))
GMAP = int(os.environ.get('GMAP', '0'))
TAFTER = int(os.environ.get('TAFTER', '0'))
EPF = int(os.environ.get('EPF', '0'))
CSPOS = int(os.environ.get('CSPOS', '1'))
CPS = int(os.environ.get('CPS', '9'))
APK = int(os.environ.get('APK', '0'))
AHOLD = int(os.environ.get('AHOLD', '0'))
SPL = (eval(os.environ.get('SPL', '[]')) + [SPLIT]*16)[:16]
STPOS = int(os.environ.get('STPOS', '1'))
AW2 = int(os.environ.get('AW2', '0'))
AQ2 = int(os.environ.get('AQ2', '1'))
PFW2A = int(os.environ.get('PFW2A', '0'))
STAG = int(os.environ.get('STAG', '0'))
STG = 53248; WOFF = 16384
LNS = 3*STG
SY = LNS + 512
SY_KVP, SY_Q, SY_OK, SY_EA, SY_EG = 0, 16, 32, 48, 64
QST = 143360; KVR = 135168
TBL = STG
F_OFW = FLG + 0x20000; F_HFW = FLG + 0x40000
WIDE = int(os.environ.get('WIDE', '0'))
WBASE = 61440; WSEG = 32768; SPARE = 32768
F_PF = FLG; F_OF = FLG + 16*128; F_HF = FLG + 20*128; F_KV = FLG + 24*128; F_SF = FLG + 26*128; F_CF = FLG + 28*128

def flat(L): return [y for x in L for y in (x if isinstance(x, list) else [x])]

def lds_wait(q, lbl, vaddr, off, vtmp, cmp_src):
    q("s_mov_b32 s3, 0")
    q(f"{lbl}:")
    q(f"ds_read_b32 {vtmp}, {vaddr} offset:{off}")
    q("s_add_u32 s3, s3, 1")
    q("s_waitcnt lgkmcnt(0)")
    q(f"v_cmp_gt_u32 vcc, {cmp_src}, {vtmp}")
    q("s_nop 4")
    q(f"s_cbranch_vccz {lbl}_ok")
    q("s_sleep 1")
    q(f"s_cmp_lt_u32 s3, {SPINMAX*8}")
    q(f"s_cbranch_scc1 {lbl}")
    q(f"{lbl}_ok:")

def gpoll(q, lbl, load, vregs, val, cnt="s58", sleep=None):
    q(f"s_mov_b32 {cnt}, 0")
    q(f"{lbl}:")
    q(load)
    q(f"s_add_u32 {cnt}, {cnt}, 1")
    q("s_waitcnt vmcnt(0)")
    for r in vregs[1:]: q(f"v_and_b32 {vregs[0]}, {vregs[0]}, {r}")
    q(f"v_cmp_ne_u32 vcc, {val}, {vregs[0]}")
    q("s_nop 4")
    q(f"s_cbranch_vccz {lbl}_ok")
    q(f"s_sleep {PSLEEP if sleep is None else sleep}")
    q(f"s_cmp_lt_u32 {cnt}, {SPINMAX}")
    q(f"s_cbranch_scc1 {lbl}")
    q(f"{lbl}_ok:")

def gen():
    name = NAME + "_kernel"
    lds = 163840
    p = Prog()
    p("s_cmp_ge_u32 s2, 256")
    p("s_cbranch_scc1 L_end")
    stamp(p, 0)
    p(f"s_load_dwordx4 s[64:67], s[0:1], {KA['x']}")
    p(f"s_load_dwordx4 s[8:11], s[0:1], {KA['w1']}")
    p(f"s_load_dwordx2 s[6:7], s[0:1], {KA['ws']}")
    p(f"s_load_dwordx4 s[32:35], s[0:1], {KA['wk']}")
    p(f"s_load_dwordx2 s[62:63], s[0:1], {KA['dbg']}")
    p("v_and_b32 v1, 63, v0")
    p("v_lshrrev_b32 v2, 6, v0")
    p("v_readfirstlane_b32 s40, v2")
    p("v_lshlrev_b32 v5, 4, v1")
    p("s_and_b32 s41, s2, 1")
    p("s_lshl_b32 s41, s41, 3")
    p("s_bfe_u32 s68, s2, 0x30003")
    p("s_add_u32 s41, s41, s68")
    p("s_bfe_u32 s42, s2, 0x20001")
    p("s_lshl_b32 s42, s42, 2")
    p("s_lshr_b32 s43, s2, 6")
    p("s_add_u32 s42, s42, s43")
    p("s_add_u32 s68, s68, s43")
    p("s_lshl_b32 s36, s41, 4")
    p("s_add_u32 s36, s36, s42")
    p("v_and_b32 v3, 15, v1")
    p("v_lshrrev_b32 v4, 4, v1")
    p("v_and_b32 v255, 3, v1")
    p("v_lshlrev_b32 v255, 2, v255")
    p(f"v_add_u32 v255, {SY}, v255")
    p("s_cmp_ge_u32 s40, 4")
    p("s_cbranch_scc1 L_G")
    head = fix(p.ins)

    p = Prog()
    sgelu = (2.0 * math.sqrt(2.0/math.pi) * math.log2(math.e) * 0.044715) ** (1.0/3.0)
    qs = math.log2(math.e) / math.sqrt(32.0)
    p("v_lshrrev_b32 v6, 3, v1")
    p("v_and_b32 v7, 7, v1")
    p("v_xor_b32 v7, v7, v6")
    p("v_lshlrev_b32 v7, 4, v7")
    p("v_lshl_add_u32 v6, v6, 11, v7")
    p("s_lshl_b32 s46, s41, 2")
    p("s_add_u32 s46, s46, s40")
    p("s_lshl_b32 s46, s46, 16")
    p("v_add_u32 v6, s46, v6")
    p("s_and_b32 s46, s41, 8")
    p("v_add_u32 v7, 0x4000, v6")
    p("v_add_u32 v14, 0x8000, v6")
    p("v_add_u32 v15, 0xc000, v6")
    p("v_lshrrev_b32 v8, 5, v1")
    p("v_lshlrev_b32 v8, 1, v8")
    p("v_and_b32 v9, 3, v1")
    p("v_xor_b32 v8, v8, v9")
    p("v_lshlrev_b32 v8, 4, v8")
    p("v_lshrrev_b32 v9, 2, v1")
    p("s_lshl_b32 s47, s40, 4")
    p("v_add_u32 v9, s47, v9")
    p("v_mul_u32_u24 v10, 7168, v9")
    p("s_mul_i32 s47, s42, 448")
    p("v_add3_u32 v10, v10, v8, s47")
    p("v_lshl_add_u32 v9, v9, 11, v8")
    p("s_lshl_b32 s47, s42, 7")
    p("v_add_u32 v9, s47, v9")
    p("s_lshl_b32 s51, s40, 12")
    p("s_lshl_b32 s52, s40, 10")
    p(f"s_add_u32 s52, s52, {WOFF}")
    def set_stage(n):
        slot = (n % 3) * STG
        return [f"s_add_u32 s69, {n}, s68", "s_and_b32 s69, s69, 3", f"s_cselect_b32 s69, 0, {LA1}", f"s_add_u32 s69, s69, {n}", "s_add_u32 s69, s69, s46", "s_and_b32 s69, s69, 15",
                "s_lshl_b32 s53, s69, 7", "s_lshl_b32 s54, s69, 17", f"s_mul_i32 s55, s69, {64*7168}", f"s_add_u32 s56, s51, {slot}", f"s_add_u32 s57, s52, {slot}"]
    slot_of = {"q0": 0, "q1": 4, 0: 1, 1: 2, 2: 3, 3: 8, 4: 5, 5: 6, 6: 7}
    OPS = [[f"s_add_u32 m0, s56, {q*1024}", f"buffer_load_dwordx4 v{(6,7,14,15)[q]}, s[12:15], s53 offen lds"] for q in range(4)]
    for a in range(2): OPS.append([f"s_add_u32 m0, s57, {slot_of['q%d'%a]*4096 - a*64}", f"buffer_load_dwordx4 v9, s[16:19], s54 offen offset:{a*64} lds"])
    for a in range(7): OPS.append([f"s_add_u32 m0, s57, {slot_of[a]*4096 - a*64}", f"buffer_load_dwordx4 v10, s[20:23], s55 offen offset:{a*64} lds"])
    issued = []
    def emit(x, tag=None):
        if isinstance(x, tuple):
            if x[0] == "raw":
                p(x[1]); return
            if x[0] == "wait":
                last = max(k for k, t in enumerate(issued) if t == x[1])
                p(f"s_waitcnt vmcnt({min(63, len(issued)-1-last)})")
                return
            x, tag = x
        p(x)
        if x.startswith("buffer_load"): issued.append(tag)
    def weave(ops, side):
        n = len(ops); k = 0
        for i, (g, tag) in enumerate(ops):
            for x in g: emit(x, tag)
            upto = (len(side) * (i + 1)) // n
            while k < upto:
                for x in side[k]: emit(x)
                k += 1
    for x in ["v_lshrrev_b32 v204, 5, v1", "v_and_b32 v205, 31, v1", "v_lshlrev_b32 v205, 4, v205", "v_lshl_add_u32 v205, v204, 11, v205",
              "s_lshl_b32 s37, s36, 2", "s_add_u32 s37, s37, s40", "s_lshl_b32 s50, s37, 6", f"s_add_u32 s50, s50, {hex(CS)}", "s_lshl_b32 s37, s37, 12", "v_lshlrev_b32 v206, 5, v204"]: p(x)
    SX = 232
    st_ld = [[(f"buffer_load_dwordx4 {V(SX+4*q,4)}, v205, s[12:15], s37 offen offset:{q*512}", "sx")] for q in range(4)]
    for x in set_stage(0): p(x)
    p("s_waitcnt lgkmcnt(0)")
    srd(p, 12, 64, 2048*1024*2)
    if STPOS == -1:
        for x in flat(st_ld): emit(x)
    for k, g in enumerate(OPS):
        if k == 4: srd(p, 16, 66, 1024*1024*2)
        if k == 6: srd(p, 20, 8, 1024*3584*2)
        for x in g: emit(x, ("st", 0))
    if STPOS == 0:
        for x in flat(st_ld): emit(x)
    srd(p, 24, 6, WS_SIZE)
    SX = 232; SF = 16; ST_ = 48; BR = 248; BF = 240
    CX = 128; CA = 176; SELC = 196
    KX = 16; KTM = 80; KW = 96; KA_ = 80; KT = 232; ONES = 188
    su = []
    def s_(x): su.append([x])
    for r in range(2): s_(f"v_mov_b64 {V(216+2*r,2)}, 0")
    for x in ["s_lshl_b32 s38, s41, 12", "s_lshl_b32 s39, s40, 10", "s_add_u32 s38, s38, s39", f"s_add_u32 s38, s38, {hex(FLG)}"]: s_(x)
    for x in ["v_lshlrev_b32 v226, 7, v1", "s_lshl_b32 s39, s41, 13", "s_and_b32 s47, s40, 1", "s_lshl_b32 s47, s47, 17", "s_add_u32 s39, s39, s47", f"s_add_u32 s39, s39, {hex(F_OFW)}"]: s_(x)
    su.append(["s_cmp_eq_u32 s42, 0", "s_cbranch_scc0 LA_nz", "buffer_store_dwordx4 v[216:219], v5, s[24:27], s38 offen sc1"] +
              (["s_cmp_lt_u32 s40, 2", "s_cbranch_scc0 LA_nz", "buffer_store_dword v216, v226, s[24:27], s39 offen sc1"] if WIDE else []) + ["LA_nz:"])
    for x in ["s_sub_u32 s43, 9, s68", "s_and_b32 s43, s43, 7", "v_lshrrev_b32 v207, 2, v1", "v_lshl_add_u32 v207, v207, 6, v8",
              f"s_add_u32 s47, s51, {WOFF}", "v_add_u32 v222, s47, v207", f"v_add_u32 v223, {WOFF+32768}, v207",
              "v_lshrrev_b32 v208, 1, v3", "v_and_b32 v209, 1, v3", "v_lshlrev_b32 v209, 4, v209", "v_mov_b32 v210, 0x3f80", "v_lshlrev_b32 v209, v209, v210"]: s_(x)
    for r in range(4): su.append([f"v_cmp_eq_u32 vcc, {r}, v208", "s_nop 1", f"v_cndmask_b32 v{SELC+r}, 0, v209, vcc"])
    s_("s_and_b32 s44, s42, 3")
    su.append(["s_cmp_ge_u32 s44, 2", "s_cselect_b32 s32, s34, s32", "s_cselect_b32 s33, s35, s33", "s_cselect_b32 s47, 4, 5", "s_cselect_b32 s48, 5, 4"])
    for x in ["s_and_b32 s33, s33, 0xffff", "s_mov_b32 s34, 0x10000", "s_mov_b32 s35, 0x20000",
              "v_and_b32 v11, 1, v1", "v_lshlrev_b32 v11, s47, v11", "v_bfe_u32 v12, v1, 1, 3", "v_lshl_add_u32 v11, v12, 6, v11", "v_lshl_add_u32 v11, v4, 11, v11",
              "s_and_b32 s47, s44, 1", "s_lshl_b32 s47, s47, s48", "s_lshl_b32 s60, s40, 14", "s_add_u32 s60, s60, s47",
              "s_lshl_b32 s45, s41, 2", "s_lshr_b32 s47, s42, 2", "s_add_u32 s45, s45, s47", "s_lshl_b32 s61, s45, 16", "s_lshl_b32 s47, s40, 9", "s_add_u32 s61, s61, s47",
              "v_bfe_u32 v211, v1, 2, 2", "v_lshlrev_b32 v211, 13, v211", "v_and_b32 v212, 3, v1", "v_lshl_add_u32 v211, v212, 4, v211", "v_lshl_add_u32 v211, v4, 6, v211",
              "s_lshl_b32 s59, s40, 10", f"s_add_u32 s59, s59, {LNS}",
              "v_lshlrev_b32 v12, 8, v4", "v_bfe_u32 v13, v1, 2, 2", "v_lshl_add_u32 v12, v13, 5, v12", "v_and_b32 v13, 3, v1", "v_lshl_add_u32 v12, v13, 3, v12", "v_add_u32 v12, s59, v12"]: s_(x)
    for r in range(4): s_(f"v_mov_b32 v{ONES+r}, 0x3f803f80")
    for x in set_stage(1): p(x)
    weave([(g, ("st", 1)) for g in OPS], su)
    for x in set_stage(2): p(x)
    emit(("wait", ("st", 0)))
    p("s_barrier")
    stamp(p, 7)
    def kv_issue(k): return ["s_mov_b32 m0, s59", f"s_add_u32 s47, s60, {(k>>2)*8192+(k&3)*512}", ("buffer_load_dwordx4 v11, s[32:35], s47 offen lds", ("kv", k))]
    def kv_use(k): return [("wait", ("kv", k)), f"ds_read_b64_tr_b16 {V(KW+4*k,2)}, v12", f"ds_read_b64_tr_b16 {V(KW+4*k+2,2)}, v12 offset:128", "s_waitcnt lgkmcnt(0)"]
    def kx_ld(bt):
        return [[f"s_add_u32 s47, s61, {(bt&1)*32768+q*2048}", (f"buffer_load_dwordx4 {V(KX+bt*16+4*q,4)}, v211, s[12:15], s47 offen offset:{(bt>>1)*256}", ("kx", bt))] for q in range(4)]
    def kx_tr(bt):
        R = lambda q, d: KX + bt*16 + 4*q + d
        Tm = lambda q, d: KTM + 4*q + d
        out = [[("wait", ("kx", bt))]]
        for (src, dst, x, qp, m) in ((R, Tm, 1, "[1,0,3,2]", "0xaaaaaaaa"), (Tm, R, 2, "[2,3,0,1]", "0xcccccccc")):
            hi = [q for q in range(4) if q & x]; lo = [q for q in range(4) if not q & x]
            a_ = [f"s_mov_b32 vcc_lo, {m}", f"s_mov_b32 vcc_hi, {m}"]
            a_ += [f"v_cndmask_b32_dpp v{dst(q,d)}, v{src(q^x,d)}, v{src(q,d)}, vcc quad_perm:{qp} row_mask:0xf bank_mask:0xf" for q in hi for d in range(4)]
            b_ = ["s_not_b64 vcc, vcc"]
            b_ += [f"v_cndmask_b32_dpp v{dst(q,d)}, v{src(q^x,d)}, v{src(q,d)}, vcc quad_perm:{qp} row_mask:0xf bank_mask:0xf" for q in lo for d in range(4)]
            out += [a_, b_]
        return out
    kv_mm = []
    for k in range(8):
        z = "0" if k == 0 else None
        kv_mm.append([M16(V(KA_+4*u,4), V(KW+4*k,4), V(KX+((k>>2)*2+u)*16+4*(k&3),4), z) for u in range(2)] + [M16(V(KA_+8,4), V(KW+4*k,4), V(ONES,4), z)])
    def red32(v, t): return [[f"v_add_f32_dpp v{v}, v{v}, v{v} row_ror:{r} row_mask:0xf bank_mask:0xf"] for r in (8, 4, 2, 1)] + \
                            [[f"v_mov_b32 v{t}, v{v}"], [f"v_permlane16_swap_b32 v{v}, v{t}"], [f"v_add_f32 v{v}, v{v}, v{t}"], [f"v_mul_f32 v{v}, {f32(1.0/1024)}, v{v}"]]
    A0 = ST_
    st1 = [[("wait", "sx")]]
    for i in range(16): st1 += [[f"v_lshlrev_b32 v{SF+2*i}, 16, v{SX+i}"], [f"v_and_b32 v{SF+2*i+1}, 0xffff0000, v{SX+i}"]]
    st1 += [[f"v_add_f32 v{A0+c}, v{SF+c}, v{SF+4+c}"] for c in range(4)] + [[f"v_add_f32 v{A0+i%4}, v{A0+i%4}, v{SF+i}"] for i in range(8, 32)]
    st1 += [[f"v_add_f32 v{A0}, v{A0}, v{A0+1}"], [f"v_add_f32 v{A0+2}, v{A0+2}, v{A0+3}"], [f"v_add_f32 v{A0+8}, v{A0}, v{A0+2}"]] + red32(A0+8, A0+1)
    st2 = [[f"v_sub_f32 v{SF+i}, v{SF+i}, v{A0+8}"] for i in range(32)]
    st2 += [[f"v_mul_f32 v{A0+c}, v{SF+c}, v{SF+c}"] for c in range(4)] + [[f"v_fmac_f32 v{A0+i%4}, v{SF+i}, v{SF+i}"] for i in range(4, 32)]
    st2 += [[f"v_add_f32 v{A0}, v{A0}, v{A0+1}"], [f"v_add_f32 v{A0+2}, v{A0+2}, v{A0+3}"], [f"v_add_f32 v{A0+9}, v{A0}, v{A0+2}"]] + red32(A0+9, A0+1)
    st3 = [[x] for x in [f"v_add_f32 v{A0+10}, {f32(1e-5)}, v{A0+9}", f"v_rsq_f32 v{A0+10}, v{A0+10}", f"v_mul_f32 v{A0+11}, v{A0+10}, v{A0+10}", f"v_mul_f32 v{A0+11}, v{A0+11}, v{A0+9}",
           f"v_add_f32 v{A0+11}, {f32(1e-5)}, v{A0+11}", f"v_rsq_f32 v{A0+11}, v{A0+11}", f"v_mul_f32 v{A0+4}, {f32(qs)}, v{A0+10}", f"v_mul_f32 v{A0}, v{A0+10}, v{A0+11}",
           f"v_mul_f32 v{A0}, {f32(sgelu)}, v{A0}", f"v_mov_b32 v{A0+1}, v{A0}", f"v_mul_f32_e64 v{A0+2}, -v{A0}, v{A0+8}", f"v_mov_b32 v{A0+3}, v{A0+2}", f"v_mul_f32_e64 v{A0+5}, -v{A0+4}, v{A0+8}"]]
    st3.append(["s_mov_b32 exec_lo, 1", "s_mov_b32 exec_hi, 1", (f"buffer_store_dwordx4 {V(A0,4)}, v206, s[24:27], s50 offen sc1", "pub"),
                (f"buffer_store_dwordx2 {V(A0+4,2)}, v206, s[24:27], s50 offen offset:16 sc1", "pub"), "s_mov_b64 exec, -1"])
    ool = Prog()
    ool.label("LA_cs")
    ool("v_add_u32 v220, s58, v222")
    ool("v_add_u32 v221, s58, v223")
    for k in range(3):
        for q in range(4): ool(f"ds_read_b128 {V(CX+(k*4+q)*4,4)}, v{220 if k < 2 else 221} offset:{(k&1)*16384+q*1024}")
    ool("s_add_u32 s47, s43, s46")
    ool("s_lshl_b32 s48, s42, 4")
    ool("s_add_u32 s47, s47, s48")
    ool("s_lshl_b32 s47, s47, 11")
    ool("s_lshl_b32 s48, s40, 7")
    ool("s_add_u32 s48, s48, s47")
    ool("v_lshlrev_b32 v220, 5, v3")
    ool("v_lshl_add_u32 v220, v4, 4, v220")
    ool("s_waitcnt lgkmcnt(0)")
    for q in range(4):
        for k in range(3): ool(M16(V(CA+4*k,4), V(SELC,4), V(CX+(k*4+q)*4,4), "0" if q == 0 else None))
    for rr in (4, 8):
        for r in range(12): ool(f"v_add_f32_dpp v{CA+r}, v{CA+r}, v{CA+r} row_ror:{rr} row_mask:0xf bank_mask:0xf")
    ool("s_mov_b32 exec_lo, 0x000f000f")
    ool("s_mov_b32 exec_hi, 0")
    ool(f"buffer_store_dwordx4 {V(CA,4)}, v220, s[24:27], s48 offen sc1")
    ool(f"buffer_store_dwordx4 {V(CA+4,4)}, v220, s[24:27], s48 offen offset:512 sc1")
    ool(f"buffer_store_dwordx4 {V(CA+8,4)}, v220, s[24:27], s47 offen offset:1024 sc1")
    ool("s_mov_b64 exec, -1")
    ool("s_setpc_b64 s[62:63]")
    def cs_call(tau): return [f"s_cmp_eq_u32 s43, {tau}", f"s_cbranch_scc0 LA_cn{tau}", f"s_mov_b32 s58, {(tau%3)*STG}", "s_call_b64 s[62:63], LA_cs", f"LA_cn{tau}:"]
    def chk(name, load, regs, tag):
        c = [("wait", tag)] + [f"v_and_b32 {regs[0]}, {regs[0]}, {r}" for r in regs[1:]] + [f"v_cmp_ne_u32 vcc, 1, {regs[0]}", "s_nop 4", f"s_cbranch_vccnz {name}_s", f"{name}_r:"]
        ool.label(name + "_s")
        gpoll(ool, name, load, regs, "1", cnt="s39")
        ool(f"s_branch {name}_r")
        return [(load, tag)], c
    def step(s, side=(), pre_=(), tail=(), post=()):
        if s >= 0: p("s_barrier")
        for x in flat(list(pre_)): emit(x)
        ops = []
        if s >= 0: ops += [(g, ("st", s+2)) for g in OPS[SPL[s+2]:]]
        hd = [list(g) for g in OPS[:SPL[s+3]]]
        if s >= 0: hd[0] = set_stage(s+3) + hd[0]
        ops += [(g, ("st", s+3)) for g in hd]
        weave(ops, list(side))
        for x in tail: emit(x)
        emit(("wait", ("st", s+2)))
        for x in flat(list(post)): emit(x)
        p("s_waitcnt lgkmcnt(0)")
    def raw(prog): return [("raw", i.text) for i in prog.ins]
    p("s_mov_b32 s4, s62")
    p("s_mov_b32 s5, s63")
    fa = [[x] for x in ["s_mov_b32 s28, s4", "s_and_b32 s29, s5, 0xffff", "s_mov_b32 s30, 0x100", "s_mov_b32 s31, 0x20000", "v_mov_b32 v217, 1", "v_mov_b32 v219, 0", "v_lshlrev_b32 v216, 2, v3",
                        "v_lshlrev_b32 v224, 2, v1", "s_lshl_b32 s64, s41, 12", f"s_add_u32 s64, s64, {hex(F_SF)}", "s_lshl_b32 s65, s42, 12", f"s_add_u32 s65, s65, {hex(F_CF)}",
                        "s_lshl_b32 s66, s42, 2", "s_add_u32 s66, s66, s40", "s_lshl_b32 s66, s66, 2", "s_add_u32 s66, s66, s64",
                        "s_lshl_b32 s67, s41, 2", "s_add_u32 s67, s67, s40", "s_lshl_b32 s67, s67, 2", "s_add_u32 s67, s67, s65"]]
    l1, c1 = chk("LA_p1", "buffer_load_dword v218, v216, s[28:31], 0 offen sc1", ["v218"], "f1")
    l2, c2 = chk("LA_p2", "buffer_load_dword v218, v224, s[24:27], s64 offen sc1", ["v218"], "f2")
    l3, c3 = chk("LA_p4", "buffer_load_dword v218, v224, s[24:27], s65 offen sc1", ["v218"], "f3")
    def wflag(r): return ["s_mov_b64 exec, 1", f"buffer_store_dword v217, v219, s[24:27], {r} offen sc1", "s_mov_b64 exec, -1"]
    D0 = ["s_waitcnt vmcnt(0)"]
    def dr(name, par, body):
        if not STAG: return body if par == 0 else []
        return ["s_bitcmp1_b32 s40, 0", f"s_cbranch_scc{1-par} {name}"] + body + [f"{name}:"]
    def cp(t): return cs_call(t) if CSPOS == 0 else []
    def ct(t): return cs_call(t) if CSPOS == 1 else []
    step(-1, pre_=cp(0), tail=ct(0))
    step(0, (st_ld if STPOS == 1 else []) + fa, pre_=["s_cmp_eq_u32 s42, 0", "s_cbranch_scc0 LA_nz2", "s_waitcnt vmcnt(0)", "LA_nz2:"] + cp(1) + kv_issue(0), tail=ct(1))
    step(1, st1, pre_=kv_use(0) + cp(2) + kv_issue(1), tail=ct(2))
    step(2, kx_ld(3) + st2, pre_=kv_use(1) + cp(3) + kv_issue(2), tail=ct(3))
    step(3, st3 + kx_tr(3), pre_=kv_use(2) + cp(4) + kv_issue(3) + l1, tail=ct(4))
    step(4, kx_ld(0), pre_=c1 + dr('LA_d0', 0, D0 + wflag('s66')) + kv_use(3) + cp(5) + kv_issue(4), tail=ct(5))
    step(5, kx_ld(1) + kx_tr(0), pre_=dr('LA_d1', 1, D0 + wflag('s66')) + kv_use(4) + cp(6) + kv_issue(5), tail=ct(6))
    step(6, kx_ld(2) + kx_tr(1), pre_=kv_use(5) + cp(7) + kv_issue(6), tail=ct(7))
    step(7, kx_tr(2), pre_=dr('LA_d2', 0, D0 + wflag('s67')) + kv_use(6) + kv_issue(7) + l2)
    g_ld = [[x] for x in ["v_lshlrev_b32 v214, 5, v3", "s_lshl_b32 s47, s45, 10", f"s_add_u32 s47, s47, {hex(CS)}"]]
    g_ld += [[(f"buffer_load_dwordx2 {V(KT+2*u,2)}, v214, s[24:27], s47 offen offset:{u*512+16} sc1", "ks")] for u in range(2)]
    g2 = [[x] for x in ["s_cmp_lt_u32 s40, 2", "s_cselect_b32 s47, 31, 7", "v_and_b32 v207, s47, v1", "v_lshlrev_b32 v207, 4, v207", "v_lshl_add_u32 v208, v204, 11, v207",
                        "s_lshl_b32 s58, s42, 15", "s_min_u32 s48, s40, 2", "s_lshl_b32 s48, s48, 9", "s_add_u32 s58, s58, s48"]]
    g2 += [[(f"buffer_load_dwordx4 {V(CX+4*q,4)}, v208, s[24:27], s58 offen sc1", "cg"), "s_add_u32 s58, s58, 4096"] for q in range(8)]
    cor = [[("wait", "ks")]]
    for u in range(2):
        for r in range(4): cor += [[f"v_mul_f32 v{KA_+4*u+r}, v{KT+2*u}, v{KA_+4*u+r}"], [f"v_fmac_f32 v{KA_+4*u+r}, v{KT+2*u+1}, v{KA_+8+r}"]]
    cor += [[x] for x in ["s_and_b32 s47, s40, 1", "s_lshl_b32 s47, s47, 11", f"s_add_u32 s47, s47, {LNS}", "v_add_u32 v13, s47, v5"]]
    cor.append(["s_cmp_lt_u32 s40, 2", "s_cbranch_scc1 LA_r1", f"ds_write_b128 v13, {V(KA_,4)}", f"ds_write_b128 v13, {V(KA_+4,4)} offset:1024", "LA_r1:"])
    gs = [[("wait", "cg")]]
    for q in range(1, 8): gs += [[f"v_add_f32 v{CX+r}, v{CX+r}, v{CX+4*q+r}"] for r in range(4)]
    for r in range(4): gs += [[f"v_mov_b32 v{CX+4+r}, v{CX+r}"]]
    for r in range(4): gs += [[f"v_permlane32_swap_b32 v{CX+r}, v{CX+4+r}"]]
    for r in range(4): gs += [[f"v_add_f32 v{CX+r}, v{CX+r}, v{CX+4+r}"]]
    w2t = []
    if PFW2A:
        w2t = [f"s_load_dwordx2 s[8:9], s[0:1], {KA['w2']}", "s_waitcnt lgkmcnt(0)", "s_mov_b32 s32, s8", "s_and_b32 s33, s9, 0xffff", f"s_mov_b32 s34, {3584*1024*2}", "s_mov_b32 s35, 0x20000",
               "v_lshlrev_b32 v225, 7, v1", "s_lshl_b32 s47, s2, 2", "s_add_u32 s47, s47, s40", "s_lshl_b32 s47, s47, 13", ("buffer_load_dword v203, v225, s[32:35], s47 offen", "w2")]
    def w2s(k):
        if PFW2A != 1: return []
        return [f"s_cmp_eq_u32 s40, {k}", f"s_cbranch_scc0 LA_w2s{k}"] + [("raw", x if isinstance(x, str) else x[0]) for x in w2t] + [f"LA_w2s{k}:"]
    step(8, kv_mm, pre_=kv_use(7) + c2 + g_ld, tail=w2s(0))
    cpf = [code_srd(32, "LA_loop") + ["v_lshlrev_b32 v225, 7, v1", "s_lshl_b32 s47, s40, 13", ("buffer_load_dword v203, v225, s[32:35], s47 offen", "c")]] if PFX == 2 else []
    step(9, pre_=dr('LA_d3', 1, D0 + wflag('s67')) + cor, tail=(flat(cpf) if CPS == 9 else []) + w2s(1))
    red = [f"ds_read_b128 {V(KT,4)}, v13", f"ds_read_b128 {V(KT+4,4)}, v13 offset:1024", "s_waitcnt lgkmcnt(0)"] + \
          [f"v_add_f32 v{KA_+r}, v{KA_+r}, v{KT+r}" for r in range(8)]
    b_ld = [["s_mov_b32 s28, s10", "s_and_b32 s29, s11, 0xffff", f"s_mov_b32 s30, {3584*2}", "s_mov_b32 s31, 0x20000", "v_lshlrev_b32 v208, 3, v1", "s_mul_i32 s47, s42, 448",
             (f"buffer_load_dwordx2 {V(BR,2)}, v208, s[28:31], s47 offen", "b")]]
    step(10, b_ld, tail=w2s(2), pre_=["s_cmp_ge_u32 s40, 2", "s_cbranch_scc1 LA_r2"] + red + ["s_cmp_eq_u32 s40, 0", "s_cbranch_scc1 LA_r2",
               f"ds_write_b128 v13, {V(KA_,4)}", f"ds_write_b128 v13, {V(KA_+4,4)} offset:1024", "LA_r2:"])
    fin = Prog()
    fin("s_cmp_eq_u32 s40, 0")
    fin("s_cbranch_scc0 LA_kvd")
    fin("v_add_u32 v13, 2048, v13")
    for x in red: fin(x)
    for r in range(8): fin(f"v_mul_f32 v{KA_+r}, {f32(1.0/qs)}, v{KA_+r}")
    for r in range(4): fin(f"v_cvt_pk_bf16_f32 v{KT+r}, v{KA_+2*r}, v{KA_+2*r+1}")
    fin("s_lshl_b32 s38, s45, 12")
    fin(f"s_add_u32 s38, s38, {hex(KV)}")
    fin("s_and_b32 s39, s44, 1")
    fin("s_cmp_ge_u32 s44, 2")
    fin("s_cbranch_scc1 LA_kvv")
    fin("v_and_b32 v11, 1, v4")
    fin("v_lshlrev_b32 v11, 9, v11")
    fin("v_lshl_add_u32 v11, v3, 4, v11")
    fin("v_lshrrev_b32 v12, 1, v4")
    fin("v_lshl_add_u32 v11, v12, 3, v11")
    fin("s_lshl_b32 s39, s39, 10")
    fin("s_add_u32 s38, s38, s39")
    for u in range(2): fin(f"buffer_store_dwordx2 {V(KT+2*u,2)}, v11, s[24:27], s38 offen offset:{u*256} sc1")
    fin("s_branch LA_kvd")
    fin.label("LA_kvv")
    fin("v_bfe_u32 v12, v3, 2, 1")
    fin("v_lshlrev_b32 v11, 8, v12")
    fin("v_lshl_add_u32 v11, v4, 6, v11")
    fin("v_lshrrev_b32 v12, 3, v3")
    fin("v_lshl_add_u32 v11, v12, 3, v11")
    fin("v_and_b32 v12, 3, v3")
    fin("v_lshl_add_u32 v11, v12, 1, v11")
    fin(f"v_add_u32 v11, {LNS+2048}, v11")
    for u in range(2):
        for r in range(4):
            op = "ds_write_b16" if r % 2 == 0 else "ds_write_b16_d16_hi"
            fin(f"{op} v11, v{KT+2*u+(r>>1)} offset:{u*512+r*16}")
    fin(f"ds_read_b128 {V(KT+4,4)}, v13")
    fin("v_lshlrev_b32 v11, 9, v4")
    fin("v_lshl_add_u32 v11, v3, 4, v11")
    fin("s_lshl_b32 s39, s39, 8")
    fin("s_add_u32 s38, s38, s39")
    fin("s_waitcnt lgkmcnt(0)")
    fin(f"buffer_store_dwordx4 {V(KT+4,4)}, v11, s[24:27], s38 offen offset:2048 sc1")
    fin.label("LA_kvd")
    fin("v_lshlrev_b32 v11, 2, v1")
    fin(f"v_add_u32 v11, {SY}, v11")
    fin("ds_write_b32 v11, v219")
    bu = [[("wait", "b")]] + [[x] for x in [f"v_lshlrev_b32 v{BF}, 16, v{BR}", f"v_and_b32 v{BF+1}, 0xffff0000, v{BR}", f"v_lshlrev_b32 v{BF+2}, 16, v{BR+1}", f"v_and_b32 v{BF+3}, 0xffff0000, v{BR+1}"]]
    bu += [[f"v_mul_f32 v{BF+r}, {f32(sgelu)}, v{BF+r}"] for r in range(4)]
    step(11, bu, pre_=raw(fin), tail=(flat(cpf) if CPS == 11 else []) + (w2t if PFW2A == 11 else []) + w2s(3))
    pub = ["s_cmp_eq_u32 s40, 0", "s_cbranch_scc0 LA_np0", "s_lshl_b32 s38, s41, 12", "s_lshl_b32 s39, s42, 2", "s_add_u32 s38, s38, s39", f"s_add_u32 s38, s38, {hex(F_KV)}",
           "s_waitcnt vmcnt(0)", "s_mov_b64 exec, 1", "buffer_store_dword v217, v219, s[24:27], s38 offen sc1", "s_mov_b64 exec, -1", "LA_np0:"]
    step(12, pre_=pub + l3, post=c3, tail=w2t if PFW2A == 12 else [])
    p("s_barrier")
    p(f"ds_write_b128 v5, {V(BF,4)} offset:{TBL+2048}")
    for g in OPS[SPL[15]:]:
        for x in g: emit(x, ("st", 15))
    p("s_lshl_b32 s47, s40, 10")
    p(f"s_add_u32 m0, s47, {TBL+4096}")
    p("s_lshl_b32 s48, s41, 12")
    p("s_add_u32 s47, s47, s48")
    p(f"s_add_u32 s47, s47, {hex(CS)}")
    emit("buffer_load_dwordx4 v5, s[24:27], s47 offen sc1 lds", "tk")
    for x in flat(g2) + flat(gs): emit(x)
    p(f"s_add_u32 s47, s48, {TBL}")
    p("v_add_u32 v207, s47, v207")
    p(f"ds_write_b128 v207, {V(CX,4)}")
    p("s_lshl_b32 s39, s40, 2")
    p(f"s_add_u32 s39, s39, {SY}")
    p("v_mov_b32 v254, s39")
    p("s_waitcnt lgkmcnt(0)")
    if AW2:
        p(f"s_load_dwordx2 s[8:9], s[0:1], {KA['w2']}")
        assert GMAP == 0
        p("s_bfe_u32 s44, s2, 0x10002")
        p("v_and_b32 v13, 3, v1")
        p("v_lshlrev_b32 v13, 4, v13")
        p("s_lshl_b32 s47, s44, 1")
        p("v_xor_b32 v14, s47, v4")
        p("v_lshl_add_u32 v13, v14, 6, v13")
        p("v_bfe_u32 v14, v1, 2, 2")
        p("v_lshl_add_u32 v8, v14, 11, v13")
        p("s_lshl_b32 s47, s40, 16")
        p("v_add_u32 v8, s47, v8")
        p("v_xor_b32 v9, 32, v8")
        p("s_lshl_b32 s56, s40, 13")
        p(f"s_mul_i32 s54, s44, {1792*2048}")
        p("s_lshr_b32 s48, s2, 5")
        p("s_lshl_b32 s48, s48, 8")
        p("s_add_u32 s54, s54, s48")
        p("s_waitcnt lgkmcnt(0)")
        srd(p, 16, 8, 3584*1024*2)
    p("s_barrier")
    if AW2:
        for n in range(AW2):
            for q in range(8):
                p(f"s_add_u32 m0, s56, {WBASE+n*WSEG+q*1024}")
                p(f"s_add_u32 s55, s54, {n*0x40000+q*0x2000}")
                p(f"buffer_load_dwordx4 v{8+(q&1)}, s[16:19], s55 offen lds")
    stamp(p, 5)

    Q = {0: 16, 1: 24}; C = {0: 32, 1: 48}; Sx = {0: 64, 1: 80}; P = {0: 96, 1: 104}
    O = {0: 112, 1: 128}; L = {0: 144, 1: 148}; SEL = 152
    KF = {0: 156, 1: 164}; VF = {0: 172, 1: 180}; T = 188; IDX = 200; EP = 201; EPR = 202
    p(f"s_load_dwordx2 s[4:5], s[0:1], {KA['wo']}")
    p("v_lshlrev_b32 v6, 4, v3")
    p("v_lshrrev_b32 v7, 5, v1")
    p("v_lshl_add_u32 v6, v7, 8, v6")
    p("v_bfe_u32 v8, v1, 4, 1")
    p(f"s_mov_b32 s44, {OH_TILE}")
    p("v_mul_lo_u32 v7, v8, s44")
    p("v_add_u32 v7, v7, v6")
    p("v_lshl_add_u32 v6, v8, 11, v6")
    p(f"s_add_u32 s47, s51, {QST}")
    p("v_add_u32 v6, s47, v6")
    p("s_lshl_b32 s45, s41, 2")
    p("s_add_u32 s45, s45, s40")
    p(f"s_mul_i32 s47, s45, {2*OH_TILE}")
    p("s_lshl_b32 s46, s42, 11")
    p("s_add_u32 s47, s47, s46")
    p(f"s_add_u32 s47, s47, {hex(OH_F)}")
    p("s_lshl_b32 s53, s41, 12")
    p("s_lshl_b32 s54, s40, 7")
    p("s_add_u32 s53, s53, s54")
    p("s_lshl_b32 s54, s42, 2")
    p("s_add_u32 s53, s53, s54")
    p(f"s_add_u32 s53, s53, {hex(F_OF)}")
    if WIDE:
        p("s_lshl_b32 s53, s45, 4")
        p("s_add_u32 s53, s53, s42")
        p("s_lshl_b32 s53, s53, 7")
        p(f"s_add_u32 s53, s53, {hex(F_OFW)}")
    srd(p, 12, 6, 262144, KV)
    p("v_and_b32 v8, 4, v1")
    p("v_cmp_eq_u32 vcc, 0, v8")
    p("v_mov_b32 v9, 0x3f803f80")
    p("v_mov_b32 v8, 0")
    for r in range(2): p(f"v_cndmask_b32 v{SEL+r}, v8, v9, vcc")
    for r in range(2): p(f"v_cndmask_b32 v{SEL+2+r}, v9, v8, vcc")
    p("v_and_b32 v8, 1, v1")
    p("v_mul_u32_u24 v8, 0xaaaa, v8")
    p(f"v_add_u32 v{IDX}, 0x4444, v8")
    for x in range(2):
        for r in range(8): p(f"v_mov_b64 {V(O[x]+2*r,2)}, 0")
        for r in range(2): p(f"v_mov_b64 {V(L[x]+2*r,2)}, 0")
    for r in range(4):
        p(f"v_mov_b64 {V(P[1]+2*r,2)}, 0")
        p(f"v_mov_b64 {V(VF[1]+2*r,2)}, 0")
    p(f"v_mov_b32 v{EP}, 1")
    p("v_lshlrev_b32 v12, 7, v1")
    p("s_waitcnt lgkmcnt(0)")
    srd(p, 20, 4, 1024*1024*2)
    for x in code_srd(16, "LG_tail"): p(x)
    p("s_lshl_b32 s49, s2, 13")
    p("s_sub_u32 s55, s40, 1")
    p("s_lshl_b32 s55, s55, 13")
    p("s_cmp_eq_u32 s40, 0")
    p("s_cselect_b32 s16, s20, s16")
    p("s_cselect_b32 s17, s21, s17")
    p("s_cselect_b32 s18, s22, s18")
    p("s_cselect_b32 s55, s49, s55")
    p("s_cmp_eq_u32 s40, 1")
    p("s_cbranch_scc0 LA_np")
    p("v_lshrrev_b32 v13, 2, v1")
    p("v_lshlrev_b32 v13, 12, v13")
    p("v_and_b32 v14, 3, v1")
    p("v_lshl_add_u32 v13, v14, 4, v13")
    p(f"s_mov_b32 s48, {hex(F_KV)}")
    gpoll(p, "LA_p3", f"buffer_load_dwordx4 {V(T,4)}, v13, s[24:27], s48 offen sc1", [f"v{T+r}" for r in range(4)], "1")
    p(f"ds_write_b32 v255, v{EP} offset:{SY_OK}")
    p.label("LA_np")
    lds_wait(p, "LA_w3", "v255", SY_OK, "v13", "1")
    stamp(p, 4)
    lds_wait(p, "LA_w2", "v255", SY_Q, "v13", "1")
    for x in range(2):
        for mf in range(2): p(f"ds_read_b128 {V(Q[x]+4*mf,4)}, v6 offset:{x*1024+mf*512}")
    stamp(p, 6)
    if PRIO_A: p(f"s_setprio {PRIO_A}")
    p("s_lshl_b32 s50, s40, 11")
    p("s_mov_b32 s51, s50")
    def kvd(slot): return [f"s_add_u32 m0, s51, {slot*8192}", "buffer_load_dwordx4 v5, s[12:15], s50 offen sc1 lds",
                           "buffer_load_dwordx4 v5, s[12:15], s50 offen offset:1024 sc1 lds", "s_add_u32 s50, s50, 0x2000"]
    for c in range(3):
        for x in kvd(c): p(x)
    p("s_waitcnt vmcnt(4)")
    p(f"ds_write_b32 v254, v{EP} offset:{SY_EA}")
    lds_wait(p, "LA_w4", "v255", SY_EA, "v13", "1")
    stamp(p, 1)
    def rdK(buf, tile): return [f"ds_read_b128 {V(KF[buf]+4*m,4)}, v5 offset:{(tile&7)*4096+m*1024}" for m in range(2)]
    def rdV(buf, tile): return [f"ds_read_b128 {V(VF[buf]+4*m,4)}, v5 offset:{(tile&7)*4096+2048+m*1024}" for m in range(2)]
    def QK(x, buf, c=None):
        cc = V(C[x],16) if c is None else c
        return [M32(V(Sx[x],16), V(KF[buf],4), V(Q[x],4), cc), M32(V(Sx[x],16), V(KF[buf]+4,4), V(Q[x]+4,4))]
    def PV(x, buf): return [M32(V(O[x],16), V(VF[buf],4), V(P[x],4)), M32(V(O[x],16), V(VF[buf]+4,4), V(P[x]+4,4))]
    def SUM(x): return [f"v_smfmac_f32_16x16x64_bf16 {V(L[x],4)}, {V(SEL,4)}, {V(P[x],8)}, v{IDX}"]
    def rowmax(q, x, dst, init=None):
        s = Sx[x]
        if init is None:
            q(f"v_max3_f32 v{dst}, v{s}, v{s+1}, v{s+2}")
            q(f"v_max_f32 v{dst}, v{dst}, v{s+3}")
            st = 4
        else: st = 0
        for i in range(st, 16, 2): q(f"v_max3_f32 v{dst}, v{dst}, v{s+i}, v{s+i+1}")
    def setC(q, x, src):
        q(f"v_mov_b32 v{T+8}, v{src}")
        q(f"v_permlane32_swap_b32 v{src}, v{T+8}")
        q(f"v_max_f32 v{src}, v{src}, v{T+8}")
        for r in range(16): q(f"v_sub_f32 v{C[x]+r}, 0, v{src}")
    for x in rdK(0, 0): p(x)
    p(f"v_add_u32 v{EP}, 1, v{EP}")
    p("s_waitcnt vmcnt(2)")
    p(f"ds_write_b32 v254, v{EP} offset:{SY_EA}")
    p("s_waitcnt lgkmcnt(0)")
    for x in range(2):
        for m in QK(x, 0, "0"): p(m)
    for x in range(2):
        rowmax(p, x, T+x)
        setC(p, x, T+x)
    for m in QK(0, 0): p(m)
    if AHOLD: lds_wait(p, "LA_w5", "v255", SY_Q, "v13", "2")
    p("s_mov_b32 s59, 0")
    p("s_nop 15")
    pre = fix(p.ins, pre=head)
    b = Prog()
    b.label("LA_loop")
    def valu(x):
        v = []
        for i in range(8):
            v += [f"v_exp_f32 v{Sx[x]+2*i}, v{Sx[x]+2*i}", f"v_exp_f32 v{Sx[x]+2*i+1}, v{Sx[x]+2*i+1}"]
            if i >= 1: v.append(f"v_cvt_pk_bf16_f32 v{P[x]+i-1}, v{Sx[x]+2*i-2}, v{Sx[x]+2*i-1}")
        v.append(f"v_cvt_pk_bf16_f32 v{P[x]+7}, v{Sx[x]+14}, v{Sx[x]+15}")
        return v
    def phase(x, mf, extra):
        v = valu(x); out = []; cum = 0; mi = 0
        for ins in v:
            while mi < 5 and cum >= APOS[mi]:
                out += extra.get(("pre", mi), [])
                out.append(mf[mi]); out += extra.get(mi, []); mi += 1
            out.append(ins); cum += 8 if "exp" in ins else 4
        assert mi == 5
        return out
    for t in range(8):
        kb = t & 1; ch = t >> 1
        nk = rdK(kb^1, t+1); nv = rdV(kb, t)
        ex = {0: [nk[0]], 1: [nk[1]], 2: [nv[0]], 3: [nv[1]]}
        if kb == 0: ex[4] = [f"ds_read_b32 v{EPR}, v255 offset:{SY_EA}"]
        for x in phase(0, QK(1, kb) + PV(1, kb^1) + SUM(1), ex): b(x)
        ex = {("pre", 0): ["s_waitcnt lgkmcnt(0)"]}
        if kb == 0:
            d = kvd((ch + 3) & 3)
            ex[0] = [f"v_cmp_gt_u32 vcc, v{EP}, v{EPR}"]
            ex[1] = [f"s_cbranch_vccnz LA_sp{ch}", f"LA_spr{ch}:"]
            ex[2] = [d[0]]; ex[3] = [d[1]]; ex[4] = [d[2], d[3]]
            ool.label(f"LA_sp{ch}")
            lds_wait(ool, f"LA_spw{ch}", "v255", SY_EA, f"v{EPR}", f"v{EP}")
            ool(f"s_branch LA_spr{ch}")
        else:
            ex[0] = [f"v_add_u32 v{EP}, 1, v{EP}"]
            ex[1] = ["s_waitcnt vmcnt(2)", f"ds_write_b32 v254, v{EP} offset:{SY_EA}"]
            if t == 3: ex[3] = [f"s_cmp_eq_u32 s59, {WOIT}", "s_cbranch_scc1 LA_xt", "LA_xtr:"]
            if t == 7: ex[4] = ["s_add_u32 s59, s59, 1", "s_cmp_lt_u32 s59, 8"]
        for x in phase(1, QK(0, kb^1) + PV(0, kb) + SUM(0), ex): b(x)
    b("s_cbranch_scc1 LA_loop")
    ool.label("LA_xt")
    ool("buffer_load_dword v13, v12, s[16:19], s55 offen")
    ool("s_branch LA_xtr")
    if os.environ.get("ADROP"):
        dr = os.environ["ADROP"].split(",")
        b.ins = [i for i in b.ins if not any(i.text.startswith(d) for d in dr)]
    rep = []
    body = fix(b.ins, pre=pre, report=rep)
    if rep: print("attn loop nops:", len(rep), rep[:5])
    assert not check_loop(body)
    e = Prog()
    stamp(e, 2)
    for m in PV(1, 1) + SUM(1): e(m)
    e("s_mov_b32 s60, 0")
    e.label("LA_fin")
    e("s_nop 15")
    for x in range(2): e(f"v_add_f32 v{L[x]}, v{L[x]}, v{L[x]+1}")
    e(f"s_mov_b32 s61, {f32(2.0**40)}")
    e(f"v_cmp_gt_f32 vcc, s61, v{L[0]}")
    e(f"v_cmp_gt_f32 s[62:63], s61, v{L[1]}")
    e("s_and_b64 vcc, vcc, s[62:63]")
    e("s_cmp_eq_u64 vcc, -1")
    e("s_cbranch_scc1 LA_store")
    e("s_cmp_eq_u32 s60, 0")
    e("s_cbranch_scc1 LA_slow")
    e.label("LA_store")
    for x in range(4): e(f"v_rcp_f32 v{T+x}, v{L[x>>1]}")
    for x in range(2):
        if APK:
            for r in range(8): e(f"v_pk_mul_f32 {V(O[x]+2*r,2)}, {V(O[x]+2*r,2)}, {V(T+2*x,2)}")
        else:
            for r in range(16): e(f"v_mul_f32 v{O[x]+r}, v{O[x]+r}, v{T+2*x}")
        for hh in range(2):
            o = P[x] + 4*hh
            src = [4*hh, 4*hh+2, 8+4*hh, 8+4*hh+2]
            for i, sr in enumerate(src): e(f"v_cvt_pk_bf16_f32 v{o+i}, v{O[x]+sr}, v{O[x]+sr+1}")
            e(f"buffer_store_dwordx4 {V(o,4)}, v7, s[24:27], s47 offen offset:{x*1024+hh*512} sc1")
    e("v_mov_b32 v8, 1")
    e("v_mov_b32 v9, 0")
    stamp(e, 3)
    e("s_waitcnt vmcnt(0)")
    e("s_mov_b64 exec, 1")
    e("buffer_store_dword v8, v9, s[24:27], s53 offen sc1")
    e("s_mov_b64 exec, -1")
    if AQ2:
        e("v_lshrrev_b32 v10, 5, v1")
        e("v_lshlrev_b32 v11, 1, v10")
        e("v_and_b32 v14, 3, v1")
        e("v_xor_b32 v11, v11, v14")
        e("v_lshlrev_b32 v11, 4, v11")
        e("v_bfe_u32 v14, v1, 4, 1")
        e("v_lshl_add_u32 v11, v14, 6, v11")
        e("v_bfe_u32 v14, v1, 2, 2")
        e("v_lshl_add_u32 v10, v10, 2, v14")
        e("v_lshl_add_u32 v10, v10, 11, v11")
        e("s_lshr_b32 s48, s2, 5")
        e("s_lshl_b32 s48, s48, 8")
        e("s_bfe_u32 s49, s2, 0x10002")
        e("s_lshl_b32 s49, s49, 7")
        e("s_add_u32 s48, s48, s49")
        e("s_lshl_b32 s49, s40, 17")
        e("s_add_u32 s48, s48, s49")
        e("s_lshl_b32 s49, s40, 13")
        e(f"v_add_u32 v{EP}, 1, v{EP}")
        e(f"ds_write_b32 v254, v{EP} offset:{SY_EA}")
        lds_wait(e, "LA_w6", "v255", SY_EA, "v13", f"v{EP}")
        for q in range(8):
            e(f"s_add_u32 m0, s49, {q*1024}")
            e(f"s_add_u32 s50, s48, {0x100000+q*0x4000}")
            e("buffer_load_dwordx4 v10, s[20:23], s50 offen lds")
        e("s_waitcnt vmcnt(0)")
    stamp_flush(e, 2, 9)
    e.label("L_end")
    e("s_endpgm")
    e.label("LA_slow")
    e("s_mov_b32 s60, 1")
    e(f"v_mov_b32 v{T}, 0xff800000")
    e(f"v_mov_b32 v{T+1}, 0xff800000")
    e("s_mov_b32 s52, 0")
    e.label("LA_s1")
    for m in range(2): e(f"buffer_load_dwordx4 {V(KF[0]+4*m,4)}, v5, s[12:15], s52 offen offset:{m*1024} sc1")
    e("s_waitcnt vmcnt(0)")
    for x in range(2):
        for m in QK(x, 0, "0"): e(m)
    e("s_nop 15")
    for x in range(2): rowmax(e, x, T+x, init=True)
    e("s_add_u32 s52, s52, 4096")
    e("s_cmp_lt_u32 s52, 0x40000")
    e("s_cbranch_scc1 LA_s1")
    for x in range(2):
        setC(e, x, T+x)
        for r in range(16): e(f"v_mov_b32 v{O[x]+r}, 0")
        for r in range(4): e(f"v_mov_b32 v{L[x]+r}, 0")
    e("s_mov_b32 s52, 0")
    e.label("LA_s2")
    for m in range(2): e(f"buffer_load_dwordx4 {V(KF[0]+4*m,4)}, v5, s[12:15], s52 offen offset:{m*1024} sc1")
    for m in range(2): e(f"buffer_load_dwordx4 {V(VF[0]+4*m,4)}, v5, s[12:15], s52 offen offset:{2048+m*1024} sc1")
    e("s_waitcnt vmcnt(0)")
    for x in range(2):
        for m in QK(x, 0): e(m)
    e("s_nop 15")
    for x in range(2):
        for v in valu(x): e(v)
    e("s_nop 3")
    for x in range(2):
        for m in PV(x, 0) + SUM(x): e(m)
    e("s_nop 15")
    e("s_add_u32 s52, s52, 4096")
    e("s_cmp_lt_u32 s52, 0x40000")
    e("s_cbranch_scc1 LA_s2")
    e("s_branch LA_fin")
    e.extend(ool)
    epi = fix(e.ins, pre=body)
    roleA = pre + [Ins(".p2align 6")] + body + epi
    import mega_g
    roleG = mega_g.gen(head)
    ins = head + roleA + roleG
    return name, kernel_text(name, ins, 256, 256), (256, 512, lds)
```
